```python
import torch

def _softmax(x, axis=-1):
    return torch.softmax(x, dim=axis)
def _gelu(x):
    return torch.nn.functional.gelu(x, approximate="tanh")
def _silu(x):
    return torch.nn.functional.silu(x)
def _sigmoid(x):
    return torch.sigmoid(x)
def _layernorm(x, axis=-1, eps=1e-5):
    m = x.mean(dim=axis, keepdim=True)
    v = x.var(dim=axis, keepdim=True, unbiased=False)
    return (x - m) / torch.sqrt(v + eps)
def _scatter_add(tgt, idx, src, axis=0):
    return tgt.clone().index_add_(axis, idx, src)
def _segment_sum(src, seg, n):
    out = torch.zeros((n,) + src.shape[1:], dtype=src.dtype)
    return out.index_add_(0, seg, src)
def _pad(x, pw):
    flat = tuple(v for pair in reversed(pw) for v in pair)
    return torch.nn.functional.pad(x, flat)

kernel_name = 'recurrent_scan__linear_attn_block__glu_gated_glu__prompt'

def setup_inputs():

    _w = (lambda a: (lambda t: t.to(torch.bfloat16) if t.is_floating_point() else t)(torch.as_tensor(a)))
    def _A_setup():
        B, S, D = 1, 2048, 576
        return {
            "x": _w((lambda *s: torch.randn(*s, dtype=torch.bfloat16) * 0.05)(B, S, D)),
            "wqkv": _w((lambda *s: torch.randn(*s, dtype=torch.bfloat16) * 0.05)(D, 3 * D)),
            "wo": _w((lambda *s: torch.randn(*s, dtype=torch.bfloat16) * 0.05)(D, D)),
        }
    _A_in = _A_setup()

    def _B_setup():
        B, S, D, F = 1, 2048, 576, 4608
        return {
            "x": _w((lambda *s: torch.randn(*s, dtype=torch.bfloat16) * 0.05)(B, S, D)),
            "w_gate": _w((lambda *s: torch.randn(*s, dtype=torch.bfloat16) * 0.05)(D, F)),
            "w_up": _w((lambda *s: torch.randn(*s, dtype=torch.bfloat16) * 0.05)(D, F)),
            "w_down": _w((lambda *s: torch.randn(*s, dtype=torch.bfloat16) * 0.05)(F, D)),
        }
    _B_in = _B_setup()

    return {
        "A_x": _A_in["x"],
        "A_wqkv": _A_in["wqkv"],
        "A_wo": _A_in["wo"],
        "B_x": _B_in["x"],
        "B_w_gate": _B_in["w_gate"],
        "B_w_up": _B_in["w_up"],
        "B_w_down": _B_in["w_down"],
    }

def reference(A_x, A_wqkv, A_wo, B_x, B_w_gate, B_w_up, B_w_down):
    def _A_ref(x, wqkv, wo):
        B, S, D = x.shape
        H = 32; Dh = D // H
        qkv = (lambda x, *d: x.permute(*d))((x @ wqkv).reshape(B, S, 3, H, Dh), 2, 0, 3, 1, 4)
        q, k, v = qkv[0], qkv[1], qkv[2]
        phi = lambda t: torch.where(t > 0, t + 1, torch.exp(t)) + 1e-6
        pq, pk = phi(q), phi(k)
        kv = torch.einsum("bhsd,bhse->bhde", pk, v)
        z = torch.einsum("bhsd->bhd", pk)
        num = torch.einsum("bhqd,bhde->bhqe", pq, kv)
        den = torch.einsum("bhqd,bhd->bhq", pq, z)[..., None] + 1e-6
        o = num / den
        return (lambda x, *d: x.permute(*d))(o, 0, 2, 1, 3).reshape(B, S, D) @ wo

    def _B_ref(x, w_gate, w_up, w_down):
        g = torch.einsum("bsd,df->bsf", x, w_gate)
        u = torch.einsum("bsd,df->bsf", x, w_up)
        h = _sigmoid(g) * u
        return torch.einsum("bsf,fd->bsd", h, w_down)

    x = A_x
    xn = _layernorm(x, axis=-1)
    s = _A_ref(xn, A_wqkv, A_wo)
    g = _silu(_B_ref(xn, B_w_gate, B_w_up, B_w_down))
    return x + s * g
```

```python
import re

RE_REG = re.compile(r'^(-|\|)?(?:abs\()?([vas])(\d+)\)?\|?$')
RE_RNG = re.compile(r'^-?([vas])\[(\d+):(\d+)\]$')


def regs_of(tok):
    tok = tok.strip()
    m = RE_RNG.match(tok)
    if m:
        return [f'{m.group(1)}{i}' for i in range(int(m.group(2)), int(m.group(3)) + 1)]
    m = RE_REG.match(tok)
    if m:
        return [f'{m.group(2)}{m.group(3)}']
    if tok in ('vcc', 'm0', 'exec', 'scc'):
        return [tok]
    if tok in ('vcc_lo', 'vcc_hi'):
        return ['vcc']
    if tok in ('exec_lo', 'exec_hi'):
        return ['exec']
    return []


TRANS = ('v_exp_f32', 'v_log_f32', 'v_rcp_f32', 'v_rsq_f32', 'v_sqrt_f32')
SCC_W = ('s_add_', 's_addc_', 's_sub_', 's_subb_', 's_and_', 's_or_', 's_xor_', 's_andn2_', 's_lshl_', 's_lshr_',
         's_ashr_', 's_bfe_', 's_min_', 's_max_', 's_cmp_', 's_not_', 's_bitcmp')


class Ins:
    def __init__(self, text):
        self.text = text.strip()
        t = self.text
        self.reads, self.writes = set(), set()
        self.kind = 'other'
        self.srcc = set()
        self.store_data = set()
        self.wide = False
        if t.endswith(':'):
            self.kind = 'label'
            self.op = ''
            return
        parts = t.split(None, 1)
        op = self.op = parts[0]
        rest = parts[1] if len(parts) > 1 else ''
        toks = [x.strip() for x in rest.split(',')] if rest else []
        mods = []
        if toks:
            last = toks[-1].split()
            toks[-1] = last[0] if last else ''
            mods = last[1:]
        R = lambda i: regs_of(toks[i]) if i < len(toks) else []
        if op.startswith('v_mfma'):
            self.kind = 'mfma'
            self.writes |= set(R(0))
            self.reads |= set(R(1) + R(2) + R(3))
            self.srcc = set(R(3))
            self.ab = set(R(1) + R(2))
        elif op.startswith('ds_read') or op.startswith('ds_bpermute'):
            self.kind = 'dsr'
            self.writes |= set(R(0))
            for i in range(1, len(toks)):
                self.reads |= set(R(i))
        elif op.startswith('ds_write'):
            self.kind = 'dsw'
            for i in range(len(toks)):
                self.reads |= set(R(i))
        elif op.startswith('buffer_load') or op.startswith('global_load'):
            if 'lds' in mods:
                self.kind = 'dma'
                for i in range(len(toks)):
                    self.reads |= set(R(i))
                self.reads.add('m0')
            else:
                self.kind = 'vload'
                self.writes |= set(R(0))
                for i in range(1, len(toks)):
                    self.reads |= set(R(i))
        elif op.startswith('buffer_store') or op.startswith('buffer_atomic'):
            self.kind = 'vstore'
            for i in range(len(toks)):
                self.reads |= set(R(i))
            self.store_data = set(R(0))
            self.wide = 'x4' in op or 'x3' in op
        elif op.startswith('v_'):
            self.kind = 'valu'
            base = op.replace('_e32', '').replace('_e64', '')
            if base in TRANS:
                self.kind = 'trans'
            if base.startswith('v_cmp'):
                self.writes |= set(R(0))
                for i in range(1, len(toks)):
                    self.reads |= set(R(i))
            elif base.startswith('v_permlane'):
                self.writes |= set(R(0) + R(1))
                self.reads |= set(R(0) + R(1))
                self.kind = 'permlane'
            elif base.startswith(('v_add_co', 'v_sub_co', 'v_addc_co')):
                self.writes |= set(R(0) + R(1))
                for i in range(2, len(toks)):
                    self.reads |= set(R(i))
            else:
                self.writes |= set(R(0))
                for i in range(1, len(toks)):
                    self.reads |= set(R(i))
                if base.startswith(('v_fmac', 'v_dot2c')):
                    self.reads |= set(R(0))
            if base in ('v_readfirstlane_b32', 'v_readlane_b32'):
                self.kind = 'readlane'
        elif op.startswith('s_load') or op in ('s_memtime', 's_memrealtime'):
            self.kind = 'smem'
            self.writes |= set(R(0))
            for i in range(1, len(toks)):
                self.reads |= set(R(i))
        elif op == 's_waitcnt':
            self.kind = 'waitcnt'
        elif op == 's_barrier':
            self.kind = 'barrier'
        elif op == 's_nop':
            self.kind = 'nop'
        elif op.startswith('s_cbranch') or op == 's_branch':
            self.kind = 'branch'
            if 'scc' in op:
                self.reads.add('scc')
            if 'vcc' in op:
                self.reads.add('vcc')
        elif op in ('s_endpgm', 's_sleep', 's_setprio'):
            self.kind = 'misc'
        elif op.startswith('s_'):
            self.kind = 'salu'
            if op.startswith('s_cmp') or op.startswith('s_bitcmp'):
                for i in range(len(toks)):
                    self.reads |= set(R(i))
            else:
                self.writes |= set(R(0))
                for i in range(1, len(toks)):
                    self.reads |= set(R(i))
            if op.startswith(SCC_W):
                self.writes.add('scc')
            if op.startswith(('s_cselect', 's_addc', 's_subb')):
                self.reads.add('scc')
        else:
            raise ValueError('unknown instruction ' + t)
        if self.kind in ('valu', 'trans', 'permlane', 'mfma', 'dsr', 'dsw', 'dma', 'vload', 'vstore', 'readlane'):
            self.reads.add('exec')

    @property
    def is_valu(self):
        return self.kind in ('valu', 'trans', 'permlane', 'readlane')

    @property
    def cost(self):
        if self.kind == 'label':
            return 0
        if self.kind == 'trans':
            return 2
        return 1


class Op:
    n = 0

    def __init__(self, text=None, wait=None, spine=False, lo=None, hi=None, after=(), rd=(), wr=(), prio=0, tag='',
                 late=False, cost=None, cap=None):
        self.id = Op.n
        Op.n += 1
        self.ins = [Ins(x) for x in text.split('\n') if x.strip()] if text else []
        self.wait = wait
        self.spine = spine
        self.lo, self.hi = lo, hi
        self.after = [(x, 0) if isinstance(x, Op) else x for x in after]
        self.prio = prio
        self.tag = tag
        self.late = late
        self.cap = cap
        w, r = set(), set()
        for i in self.ins:
            r |= (i.reads - w)
            w |= i.writes
        self.reads = r | set(rd)
        self.writes = w | set(wr)
        if len(self.ins) > 0 and 'scc' in self.writes and 'scc' not in self.reads:
            self.scc_clobber = True
        self.cost = cost if cost is not None else (1 if wait is not None else sum(i.cost for i in self.ins))
        self.gap = None

    def kinds(self):
        return {i.kind for i in self.ins}

    @property
    def res(self):
        k = self.kinds()
        if k & {'dsr', 'dsw'}:
            return 'lds'
        if k & {'dma', 'vload', 'vstore'}:
            return 'vm'
        return None


class Region:
    def __init__(self, cap=2):
        self.ops = []
        self.nspine = 0
        self.cap = cap

    def add(self, op):
        if op.spine:
            op.sidx = self.nspine
            self.nspine += 1
        self.ops.append(op)
        return op

    def mfma(self, text, **kw):
        return self.add(Op(text, spine=True, **kw))

    def op(self, text, **kw):
        return self.add(Op(text, **kw))

    def wait(self, ops, **kw):
        kw.setdefault('late', True)
        after = list(kw.pop('after', ())) + [(o, kw.get('dist', 0)) for o in ops]
        kw.pop('dist', None)
        return self.add(Op(None, wait=list(ops), after=after, **kw))

    @property
    def here(self):
        return self.nspine - 1

    def schedule(self, log=None):
        ops = self.ops
        last_w, readers = {}, {}
        for o in ops:
            o.pred = {}
            o.succ = {}

        mine = set(ops)

        def edge(a, b, d):
            if a is b or a not in mine:
                return
            b.pred[a] = max(b.pred.get(a, -1), d)
            a.succ[b] = max(a.succ.get(b, -1), d)

        for o in ops:
            for r in o.reads:
                if r == 'scc':
                    continue
                p = last_w.get(r)
                if p is not None:
                    d = 0
                    if p.spine and not o.spine:
                        d = 3
                    elif 'trans' in p.kinds() and not o.spine:
                        d = 1
                    elif 'permlane' in o.kinds() or r == 'm0':
                        d = 1
                    elif o.spine and not p.spine and p.kinds() & {'valu', 'trans', 'permlane'}:
                        d = 1
                    edge(p, o, d)
            for r in o.writes:
                if r == 'scc':
                    continue
                p = last_w.get(r)
                if p is not None:
                    edge(p, o, 3 if (p.spine and not o.spine) else 0)
                for q in readers.get(r, ()):
                    d = 0
                    if q.spine and not o.spine and r in q.ins[0].srcc:
                        d = 1
                    if 'vstore' in q.kinds():
                        d = 1
                    edge(q, o, d)
            for r in o.reads:
                readers.setdefault(r, []).append(o)
            for r in o.writes:
                last_w[r] = o
                readers[r] = []
            for p, d in o.after:
                edge(p, o, d)
        NG = self.nspine
        for o in ops:
            if o.spine:
                o.gap = o.sidx
        order = ops
        for o in order:
            if o.spine:
                o.es = o.sidx
                continue
            e = -1 if o.lo is None else o.lo
            for p, d in o.pred.items():
                e = max(e, p.es + d)
            o.es = min(e, NG - 1)
        for o in reversed(order):
            if o.spine:
                o.ls = o.sidx
                continue
            l = NG - 1 if o.hi is None else o.hi
            for s, d in o.succ.items():
                l = min(l, (s.sidx - 1 - d) if s.spine else (s.ls - d))
            o.ls = l
        hard = {}
        for o in reversed(order):
            if o.spine:
                continue
            l = NG - 1
            for s, d in o.succ.items():
                l = min(l, (s.sidx - 1) if s.spine else hard[s])
            hard[o] = l
        for o in order:
            if not o.spine:
                lo_hard = -1
                for p in o.pred:
                    if p.spine:
                        lo_hard = max(lo_hard, p.sidx)
                if lo_hard > hard[o]:
                    raise RuntimeError(f'infeasible op {o.tag} {o.ins[0].text if o.ins else o.wait}')
                o.ls = min(max(o.ls, lo_hard), hard[o])
                o.es = min(o.es, o.ls)
        pend = [o for o in ops if not o.spine]
        for o in pend:
            o.npred = sum(1 for p in o.pred if not p.spine)
        byes = {}
        for o in pend:
            byes.setdefault(o.ls if o.late else o.es, []).append(o)
        spine = [o for o in ops if o.spine]
        avail = []
        gaps = {}
        placed = 0
        over = 0
        for g in range(-1, NG):
            avail += byes.pop(g, [])
            load = 0
            lst = []
            used = set()
            cap = self.cap
            if g >= 0 and spine[g].cap is not None:
                cap = spine[g].cap
            while True:
                best = None
                for o in avail:
                    if o.npred:
                        continue
                    forced = o.ls <= g
                    ok = True
                    if not forced:
                        for p, d in o.pred.items():
                            if p.gap + d > g:
                                ok = False
                                break
                        if ok and load + o.cost > cap and not (load == 0 and o.cost > cap):
                            ok = False
                        if ok and cap <= 2 and o.res in used:
                            ok = False
                    if ok:
                        key = (o.ls - o.prio, o.id)
                        if best is None or key < bkey:
                            best, bkey = o, key
                if best is None:
                    break
                avail.remove(best)
                best.gap = g
                lst.append(best)
                load += best.cost
                if best.res:
                    used.add(best.res)
                placed += 1
                for s in best.succ:
                    if not s.spine:
                        s.npred -= 1
            waits_last = [o for o in lst]
            gaps[g] = waits_last
            over += max(0, load - cap)
        assert placed == len(pend), (placed, len(pend), [(o.tag, o.es, o.ls) for o in avail][:10])
        out = list(gaps[-1])
        spine = [o for o in ops if o.spine]
        for s in spine:
            out.append(s)
            out += gaps[s.sidx]
        pos = {o: i for i, o in enumerate(out)}
        for o in out:
            for p in o.pred:
                assert pos[p] < pos[o], ('order violated', p.tag, o.tag)
        if log is not None:
            log.append(f'region: spine={NG} fillers={len(pend)} slots={sum(o.cost for o in pend)} over={over}')
        self.loads = {g: sum(o.cost for o in l) for g, l in gaps.items()}
        return out


class Linear:
    def __init__(self):
        self.out = []
        self.vm = []
        self.lg = []
        self.hist = []
        self.nops = 0
        self.autowaits = []
        self.seq = {}

    def _pending(self, q, regs):
        hit = -1
        for idx, (op, ins) in enumerate(q):
            if ins.writes & regs:
                hit = idx
        return hit

    def _emit_wait(self, vm=None, lg=None):
        parts = []
        if vm is not None:
            assert vm <= 63, vm
            parts.append(f'vmcnt({vm})')
            self.vm = self.vm[len(self.vm) - vm:] if vm else []
        if lg is not None:
            lg = min(lg, 15)
            parts.append(f'lgkmcnt({lg})')
            self.lg = self.lg[len(self.lg) - lg:] if lg else []
        if parts:
            self._raw(Ins('s_waitcnt ' + ' '.join(parts)))

    def _raw(self, ins):
        self.out.append(ins.text)
        if ins.kind == 'label':
            return
        n = int(ins.text.split()[1]) + 1 if ins.kind == 'nop' else 1
        self.hist.append((ins, n))
        if len(self.hist) > 40:
            self.hist.pop(0)

    def _need(self, p, c):
        vw = {r for r in p.writes if r[0] in 'va' and r != 'vcc'}
        sw = {r for r in p.writes if r[0] == 's' or r == 'vcc'} - {'scc'}
        n = 0
        if p.kind == 'mfma':
            big = '32x32' in p.op
            if c.kind == 'mfma':
                if c.ab & vw:
                    n = max(n, 12 if big else 8)
                if c.srcc & vw and c.srcc != vw:
                    n = max(n, 10 if big else 6)
            elif (c.reads | c.writes) & vw:
                n = max(n, 12 if big else 8)
            if c.is_valu and c.writes & p.srcc:
                n = max(n, 7 if big else 3)
        if p.is_valu:
            if c.kind == 'mfma' and c.reads & vw:
                n = max(n, 2)
            if p.kind == 'trans' and c.is_valu and c.reads & vw:
                n = max(n, 1)
            if c.kind == 'permlane' and c.reads & vw:
                n = max(n, 2)
            if c.kind == 'readlane' and c.reads & vw:
                n = max(n, 1)
            if c.is_valu and c.reads & sw:
                n = max(n, 2)
            if c.kind in ('dma', 'vload', 'vstore') and c.reads & sw:
                n = max(n, 5)
            if c.kind == 'salu' and c.reads & sw:
                n = max(n, 2)
            if p.op.startswith('v_dot2') and not c.op.startswith('v_dot2') and (c.reads | c.writes) & vw:
                n = max(n, 3)
        if p.kind == 'vstore' and p.wide and c.writes & p.store_data:
            n = max(n, 2)
        if p.kind == 'salu' and 'm0' in p.writes and c.kind == 'dma':
            n = max(n, 1)
        if p.kind == 'salu' and 'exec' in p.writes and c.kind == 'mfma':
            n = max(n, 1)
        return n

    def ins(self, ins, op=None):
        if ins.kind == 'label':
            self._raw(ins)
            return
        if ins.kind == 'waitcnt':
            m = re.search(r'vmcnt\((\d+)\)', ins.text)
            if m:
                k = int(m.group(1))
                self.vm = self.vm[len(self.vm) - k:] if 0 < k < len(self.vm) else ([] if k == 0 else self.vm)
            m = re.search(r'lgkmcnt\((\d+)\)', ins.text)
            if m:
                k = int(m.group(1))
                if any(i.kind == 'smem' for _, i in self.lg):
                    assert k == 0
                self.lg = self.lg[len(self.lg) - k:] if 0 < k < len(self.lg) else ([] if k == 0 else self.lg)
            self._raw(ins)
            return
        touched = (ins.reads | ins.writes) - {'exec', 'scc'}
        hv = self._pending(self.vm, touched)
        hl = self._pending(self.lg, touched)
        if ins.kind == 'vload' and hv >= 0 and not (ins.reads & set().union(*[i.writes for _, i in self.vm])):
            hv = -1
        if hv >= 0 or hl >= 0:
            lgn = None
            if hl >= 0:
                lgn = 0 if any(i.kind == 'smem' for _, i in self.lg) else len(self.lg) - 1 - hl
            self.autowaits.append(ins.text)
            self._emit_wait(len(self.vm) - 1 - hv if hv >= 0 else None, lgn)
        need = 0
        dist = 0
        for p, n in reversed(self.hist):
            need = max(need, self._need(p, ins) - dist)
            dist += n
            if dist >= 20:
                break
        if need > 0:
            self.nops += need
            self._raw(Ins(f's_nop {need - 1}'))
        self._raw(ins)
        if ins.kind in ('dma', 'vload', 'vstore'):
            self.vm.append((op, ins))
            assert len(self.vm) <= 200
        elif ins.kind in ('dsr', 'dsw', 'smem'):
            self.lg.append((op, ins))

    def op(self, o):
        if o.wait is not None:
            tgt = set(o.wait)
            hv = max([i for i, (p, _) in enumerate(self.vm) if p in tgt], default=-1)
            hl = max([i for i, (p, _) in enumerate(self.lg) if p in tgt], default=-1)
            lgn = None
            if hl >= 0:
                lgn = 0 if any(i.kind == 'smem' for _, i in self.lg) else len(self.lg) - 1 - hl
            vmn = None
            if hv >= 0:
                vmn = min(63, len(self.vm) - 1 - hv)
            self._emit_wait(vmn, lgn)
            return
        for i in o.ins:
            self.ins(i, o)

    def text(self, s):
        for l in s.split('\n'):
            if l.strip():
                self.ins(Ins(l))
```

```python
import sys
from sched import Region, Linear, Op, Ins

NAME = 'recurrent_scan__linear_attn_block__glu_gated_glu__prompt'
MF = 'v_mfma_f32_16x16x32_bf16'
LOG2E = 0x3fb8aa3b
NLOG2E = 0xbfb8aa3b
EPS6 = 0x358637bd
OOB = 0x80000000

F1, F2A, F2B, F3, F2O = 0, 4096, 4096 + 8192, 4096 + 16384, 4096 + 24576
KV_BASE, OL_BASE, O_BASE, PART_BASE, H_BASE = 0x10000, 0x200000, 0x300000, 0x600000, 0x1000000
DUMP_BASE = 0x2400000
WS_SIZE = 0x4000000
CH = 18432
NCH = 8
EXB = 6 * CH
KVX = NCH * CH
RS = 159744
QL = 160256
DUMMY = 162304
LDS_BYTES = 163840

SX, SG, SU, SQ, SD, SW, SO, SB, SWO = 4, 8, 12, 16, 20, 24, 28, 32, 36
sI, sJ, sJJ, sQ_, sIL, sWV, sR, sC = 40, 41, 42, 43, 44, 45, 46, 47
KA, KQ, TB = 48, 57, 66
sMA, sM2, sH0, sH1, sT0, sT1, sT2, sT3 = 84, 85, 86, 87, 88, 89, 90, 91
sMASK16, sMASKONE = 92, 94
sHB, sCNT, sK3, sK4, sK5 = 96, 97, 98, 99, 100
ACC0, ACC1, XNV, RING = 0, 64, 128, 160
PQ = 192
SC = 208
vL16, vA0, vA1, vLA0, vLA1, vLB, vLL = 212, 213, 214, 215, 216, 217, 218
V288 = 219
vFST, vONE, vLANE, vPOLL = 224, 225, 226, 227
T = 228
NT = 28


def vr(b, n=4):
    return f'v[{b}:{b + n - 1}]' if n > 1 else f'v{b}'


def sr(b, n=4):
    return f's[{b}:{b + n - 1}]'


def xn(n, lo=0, cnt=4):
    if n < 64:
        return f'a[{4 * n + lo}:{4 * n + lo + cnt - 1}]'
    return vr(XNV + 4 * (n - 64) + lo, cnt)


class Gen:
    def __init__(self, stop=None, dumps=(), stamps=False, opts=None):
        self.stop = stop
        self.dumps = dumps
        self.stamps = stamps
        self.o = dict(ntail=0, hlook=5, warm=True, spin=200000)
        self.o.update(opts or {})
        self.lin = Linear()
        self.slow = []
        self.log = []
        self.nstamp = 0

    def setup(self):
        L = self.lin.text
        L(f'''
        s_cmp_ge_u32 s2, 256
        s_cbranch_scc1 L_end
        s_load_dwordx4 s[4:7], s[0:1], 0
        s_load_dwordx2 s[36:37], s[0:1], 16
        s_load_dwordx4 s[8:11], s[0:1], 32
        s_load_dwordx4 s[20:23], s[0:1], 48
        s_load_dwordx4 s[32:35], s[0:1], 64
        v_lshrrev_b32 v1, 6, v0
        v_and_b32 v{vLANE}, 63, v0
        v_mov_b32 v{T + 25}, v0
        v_readfirstlane_b32 s{sWV}, v1
        s_and_b32 s{sT0}, s2, 7
        s_lshr_b32 s{sJJ}, s{sT0}, 1
        s_and_b32 s{sT0}, s{sT0}, 1
        s_lshr_b32 s{sT1}, s2, 3
        s_and_b32 s{sQ_}, s{sT1}, 3
        s_lshr_b32 s{sIL}, s{sT1}, 2
        s_lshl_b32 s{sT0}, s{sT0}, 3
        s_add_u32 s{sI}, s{sT0}, s{sIL}
        s_lshl_b32 s{sJ}, s{sJJ}, 2
        s_add_u32 s{sJ}, s{sJ}, s{sQ_}
        s_lshr_b32 s{sR}, s{sWV}, 1
        s_and_b32 s{sC}, s{sWV}, 1
        s_lshl_b32 s{sT0}, s{sQ_}, 1
        s_add_u32 s{sT0}, s{sT0}, s{sIL}''')
        for u in range(9):
            L(f'''s_add_u32 s{sT1}, s{sT0}, {u}
            s_sub_u32 s{sT2}, s{sT1}, 9
            s_cselect_b32 s{sT1}, s{sT1}, s{sT2}
            s_sub_u32 s{sT2}, s{sT1}, 9
            s_cselect_b32 s{sT1}, s{sT1}, s{sT2}
            s_lshl_b32 s{TB + u}, s{sT1}, 7
            s_mul_i32 s{KA + u}, s{sT1}, {64 * 9216}
            s_mul_i32 s{KQ + u}, s{sT1}, {64 * 3456}''')
        L(f'''
        v_and_b32 v4, 15, v{vLANE}
        v_lshrrev_b32 v5, 4, v{vLANE}
        s_lshl_b32 s{sT1}, s{sI}, 7
        s_lshl_b32 s{sT2}, s{sWV}, 5
        s_add_u32 s{sT1}, s{sT1}, s{sT2}
        v_add_u32 v6, s{sT1}, v4
        v_mul_u32_u24 v6, 1152, v6
        v_lshl_add_u32 v{T}, v5, 4, v6
        v_add_u32 v{T + 1}, {16 * 1152}, v{T}
        v_lshlrev_b32 v{vL16}, 4, v{vLANE}
        s_waitcnt lgkmcnt(0)
        s_mov_b32 s{SQ}, s6
        s_mov_b32 s{SQ + 1}, s7
        s_mov_b32 s6, {2048 * 1152}
        s_mov_b32 s7, 0x20000
        s_mov_b32 s{SW}, s34
        s_mov_b32 s{SW + 1}, s35
        s_mov_b32 s{SW + 2}, {WS_SIZE}
        s_mov_b32 s{SW + 3}, 0x20000''')
        L(f'''
        v_mov_b32 v{vONE}, 1
        v_mov_b32 v{T + 2}, 0
        v_cmp_eq_u32 vcc, 0, v{T + 25}
        v_mov_b32 v{vFST}, {OOB}
        v_cndmask_b32 v{vFST}, v{vFST}, v{T + 2}, vcc''')
        self.clear_ops = []
        for f in ('1', '2a', '2b', '3', '2o'):
            L(self.flag_addr(f, True, sT0))
            op = Op(f'buffer_store_dword v{T + 2}, v{vFST}, {sr(SW)}, s{sT0} offen sc1')
            self.clear_ops.append(op)
            self.lin.op(op)
        self.xl = {}
        for rho in range(2):
            for t in range(18):
                op = Op(f'buffer_load_dwordx4 {vr(self.raw(rho, t))}, v{T + rho}, {sr(SX)}, s{TB + (t >> 1)} offen offset:{64 * (t & 1)}')
                self.xl[rho, t] = op
                self.lin.op(op)
        L(f'''
        s_mov_b32 s{SU}, s10
        s_mov_b32 s{SU + 1}, s11
        s_mov_b32 s{SO}, s22
        s_mov_b32 s{SO + 1}, s23
        s_mov_b32 s{SO + 2}, {2048 * 1152}
        s_mov_b32 s{SO + 3}, 0x20000
        s_mov_b32 s{SB + 2}, 256
        s_mov_b32 s{SB + 3}, 0x20000
        s_and_b32 s{sT0}, s{sQ_}, 1
        s_lshl_b32 s{sT0}, s{sT0}, 6
        s_mul_i32 s{sT1}, s{sJ}, 576
        s_add_u32 s{sT0}, s{sT0}, s{sT1}
        s_add_u32 s{SG}, s{SG}, s{sT0}
        s_addc_u32 s{SG + 1}, s{SG + 1}, 0
        s_sub_u32 s{SG + 2}, {576 * 9216}, s{sT0}
        s_mov_b32 s{SG + 3}, 0x20000
        s_add_u32 s{SU}, s{SU}, s{sT0}
        s_addc_u32 s{SU + 1}, s{SU + 1}, 0
        s_sub_u32 s{SU}, s{SU}, 1024
        s_subb_u32 s{SU + 1}, s{SU + 1}, 0
        s_sub_u32 s{SU + 2}, {576 * 9216 + 1024}, s{sT0}
        s_mov_b32 s{SU + 3}, 0x20000
        s_mul_i32 s{sT0}, s{sJ}, 72
        s_add_u32 s{SQ}, s{SQ}, s{sT0}
        s_addc_u32 s{SQ + 1}, s{SQ + 1}, 0
        s_sub_u32 s{SQ + 2}, {576 * 3456}, s{sT0}
        s_mov_b32 s{SQ + 3}, 0x20000
        s_mul_i32 s{sT0}, s{sQ_}, 288
        s_add_u32 s{SWO}, s{SWO}, s{sT0}
        s_addc_u32 s{SWO + 1}, s{SWO + 1}, 0
        s_sub_u32 s{SWO + 2}, {576 * 1152}, s{sT0}
        s_mov_b32 s{SWO + 3}, 0x20000
        s_mul_i32 s{sT1}, s{sJJ}, {1152 * 1152}
        s_add_u32 s{sT0}, s{sT0}, s{sT1}
        s_add_u32 s{SD}, s{SD}, s{sT0}
        s_addc_u32 s{SD + 1}, s{SD + 1}, 0
        s_sub_u32 s{SD + 2}, {4608 * 1152}, s{sT0}
        s_mov_b32 s{SD + 3}, 0x20000
        s_lshl_b32 s{sMA}, s{sWV}, 11
        s_mul_i32 s{sM2}, s{sWV}, 4608
        v_lshrrev_b32 v{T + 2}, 3, v{vLANE}
        s_lshl_b32 s{sT0}, s{sWV}, 3
        v_add_u32 v{T + 2}, s{sT0}, v{T + 2}
        v_mul_u32_u24 v{T + 2}, 9216, v{T + 2}
        v_bfe_u32 v{T + 3}, v{vLANE}, 4, 2
        v_lshlrev_b32 v{T + 3}, 1, v{T + 3}
        v_and_b32 v{T + 4}, 7, v{vLANE}
        v_xor_b32 v{T + 3}, v{T + 3}, v{T + 4}
        v_lshl_add_u32 v{vA0}, v{T + 3}, 4, v{T + 2}
        v_add_u32 v{vA1}, {32 * 9216}, v{vA0}''')
        for n in range(6):
            for op in self.dma_ops(n):
                self.lin.op(op)
        if self.o['warm']:
            L(f'''s_getpc_b64 s[{sT2}:{sT3}]
            L_pc:
            s_lshr_b32 s{sT0}, s2, 3
            s_lshl_b32 s{sT0}, s{sT0}, 5
            v_add_u32 v{T + 3}, s{sT0}, v{T + 25}
            v_lshlrev_b32 v{T + 3}, 7, v{T + 3}
            v_min_u32 v{T + 3}, L_end-L_pc, v{T + 3}
            v_cmp_gt_u32 vcc, 32, v{T + 25}
            s_and_saveexec_b64 s[{sK3}:{sK4}], vcc
            s_cbranch_execz L_nowarm
            global_load_dword v{vPOLL}, v{T + 3}, s[{sT2}:{sT3}]
            L_nowarm:
            s_mov_b64 exec, -1''')
            self.lin.vm.pop()
        L(f'''
        v_lshrrev_b32 v{T + 4}, 2, v{vLANE}
        v_lshrrev_b32 v{T + 5}, 5, v{vLANE}
        v_lshlrev_b32 v{T + 5}, 11, v{T + 5}
        v_and_b32 v{T + 6}, 7, v{T + 4}
        v_lshl_add_u32 v{T + 5}, v{T + 6}, 7, v{T + 5}
        v_bfe_u32 v{T + 6}, v{vLANE}, 3, 2
        s_lshl_b32 s{sT0}, s{sC}, 1
        v_xor_b32 v{T + 6}, s{sT0}, v{T + 6}
        v_lshl_add_u32 v{T + 5}, v{T + 6}, 5, v{T + 5}
        v_and_b32 v{T + 6}, 3, v{vLANE}
        v_lshl_add_u32 v{vLA0}, v{T + 6}, 3, v{T + 5}
        v_xor_b32 v{vLA1}, 32, v{vLA0}
        v_mul_u32_u24 v{T + 4}, 288, v{T + 4}
        s_mul_i32 s{sT0}, s{sC}, 144
        v_add_u32 v{T + 4}, s{sT0}, v{T + 4}
        v_lshl_add_u32 v{vLB}, v{T + 6}, 3, v{T + 4}
        v_lshl_add_u32 v{vLL}, v{T + 6}, 4, v{T + 4}
        v_add_u32 v{vLL}, 96, v{vLL}
        s_mov_b32 s{sMASK16}, 0xffff
        s_mov_b32 s{sMASK16 + 1}, 0
        s_mov_b32 s{sMASKONE}, 0x44444444
        s_mov_b32 s{sMASKONE + 1}, 0x44444444
        s_lshl_b32 s{sT0}, s{sI}, 2
        s_add_u32 s{sT0}, s{sT0}, s{sJJ}
        s_mul_i32 s{sHB}, s{sT0}, {18 * 16384}
        s_add_u32 s{sHB}, s{sHB}, {H_BASE}
        s_mul_i32 s{sT0}, s{sQ_}, 9
        s_add_u32 s{sT0}, s{sT0}, 1
        s_lshr_b32 s{sT0}, s{sT0}, 1
        s_lshl_b32 s{sT0}, s{sT0}, 14
        s_add_u32 s{sT0}, s{sT0}, s{sHB}
        s_lshl_b32 s{sT1}, s{sC}, 11
        s_add_u32 s{sT0}, s{sT0}, s{sT1}
        s_lshl_b32 s{sT1}, s{sWV}, 12
        s_add_u32 s{sH0}, s{sT0}, s{sT1}
        s_xor_b32 s{sT1}, s{sT1}, 4096
        s_add_u32 s{sH1}, s{sT0}, s{sT1}''')
        self.base = {vLA0: 0, vLA1: 0, vLB: 0, vLL: 0}
        L(self.pat288('qkv'))

    def raw(self, rho, t):
        n = rho * 18 + t
        return 4 * n if n < 32 else RING + 4 * (n - 32)

    def flag_addr(self, f, own, dst):
        t = dst
        if f == '1':
            s = f's_lshl_b32 s{t}, s{sJ}, 7\n'
            if own:
                s += f's_lshl_b32 s{sT1}, s{sI}, 2\ns_add_u32 s{t}, s{t}, s{sT1}\n'
            return s
        if f == '2o':
            s = f's_lshl_b32 s{t}, s{sI}, 7\ns_add_u32 s{t}, s{t}, {F2O}\n'
            if own:
                s += f's_lshl_b32 s{sT1}, s{sJ}, 2\ns_add_u32 s{t}, s{t}, s{sT1}\n'
            return s
        grp, mem, base = (sJJ, sQ_, F2A) if f == '2a' else (sJJ, sQ_, F2B) if f == '2b' else (sQ_, sJJ, F3)
        s = f's_lshl_b32 s{t}, s{sI}, 2\ns_add_u32 s{t}, s{t}, s{grp}\ns_lshl_b32 s{t}, s{t}, 7\ns_add_u32 s{t}, s{t}, {base}\n'
        if own:
            s += f's_lshl_b32 s{sT1}, s{mem}, 2\ns_add_u32 s{t}, s{t}, s{sT1}\n'
        return s

    def pat288(self, kind, a=T + 20, b=T + 21, c=T + 22, d=T + 23, e=T + 24):
        s = f's_mul_i32 s{sK5}, s{sWV}, 288\n'
        for n in range(5):
            first = 0 if n == 0 else 32 + 64 * (n - 1)
            imm = 0 if n == 0 else 512 + 1024 * (n - 1)
            dst = V288 + n
            s += f'''v_add_u32 v{a}, s{sK5}, v{vLANE}
            v_add_u32 v{a}, {first}, v{a}
            v_mul_u32_u24 v{b}, 3641, v{a}
            v_lshrrev_b32 v{b}, 16, v{b}
            v_mul_u32_u24 v{c}, 18, v{b}
            v_sub_u32 v{a}, v{a}, v{c}
            '''
            if kind == 'qkv':
                s += f'''v_mul_u32_u24 v{b}, 3456, v{b}
                v_cmp_le_u32 vcc, 9, v{a}
                v_cndmask_b32 v{c}, 0, 9, vcc
                v_sub_u32 v{a}, v{a}, v{c}
                v_lshl_add_u32 v{b}, v{c}, 2, v{b}
                v_lshrrev_b32 v{c}, 1, v{a}
                v_and_b32 v{d}, 1, v{a}
                v_lshlrev_b32 v{d}, 4, v{d}
                v_subrev_u32 v{e}, 6, v{a}
                v_cmp_le_u32 vcc, 6, v{a}
                v_cndmask_b32 v{c}, v{c}, v{e}, vcc
                v_cndmask_b32 v{d}, v{d}, 32, vcc
                v_add_u32 v{c}, 1, v{c}
                v_cmp_eq_u32 vcc, 3, v{c}
                v_cndmask_b32 v{c}, v{c}, 0, vcc
                v_mul_u32_u24 v{c}, 1152, v{c}
                v_add3_u32 v{dst}, v{b}, v{c}, v{d}
                '''
            else:
                if kind == 'c':
                    s += f'''v_lshrrev_b32 v{c}, 4, v{b}
                    v_lshl_add_u32 v{b}, v{c}, 1, v{b}
                    '''
                elif kind == 'cl':
                    s += f'''v_lshrrev_b32 v{c}, 5, v{b}
                    v_lshlrev_b32 v{c}, 4, v{c}
                    v_and_b32 v{d}, 12, v{b}
                    v_add_u32 v{c}, v{c}, v{d}
                    v_bfe_u32 v{d}, v{b}, 4, 1
                    v_lshl_add_u32 v{c}, v{d}, 1, v{c}
                    v_bfe_u32 v{d}, v{b}, 1, 1
                    v_add_u32 v{c}, v{c}, v{d}
                    v_mul_u32_u24 v{c}, 18, v{c}
                    v_and_b32 v{d}, 1, v{b}
                    v_add3_u32 v{b}, v{c}, v{d}, 16
                    '''
                s += f'''v_mul_u32_u24 v{b}, 1152, v{b}
                v_lshl_add_u32 v{dst}, v{a}, 4, v{b}
                '''
            if imm:
                s += f'v_subrev_u32 v{dst}, {imm}, v{dst}\n'
            else:
                s += f'''v_mov_b32 v{c}, {OOB}
                v_cmp_gt_u32 vcc, 32, v{vLANE}
                v_cndmask_b32 v{dst}, v{c}, v{dst}, vcc
                '''
        return s

    def build_stream(self):
        st = []
        for name in ('A0', 'Q', 'A1', 'A2', 'A3'):
            st += [(name, u) for u in range(9)]
        st += [('A4', u) for u in range(5)]
        st += [('B', u) for u in range(18)]
        st += [('O', 0), ('O', 1)]
        st += [('C', u) for u in range(9)]
        self.stream = st
        self.dmas = {}
        nC = len(st) - 9
        self.slot = [n % NCH for n in range(len(st))]
        self.next_user = {n: n + NCH for n in range(nC - 2)}
        for e in range(3):
            self.slot[nC + 6 + e] = self.slot[nC + e]
            self.next_user[nC + e] = nC + 6 + e

    def dma_ops(self, n):
        name, u = self.stream[n]
        cb = self.slot[n] * CH
        ops = []
        if name in ('A0', 'A1', 'A2', 'A3'):
            if u == 0 and name != 'A0':
                for s_ in (SG, SU):
                    ops.append(Op(f's_add_u32 s{s_}, s{s_}, 128\ns_addc_u32 s{s_ + 1}, s{s_ + 1}, 0\ns_sub_u32 s{s_ + 2}, s{s_ + 2}, 128'))
            for hh in range(2):
                va = vA1 if hh else vA0
                ops.append(Op(f's_add_u32 m0, s{sMA}, {cb + 8192 * hh}'))
                ops.append(Op(f'buffer_load_dwordx4 v{va}, {sr(SG)}, s{KA + u} offen lds'))
                ops.append(Op(f'buffer_load_dwordx4 v{va}, {sr(SU)}, s{KA + u} offen offset:1024 lds'))
        elif name == 'A4':
            if u == 0:
                ops.append(Op(f's_and_b32 s{sK3}, s{sQ_}, 1\ns_mul_i32 s{sK3}, s{sK3}, -576\ns_add_u32 s{sK3}, s{sK3}, 128\ns_ashr_i32 s{sK4}, s{sK3}, 31'))
                for s_ in (SG, SU):
                    ops.append(Op(f's_add_u32 s{s_}, s{s_}, s{sK3}\ns_addc_u32 s{s_ + 1}, s{s_ + 1}, s{sK4}\ns_sub_u32 s{s_ + 2}, s{s_ + 2}, s{sK3}'))
                for l in f'''v_lshrrev_b32 v{T + 20}, 2, v{vLANE}
                s_lshl_b32 s{sK5}, s{sWV}, 4
                v_add_u32 v{T + 20}, s{sK5}, v{T + 20}
                v_mul_u32_u24 v{T + 20}, 9216, v{T + 20}
                v_bfe_u32 v{T + 21}, v{vLANE}, 4, 1
                v_lshlrev_b32 v{T + 21}, 1, v{T + 21}
                v_and_b32 v{T + 22}, 3, v{vLANE}
                v_xor_b32 v{T + 21}, v{T + 21}, v{T + 22}
                v_lshl_add_u32 v{vA0}, v{T + 21}, 4, v{T + 20}'''.split('\n'):
                    ops.append(Op(l))
            for k in range(2):
                uu = 2 * u + k
                if uu > 8:
                    break
                ops.append(Op(f's_add_u32 m0, s{sMA}, {cb + 8192 * k}'))
                ops.append(Op(f'buffer_load_dwordx4 v{vA0}, {sr(SG)}, s{KA + uu} offen lds'))
                ops.append(Op(f'buffer_load_dwordx4 v{vA0}, {sr(SU)}, s{KA + uu} offen offset:1024 lds'))
        elif name == 'O':
            pass
        else:
            if name == 'B' and u == 0:
                ops += [Op(l) for l in self.group_vcc(self.pat288('b'))]
                ops += self.b_tables()
            if name == 'C' and u == 0:
                ops += [Op(l) for l in self.group_vcc(self.pat288('c'))]
                for k in range(8):
                    ops.append(Op(f's_add_u32 s{KQ + k}, s{sIL}, {k}\ns_and_b32 s{KQ + k}, s{KQ + k}, 7\ns_mul_i32 s{KQ + k}, s{KQ + k}, {72 * 1152}'))
            if name == 'C' and u == 8:
                ops += [Op(l) for l in self.group_vcc(self.pat288('cl'))]
            srd = {'Q': SQ, 'B': SD, 'C': SWO}[name]
            if name == 'Q':
                so = f's{KQ + u}'
            elif name == 'B':
                ops.append(Op(f's_mul_i32 s{sK3}, s{TB + u}, 72'))
                so = f's{sK3}'
            else:
                so = f's{KQ + u}' if u < 8 else '0'
            ops.append(Op(f's_add_u32 m0, s{sM2}, {cb}'))
            for k in range(5):
                imm = 0 if k == 0 else 512 + 1024 * (k - 1)
                ops.append(Op(f'buffer_load_dwordx4 v{V288 + k}, {sr(srd)}, {so} offen offset:{imm} lds'))
        self.dmas[n] = [o for o in ops if 'dma' in o.kinds()]
        return ops

    @staticmethod
    def group_vcc(text):
        return [l.strip() for l in text.split('\n') if l.strip()]

    def b_tables(self):
        ops = [Op(f's_mul_i32 s{sK3}, s{sQ_}, 3\ns_mul_i32 s{sK4}, s{sIL}, 3\ns_lshr_b32 s{sK4}, s{sK4}, 1\ns_add_u32 s{sK3}, s{sK3}, s{sK4}')]
        for p in range(12):
            d = TB + p
            ops.append(Op(f'''s_add_u32 s{d}, s{sK3}, {p}
            s_sub_u32 s{sK4}, s{d}, 24
            s_cselect_b32 s{d}, s{d}, s{sK4}
            s_sub_u32 s{sK4}, s{d}, 12
            s_cselect_b32 s{d}, s{d}, s{sK4}'''))
            ops.append(Op(f'''s_mul_i32 s{sK4}, s{d}, 43
            s_lshr_b32 s{sK4}, s{sK4}, 7
            s_mul_i32 s{sK4}, s{sK4}, 3
            s_add_u32 s{sK4}, s{sK4}, 1
            s_lshr_b32 s{sK4}, s{sK4}, 1
            s_add_u32 s{d}, s{d}, s{sK4}
            s_lshl_b32 s{d}, s{d}, 10'''))
        for p in range(4):
            d = TB + 12 + p
            ops.append(Op(f'''s_add_u32 s{d}, s{sIL}, s{sQ_}
            s_add_u32 s{d}, s{d}, {p}
            s_and_b32 s{d}, s{d}, 3
            s_mul_i32 s{d}, s{d}, 9
            s_add_u32 s{d}, s{d}, 7
            s_lshr_b32 s{d}, s{d}, 1
            s_lshl_b32 s{d}, s{d}, 10'''))
        for p in range(2):
            d = TB + 16 + p
            ops.append(Op(f'''s_add_u32 s{d}, s{sIL}, {p}
            s_and_b32 s{d}, s{d}, 1
            s_mul_i32 s{d}, s{d}, {9 * 1024}
            s_add_u32 s{d}, s{d}, {4 * 1024}'''))
        return ops

    def addr(self, R, reg, off, **kw):
        cur = self.base[reg]
        if not (0 <= off - cur and off - cur + 5120 < 65536):
            chunk = off // CH
            new = (chunk // 3) * 3 * CH
            d = new - cur
            R.op(f'v_add_u32 v{reg}, {d}, v{reg}' if d > 0 else f'v_subrev_u32 v{reg}, {-d}, v{reg}', prio=50, **kw)
            self.base[reg] = cur = new
        return off - cur

    def layernorm(self):
        R = Region(cap=5)
        ONES, SEL0, SEL1, NM, D = T + 2, T + 6, T + 10, PQ, RING + 16
        VAR = T + 14
        vXO, vXP = T + 16, T + 17
        PK = [T + 18, T + 22, PQ + 8, PQ + 12]
        for l in f'''v_mov_b32 v{ONES}, 0x3f803f80
        v_mov_b32 v{ONES + 1}, 0x3f803f80
        v_mov_b32 v{ONES + 2}, 0x3f803f80
        v_mov_b32 v{ONES + 3}, 0x3f803f80
        v_and_b32 v{VAR}, 15, v{vLANE}
        v_lshrrev_b32 v{VAR + 1}, 4, v{vLANE}
        v_lshlrev_b32 v{VAR + 1}, 3, v{VAR + 1}
        v_sub_u32 v{VAR}, v{VAR}, v{VAR + 1}
        v_mov_b32 v{VAR + 1}, 0x3f80
        v_mov_b32 v{vXO}, 0x3f800000'''.split('\n'):
            R.op(l)
        for sel, add in ((SEL0, 0), (SEL1, 16)):
            for k in range(4):
                R.op(f'''v_cmp_eq_u32 vcc, {2 * k - add}, v{VAR}
                v_cndmask_b32 v{sel + k}, 0, v{VAR + 1}, vcc''')
                R.op(f'''v_cmp_eq_u32 vcc, {2 * k + 1 - add}, v{VAR}
                v_cndmask_b32 v{sel + k}, v{sel + k}, v{vXO}, vcc''')
        for l in f'''s_mul_i32 s{sT0}, s{sWV}, 6144
        s_add_u32 s{sT0}, s{sT0}, {EXB}
        v_add_u32 v{vXO}, s{sT0}, v{vL16}
        s_xor_b32 s{sT1}, s{sWV}, 1
        s_mul_i32 s{sT1}, s{sT1}, 6144
        s_add_u32 s{sT1}, s{sT1}, {EXB}
        v_add_u32 v{vXP}, s{sT1}, v{vL16}
        v_mov_b32 v{VAR}, 0
        v_mov_b32 v{VAR + 1}, 0'''.split('\n'):
            R.op(l)
        arrived = None
        prev_reads = []
        cnt = 0
        for rho in range(2):
            nm = NM + 4 * rho
            for t in range(18):
                if t % 2 == 0:
                    w = R.wait([self.xl[rho, t], self.xl[rho, t + 1]])
                R.mfma(f'{MF} {vr(nm)}, {vr(ONES)}, {vr(self.raw(rho, t))}, {vr(nm) if t else 0}', after=[w])
            if rho == 0:
                wclr = R.wait(self.clear_ops, late=False)
                R.op(f's_lshl_b32 s{sT0}, s{sI}, 2')
                R.op(f'buffer_atomic_add v{vONE}, v{vFST}, {sr(SB)}, s{sT0} offen sc1', after=[wclr])
            for k in range(4):
                R.op(f'v_mul_f32 v{nm + k}, {hex(0xbae38e39)}, v{nm + k}')
            for kg in range(3):
                half = (rho * 3 + kg) & 1
                writes = []
                for tt in range(6):
                    t = 6 * kg + tt
                    d0, d1 = D + 8 * (cnt & 1), D + 8 * (cnt & 1) + 4
                    pk = PK[cnt & 3]
                    cnt += 1
                    R.mfma(f'{MF} {vr(d0)}, {vr(SEL0)}, {vr(self.raw(rho, t))}, {vr(nm)}')
                    R.mfma(f'{MF} {vr(d1)}, {vr(SEL1)}, {vr(self.raw(rho, t))}, {vr(nm)}')
                    for k, s_ in enumerate((d0, d0 + 2, d1, d1 + 2)):
                        R.op(f'v_cvt_pk_bf16_f32 v{pk + k}, v{s_}, v{s_ + 1}', prio=5)
                    writes.append(R.op(f'ds_write_b128 v{vXO}, {vr(pk)} offset:{half * 24576 + tt * 1024}', after=[arrived] if arrived else []))
                    for k in range(4):
                        R.op(f'v_dot2c_f32_bf16 v{VAR + rho}, v{pk + k}, v{pk + k}')
                w = R.wait(writes + prev_reads, late=False)
                arrived = R.op('s_barrier', after=[w], wr=['bar'])
                prev_reads = []
                for tt in range(6):
                    t = 6 * kg + tt
                    prev_reads.append(R.op(f'ds_read_b128 {xn(4 * t + rho)}, v{vXO} offset:{half * 24576 + tt * 1024}', after=[arrived]))
                    prev_reads.append(R.op(f'ds_read_b128 {xn(4 * t + 2 + rho)}, v{vXP} offset:{half * 24576 + tt * 1024}', after=[arrived]))
        self.ln_last_reads = prev_reads
        a, b = D, D + 1
        R.op(f'v_and_b32 v{D + 2}, 15, v{vLANE}')
        R.op(f's_lshl_b32 s{sT0}, s{sWV}, 7\ns_add_u32 s{sT0}, s{sT0}, {RS}')
        R.op(f'v_lshl_add_u32 v{D + 2}, v{D + 2}, 2, s{sT0}')
        R.op(f's_mov_b32 s{sT1}, {hex(0x3ae38e39)}')
        R.op(f'v_mov_b32 v{D + 3}, {hex(0x3727c5ac)}')
        self.rs_writes = []
        for rho in range(2):
            v = VAR + rho
            R.op(f's_nop 2\nv_mov_b32 v{a}, v{v}')
            R.op(f'v_permlane32_swap_b32 v{a}, v{v}')
            R.op(f'v_add_f32 v{v}, v{a}, v{v}')
            R.op(f'v_mov_b32 v{a}, v{v}')
            R.op(f'v_permlane16_swap_b32 v{a}, v{v}')
            R.op(f'v_add_f32 v{v}, v{a}, v{v}')
            R.op(f'v_fma_f32 v{v}, v{v}, s{sT1}, v{D + 3}')
            R.op(f'v_rsq_f32 v{v}, v{v}')
            self.rs_writes.append(R.op(f'ds_write_b32 v{D + 2}, v{v} offset:{64 * rho}'))
        return R

    def stamp(self, R):
        if not self.stamps:
            return
        k = self.nstamp
        self.nstamp += 1
        t = Op(f's_memrealtime s[{sT2}:{sT3}]\ns_waitcnt lgkmcnt(0)\nv_mov_b32 v{T + 26}, s{sT2}\nv_mov_b32 v{T + 27}, s2\nv_lshl_add_u32 v{T + 27}, v{T + 27}, 7, v{vFST}\ns_mov_b32 s{sT2}, {DUMP_BASE + 4 * k}\nbuffer_store_dword v{T + 26}, v{T + 27}, {sr(SW)}, s{sT2} offen',
               lo=R.here if R else None, hi=R.here if R else None)
        if R:
            R.add(t)
        else:
            self.lin.op(t)

    def poll(self, R, name, srd, addr_text, mask, val, lo, check_lo, after=()):
        vp = T + 19
        if addr_text:
            R.op(addr_text, lo=lo - 4)
        so = f's{sT2}' if addr_text else '0'
        R.op(f'v_and_b32 v{vPOLL}, {mask}, v{vLANE}', lo=lo - 4)
        R.op(f'v_lshlrev_b32 v{vPOLL}, 2, v{vPOLL}', lo=lo - 4)
        ld = R.op(f'buffer_load_dword v{vp}, v{vPOLL}, {sr(srd)}, {so} offen sc1', lo=lo, hi=lo + 6, after=after)
        w = R.wait([ld], late=False, lo=check_lo, hi=check_lo + 4)
        chk = R.op(f'v_cmp_ne_u32 vcc, {val}, v{vp}\ns_cbranch_vccnz L_slow_{name}\nL_back_{name}:', after=[w],
                   rd=[f'v{vPOLL}', f's{sT2}'], wr=[f'v{vp}'], hi=check_lo + 4)
        self.slow.append(f'''L_slow_{name}:
        s_mov_b32 s{sCNT}, 0
        L_spin_{name}:
        buffer_load_dword v{vp}, v{vPOLL}, {sr(srd)}, {so} offen sc1
        s_waitcnt vmcnt(0)
        v_cmp_ne_u32 vcc, {val}, v{vp}
        s_cbranch_vccz L_back_{name}
        s_add_u32 s{sCNT}, s{sCNT}, 1
        s_cmp_lt_u32 s{sCNT}, {self.o['spin']}
        s_cbranch_scc1 L_spin_{name}
        s_branch L_back_{name}''')
        return chk

    def set_flag(self, R, f, after):
        R.op(self.flag_addr(f, True, sT0), lo=after[0].lo - 12)
        self.flags[f] = R.op(f'buffer_store_dword v{vONE}, v{vFST}, {sr(SW)}, s{sT0} offen sc1', after=after, hi=after[0].lo + 2)

    def chunk_enter(self, R, n, lo, pre=()):
        waits = list(self.dmas[n]) + self.pre_bar
        self.pre_bar = []
        w = R.wait(waits, late=False, lo=lo, prio=100) if waits else None
        dep = list(pre) + ([w] if w else [])
        freed = [k for k in self.unfreed if self.lastwait.get(k) is not None]
        dep += [self.lastwait[k] for k in freed]
        bar = R.op('s_barrier', after=dep, wr=['bar'], lo=lo, prio=100)
        for k in freed:
            self.unfreed.remove(k)
            self.free_bar[k] = bar
            m = self.next_user.get(k)
            if m is not None:
                span = self.span
                ops = self.dma_ops(m)
                nd = sum(1 for o in ops if 'dma' in o.kinds())
                idx = 0
                for o in ops:
                    isd = 'dma' in o.kinds()
                    if isd:
                        o.after.append((bar, 0))
                        o.lo = lo + 1 + (idx * span) // max(nd, 1)
                        idx += 1
                    else:
                        o.lo = lo - 8
                    o.hi = lo + span + 8
                    R.add(o)
        for fn in self.post_bar:
            fn(bar)
        self.post_bar = []
        self.unfreed.append(n)
        self.bars[n] = bar
        return bar

    def tr_pair(self, R, dst, reg, off, step, after, prio=10, lo=None):
        o = self.addr(R, reg, off, lo=lo)
        return [R.op(f'ds_read_b64_tr_b16 {vr(dst, 2)}, v{reg} offset:{o}', after=after, prio=prio, lo=lo),
                R.op(f'ds_read_b64_tr_b16 {vr(dst + 2, 2)}, v{reg} offset:{o + step}', after=after, prio=prio, lo=lo)]

    def p_reads(self, R, name, n, t, buf, after):
        cb = self.slot[n] * CH
        out = []
        if name == 'Q':
            base = cb + 9216 * (t & 1)
            for f in range(4):
                out += self.tr_pair(R, buf + 4 * f, vLL if f == 3 else vLB, base + (32 * f if f < 3 else 0), 4608, after)
        elif name == 'A4':
            base = cb + 4096 * (t & 3)
            for f in range(2):
                out += self.tr_pair(R, buf + 4 * f, vLA0, base + 1024 * f, 2048, after)
        else:
            base = cb + 8192 * (t & 1)
            for f in range(4):
                out += self.tr_pair(R, buf + 4 * f, vLA1 if f & 1 else vLA0, base + 1024 * (f >> 1), 4096, after)
        return out

    def epi_glu(self, R, acc, half):
        stores = []
        if not half:
            for rs in range(4):
                G = [acc + (tt * 4 + rs) * 4 for tt in range(2)]
                U = [acc + ((2 + tt) * 4 + rs) * 4 for tt in range(2)]
                for tt in range(2):
                    self.glu4(R, G[tt], U[tt], SC + rs)
                for k in range(4):
                    g = G[k >> 1] + 2 * (k & 1)
                    R.op(f'v_cvt_pk_bf16_f32 v{U[0] + k}, v{g}, v{g + 1}')
                stores.append(R.op(f'buffer_store_dwordx4 {vr(U[0])}, v{vL16}, {sr(SW)}, s{sH0 + (rs >> 1)} offen offset:{1024 * (rs & 1)} sc1'))
            R.op(f's_add_u32 s{sH0}, s{sH0}, 16384')
            R.op(f's_add_u32 s{sH1}, s{sH1}, 16384')
        else:
            R.op(f'''s_lshr_b32 s{sH0}, s{sQ_}, 1
            s_mul_i32 s{sH0}, s{sH0}, {9 * 16384}
            s_add_u32 s{sH0}, s{sH0}, {4 * 16384}
            s_add_u32 s{sH0}, s{sH0}, s{sHB}''')
            R.op(f'''s_and_b32 s{sH1}, s{sQ_}, 1
            s_lshl_b32 s{sH1}, s{sH1}, 1
            s_add_u32 s{sH1}, s{sH1}, s{sC}
            s_lshl_b32 s{sH1}, s{sH1}, 10
            s_add_u32 s{sH0}, s{sH0}, s{sH1}''')
            R.op(f'''s_xor_b32 s{sH1}, s{sWV}, 1
            s_lshl_b32 s{sH1}, s{sH1}, 12
            s_add_u32 s{sH1}, s{sH1}, s{sH0}''')
            R.op(f'''s_lshl_b32 s{sT1}, s{sWV}, 12
            s_add_u32 s{sH0}, s{sH0}, s{sT1}''')
            for P in range(2):
                G = [acc + (2 * P + k) * 4 for k in range(2)]
                U = [acc + 16 + (2 * P + k) * 4 for k in range(2)]
                for k in range(2):
                    self.glu4(R, G[k], U[k], SC + 2 * P + k)
                for k in range(4):
                    g = G[k >> 1] + 2 * (k & 1)
                    R.op(f'v_cvt_pk_bf16_f32 v{U[0] + k}, v{g}, v{g + 1}')
                stores.append(R.op(f'buffer_store_dwordx4 {vr(U[0])}, v{vL16}, {sr(SW)}, s{sH0 + P} offen sc1'))
        return stores

    @staticmethod
    def glu4(R, G, U, sc):
        for e in range(4):
            g = G + e
            R.op(f'v_mul_f32 v{g}, v{sc}, v{g}')
            R.op(f'v_exp_f32 v{g}, v{g}')
            R.op(f'v_add_f32 v{g}, 1.0, v{g}')
            R.op(f'v_rcp_f32 v{g}, v{g}')
            R.op(f'v_mul_f32 v{g}, v{g}, v{U + e}')

    @staticmethod
    def phi(R, x, tmp):
        R.op(f'v_mul_f32 v{tmp}, {hex(LOG2E)}, v{x}')
        R.op(f'v_exp_f32 v{tmp}, v{tmp} clamp')
        R.op(f'v_max_f32 v{x}, 0, v{x}')
        R.op(f'v_add_f32 v{x}, {hex(EPS6)}, v{x}')
        R.op(f'v_add_f32 v{x}, v{x}, v{tmp}')

    def load_scales(self, R, after):
        a0, a1 = T + 20, T + 21
        R.op(f'v_and_b32 v{a0}, 15, v{vLANE}')
        R.op(f's_lshl_b32 s{sT0}, s{sWV}, 7\ns_add_u32 s{sT0}, s{sT0}, {RS}')
        R.op(f'v_lshl_add_u32 v{a0}, v{a0}, 2, s{sT0}')
        R.op(f'v_xor_b32 v{a1}, 128, v{a0}')
        lds = [R.op(f'ds_read_b32 v{SC + rs}, v{a0 if rs < 2 else a1} offset:{64 * (rs & 1)}', after=after) for rs in range(4)]
        w = R.wait(lds, late=False, dist=6)
        for rs in range(4):
            R.op(f'v_mul_f32 v{SC + rs}, {hex(NLOG2E)}, v{SC + rs}', after=[w])

    def epi_qkv(self, R, acc):
        KM = [acc + 4 * rs for rs in range(4)]
        VM = [acc + 16 + 4 * rs for rs in range(4)]
        QM = [acc + 32 + 4 * rs for rs in range(4)]
        LL = [acc + 48 + 4 * rs for rs in range(4)]
        a0, a1, aq = T + 20, T + 21, T + 22
        R4 = [T, T + 4]
        LR = T + 8
        TM = [T + 12, T + 13, T + 14, T + 15]
        r1 = T + 16
        R.op(f'v_lshrrev_b32 v{a0}, 4, v{vLANE}')
        R.op(f's_lshl_b32 s{sT0}, s{sWV}, 7\ns_add_u32 s{sT0}, s{sT0}, {RS}')
        R.op(f'v_lshl_add_u32 v{a0}, v{a0}, 4, s{sT0}')
        R.op(f'v_xor_b32 v{a1}, 128, v{a0}')
        for l in f'''v_and_b32 v{aq}, 3, v{vLANE}
        v_lshlrev_b32 v{aq}, 5, v{aq}
        v_lshrrev_b32 v{r1}, 4, v{vLANE}
        v_lshl_add_u32 v{aq}, v{r1}, 3, v{aq}
        s_lshl_b32 s{sT1}, s{sWV}, 9
        s_add_u32 s{sT1}, s{sT1}, {QL}
        v_add_u32 v{aq}, s{sT1}, v{aq}
        v_lshlrev_b32 v{r1}, 3, v{vLANE}
        v_add_u32 v{r1}, {DUMMY}, v{r1}
        v_bfe_u32 v{TM[0]}, v{vLANE}, 2, 2'''.split('\n'):
            R.op(l)
        R.op(f'v_cmp_eq_u32 vcc, 2, v{TM[0]}\nv_cndmask_b32 v{aq}, v{r1}, v{aq}, vcc')
        self.ql_writes = []
        tm = 0
        for rs in range(4):
            r4 = R4[rs & 1]
            ld = R.op(f'ds_read_b128 {vr(r4)}, v{a0 if rs < 2 else a1} offset:{64 * (rs & 1)}')
            w = R.wait([ld], late=False, dist=6)
            R.op(f'v_mul_f32 v{r1}, {hex(0xbf317218)}, v{SC + rs}')
            for e in range(4):
                R.op(f'v_mul_f32 v{QM[rs] + e}, v{r1}, v{QM[rs] + e}')
                self.phi(R, QM[rs] + e, TM[tm & 3]); tm += 1
            R.op(f'v_cvt_pk_bf16_f32 v{PQ + 4 * rs}, v{QM[rs]}, v{QM[rs] + 1}')
            R.op(f'v_cvt_pk_bf16_f32 v{PQ + 4 * rs + 1}, v{QM[rs] + 2}, v{QM[rs] + 3}')
            for e in range(4):
                R.op(f'v_mul_f32 v{KM[rs] + e}, v{r4 + e}, v{KM[rs] + e}', after=[w])
                self.phi(R, KM[rs] + e, TM[tm & 3]); tm += 1
                R.op(f'v_mul_f32 v{VM[rs] + e}, v{r4 + e}, v{VM[rs] + e}', after=[w])
                R.op(f'v_mul_f32 v{LL[rs] + e}, v{r4 + e}, v{LL[rs] + e}', after=[w])
                R.op(f'v_cndmask_b32 v{LR + e}, v{LL[rs] + e}, 1.0, s[{sMASKONE}:{sMASKONE + 1}]')
                self.phi(R, LL[rs] + e, TM[tm & 3]); tm += 1
            P, h = rs >> 1, 2 * (rs & 1)
            for X in (KM, VM, LL):
                R.op(f'v_cvt_pk_bf16_f32 v{X[2 * P] + h}, v{X[rs]}, v{X[rs] + 1}')
                R.op(f'v_cvt_pk_bf16_f32 v{X[2 * P] + h + 1}, v{X[rs] + 2}, v{X[rs] + 3}')
            R.op(f'v_cvt_pk_bf16_f32 v{QM[2 * P] + h}, v{LR}, v{LR + 1}')
            R.op(f'v_cvt_pk_bf16_f32 v{QM[2 * P] + h + 1}, v{LR + 2}, v{LR + 3}')
            self.ql_writes.append(R.op(f'ds_write_b64 v{aq}, {vr(LL[2 * P] + h, 2)} offset:{128 * rs}'))
        self.kv_in = dict(km=[KM[0], KM[2]], vm=[VM[0], VM[2]], lp=[LL[0], LL[2]], lr=[QM[0], QM[2]])
        self.kv_d = dict(mm=KM[1], ml=KM[3], lm=VM[1], ll=VM[3])
        self.kv_tmp = [QM[1], QM[3], LL[1]]

    def kv_mfmas(self, R):
        I, D = self.kv_in, self.kv_d
        for P in range(2):
            for d, a, b in (('mm', 'km', 'vm'), ('ml', 'km', 'lr'), ('lm', 'lp', 'vm'), ('ll', 'lp', 'lr')):
                R.mfma(f'{MF} {vr(D[d])}, {vr(I[a][P])}, {vr(I[b][P])}, {vr(D[d]) if P else 0}')

    def kv_exchange(self, R, X, tmp, then):
        a0, a1 = T + 17, T + 18
        R.op(f's_mul_i32 s{sT0}, s{sWV}, 3072\ns_add_u32 s{sT0}, s{sT0}, {KVX}')
        R.op(f'v_add_u32 v{a0}, s{sT0}, v{vL16}')
        R.op(f's_xor_b32 s{sT0}, s{sWV}, 2\ns_mul_i32 s{sT0}, s{sT0}, 3072\ns_add_u32 s{sT0}, s{sT0}, {KVX}')
        R.op(f'v_add_u32 v{a1}, s{sT0}, v{vL16}')
        ws = [R.op(f'ds_write_b128 v{a0}, {vr(X[k])} offset:{1024 * k}', prio=5) for k in range(3)]
        self.pre_bar += ws

        def after_bar(bar):
            rd = [R.op(f'ds_read_b128 {vr(tmp[k])}, v{a1} offset:{1024 * k}', after=[bar], prio=5) for k in range(3)]
            w = R.wait(rd, late=False, dist=6)
            for k in range(3):
                for e in range(4):
                    R.op(f'v_add_f32 v{X[k] + e}, v{X[k] + e}, v{tmp[k] + e}', after=[w], prio=5)
            then()
        self.post_bar.append(after_bar)

    def kv_publish(self, R):
        D = self.kv_d
        R.op(f'v_mov_b32 v{D["lm"] + 2}, v{D["ll"]}')
        R.op(f'v_mov_b32 v{D["lm"] + 3}, v{D["ll"] + 1}')
        X = [D['mm'], D['ml'], D['lm']]

        def store():
            a = T + 17
            R.op(f'''s_lshl_b32 s{sT0}, s{sJ}, 1
            s_add_u32 s{sT0}, s{sT0}, s{sC}
            s_lshl_b32 s{sT0}, s{sT0}, 4
            s_add_u32 s{sT0}, s{sT0}, s{sI}
            s_mul_i32 s{sT0}, s{sT0}, 3072
            s_add_u32 s{sT0}, s{sT0}, {KV_BASE}''')
            R.op(f's_lshl_b32 s{sT1}, s{sR}, 31')
            R.op(f'v_or_b32 v{a}, s{sT1}, v{vL16}')
            st = [R.op(f'buffer_store_dwordx4 {vr(X[k])}, v{a}, {sr(SW)}, s{sT0} offen offset:{1024 * k} sc1', prio=5) for k in range(3)]
            self.kv_stores = st
        self.kv_exchange(R, X, self.kv_tmp, store)

    def kv_gather(self, R, batch, buf, after):
        S = T
        R.op(f'''s_lshl_b32 s{sT3}, s{sJ}, 1
        s_add_u32 s{sT3}, s{sT3}, s{sC}
        s_lshl_b32 s{sT3}, s{sT3}, 1
        s_add_u32 s{sT3}, s{sT3}, s{sR}
        s_mul_i32 s{sT3}, s{sT3}, {8 * 3072}
        s_add_u32 s{sT3}, s{sT3}, {KV_BASE + batch * 4 * 3072}''')
        lds = []
        for p in range(4):
            if p:
                R.op(f's_add_u32 s{sT3}, s{sT3}, 3072')
            lds.append([R.op(f'buffer_load_dwordx4 {vr(buf + 12 * p + 4 * k)}, v{vL16}, {sr(SW)}, s{sT3} offen offset:{1024 * k} sc1', after=after) for k in range(3)])
        w = R.wait(sum(lds, []), late=False, dist=70)
        for p in range(4):
            for e in range(12):
                if batch == 0 and p == 0:
                    continue
                if batch == 0 and p == 1:
                    R.op(f'v_add_f32 v{S + e}, v{buf + e}, v{buf + 12 + e}', after=[w])
                else:
                    R.op(f'v_add_f32 v{S + e}, v{S + e}, v{buf + 12 * p + e}', after=[w])

    def kv_finish(self, R, tmp):
        S = T
        KVM, KVL = T + 12, tmp[0]

        def pack():
            R.op(f'v_cvt_pk_bf16_f32 v{KVM}, v{S}, v{S + 1}')
            R.op(f'v_cvt_pk_bf16_f32 v{KVM + 1}, v{S + 2}, v{S + 3}')
            R.op(f'v_cvt_pk_bf16_f32 v{KVM + 2}, v{S + 8}, v{S + 9}')
            R.op(f'v_cndmask_b32 v{KVM + 2}, 0, v{KVM + 2}, s[{sMASK16}:{sMASK16 + 1}]')
            R.op(f'v_mov_b32 v{KVM + 3}, 0')
            R.op(f'v_cvt_pk_bf16_f32 v{S}, v{S + 4}, v{S + 5}')
            R.op(f'v_cvt_pk_bf16_f32 v{S + 1}, v{S + 6}, v{S + 7}')
            R.op(f'v_cvt_pk_bf16_f32 v{S + 2}, v{S + 10}, v{S + 11}')
            R.op(f'v_cndmask_b32 v{S + 2}, 0, v{S + 2}, s[{sMASK16}:{sMASK16 + 1}]')
            R.op(f'v_mov_b32 v{S + 3}, 0')
            aq = T + 16
            R.op(f'v_and_b32 v{aq}, 15, v{vLANE}')
            R.op(f's_lshl_b32 s{sT1}, s{sWV}, 9\ns_add_u32 s{sT1}, s{sT1}, {QL}')
            R.op(f'v_lshl_add_u32 v{aq}, v{aq}, 3, s{sT1}')
            rd = [R.op(f'ds_read_b64_tr_b16 {vr(PQ + 4 * rs + 2, 2)}, v{aq} offset:{128 * rs}', after=self.ql_writes) for rs in range(4)]
            self.pq_wait = R.wait(rd, late=False, dist=6)
            self.kv_frags = (KVM, S)
        self.kv_exchange(R, [S, S + 4, S + 8], tmp, pack)

    def o_mfmas(self, R, buf):
        KVM, KVL = self.kv_frags
        for rs in range(4):
            R.mfma(f'{MF} {vr(buf + 8 * rs)}, {vr(KVM)}, {vr(PQ + 4 * rs)}, 0', after=[self.pq_wait])
            R.mfma(f'{MF} {vr(buf + 8 * rs + 4)}, {vr(KVL)}, {vr(PQ + 4 * rs)}, 0')
        a = T + 16
        R.op(f'v_and_b32 v{a}, 15, v{vLANE}')
        R.op(f'v_lshlrev_b32 v{a}, 2, v{a}')
        R.op(f'v_mov_b32 v{a + 1}, {OOB}')
        R.op(f'v_lshrrev_b32 v{a + 2}, 4, v{vLANE}')
        R.op(f'v_cmp_eq_u32 vcc, 1, v{a + 2}\nv_cndmask_b32 v{a}, v{a + 1}, v{a}, vcc')
        st = []
        for P in range(2):
            R.op(f'''s_xor_b32 s{sT0}, s{sWV}, {P}
            s_lshl_b32 s{sT1}, s{sI}, 2
            s_add_u32 s{sT0}, s{sT0}, s{sT1}
            s_lshl_b32 s{sT3}, s{sJ}, 1
            s_add_u32 s{sT3}, s{sT3}, s{sC}''')
            R.op(f'''s_lshl_b32 s{sT1}, s{sT0}, 6
            s_add_u32 s{sT1}, s{sT1}, s{sT3}
            s_lshl_b32 s{sT1}, s{sT1}, 6
            s_add_u32 s{sT1}, s{sT1}, {OL_BASE}''')
            R.op(f'''s_lshl_b32 s{sT0}, s{sT0}, 5
            s_add_u32 s{sT0}, s{sT0}, s{sT3}
            s_lshl_b32 s{sT0}, s{sT0}, 10
            s_add_u32 s{sT0}, s{sT0}, {O_BASE}''')
            for k in range(2):
                rs = 2 * P + k
                m, l = buf + 8 * rs, buf + 8 * rs + 4
                R.op(f'v_add_f32 v{l + 2}, {hex(EPS6)}, v{l + 2}')
                R.op(f'v_rcp_f32 v{l + 2}, v{l + 2}')
                for e in (m, m + 1, m + 2, m + 3, l, l + 1):
                    R.op(f'v_mul_f32 v{e}, v{l + 2}, v{e}')
                R.op(f'v_cvt_pk_bf16_f32 v{buf + 16 * P + 2 * k}, v{m}, v{m + 1}')
                R.op(f'v_cvt_pk_bf16_f32 v{buf + 16 * P + 2 * k + 1}, v{m + 2}, v{m + 3}')
                R.op(f'v_cvt_pk_bf16_f32 v{l}, v{l}, v{l + 1}')
                st.append(R.op(f'buffer_store_dword v{l}, v{a}, {sr(SW)}, s{sT1} offen offset:{2048 * k} sc1'))
            st.append(R.op(f'buffer_store_dwordx4 {vr(buf + 16 * P)}, v{vL16}, {sr(SW)}, s{sT0} offen sc1'))
        return st

    def flag_later(self, R, f, stores):
        self.pre_bar += stores
        self.post_bar.append(lambda bar: self.set_flag(R, f, [bar]))

    def main(self):
        R = Region(cap=2)
        self.pre_bar = list(self.ln_last_reads) + list(self.rs_writes)
        self.post_bar, self.unfreed = [], []
        self.lastwait, self.free_bar, self.bars = {}, {}, {}
        self.lastwait[-2] = self.lastwait[-1] = self.pre_bar[0]
        ks = []
        n0 = 0
        for name in ('A0', 'Q', 'A1', 'A2', 'A3'):
            ks += [(name, t, n0 + (t >> 1)) for t in range(18)]
            n0 += 9
        ks += [('A4', t, n0 + (t >> 2)) for t in range(18)]
        n0 += 5
        accs = {'A0': ACC0, 'Q': ACC1, 'A1': ACC0, 'A2': ACC1, 'A3': ACC0, 'A4': ACC1}
        self.span = 28
        w0 = R.wait(self.pre_bar + self.dmas[0], late=False)
        self.pre_bar = []
        bar = R.op('s_barrier', after=[w0], wr=['bar'])
        self.bars[0] = bar
        self.unfreed = [0]
        for m in (6, 7):
            for o in self.dma_ops(m):
                if 'dma' in o.kinds():
                    o.after.append((bar, 0))
                o.hi = 30
                R.add(o)
        reads = self.p_reads(R, 'A0', 0, 0, RING, [bar])
        self.load_scales(R, [bar])
        hst = {}
        for x, (name, t, n) in enumerate(ks):
            buf = RING + 16 * (x & 1)
            nbuf = RING + 16 * ((x + 1) & 1)
            w = R.wait(reads, dist=4)
            last_in_chunk = x + 1 == len(ks) or ks[x + 1][2] != n
            if last_in_chunk:
                self.lastwait[n] = w
            g0 = R.here
            if t == 0:
                self.stamp(R)
            if x + 1 < len(ks):
                nn, nt, nc = ks[x + 1]
                dep = [w]
                if nc != n:
                    self.span = 28 if name != 'A4' else 28
                    dep = [self.chunk_enter(R, nc, g0 + 1, [w])]
                if nn == 'A4' and nt == 0:
                    for l in f'''v_lshrrev_b32 v{T + 20}, 2, v{vLANE}
                    v_lshlrev_b32 v{T + 21}, 6, v{T + 20}
                    v_bfe_u32 v{T + 20}, v{vLANE}, 4, 1
                    v_xor_b32 v{T + 20}, s{sC}, v{T + 20}
                    v_lshl_add_u32 v{T + 21}, v{T + 20}, 5, v{T + 21}
                    v_and_b32 v{T + 20}, 3, v{vLANE}
                    v_lshl_add_u32 v{vLA0}, v{T + 20}, 3, v{T + 21}'''.split('\n'):
                        R.op(l, lo=g0 - 40)
                    self.base[vLA0] = 0
                reads = self.p_reads(R, nn, nc, nt, nbuf, dep)
            else:
                self.b_prepare(R, n0, w, g0)
            acc = accs[name]
            nf = 2 if name == 'A4' else 4
            for f in range(nf):
                for rs in range(4):
                    d = vr(acc + (f * 4 + rs) * 4)
                    c = d if t else '0'
                    a_, b_ = vr(buf + 4 * f), xn(4 * t + rs)
                    if name == 'Q' and f != 2:
                        a_, b_ = b_, a_
                    R.mfma(f'{MF} {d}, {a_}, {b_}, {c}', after=[w] if (f == 0 and rs == 0) else [])
            g1 = R.here
            if t == 17:
                if name == 'Q':
                    self.epi_qkv(R, acc)
                elif name == 'A4':
                    self.h_late = hst['A3'] + self.epi_glu(R, acc, True)
                else:
                    hst[name] = self.epi_glu(R, acc, False)
            if name == 'A1' and t == 13:
                self.kv_mfmas(R)
                self.kv_publish(R)
            if name == 'A1' and t == 17:
                self.flag_later(R, '1', self.kv_stores)
            if name == 'A1' and t == 4:
                self.chk0 = self.poll(R, 'clr', SB, '', 15, 16, g1, g1 + 60)
            if name == 'A2' and t == 4:
                self.chk1 = self.poll(R, 'kv', SW, self.flag_addr('1', False, sT2), 15, 1, g1, g1 + 60, after=[self.chk0, self.flags['1']])
            if name == 'A2' and t == 9:
                self.kv_gather(R, 0, ACC0 + 16, [self.chk1])
            if name == 'A3' and t == 7:
                self.kv_gather(R, 1, ACC1 + 16, [self.chk1])
            if name == 'A3' and t == 11:
                self.flag_later(R, '2a', hst['A0'] + hst['A1'] + hst['A2'])
            if name == 'A3' and t == 15:
                self.kv_finish(R, [ACC1 + 32, ACC1 + 36, ACC1 + 40])
            if name == 'A3' and t == 16:
                self.chk2a = self.poll(R, 'ha', SW, self.flag_addr('2a', False, sT2), 3, 1, g1, g1 + 50, after=[self.flags['2a']])
            if name == 'A4' and t == 9:
                self.o_stores = self.o_mfmas(R, ACC1 + 32)
            if name == 'A4' and t >= 6:
                self.h_loads(R, t - 6, [self.chk2a], g1)
        self.phase_b(R, n0)
        return R

    def h_loads(self, R, pos, after, lo):
        if pos in self.hl or pos >= self.o['hlook'] and not self.in_b:
            return
        R.op(f's_lshl_b32 s{sK4}, s{TB + pos}, 4\ns_add_u32 s{sK4}, s{sK4}, s{sHB}', lo=lo - 4)
        if not hasattr(self, 'vH'):
            self.vH = vA1
            R.op(f's_lshl_b32 s{sK5}, s{sWV}, 12', lo=lo - 30)
            R.op(f'v_add_u32 v{self.vH}, s{sK5}, v{vL16}', lo=lo - 30)
        ops = []
        for hh in range(2):
            for rho in range(2):
                n = 4 * pos + 2 * hh + rho
                if pos < 16:
                    ops.append(R.op(f'buffer_load_dwordx4 {xn(n)}, v{self.vH}, {sr(SW)}, s{sK4} offen offset:{2048 * hh + 1024 * rho} sc1', after=after, lo=lo, hi=lo + 30))
                else:
                    for k in range(2):
                        ops.append(R.op(f'buffer_load_dwordx2 {xn(n, 2 * k, 2)}, v{self.vH}, {sr(SW)}, s{sK4} offen offset:{2048 * hh + 1024 * k + 8 * rho} sc1', after=after, lo=lo, hi=lo + 30))
        self.hl[pos] = ops

    hl = {}
    in_b = False

    def b_prepare(self, R, n0, w, g0):
        R.op(f's_mul_i32 s{sK5}, s{sC}, 144', lo=g0 - 20)
        R.op(f'v_subrev_u32 v{vLB}, s{sK5}, v{vLB}', lo=g0 - 20)
        self.bbar = self.chunk_enter(R, n0, g0 + 1, [w])
        self.bq = []
        self.b_next = 0
        self.b_n0 = n0
        for _ in range(2):
            self.b_read(R, g0 + 1)

    def b_order(self):
        nt = self.o['ntail']
        seq = [(k, t) for k in range(36 - nt) for t in range(9)]
        seq += [(k, t) for t in range(9) for k in range(36 - nt, 36)]
        return seq

    def b_read(self, R, lo):
        seq = self.b_order()
        k, t = seq[self.b_next]
        n = self.b_n0 + (k >> 1)
        if n not in self.bars:
            self.span = 30
            self.chunk_enter(R, n, lo)
        off = self.slot[n] * CH + 9216 * (k & 1) + 32 * t
        slot = self.b_ring[self.b_next % len(self.b_ring)]
        self.bq.append(self.tr_pair(R, slot, vLB, off, 4608, [self.bars[n]], lo=lo))
        self.b_next += 1

    b_ring = [RING + 8, RING + 12, RING + 24, RING + 28, RING, RING + 4, RING + 16, RING + 20]

    def bacc(self, t, rho):
        i = 2 * t + rho
        return ACC0 + 4 * i if i < 16 else PQ + 4 * (i - 16)

    def phase_b(self, R, n0):
        self.in_b = True
        seq = self.b_order()
        AH = 6
        lastuse = {}
        for x, (k, t) in enumerate(seq):
            lastuse[k >> 1] = x
        self.stamp(R)
        R.op(f'''s_lshl_b32 s{sH0}, s{sI}, 2
        s_add_u32 s{sH0}, s{sH0}, s{sQ_}
        s_lshl_b32 s{sH0}, s{sH0}, 2
        s_add_u32 s{sH0}, s{sH0}, s{sWV}
        s_lshl_b32 s{sH0}, s{sH0}, 2
        s_add_u32 s{sH0}, s{sH0}, s{sJJ}
        s_mul_i32 s{sH0}, s{sH0}, 9216
        s_add_u32 s{sH0}, s{sH0}, {PART_BASE}''', lo=R.here + 300)
        R.op(f's_add_u32 s{sH1}, s{sH0}, 4096', lo=R.here + 300)
        self.part_stores = []
        done = {}
        seen = set()
        hw = {}
        w = None
        for x, (k, t) in enumerate(seq):
            g0 = R.here
            while self.b_next < min(len(seq), x + 1 + AH):
                self.b_read(R, g0)
            if self.b_next == len(seq) and x == len(seq) - 4:
                self.c_prepare(R, n0 + 18, g0)
            dep = []
            if x % 3 == 0:
                w = R.wait(sum(self.bq[x:x + 3], []), dist=3)
                dep.append(w)
                for c_, lu in lastuse.items():
                    if x <= lu < x + 3:
                        self.lastwait[n0 + c_] = w
            pos = k >> 1
            if pos not in hw:
                hw[pos] = R.wait(self.hl[pos])
                dep.append(hw[pos])
                nxt = pos + self.o['hlook']
                if nxt < 18:
                    self.h_loads(R, nxt, [self.chk2a] if nxt < 12 else [self.chk2b], g0)
                if pos == 0:
                    self.flag_later(R, '2o', self.o_stores)
                if pos == 3:
                    self.flag_later(R, '2b', self.h_late)
                if pos == 5:
                    self.chk2b = self.poll(R, 'hb', SW, self.flag_addr('2b', False, sT2), 3, 1, g0, g0 + 50, after=[self.flags['2b']])
                if pos == 8:
                    self.chk2o = self.poll(R, 'o', SW, self.flag_addr('2o', False, sT2), 15, 1, g0, g0 + 60, after=[self.flags['2o']])
                if pos == 12:
                    self.o_stage_load(R, g0)
                if pos == 13:
                    self.final_prefetch(R, g0)
            slot = self.b_ring[x % len(self.b_ring)]
            for rho in range(2):
                d = vr(self.bacc(t, rho))
                R.mfma(f'{MF} {d}, {vr(slot)}, {xn(4 * pos + 2 * (k & 1) + rho)}, {d if (t, rho) in seen else 0}', after=dep)
                seen.add((t, rho))
                dep = []
            if k == 35:
                done[t] = True
                if t == 8:
                    X = self.bacc(8, 0)
                    for rho in range(2):
                        a = self.bacc(8, rho)
                        R.op(f'v_cvt_pk_bf16_f32 v{X + 2 * rho}, v{a}, v{a + 1}', prio=40)
                        R.op(f'v_cvt_pk_bf16_f32 v{X + 2 * rho + 1}, v{a + 2}, v{a + 3}', prio=40)
                    R.op(f's_add_u32 s{sT0}, s{sH0}, 8192')
                    self.part_stores.append(R.op(f'buffer_store_dwordx4 {vr(X)}, v{vL16}, {sr(SW)}, s{sT0} offen sc1', prio=40))
                elif t & 1:
                    for rho in range(2):
                        X, Y = self.bacc(t - 1, rho), self.bacc(t, rho)
                        for kk, a in enumerate((X, X + 2, Y, Y + 2)):
                            R.op(f'v_cvt_pk_bf16_f32 v{X + kk}, v{a}, v{a + 1}', prio=40)
                        self.part_stores.append(R.op(f'buffer_store_dwordx4 {vr(X)}, v{vL16}, {sr(SW)}, s{sH0 + rho} offen offset:{1024 * (t >> 1)} sc1', prio=40))
        self.phase_c(R, n0 + 18)

    def o_stage_load(self, R, lo):
        buf = ACC1
        R.op(f'''s_lshl_b32 s{sT0}, s{sI}, 2
        s_add_u32 s{sT0}, s{sT0}, s{sJJ}
        s_lshl_b32 s{sT1}, s{sT0}, 15
        s_add_u32 s{sT1}, s{sT1}, {O_BASE}''', lo=lo - 10)
        self.o_ld = []
        for k in range(2):
            R.op(f'''s_lshl_b32 s{sT3}, s{sWV}, 1
            s_add_u32 s{sT3}, s{sT3}, s{sIL}
            s_add_u32 s{sT3}, s{sT3}, {k}
            s_and_b32 s{sT3}, s{sT3}, 7
            s_lshl_b32 s{sT3}, s{sT3}, 12
            s_add_u32 s{sT3}, s{sT3}, s{sT1}''', lo=lo - 10)
            for p in range(4):
                self.o_ld.append(R.op(f'buffer_load_dwordx4 {vr(buf + 16 * k + 4 * p)}, v{vL16}, {sr(SW)}, s{sT3} offen offset:{1024 * p} sc1', after=[self.chk2o], lo=lo))
        a = T + 16
        R.op(f'v_lshrrev_b32 v{a}, 4, v{vLANE}', lo=lo - 10)
        R.op(f'v_lshlrev_b32 v{a}, 8, v{a}', lo=lo - 10)
        R.op(f'v_and_b32 v{a + 1}, 15, v{vLANE}', lo=lo - 10)
        R.op(f'v_lshl_add_u32 v{a}, v{a + 1}, 2, v{a}', lo=lo - 10)
        R.op(f'''s_lshl_b32 s{sT0}, s{sT0}, 1
        s_add_u32 s{sT0}, s{sT0}, s{sC}
        s_lshl_b32 s{sT0}, s{sT0}, 1
        s_add_u32 s{sT0}, s{sT0}, s{sR}
        s_lshl_b32 s{sT0}, s{sT0}, 10
        s_add_u32 s{sT0}, s{sT0}, {OL_BASE}''', lo=lo - 10)
        for p in range(4):
            self.o_ld.append(R.op(f'buffer_load_dword v{buf + 32 + p}, v{a}, {sr(SW)}, s{sT0} offen offset:{64 * p} sc1', after=[self.chk2o], lo=lo))

    def final_prefetch(self, R, lo):
        XR = ACC1 + 36
        self.vXa, self.vXb, self.vO8 = vLA1, SC + 3, SC + 2
        a = T + 23
        for l in f'''v_and_b32 v{a}, 15, v{vLANE}
        s_lshl_b32 s{sT0}, s{sI}, 2
        s_add_u32 s{sT0}, s{sT0}, s{sJJ}
        s_lshl_b32 s{sT0}, s{sT0}, 5
        v_add_u32 v{self.vXb}, s{sT0}, v{a}
        v_mul_u32_u24 v{self.vXb}, 1152, v{self.vXb}
        v_lshrrev_b32 v{self.vXa}, 4, v{vLANE}
        v_lshl_add_u32 v{self.vXb}, v{self.vXa}, 3, v{self.vXb}
        s_mul_i32 s{sT0}, s{sQ_}, 288
        v_add_u32 v{self.vXb}, s{sT0}, v{self.vXb}
        s_lshl_b32 s{sT0}, s{sWV}, 6
        v_add_u32 v{self.vXa}, s{sT0}, v{self.vXb}
        s_min_u32 s{sT0}, s{sWV}, 1
        s_lshl_b32 s{sT0}, s{sT0}, 31
        v_or_b32 v{self.vO8}, s{sT0}, v{self.vXb}
        s_lshl_b32 s{sT0}, s{sJJ}, 7
        s_add_u32 s{sT0}, s{sT0}, {RS}
        v_lshl_add_u32 v{a}, v{a}, 2, s{sT0}
        s_mov_b32 s{sCNT + 4}, {16 * 1152}'''.split('\n'):
            R.op(l, lo=lo - 10)
        self.x_ld = []
        for rho in range(2):
            so = f's{sCNT + 4}' if rho else '0'
            for u, (va, imm) in enumerate(((self.vXa, 0), (self.vXa, 32), (self.vXb, 256))):
                self.x_ld.append(R.op(f'buffer_load_dwordx2 {vr(XR + 2 * (3 * rho + u), 2)}, v{va}, {sr(SX)}, {so} offen offset:{imm}', lo=lo))
        self.rs_ld = [R.op(f'ds_read_b32 v{SC + rho}, v{a} offset:{64 * rho}', lo=lo) for rho in range(2)]
        self.XR = XR

    def c_prepare(self, R, nO, g0):
        pass

    def phase_c(self, R, nO):
        g0 = R.here
        ost = (nO % NCH) * CH
        assert (nO + 1) % NCH == nO % NCH + 1
        a = T + 16
        buf = ACC1
        R.op(f's_lshl_b32 s{sT0}, s{sWV}, 13\ns_add_u32 s{sT0}, s{sT0}, {ost}', lo=g0 - 120)
        R.op(f'v_add_u32 v{a}, s{sT0}, v{vL16}', lo=g0 - 120)
        R.op(f's_lshl_b32 s{sT0}, s{sWV}, 10\ns_add_u32 s{sT0}, s{sT0}, {ost + 32768}', lo=g0 - 120)
        R.op(f'v_add_u32 v{a + 1}, s{sT0}, v{vL16}', lo=g0 - 120)
        fb = [self.free_bar[nO - NCH], self.free_bar[nO + 1 - NCH]]
        wl = R.wait(self.o_ld, late=False, lo=g0 - 110)
        ws = [R.op(f'ds_write_b128 v{a}, {vr(buf + 4 * p)} offset:{1024 * p}', after=fb + [wl], lo=g0 - 100) for p in range(8)]
        ws.append(R.op(f'ds_write_b128 v{a + 1}, {vr(buf + 32)}', after=fb + [wl], lo=g0 - 100))
        vO0, vO1, vLC = T + 17, T + 18, vLA0
        R.op(f'v_add_u32 v{vO0}, {ost}, v{vL16}', lo=g0 - 30)
        R.op(f'v_add_u32 v{vO1}, {ost + 8}, v{vL16}', lo=g0 - 30)
        R.op(f's_lshl_b32 s{sT0}, s{sWV}, 6', lo=g0 - 30)
        R.op(f'v_add_u32 v{vLC}, s{sT0}, v{vLB}', lo=g0 - 12)
        self.base[vLC] = self.base[vLB]
        self.pre_bar += ws

        self.span = 8
        nC = nO + 2
        AB = [RING, RING + 12]
        BB = [ACC1 + 48, ACC1 + 56]
        SA = ACC1

        def reads(k, lo):
            n = nC + (k >> 1)
            if n not in self.bars:
                self.chunk_enter(R, n, lo)
            bar = self.bars[n]
            off = self.slot[n] * CH + 9216 * (k & 1)
            out = []
            for f in range(3):
                out += self.tr_pair(R, AB[k & 1] + 4 * f, vLC if f < 2 else vLB, off + (32 * f if f < 2 else 256), 4608, [bar], lo=lo)
            for rho in range(2):
                d = vr(BB[k & 1] + 4 * rho)
                if k < 16:
                    out.append(R.op(f'ds_read2st64_b64 {d}, v{vO1 if rho else vO0} offset0:{4 * k} offset1:{4 * k + 2}', after=[bar], lo=lo, prio=10))
                else:
                    out.append(R.op(f'ds_read_b128 {d}, v{vO0} offset:{32768 + 2048 * (k - 16) + 1024 * rho}', after=[bar], lo=lo, prio=10))
            return out
        rd = reads(0, g0 - 3)
        self.stamp(R)
        for k in range(18):
            w = R.wait(rd, dist=2)
            if k & 1:
                self.lastwait[nC + (k >> 1)] = w
            g = R.here
            if k == self.o.get('f3k', 11):
                self.flag_later(R, '3', self.part_stores)
            if k + 1 < 18:
                rd = reads(k + 1, g + 1)
                for o in rd:
                    o.after.append((w, 0))
            for f in range(3):
                for rho in range(2):
                    d = vr(SA + 4 * (3 * rho + f))
                    R.mfma(f'{MF} {d}, {vr(AB[k & 1] + 4 * f)}, {vr(BB[k & 1] + 4 * rho)}, {d if k else 0}', after=[w] if f + rho == 0 else [], cap=3)
        self.SA = SA

    def final(self):
        L = self.lin.text
        vp = T + 19
        L(self.flag_addr('3', False, sT2))
        L(f'''v_and_b32 v{vPOLL}, 3, v{vLANE}
        v_lshlrev_b32 v{vPOLL}, 2, v{vPOLL}
        s_lshl_b32 s{sT0}, s{sI}, 2
        s_add_u32 s{sT0}, s{sT0}, s{sQ_}
        s_lshl_b32 s{sT0}, s{sT0}, 2
        s_add_u32 s{sT0}, s{sT0}, s{sJJ}
        s_mul_i32 s{sT0}, s{sT0}, {4 * 9216}
        s_add_u32 s{sT0}, s{sT0}, {PART_BASE}
        s_lshl_b32 s{sT1}, s{sWV}, 10
        v_add_u32 v{vA0}, s{sT1}, v{vL16}
        v_add_u32 v{vA1}, 4096, v{vA0}
        v_add_u32 v{vLL}, 8192, v{vL16}
        s_mov_b32 s{sCNT}, 0
        L_spin_p:
        buffer_load_dword v{vp}, v{vPOLL}, {sr(SW)}, s{sT2} offen sc1
        s_waitcnt vmcnt(0)
        v_cmp_ne_u32 vcc, 1, v{vp}
        s_cbranch_vccz L_got_p
        s_add_u32 s{sCNT}, s{sCNT}, 1
        s_cmp_lt_u32 s{sCNT}, {self.o['spin']}
        s_cbranch_scc1 L_spin_p
        L_got_p:''')
        self.stamp(None)
        PB = ACC0
        for piece, va in enumerate((vA0, vA1, vLL)):
            for pj in range(4):
                L(f's_add_u32 s{sT1}, s{sT0}, {pj * 9216}')
                L(f'buffer_load_dwordx4 {vr(PB + 16 * piece + 4 * pj)}, v{va}, {sr(SW)}, s{sT1} offen sc1')
        R = Region(cap=1000)
        tm = RING
        for piece in range(3):
            for half in range(2):
                rho, u = (piece, half) if piece < 2 else (half, 2)
                S = self.SA + 4 * (3 * rho + u)
                X = self.XR + 2 * (3 * rho + u)
                M = PQ + 4 * ((2 * piece + half) & 3)
                for e in range(4):
                    m = M + e
                    t0 = tm + 2 * e + 8 * (half)
                    for pj in range(4):
                        src = PB + 16 * piece + 4 * pj + 2 * half + (e >> 1)
                        dst = m if pj == 0 else t0
                        R.op(f'v_and_b32 v{dst}, 0xffff0000, v{src}' if e & 1 else f'v_lshlrev_b32 v{dst}, 16, v{src}')
                        if pj:
                            R.op(f'v_add_f32 v{m}, v{m}, v{t0}')
                    R.op(f'v_mul_f32 v{m}, v{SC + rho}, v{m}')
                    R.op(f'v_mul_f32 v{t0}, {hex(NLOG2E)}, v{m}')
                    R.op(f'v_exp_f32 v{t0}, v{t0}')
                    R.op(f'v_add_f32 v{t0}, 1.0, v{t0}')
                    R.op(f'v_rcp_f32 v{t0}, v{t0}')
                    R.op(f'v_mul_f32 v{m}, v{m}, v{S + e}')
                    src = X + (e >> 1)
                    R.op(f'v_and_b32 v{t0 + 1}, 0xffff0000, v{src}' if e & 1 else f'v_lshlrev_b32 v{t0 + 1}, 16, v{src}')
                    R.op(f'v_fma_f32 v{m}, v{m}, v{t0}, v{t0 + 1}')
                R.op(f'v_cvt_pk_bf16_f32 v{M}, v{M}, v{M + 1}')
                R.op(f'v_cvt_pk_bf16_f32 v{M + 1}, v{M + 2}, v{M + 3}')
                va, imm = ((self.vXa, 0), (self.vXa, 32), (self.vO8, 256))[u]
                so = f's{sCNT + 4}' if rho else '0'
                R.op(f'buffer_store_dwordx2 {vr(M, 2)}, v{va}, {sr(SO)}, {so} offen offset:{imm}')
        ops = R.ops
        for o in self.interleave(ops):
            self.lin.op(o)
        self.stamp(None)

    @staticmethod
    def interleave(ops):
        out, i = [], 0
        per = 15
        while i < len(ops):
            blk = ops[i:i + 4 * per]
            for k in range(per):
                for e in range(4):
                    out.append(blk[e * per + k])
            out += ops[i + 4 * per:i + 4 * per + 3]
            i += 4 * per + 3
        return out

    def build(self):
        self.hl = {}
        self.flags = {}
        self.build_stream()
        self.setup()
        self.stamp(None)
        for fn in (self.layernorm, self.main):
            R = fn()
            for o in R.schedule(self.log):
                self.lin.op(o)
            if self.o.get('prof'):
                ld = R.loads
                for g in range(0, R.nspine, 48):
                    xs = [ld[k] for k in range(g, min(g + 48, R.nspine))]
                    self.log.append(f'{g:5d} sum={sum(xs):4d} ' + ''.join(str(min(9, v)) for v in xs))
        self.final()
        self.lin.text('s_endpgm')
        body = list(self.lin.out)
        for s in self.slow:
            body += [l.strip() for l in s.split('\n')]
        body += ['L_end:', 's_endpgm']
        self.log.append(f'nops={self.lin.nops} autowaits={len(self.lin.autowaits)} instrs={len(body)}')
        hdr = open('cdna_kernels/' + NAME + '.s.ref').read().split('\n')
        head = [l for l in hdr if l.startswith(';') and '@launch' not in l and 'Override launch' not in l and 'grid=ceil' not in l
                and not l.startswith(';;')]
        head = head[:11]
        K = NAME + '_kernel'
        txt = head + [f'; @launch grid=(256,1,1) block=(256,1,1) lds={LDS_BYTES}',
                      '.amdgcn_target "amdgcn-amd-amdhsa--gfx950"', '.text', f'.globl {K}', '.p2align 8',
                      f'.type {K},@function', f'{K}:']
        txt += [l if l.endswith(':') else '    ' + l for l in body]
        txt += ['.section .rodata,"a"', '.p2align 6', f'.amdhsa_kernel {K}', '  .amdhsa_next_free_vgpr 512',
                '  .amdhsa_next_free_sgpr 102', '  .amdhsa_accum_offset 256', '  .amdhsa_group_segment_fixed_size 0',
                '  .amdhsa_kernarg_size 80', '  .amdhsa_float_denorm_mode_32 3', '  .amdhsa_user_sgpr_count 2',
                '  .amdhsa_user_sgpr_kernarg_segment_ptr 1', '  .amdhsa_system_sgpr_workgroup_id_x 1',
                '.end_amdhsa_kernel']
        return '\n'.join(txt) + '\n'


if __name__ == '__main__':
    import argparse
    ap = argparse.ArgumentParser()
    ap.add_argument('out')
    ap.add_argument('--stamps', action='store_true')
    ap.add_argument('-o', action='append', default=[])
    a = ap.parse_args()
    opts = {k: int(v) for k, v in (x.split('=') for x in a.o)}
    g = Gen(stamps=a.stamps, opts=opts)
    open(a.out, 'w').write(g.build())
    print('\n'.join(g.log))
    for t in g.lin.autowaits[:400]:
        print('  autowait:', t)
```

```python
import re

RE_REG = re.compile(r'^(-|\|)?(?:abs\()?([vas])(\d+)\)?\|?$')
RE_RNG = re.compile(r'^-?([vas])\[(\d+):(\d+)\]$')


def regs_of(tok):
    tok = tok.strip()
    m = RE_RNG.match(tok)
    if m:
        return [f'{m.group(1)}{i}' for i in range(int(m.group(2)), int(m.group(3)) + 1)]
    m = RE_REG.match(tok)
    if m:
        return [f'{m.group(2)}{m.group(3)}']
    if tok in ('vcc', 'm0', 'exec', 'scc'):
        return [tok]
    if tok in ('vcc_lo', 'vcc_hi'):
        return ['vcc']
    if tok in ('exec_lo', 'exec_hi'):
        return ['exec']
    return []


TRANS = ('v_exp_f32', 'v_log_f32', 'v_rcp_f32', 'v_rsq_f32', 'v_sqrt_f32')
SCC_W = ('s_addk_', 's_add_', 's_addc_', 's_sub_', 's_subb_', 's_and_', 's_or_', 's_xor_', 's_andn2_', 's_lshl_', 's_lshr_',
         's_ashr_', 's_bfe_', 's_min_', 's_max_', 's_cmp_', 's_not_', 's_bitcmp')


class Ins:
    def __init__(self, text):
        self.text = text.strip()
        t = self.text
        self.reads, self.writes = set(), set()
        self.kind = 'other'
        self.srcc = set()
        self.store_data = set()
        self.wide = False
        if t.endswith(':'):
            self.kind = 'label'
            self.op = ''
            return
        parts = t.split(None, 1)
        op = self.op = parts[0]
        rest = parts[1] if len(parts) > 1 else ''
        toks = [x.strip() for x in rest.split(',')] if rest else []
        mods = []
        if toks:
            last = toks[-1].split()
            toks[-1] = last[0] if last else ''
            mods = last[1:]
        R = lambda i: regs_of(toks[i]) if i < len(toks) else []
        if op.startswith('v_mfma'):
            self.kind = 'mfma'
            self.writes |= set(R(0))
            self.reads |= set(R(1) + R(2) + R(3))
            self.srcc = set(R(3))
            self.ab = set(R(1) + R(2))
        elif op.startswith('ds_read') or op.startswith('ds_bpermute'):
            self.kind = 'dsr'
            self.writes |= set(R(0))
            for i in range(1, len(toks)):
                self.reads |= set(R(i))
        elif op.startswith('ds_write'):
            self.kind = 'dsw'
            for i in range(len(toks)):
                self.reads |= set(R(i))
        elif op.startswith('buffer_load') or op.startswith('global_load'):
            if 'lds' in mods:
                self.kind = 'dma'
                for i in range(len(toks)):
                    self.reads |= set(R(i))
                self.reads.add('m0')
            else:
                self.kind = 'vload'
                self.writes |= set(R(0))
                for i in range(1, len(toks)):
                    self.reads |= set(R(i))
        elif op.startswith('buffer_store') or op.startswith('buffer_atomic'):
            self.kind = 'vstore'
            for i in range(len(toks)):
                self.reads |= set(R(i))
            self.store_data = set(R(0))
            self.wide = 'x4' in op or 'x3' in op
        elif op.startswith('v_'):
            self.kind = 'valu'
            base = op.replace('_e32', '').replace('_e64', '')
            if base in TRANS:
                self.kind = 'trans'
            if base.startswith('v_cmp'):
                self.writes |= set(R(0))
                for i in range(1, len(toks)):
                    self.reads |= set(R(i))
            elif base.startswith('v_swap'):
                self.writes |= set(R(0) + R(1))
                self.reads |= set(R(0) + R(1))
            elif base.startswith('v_permlane'):
                self.writes |= set(R(0) + R(1))
                self.reads |= set(R(0) + R(1))
                self.kind = 'permlane'
            elif base.startswith(('v_add_co', 'v_sub_co', 'v_addc_co')):
                self.writes |= set(R(0) + R(1))
                for i in range(2, len(toks)):
                    self.reads |= set(R(i))
            else:
                self.writes |= set(R(0))
                for i in range(1, len(toks)):
                    self.reads |= set(R(i))
                if base.startswith(('v_fmac', 'v_dot2c')):
                    self.reads |= set(R(0))
            if base in ('v_readfirstlane_b32', 'v_readlane_b32'):
                self.kind = 'readlane'
        elif op.startswith('s_load') or op in ('s_memtime', 's_memrealtime'):
            self.kind = 'smem'
            self.writes |= set(R(0))
            for i in range(1, len(toks)):
                self.reads |= set(R(i))
        elif op == 's_waitcnt':
            self.kind = 'waitcnt'
        elif op == 's_barrier':
            self.kind = 'barrier'
        elif op == 's_nop':
            self.kind = 'nop'
        elif op.startswith('s_cbranch') or op == 's_branch':
            self.kind = 'branch'
            if 'scc' in op:
                self.reads.add('scc')
            if 'vcc' in op:
                self.reads.add('vcc')
        elif op in ('s_endpgm', 's_sleep', 's_setprio'):
            self.kind = 'misc'
        elif op.startswith('s_'):
            self.kind = 'salu'
            if op.startswith('s_cmp') or op.startswith('s_bitcmp'):
                for i in range(len(toks)):
                    self.reads |= set(R(i))
            else:
                self.writes |= set(R(0))
                for i in range(1, len(toks)):
                    self.reads |= set(R(i))
            if op.startswith('s_addk'):
                self.reads |= set(R(0))
            if toks and toks[0] == 'vcc_hi':
                self.reads.add('vcc')
            if op.startswith(SCC_W):
                self.writes.add('scc')
            if op.startswith(('s_cselect', 's_addc', 's_subb')):
                self.reads.add('scc')
        else:
            raise ValueError('unknown instruction ' + t)
        if self.kind in ('valu', 'trans', 'permlane', 'mfma', 'dsr', 'dsw', 'dma', 'vload', 'vstore', 'readlane'):
            self.reads.add('exec')

    @property
    def is_valu(self):
        return self.kind in ('valu', 'trans', 'permlane', 'readlane')

    @property
    def cost(self):
        if self.kind == 'label':
            return 0
        if self.kind == 'trans':
            return 2
        return 1


class Op:
    n = 0

    def __init__(self, text=None, wait=None, spine=False, lo=None, hi=None, after=(), rd=(), wr=(), prio=0, tag='',
                 late=False, cost=None, cap=None, pipe=0, noexec=False):
        self.id = Op.n
        Op.n += 1
        self.ins = [Ins(x) for x in text.split('\n') if x.strip()] if text else []
        self.wait = wait
        self.spine = spine
        self.lo, self.hi = lo, hi
        self.after = [(x, 0) if isinstance(x, Op) else x for x in after]
        self.prio = prio
        self.tag = tag
        self.late = late
        self.cap = cap
        self.pipe = pipe
        w, r = set(), set()
        for i in self.ins:
            r |= (i.reads - w)
            w |= i.writes
        self.reads = r | set(rd)
        self.writes = w | set(wr)
        self.maybe = noexec
        if noexec:
            self.writes.discard('exec')
        if len(self.ins) > 0 and 'scc' in self.writes and 'scc' not in self.reads:
            self.scc_clobber = True
        self.cost = cost if cost is not None else (1 if wait is not None else sum(i.cost for i in self.ins))
        self.gap = None

    def kinds(self):
        return {i.kind for i in self.ins}

    @property
    def res(self):
        k = self.kinds()
        if k & {'dsr', 'dsw'}:
            return 'lds'
        if k & {'dma', 'vload', 'vstore'}:
            return 'vm'
        return None


class Region:
    def __init__(self, cap=2, backlog=400, gapc=17.5, pipe0=0, hwq=600, spread=False, vprio=0, vfrom=0):
        self.vfrom = vfrom
        self.vprio = vprio
        self.spread = spread
        self.hwq = hwq
        self.backlog, self.gapc, self.pipe0 = backlog, gapc, pipe0
        self.ops = []
        self.nspine = 0
        self.cap = cap

    def add(self, op):
        if op.spine:
            op.sidx = self.nspine
            self.nspine += 1
        self.ops.append(op)
        return op

    def mfma(self, text, **kw):
        return self.add(Op(text, spine=True, **kw))

    def op(self, text, **kw):
        lines = [l.strip() for l in text.split('\n') if l.strip()]
        if len(lines) == 1 or kw.pop('atomic', False):
            return self.add(Op(text, **kw))
        groups = []
        for l in lines:
            if groups and 'scc' in Ins(l).reads:
                groups[-1] += '\n' + l
            else:
                groups.append(l)
        for g in groups:
            last = self.add(Op(g, **kw))
        return last

    def wait(self, ops, **kw):
        kw.setdefault('late', True)
        dist = kw.pop('dist', 0)
        pairs = [o if isinstance(o, tuple) else (o, dist) for o in ops]
        after = list(kw.pop('after', ())) + pairs
        return self.add(Op(None, wait=[o for o, _ in pairs], after=after, **kw))

    @property
    def here(self):
        return self.nspine - 1

    def schedule(self, log=None):
        ops = self.ops
        last_w, readers = {}, {}
        for o in ops:
            o.pred = {}
            o.succ = {}

        mine = set(ops)

        def edge(a, b, d):
            if a is b or a not in mine:
                return
            b.pred[a] = max(b.pred.get(a, -1), d)
            a.succ[b] = max(a.succ.get(b, -1), d)

        for o in ops:
            for r in o.reads:
                if r == 'scc':
                    continue
                p = last_w.get(r)
                if p is not None:
                    d = 0
                    if p.spine and not o.spine:
                        d = 3
                    elif 'trans' in p.kinds() and not o.spine:
                        d = 1
                    elif 'permlane' in o.kinds() or r in ('m0', 'vcc'):
                        d = 1
                    elif o.spine and not p.spine and p.kinds() & {'valu', 'trans', 'permlane'}:
                        d = 1
                    edge(p, o, d)
            for r in o.writes:
                if r == 'scc':
                    continue
                p = last_w.get(r)
                if p is not None:
                    edge(p, o, 3 if (p.spine and not o.spine) else 0)
                for q in readers.get(r, ()):
                    d = 0
                    if q.spine and not o.spine and r in q.ins[0].srcc:
                        d = 1
                    if 'vstore' in q.kinds():
                        d = 1
                    edge(q, o, d)
            for r in o.reads:
                readers.setdefault(r, []).append(o)
            for r in o.writes:
                last_w[r] = o
                readers[r] = []
            for p, d in o.after:
                edge(p, o, d)
        NG = self.nspine
        for o in ops:
            if o.spine:
                o.gap = o.sidx
        order = ops
        for o in order:
            if o.spine:
                o.es = o.sidx
                continue
            e = -1 if o.lo is None else o.lo
            e0 = -1
            for p, d in o.pred.items():
                e = max(e, p.es + d)
                e0 = max(e0, p.es)
            if o.hi is not None:
                e = min(e, max(o.hi, e0))
            o.es = min(e, NG - 1)
        for o in reversed(order):
            if o.spine:
                o.ls = o.sidx
                continue
            l = NG - 1 if o.hi is None else o.hi
            for s, d in o.succ.items():
                l = min(l, (s.sidx - 1 - d) if s.spine else (s.ls - d))
            o.ls = l
        hard = {}
        for o in reversed(order):
            if o.spine:
                continue
            l = NG - 1
            for s, d in o.succ.items():
                l = min(l, (s.sidx - 1) if s.spine else hard[s])
            hard[o] = l
        for o in order:
            if not o.spine:
                lo_hard = -1
                for p in o.pred:
                    if p.spine:
                        lo_hard = max(lo_hard, p.sidx)
                if lo_hard > hard[o]:
                    raise RuntimeError(f'infeasible op {o.tag} {o.ins[0].text if o.ins else o.wait}')
                o.es = min(o.es, hard[o])
                o.ls = min(max(o.ls, o.es, lo_hard), hard[o])
        pend = [o for o in ops if not o.spine]
        for o in reversed(pend):
            if o.pipe or (o.succ and o.kinds() <= {'salu'} and any(getattr(x, 'boost', False) for x in o.succ)):
                o.boost = True
                if o.es >= self.vfrom:
                    o.prio = max(o.prio, self.vprio)
        for o in pend:
            o.npred = sum(1 for p in o.pred if not p.spine)
        byes = {}
        for o in pend:
            byes.setdefault(o.ls if o.late else o.es, []).append(o)
        spine = [o for o in ops if o.spine]
        due = {}
        for o in pend:
            due[o.ls] = due.get(o.ls, 0) + o.cost
        avail = []
        gaps = {}
        placed = 0
        over = 0
        now = 0.0
        busy = self.pipe0
        self.pipe_trace = {}
        self.time_at = {}
        self.slot_t = {}
        self.forced_pipe = 0
        for g in range(-1, NG):
            avail += byes.pop(g, [])
            load = 0
            lst = []
            used = set()
            cap = self.cap
            if g >= 0 and spine[g].cap is not None:
                cap = spine[g].cap
            base_cap = cap
            if self.spread and g >= 0:
                for H in (8, 16, 32, 64, 128):
                    dem = sum(due.get(k, 0) for k in range(g, g + H + 1))
                    room = sum((spine[k].cap or self.cap) for k in range(g, min(NG, g + H + 1)))
                    if dem > room:
                        cap = max(cap, base_cap + min(2, -(-(dem - room) // (H + 1))))
            while True:
                best = None
                for o in avail:
                    if o.npred:
                        continue
                    forced = o.ls <= g
                    ok = True
                    if not forced:
                        for p, d in o.pred.items():
                            if p.gap + d > g:
                                ok = False
                                break
                        if ok and load + o.cost > cap and not (load == 0 and o.cost > cap):
                            ok = False
                        if ok and base_cap <= 2 and o.res in used and not (o.res == 'lds' and g >= 0 and spine[g].tag == 'lds2'):
                            ok = False
                        if ok and o.pipe and busy - now > self.backlog:
                            ok = False
                    if ok:
                        key = (o.ls - o.prio, o.id)
                        if best is None or key < bkey:
                            best, bkey = o, key
                if best is None:
                    break
                avail.remove(best)
                best.gap = g
                lst.append(best)
                load += best.cost
                due[best.ls] -= best.cost
                if best.res:
                    used.add(best.res)
                if best.pipe:
                    if busy - now > self.backlog:
                        self.forced_pipe += 1
                        now = max(now, busy - self.hwq)
                    busy = max(busy, now) + best.pipe
                placed += 1
                for s in best.succ:
                    if not s.spine:
                        s.npred -= 1
            waits_last = [o for o in lst]
            gaps[g] = waits_last
            over += max(0, load - base_cap)
            self.pipe_trace[g] = busy - now
            self.time_at[g] = now
            self.slot_t[g] = (self.slot_t.get(g - 1, 0) + max(16, 8 + 4 * load))
            now += max(self.gapc, 8 + 4 * load)
        assert placed == len(pend), (placed, len(pend), [(o.tag, o.es, o.ls) for o in avail][:10])
        out = list(gaps[-1])
        spine = [o for o in ops if o.spine]
        for s in spine:
            out.append(s)
            out += gaps[s.sidx]
        pos = {o: i for i, o in enumerate(out)}
        for o in out:
            for p in o.pred:
                assert pos[p] < pos[o], ('order violated', p.tag, o.tag)
        if log is not None:
            log.append(f'region: spine={NG} fillers={len(pend)} slots={sum(o.cost for o in pend)} over={over} forced_pipe={self.forced_pipe} est_cycles={now:.0f}')
        self.loads = {g: sum(o.cost for o in l) for g, l in gaps.items()}
        return out


class Linear:
    def __init__(self):
        self.out = []
        self.vm = []
        self.lg = []
        self.hist = []
        self.nops = 0
        self.autowaits = []
        self.seq = {}
        self.probe = None
        self.probe_names = []
        self.probe_vm = False
        self.probe_skip = 0
        self.probe_open = False
        self.probe_pend = False

    def _pending(self, q, regs):
        hit = -1
        for idx, (op, ins) in enumerate(q):
            if ins.writes & regs:
                hit = idx
        return hit

    def _emit_wait(self, vm=None, lg=None):
        parts = []
        if lg:
            lg -= sum(1 for p, _ in self.lg[len(self.lg) - lg:] if p is not None and p.maybe)
        if vm is not None:
            assert vm <= 63, vm
            parts.append(f'vmcnt({vm})')
            self.vm = self.vm[len(self.vm) - vm:] if vm else []
        if lg is not None:
            lg = min(lg, 15)
            parts.append(f'lgkmcnt({lg})')
            self.lg = self.lg[len(self.lg) - lg:] if lg else []
        if parts:
            self._raw(Ins('s_waitcnt ' + ' '.join(parts)))
        if lg == 0 and self.probe_pend:
            self._probe_flush()

    def _probe_flush(self):
        k = len(self.probe_names) - 1
        self.probe_pend = False
        self._raw(Ins('s_sub_u32 s0, s2, s0'))
        self._raw(Ins(f'v_writelane_b32 v{self.probe + k // 64}, s0, {k % 64}'))

    def _probe_begin(self, name):
        if self.probe_pend:
            self._emit_wait(None, 0)
        self.probe_names.append(name)
        self.ins(Ins('s_memtime s[0:1]'))
        self.probe_open = True

    def _probe_end(self):
        self.probe_open = False
        self.ins(Ins('s_memtime s[2:3]'))
        self.probe_pend = True

    def _raw(self, ins):
        self.out.append(ins.text)
        if ins.kind == 'label':
            return
        n = int(ins.text.split()[1]) + 1 if ins.kind == 'nop' else 1
        self.hist.append((ins, n))
        if len(self.hist) > 40:
            self.hist.pop(0)

    def _need(self, p, c):
        vw = {r for r in p.writes if r[0] in 'va' and r != 'vcc'}
        sw = {r for r in p.writes if r[0] == 's' or r == 'vcc'} - {'scc'}
        n = 0
        if p.kind == 'mfma':
            big = '32x32' in p.op
            if c.kind == 'mfma':
                if c.ab & vw:
                    n = max(n, 12 if big else 8)
                if c.srcc & vw and c.srcc != vw:
                    n = max(n, 10 if big else 6)
            elif (c.reads | c.writes) & vw:
                n = max(n, 12 if big else 8)
            if c.is_valu and c.writes & p.srcc:
                n = max(n, 7 if big else 3)
        if p.is_valu:
            if c.kind == 'mfma' and c.reads & vw:
                n = max(n, 2)
            if p.kind == 'trans' and c.is_valu and c.reads & vw:
                n = max(n, 1)
            if c.kind == 'permlane' and c.reads & vw:
                n = max(n, 2)
            if c.kind == 'readlane' and c.reads & vw:
                n = max(n, 1)
            if c.is_valu and c.reads & sw:
                n = max(n, 2)
            if c.kind in ('dma', 'vload', 'vstore') and c.reads & sw:
                n = max(n, 5)
            if c.kind == 'salu' and c.reads & sw:
                n = max(n, 2)
            if p.op.startswith('v_dot2') and not c.op.startswith('v_dot2') and (c.reads | c.writes) & vw:
                n = max(n, 3)
        if p.kind == 'vstore' and p.wide and c.writes & p.store_data:
            n = max(n, 2)
        if p.kind == 'salu' and 'm0' in p.writes and c.kind == 'dma':
            n = max(n, 1)
        if p.kind == 'salu' and 'exec' in p.writes and c.kind == 'mfma':
            n = max(n, 1)
        return n

    def ins(self, ins, op=None):
        if ins.kind == 'label':
            self._raw(ins)
            return
        if ins.kind == 'waitcnt':
            m = re.search(r'vmcnt\((\d+)\)', ins.text)
            if m:
                k = int(m.group(1))
                self.vm = self.vm[len(self.vm) - k:] if 0 < k < len(self.vm) else ([] if k == 0 else self.vm)
            m = re.search(r'lgkmcnt\((\d+)\)', ins.text)
            if m:
                k = int(m.group(1))
                if any(i.kind == 'smem' for _, i in self.lg):
                    assert k == 0
                self.lg = self.lg[len(self.lg) - k:] if 0 < k < len(self.lg) else ([] if k == 0 else self.lg)
            self._raw(ins)
            return
        touched = (ins.reads | ins.writes) - {'exec', 'scc'}
        hv = self._pending(self.vm, touched)
        hl = self._pending(self.lg, touched)
        if ins.kind == 'vload' and hv >= 0 and not (ins.reads & set().union(*[i.writes for _, i in self.vm])):
            hv = -1
        if hv >= 0 or hl >= 0:
            lgn = None
            if hl >= 0:
                lgn = 0 if any(i.kind == 'smem' for _, i in self.lg) else len(self.lg) - 1 - hl
            self.autowaits.append(ins.text)
            self._emit_wait(len(self.vm) - 1 - hv if hv >= 0 else None, lgn)
        need = 0
        dist = 0
        for p, n in reversed(self.hist):
            need = max(need, self._need(p, ins) - dist)
            dist += n
            if dist >= 20:
                break
        if need > 0:
            self.nops += need
            self._raw(Ins(f's_nop {need - 1}'))
        self._raw(ins)
        if ins.kind in ('dma', 'vload', 'vstore'):
            self.vm.append((op, ins))
            assert len(self.vm) <= 200
        elif ins.kind in ('dsr', 'dsw', 'smem'):
            self.lg.append((op, ins))

    def op(self, o):
        isbar = o.wait is None and o.ins[0].kind == 'barrier'
        if self.probe_open and not isbar:
            self._probe_end()
        isvm = o.wait is None and o.res == 'vm'
        if self.probe is not None and len(self.probe_names) < 192:
            if self.probe_vm:
                if isvm or isbar or (o.wait is not None and any(p in set(o.wait) for p, _ in self.vm)):
                    self.probe_skip -= 1
                    if self.probe_skip < 0:
                        self._probe_begin(('bar:' + o.tag) if isbar else ('w:' + o.tag) if not isvm else o.ins[0].kind + (':' + o.tag if o.tag else ''))
                        isbar = True
            elif isbar and not self.probe_open:
                self._probe_begin('bar:' + o.tag)
            elif o.wait is not None and any(p in set(o.wait) for p, _ in self.vm):
                self._probe_begin(o.tag or 'w')
        self._op(o)
        if isbar and self.probe_open:
            self._probe_end()

    def _op(self, o):
        if o.wait is not None:
            tgt = set(o.wait)
            hv = max([i for i, (p, _) in enumerate(self.vm) if p in tgt], default=-1)
            hl = max([i for i, (p, _) in enumerate(self.lg) if p in tgt], default=-1)
            lgn = None
            if hl >= 0:
                lgn = 0 if any(i.kind == 'smem' for _, i in self.lg) else len(self.lg) - 1 - hl
            vmn = None
            if hv >= 0:
                vmn = min(63, len(self.vm) - 1 - hv)
            self._emit_wait(vmn, lgn)
            return
        for i in o.ins:
            self.ins(i, o)

    def text(self, s):
        for l in s.split('\n'):
            if l.strip():
                self.ins(Ins(l))
```

```python
import sys
from sched import Region, Linear, Op, Ins

NAME = 'recurrent_scan__linear_attn_block__glu_gated_glu__prompt'
MF = 'v_mfma_f32_16x16x32_bf16'
LOG2E = 0x3fb8aa3b
NLOG2E = 0xbfb8aa3b
EPS6 = 0x358637bd
OOB = 0x80000000

F1, F2A, F2B, F3, F2O, F2C = 0, 4096, 4096 + 8192, 4096 + 16384, 4096 + 24576, 4096 + 32768
F2D = 4096 + 40960
KV2_BASE = 0x100000
KV_BASE, OL_BASE, O_BASE, PART_BASE, H_BASE = 0x20000, 0x200000, 0x300000, 0x500000, 0x1000000
DUMP_BASE = 0x2400000
WS_SIZE = 0x4000000
RS = 159744
QL = 160256
DUMMY = 162304
LDS_BYTES = 163840

SX, SG, SU, SQ, SD, SW, SO, SB, SWO = 4, 8, 12, 16, 20, 24, 28, 32, 36
sI, sJ, sJJ, sQ_, sIL, sWV, sR, sC = 40, 41, 42, 43, 44, 45, 46, 47
KA, KQ, TB = 48, 57, 66
sMA, sM2, sH0, sH1, sT0, sT1, sT2, sT3 = 84, 85, 86, 87, 88, 89, 90, 91
sMASKC, sMASKONE, sMK2, sMK3 = 92, 94, 32, 34
sHB, sCNT, sK3, sK4, sK5 = 96, 97, 98, 99, 100
sS0 = 0
sJQ = 101
sEPS = SQ + 3
sIH = 3
sCNT2 = TB + 9
sCL2 = sM2
sCNT2X = sM2
sST = 76
ACC0, ACC1, XNV, RING = 0, 64, 128, 160
PQ = 192
SC = 208
vL16, vA0, vA1, vLA0, vLA1, vLB, vLL = 212, 213, 214, 215, 216, 217, 218
P_A, P_AH, P_Q, P_B, P_H, P_S = 76, 160, 175, 100, 80, 240
V288 = 219
vFST, vONE, vLANE, vPOLL = 224, 225, 226, 227
T = 228
NT = 28
PSTR = 10240
XR_ = 18432
PRB = 'probe'
PRV = T + 25
V_G0, V_G1 = T + 10, T + 6
VQ = [vLL, T, T + 1, V288 + 4]


def vr(b, n=4):
    return f'v[{b}:{b + n - 1}]' if n > 1 else f'v{b}'


def sr(b, n=4):
    return f's[{b}:{b + n - 1}]'


def xn(n, lo=0, cnt=4):
    if n < 64:
        return f'a[{4 * n + lo}:{4 * n + lo + cnt - 1}]'
    return vr(XNV + 4 * (n - 64) + lo, cnt)


class Gen:
    def __init__(self, ns, stamps=False, opts=None):
        self.ns = ns
        self.nt = 8 if ns == 5 else 10
        self.CH, self.NCH = (18432, 8) if ns == 5 else (20480, 7)
        self.KVX = self.CH * self.NCH
        self.order = ('A0', 'Q', 'A1', 'A2', 'A3', 'A4')[:ns + 1]
        self.LB, self.OB = (ACC1, ACC0) if ns == 5 else (ACC0, ACC1)
        self.sfx = f'_{ns}'
        self.jump = (2, 0, -4, 0) if ns == 5 else (1, 0, -3)
        self.stamps = stamps
        self.o = dict(ntail=4, f3k=3, ppf=600, hlook=7, pkv=90, warm=True, spin=200000, ddma=50, dst=70, backlog=60, dh=50, dm=110)
        self.o.update(opts or {})
        self.lin = Linear()
        self.slow = []
        self.log = []
        self.nstamp = 0
        self.marks = []
        self.spool = 0
        self.stamp_names = []

    def setup(self):
        L = self.lin.text
        st = self.stamps
        hi = self.o.get('hicls', 0)
        L(f'''
        {'s_memrealtime s[76:77]' if st else ''}
        s_load_dwordx4 s[4:7], s[0:1], 0
        s_load_dwordx4 s[32:35], s[0:1], 64
        s_getpc_b64 s[{sT2}:{sT3}]
        L_pc{self.sfx}:
        s_lshr_b32 s{sT1}, s2, 3
        v_and_b32 v{vLANE}, 63, v0
        v_lshrrev_b32 v1, 6, v0
        {f's_and_b32 s{sT0}, s{sT1}, 15' if hi else f's_lshr_b32 s{sT0}, s2, 4'}
        {'' if hi else f's_and_b32 s{sT0}, s{sT0}, 14'}
        {'' if hi else f's_bfe_u32 s{sK3}, s2, 0x10003'}
        {'' if hi else f's_or_b32 s{sT0}, s{sT0}, s{sK3}'}
        v_lshl_add_u32 v2, v{vLANE}, 4, s{sT0}
        v_readfirstlane_b32 s{sWV}, v1
        v_lshlrev_b32 v2, 7, v2
        v_min_u32 v2, L_stop{self.sfx}-L_pc{self.sfx}, v2
        v_cmp_gt_u32 vcc, {32 if self.o['warm'] else 0}, v0
        s_and_saveexec_b64 s[{sK3}:{sK4}], vcc
        s_cbranch_execz L_nowarm{self.sfx}
        global_load_dword v{T + 27}, v2, s[{sT2}:{sT3}]
        L_nowarm{self.sfx}:
        s_mov_b64 exec, -1''')
        self.lin.vm.pop()
        L(f'''
        s_and_b32 s{sQ_}, s{sT1}, {1 if hi else 3}
        {(f's_mul_i32 s{sQ_}, s{sQ_}, 3' if self.ns == 5 else f's_add_u32 s{sQ_}, s{sQ_}, 1') if hi else ''}
        {f's_bfe_u32 s{sIL}, s{sT1}, 0x30001' if hi else f's_lshr_b32 s{sIL}, s{sT1}, 2'}
        s_and_b32 s{sT0}, s2, 1
        s_lshl_b32 s{sT0}, s{sT0}, 3
        s_add_u32 s{sI}, s{sT0}, s{sIL}
        s_lshl_b32 s{sT0}, s{sQ_}, 1
        s_add_u32 s{sT0}, s{sT0}, s{sIL}
        s_sub_u32 s{sT2}, s{sT0}, 9
        s_cselect_b32 s{sT0}, s{sT0}, s{sT2}
        s_lshl_b32 s{TB}, s{sT0}, 7
        s_lshl_b32 s{sT1}, s{sI}, 2
        s_add_u32 s{sT1}, s{sT1}, s{sWV}
        s_lshl_b32 s{sT1}, s{sT1}, 5
        v_lshrrev_b32 v4, 3, v{vLANE}
        v_add_u32 v4, s{sT1}, v4
        v_mul_u32_u24 v4, 1152, v4
        v_bfe_u32 v5, v{vLANE}, 4, 2
        v_lshlrev_b32 v5, 1, v5
        v_and_b32 v6, 7, v{vLANE}
        v_xor_b32 v{vA0}, v5, v6
        v_lshl_add_u32 v{T + 2}, v{vA0}, 4, v4
        v_add_u32 v{T + 3}, {8 * 1152 - 1024}, v{T + 2}
        v_add_u32 v{T + 4}, {16 * 1152}, v{T + 2}
        v_add_u32 v{T + 5}, {24 * 1152 - 1024}, v{T + 2}
        s_mul_i32 s{sM2}, s{sWV}, {XR_}
        s_add_u32 s{sM2}, s{sM2}, 16384
        s_add_u32 s{sCNT2}, s{sM2}, {4 * XR_}
        v_mov_b32 v{T + 25}, v0''')
        for u in range(1, 9):
            L(f'''s_add_u32 s{TB + u}, s{TB + u - 1}, 128
            s_cmp_eq_u32 s{TB + u}, 1152
            s_cselect_b32 s{TB + u}, 0, s{TB + u}''')
        L(f'''
        s_load_dwordx2 s[36:37], s[0:1], 16
        s_load_dwordx4 s[8:11], s[0:1], 32
        s_load_dwordx4 s[20:23], s[0:1], 48
        {'s_memrealtime s[78:79]' if st else ''}
        s_waitcnt lgkmcnt(0)
        {'s_memrealtime s[80:81]' if st else ''}
        s_mov_b32 s{SQ}, s6
        s_mov_b32 s{SQ + 1}, s7
        s_mov_b32 s6, {2048 * 1152}
        s_mov_b32 s7, 0x20000''')
        self.xl = {}
        nf = self.o.get('xfirst', 3)
        order = [(0, u) for u in range(nf)] + [(1, u) for u in range(nf)]
        order += [(0, u) for u in range(nf, 9)] + [(1, u) for u in range(nf, 9)]
        pend = []
        for rho, u in order:
            pend.append(Op(f's_add_u32 m0, s{sCNT2 if rho else sM2}, {2048 * u}'))
            for hf in range(2):
                op = Op(f'buffer_load_dwordx4 v{T + 2 + 2 * rho + hf}, {sr(SX)}, s{TB + u} offen offset:{1024 * hf} lds')
                self.xl[rho, u, hf] = op
                pend.append(op)
        for _ in range(6 * nf):
            self.lin.op(pend.pop(0))
        if st:
            L('s_memrealtime s[82:83]')
        S = Region()
        L = S.op
        L(f'''
        s_mov_b32 s{SW}, s34
        s_mov_b32 s{SW + 1}, s35
        s_mov_b32 s{SW + 2}, {WS_SIZE}
        s_mov_b32 s{SW + 3}, 0x20000
        s_bfe_u32 s{sJJ}, s2, 0x20001
        s_lshl_b32 s{sJ}, s{sJJ}, 2
        s_and_b32 s{sT0}, s{sQ_}, 2
        s_add_u32 s{sJ}, s{sJ}, s{sT0}
        s_lshr_b32 s{sT0}, s{sJJ}, 1
        s_xor_b32 s{sT0}, s{sT0}, {(self.ns - 4) ^ self.o.get('qflip', 1)}
        s_add_u32 s{sJ}, s{sJ}, s{sT0}
        s_lshr_b32 s{sIH}, s{sI}, 3
        s_and_b32 s{sIH}, s{sIH}, {self.o.get('ihoff', 1)}
        s_xor_b32 s{sJQ}, s{sJ}, {self.o.get('qswap', 1)}
        s_lshr_b32 s{sR}, s{sWV}, 1
        s_and_b32 s{sC}, s{sWV}, 1
        v_mov_b32 v{vONE}, 1
        v_min_u32 v{vFST}, 1, v{T + 25}
        v_lshlrev_b32 v{vFST}, 31, v{vFST}
        v_lshlrev_b32 v{vL16}, 4, v{vLANE}''')
        if self.o.get('defer', 1):
            self.ln_consts(S)
        nearly = len(S.ops)
        for u in range(9):
            L(f's_mul_i32 s{KA + u}, s{TB + u}, {64 * 9216 // 128}\ns_mul_i32 s{KQ + u}, s{TB + u}, {64 * 3456 // 128}')
        L(f'''
        s_mov_b32 s{SU}, s10
        s_mov_b32 s{SU + 1}, s11
        s_mov_b32 s{SO}, s22
        s_mov_b32 s{SO + 1}, s23
        s_mov_b32 s{SO + 2}, {2048 * 1152}
        s_mov_b32 s{SO + 3}, 0x20000
        s_mov_b32 s{SB + 2}, 256
        s_mov_b32 s{SB + 3}, 0x20000
        s_lshl_b32 s{sT1}, s{sQ_}, 3
        s_lshr_b32 s{sCNT}, 0x0d090500, s{sT1}
        s_and_b32 s{sCNT}, s{sCNT}, 0xff
        s_lshl_b32 s{sT0}, s{sCNT}, 7
        s_mul_i32 s{sT1}, s{sJJ}, 2304
        s_add_u32 s{sT0}, s{sT0}, s{sT1}
        s_add_u32 s{SG}, s{SG}, s{sT0}
        s_addc_u32 s{SG + 1}, s{SG + 1}, 0
        s_sub_u32 s{SG + 2}, {576 * 9216}, s{sT0}
        s_mov_b32 s{SG + 3}, 0x20000
        s_add_u32 s{SU}, s{SU}, s{sT0}
        s_addc_u32 s{SU + 1}, s{SU + 1}, 0
        s_sub_u32 s{SU}, s{SU}, 1024
        s_subb_u32 s{SU + 1}, s{SU + 1}, 0
        s_sub_u32 s{SU + 2}, {576 * 9216 + 1024}, s{sT0}
        s_mov_b32 s{SU + 3}, 0x20000
        s_mov_b32 s{SQ + 2}, {576 * 3456}
        s_mov_b32 s{SQ + 3}, 0x20000
        s_lshl_b32 s{sT1}, s{sQ_}, 3
        s_lshr_b32 s{sT0}, 0x07050200, s{sT1}
        s_and_b32 s{sT0}, s{sT0}, 0xff
        s_lshl_b32 s{sT0}, s{sT0}, 7
        s_mul_i32 s{sT1}, s{sR}, {4 * 1152}
        s_add_u32 s{sT1}, s{sT1}, s{sT0}
        s_add_u32 s{SWO}, s{SWO}, s{sT1}
        s_addc_u32 s{SWO + 1}, s{SWO + 1}, 0
        s_sub_u32 s{SWO}, s{SWO}, 1024
        s_subb_u32 s{SWO + 1}, s{SWO + 1}, 0
        s_sub_u32 s{SWO + 2}, {576 * 1152 + 1024}, s{sT1}
        s_mov_b32 s{SWO + 3}, 0x20000
        s_mul_i32 s{sT1}, s{sJJ}, {1152 * 1152}
        s_add_u32 s{sT0}, s{sT0}, s{sT1}
        s_add_u32 s{SD}, s{SD}, s{sT0}
        s_addc_u32 s{SD + 1}, s{SD + 1}, 0
        s_sub_u32 s{SD}, s{SD}, 1024
        s_subb_u32 s{SD + 1}, s{SD + 1}, 0
        s_sub_u32 s{SD + 2}, {4608 * 1152 + 1024}, s{sT0}
        s_mov_b32 s{SD + 3}, 0x20000
        s_lshl_b32 s{sMA}, s{sWV}, 11
        v_lshrrev_b32 v{T + 9}, 3, v{vLANE}
        s_lshl_b32 s{sT0}, s{sWV}, 3
        v_add_u32 v{T + 9}, s{sT0}, v{T + 9}
        v_mul_u32_u24 v{T + 9}, 9216, v{T + 9}
        v_lshl_add_u32 v{vA0}, v{vA0}, 4, v{T + 9}
        v_add_u32 v{vA1}, {32 * 9216}, v{vA0}
        v_lshrrev_b32 v{T + 8}, 2, v{vLANE}
        v_lshrrev_b32 v{T + 9}, 5, v{vLANE}
        v_lshlrev_b32 v{T + 9}, 11, v{T + 9}
        v_and_b32 v{T + 7}, 7, v{T + 8}
        v_lshl_add_u32 v{T + 9}, v{T + 7}, 7, v{T + 9}
        v_bfe_u32 v{T + 7}, v{vLANE}, 3, 2
        s_lshl_b32 s{sT0}, s{sC}, 1
        v_xor_b32 v{T + 7}, s{sT0}, v{T + 7}
        v_lshl_add_u32 v{T + 9}, v{T + 7}, 5, v{T + 9}
        v_and_b32 v{T + 7}, 3, v{vLANE}
        v_lshl_add_u32 v{vLA0}, v{T + 7}, 3, v{T + 9}
        v_xor_b32 v{vLA1}, 32, v{vLA0}
        s_sub_u32 s{sMASKC}, 0, s{sC}
        s_mov_b32 s{sMASKC + 1}, s{sMASKC}
        s_lshl_b32 s{sT0}, s{sC}, 1
        s_lshr_b32 s{sMASKONE}, 0x44444444, s{sT0}
        s_mov_b32 s{sMASKONE + 1}, s{sMASKONE}
        s_lshl_b32 s{sT0}, s{sI}, 2
        s_add_u32 s{sT0}, s{sT0}, s{sJJ}
        s_mul_i32 s{sHB}, s{sT0}, {18 * 16384}
        s_add_u32 s{sHB}, s{sHB}, {H_BASE}
        s_lshl_b32 s{sT0}, s{sCNT}, 14
        s_add_u32 s{sT0}, s{sT0}, s{sHB}
        s_lshl_b32 s{sT1}, s{sC}, 11
        s_add_u32 s{sT0}, s{sT0}, s{sT1}
        s_lshl_b32 s{sT1}, s{sWV}, 12
        s_add_u32 s{sH0}, s{sT0}, s{sT1}
        s_xor_b32 s{sT1}, s{sT1}, 4096
        s_add_u32 s{sH1}, s{sT0}, s{sT1}''')
        qd, qr = self.pat_qkv()
        L(qd)
        L(qr)
        if not self.o.get('defer', 1):
            self.ln_consts(S)
            nearly = len(S.ops)
        for o in S.ops[:nearly]:
            self.lin.op(o)
        rest = S.ops[nearly:]
        if st:
            self.lin.text('s_waitcnt lgkmcnt(0)')
            for k, nm in enumerate(('entry', 'karg0', 'karg1', 'xa')):
                self.stamp_names.append(nm)
                self.lin.text(f'v_mov_b32 v{T + 26}, s{sST + 2 * k}\nv_mov_b32 v{T + 27}, 0\ns_lshl_b32 s{sT2}, s2, 10\ns_add_u32 s{sT2}, s{sT2}, {DUMP_BASE + 8 * k}\nbuffer_store_dwordx2 v[{T + 26}:{T + 27}], v{vFST}, {sr(SW)}, s{sT2} offen')
            self.nstamp = 4
        self.stamp(None, 'setup')
        k = 3 * (9 - nf)
        per = -(-len(rest) // (9 - nf))
        for g in range(9 - nf):
            ops = pend[3 * g:3 * g + 2] + rest[per * g:per * g + per // 2] + [pend[3 * g + 2]] + rest[per * g + per // 2:per * (g + 1)]
            for o in ops:
                self.lin.op(o)
        self.x_pend = pend[k:]
        self.base = {vLA0: 0, vLA1: 0}
        self.base.update({r: 0 for r in VQ})

    @staticmethod
    def raw(rho, t):
        if rho == 0:
            return ACC0 + 4 * t if t < 16 else ACC1 + 56 + 4 * (t - 16)
        return RING + 4 * t if t < 4 else ACC1 + 4 * (t - 4)

    def flag_addr(self, f, own, dst, sT1=sT1, own_ok=False):
        t = dst
        if f == '1':
            blk, grp, line, mem = (sJ if own else sJQ), None, 21, sI
        elif f == '2o':
            blk, grp, line, mem = sI, None, 20, sJ
        elif f == '3':
            blk, grp, line, mem = sI, sQ_, 16, sJJ
        else:
            blk, grp, line, mem = sI, sJJ, 4 * 'abcd'.index(f[1]), sQ_
        s = f's_lshl_b32 s{t}, s{blk}, 5\n'
        if grp is not None:
            s += f's_add_u32 s{t}, s{t}, s{grp}\n'
        if line:
            s += f's_add_u32 s{t}, s{t}, {line}\n'
        if own:
            s += f's_lshl_b32 s{t}, s{t}, 5\ns_add_u32 s{t}, s{t}, s{mem}\ns_lshl_b32 s{t}, s{t}, 2\n'
        else:
            s += f's_lshl_b32 s{t}, s{t}, 7\n'
        return s

    def pat_b(self, a, b):
        s = f'''v_lshrrev_b32 v{a}, 3, v{vLANE}
        s_lshl_b32 s{sK5}, s{sWV}, 3
        v_add_u32 v{a}, s{sK5}, v{a}
        v_mul_u32_u24 v{a}, 1152, v{a}
        v_bfe_u32 v{b}, v{vLANE}, 4, 2
        v_lshlrev_b32 v{b}, 1, v{b}
        v_and_b32 v{V288}, 7, v{vLANE}
        v_xor_b32 v{b}, v{b}, v{V288}
        v_lshl_add_u32 v{a}, v{b}, 4, v{a}
        v_add_u32 v{V288}, 1024, v{a}
        v_add_u32 v{V288 + 1}, 128, v{a}
        v_add_u32 v{V288 + 2}, {1024 + 32 * 1152}, v{a}
        v_add_u32 v{V288 + 3}, {128 + 32 * 1152}, v{a}
        '''
        if self.nt > 8:
            s += f'''v_lshrrev_b32 v{a}, 2, v{vLANE}
            s_lshl_b32 s{sK5}, s{sWV}, 4
            v_add_u32 v{a}, s{sK5}, v{a}
            v_mul_u32_u24 v{a}, 1152, v{a}
            v_bfe_u32 v{b}, v{vLANE}, 4, 1
            v_lshlrev_b32 v{b}, 1, v{b}
            v_and_b32 v{V288 + 4}, 3, v{vLANE}
            v_xor_b32 v{b}, v{b}, v{V288 + 4}
            v_lshl_add_u32 v{a}, v{b}, 4, v{a}
            s_mul_i32 s{sK5}, s{sQ_}, -320
            s_add_u32 s{sK5}, s{sK5}, {1024 + 576}
            v_add_u32 v{V288 + 4}, s{sK5}, v{a}
            '''
        return s

    def pat_c(self):
        s = f'v_add_u32 v{V288 + 2}, {4 * 1152}, v{V288 + 2}\nv_add_u32 v{V288 + 3}, {4 * 1152}, v{V288 + 3}\n'
        if self.nt > 8:
            s += f's_mul_i32 s{sK5}, s{sC}, {4 * 1152}\nv_add_u32 v{V288 + 4}, s{sK5}, v{V288 + 4}\n'
        return s

    def pat_cl(self, a=T + 20):
        s = f'v_lshrrev_b32 v{a}, 5, v{vLANE}\nv_mul_u32_u24 v{a}, {68 * 1152}, v{a}\n'
        for k in range(4):
            s += f'v_add_u32 v{PQ + k}, v{a}, v{V288 + k}\n'
            if k >= 2:
                s += f'v_add_u32 v{PQ + k}, {256 * 1152}, v{PQ + k}\n'
        s += f'''s_mul_i32 s{KQ + 8}, s{sC}, 136
        s_lshl_b32 s{sK5}, s{sR}, 4
        s_add_u32 s{KQ + 8}, s{KQ + 8}, s{sK5}
        s_add_u32 s{KQ + 8}, s{KQ + 8}, 16
        s_mul_i32 s{KQ + 8}, s{KQ + 8}, 1152
        '''
        if self.nt > 8:
            s += f'''v_lshrrev_b32 v{a}, 4, v{vLANE}
            v_mul_u32_u24 v{a}, {68 * 1152}, v{a}
            v_add_u32 v{PQ + 4}, v{a}, v{V288 + 4}
            s_mul_i32 s{sCL2}, s{sR}, 252
            s_mul_i32 s{sK5}, s{sC}, 20
            s_add_u32 s{sCL2}, s{sCL2}, s{sK5}
            s_add_u32 s{sCL2}, s{sCL2}, 16
            s_mul_i32 s{sCL2}, s{sCL2}, 1152
            '''
        return s

    def pat_qkv(self, a=T + 20, b=T + 21, c=T + 22, d=T + 23, e=T + 24):
        s = f'''s_mul_i32 s{sK3}, s{sJQ}, 72
        s_and_b32 s{sK3}, s{sK3}, -16
        v_mov_b32 v{e}, s{sK3}
        s_mul_i32 s{sK3}, s{sJ}, 72
        s_and_b32 s{sK3}, s{sK3}, -16
        '''
        for n in range(4):
            s += f'''v_lshrrev_b32 v{a}, 4, v{vLANE}
            v_add_u32 v{a}, {4 * n}, v{a}
            v_and_b32 v{b}, 7, v{a}
            v_lshlrev_b32 v{b}, 1, v{b}
            v_and_b32 v{c}, 15, v{vLANE}
            v_xor_b32 v{b}, v{b}, v{c}
            v_mul_u32_u24 v{c}, 52, v{b}
            v_lshrrev_b32 v{c}, 8, v{c}
            v_mul_u32_u24 v{d}, 5, v{c}
            v_sub_u32 v{b}, v{b}, v{d}
            v_lshlrev_b32 v{b}, 4, v{b}
            v_add_u32 v{d}, 1, v{c}
            v_mul_u32_u24 v{d}, 1152, v{d}
            v_add_u32 v{d}, s{sK3}, v{d}
            v_cmp_eq_u32 vcc, 2, v{c}
            v_cndmask_b32 v{d}, v{d}, v{e}, vcc
            v_add_u32 v{b}, v{b}, v{d}
            v_add_u32 v{c}, 1, v{c}
            v_lshrrev_b32 v{c}, 2, v{c}
            v_lshl_or_b32 v{b}, v{c}, 31, v{b}
            s_lshl_b32 s{sK5}, s{sWV}, 4
            v_add_u32 v{a}, s{sK5}, v{a}
            v_mul_u32_u24 v{a}, 3456, v{a}
            v_add_u32 v{V288 + n}, v{a}, v{b}
            '''
            if n:
                s += f'v_subrev_u32 v{V288 + n}, {1024 * n}, v{V288 + n}\n'
        r = f'''s_and_b32 s{sK3}, s{sJ}, 1
        s_lshl_b32 s{sK3}, s{sK3}, 3
        s_mul_i32 s{sK4}, s{sC}, 40
        s_and_b32 s{sK5}, s{sJQ}, 1
        s_lshl_b32 s{sK5}, s{sK5}, 3
        s_add_u32 s{sK5}, s{sK5}, s{sK4}
        s_add_u32 s{sK4}, s{sK4}, s{sK3}
        s_add_u32 s{sK3}, s{sK3}, 32
        '''
        for f in range(4):
            r += f'v_and_b32 v{a}, 3, v{vLANE}\n'
            if f < 3:
                r += f'v_lshl_add_u32 v{a}, v{a}, 3, s{sK5 if f == 2 else sK4}\nv_add_u32 v{a}, {80 * f}, v{a}\n'
            else:
                r += f'v_min_u32 v{a}, 2, v{a}\nv_lshrrev_b32 v{c}, 1, v{a}\nv_mul_u32_u24 v{a}, 80, v{a}\nv_add_u32 v{a}, s{sK3}, v{a}\nv_lshlrev_b32 v{c}, 3, v{c}\nv_and_b32 v{c}, {8 * self.o.get("qswap", 1)}, v{c}\nv_xor_b32 v{a}, v{a}, v{c}\n'
            r += f'''v_bfe_u32 v{b}, v{vLANE}, 2, 3
            v_lshlrev_b32 v{b}, 5, v{b}
            v_xor_b32 v{a}, v{a}, v{b}
            v_lshrrev_b32 v{b}, 2, v{vLANE}
            v_lshl_add_u32 v{VQ[f]}, v{b}, 8, v{a}
            '''
        return s, r

    def build_stream(self):
        st = []
        for name in self.order:
            st += [(name, u) for u in range(9)]
        st += [('B', u) for u in range(18)]
        st += [('O', 0), ('O', 1)]
        st += [('C', u) for u in range(9)]
        self.stream = st
        self.dmas = {}
        nC = len(st) - 9
        nO = nC - 2
        npin, tpin = self.o.get('npin', 0), self.o.get('tpin', 40)
        order = [n for n in range(len(st)) if not nC <= n < nC + npin]
        order[tpin:tpin] = list(range(nC, nC + npin))
        self.slot, self.next_user = {}, {}
        for k in range(self.NCH):
            self.slot[order[k]] = k
        release = [n for n in range(len(st)) if n not in (nO, nO + 1)]
        for m, k in zip(order[self.NCH:], release):
            self.slot[m] = self.slot[k]
            self.next_user[k] = m
        self.prev_user = {m: k for k, m in self.next_user.items()}

    def dma_ops(self, n):
        name, u = self.stream[n]
        cb = self.slot[n] * self.CH
        ops = []
        if name[0] == 'A':
            if u == 0 and name != 'A0' and self.jump[int(name[1]) - 1]:
                ops.append(Op(f's_mul_i32 s{sK3}, s{sIH}, {128 * self.jump[int(name[1]) - 1]}\ns_add_u32 s{sK3}, s{sK3}, 128\ns_ashr_i32 s{sK4}, s{sK3}, 31'))
                for s_ in (SG, SU):
                    ops.append(Op(f's_add_u32 s{s_}, s{s_}, s{sK3}\ns_addc_u32 s{s_ + 1}, s{s_ + 1}, s{sK4}\ns_sub_u32 s{s_ + 2}, s{s_ + 2}, s{sK3}'))
            elif u == 0 and name != 'A0':
                for s_ in (SG, SU):
                    ops.append(Op(f's_add_u32 s{s_}, s{s_}, 128\ns_addc_u32 s{s_ + 1}, s{s_ + 1}, 0\ns_sub_u32 s{s_ + 2}, s{s_ + 2}, 128'))
            for hh in range(2):
                va = vA1 if hh else vA0
                ops.append(Op(f's_add_u32 m0, s{sMA}, {cb + 8192 * hh}'))
                ops.append(Op(f'buffer_load_dwordx4 v{va}, {sr(SG)}, s{KA + u} offen lds', pipe=P_A))
                ops.append(Op(f'buffer_load_dwordx4 v{va}, {sr(SU)}, s{KA + u} offen offset:1024 lds', pipe=P_A))
        elif name == 'O':
            pass
        elif name == 'Q':
            ops.append(Op(f's_lshl_b32 s{sK5}, s{sMA}, 1'))
            ops.append(Op(f's_add_u32 m0, s{sK5}, {cb}'))
            for k in range(4):
                ops.append(Op(f'buffer_load_dwordx4 v{V288 + k}, {sr(SQ)}, s{KQ + u} offen offset:{1024 * k} lds', pipe=P_Q if (self.ns - 4) ^ self.o.get('qflip', 1) else 140))
        else:
            if name == 'B':
                ops.append(Op(f's_mul_i32 s{sK3}, s{TB + u}, 9'))
                ops.append(Op(f's_lshr_b32 s{sK3}, s{sK3}, 1'))
                so, srd, vb = f's{sK3}', SD, V288
            else:
                so, srd, vb = f's{KQ + u}', SWO, (V288 if u < 8 else PQ)
                if u == 0:
                    ops += [Op(l) for l in self.pat_c().split('\n') if l]
            for hh in range(2):
                ops.append(Op(f's_add_u32 m0, s{sMA}, {cb + 8192 * hh}'))
                for ln in range(2):
                    ops.append(Op(f'buffer_load_dwordx4 v{vb + 2 * hh + ln}, {sr(srd)}, {so} offen offset:{1024 * ln} lds', pipe=P_A))
            if self.nt > 8:
                ops.append(Op(f's_lshr_b32 s{sK4}, s{sMA}, 1'))
                ops.append(Op(f's_add_u32 m0, s{sK4}, {cb + 16384}'))
                ops.append(Op(f'buffer_load_dwordx4 v{vb + 4}, {sr(srd)}, {f"s{sCL2}" if (name, u) == ("C", 8) else so} offen lds', pipe=P_AH))
        self.dmas[n] = [o for o in ops if 'dma' in o.kinds()]
        for o in self.dmas[n]:
            o.tag = f'{name}{u}'
        return ops

    def b_tables(self, R):
        R.op(f's_lshl_b32 s{sK3}, s{sQ_}, 1\ns_add_u32 s{sK3}, s{sK3}, s{sIL}')
        R.op(f's_mul_i32 s{sK4}, s{sIH}, {hex(0x100b0703 - 0x0e0a0601)}\ns_add_u32 s{sK4}, s{sK4}, 0x0e0a0601')
        for p in range(8):
            d = TB + p
            R.op(f'''s_add_u32 s{d}, s{sK3}, {p}
            s_bitcmp1_b32 s{d}, 0
            s_cselect_b32 s{sK5}, s{sK4}, 0x0d090500
            s_and_b32 s{d}, s{d}, 6
            s_lshl_b32 s{d}, s{d}, 2
            s_lshr_b32 s{d}, s{sK5}, s{d}
            s_and_b32 s{d}, s{d}, 0xff
            s_lshl_b32 s{d}, s{d}, 14''')
        R.op(f's_add_u32 s{sK3}, s{sIL}, s{sQ_}')
        for base, n, t0, t1 in ((8, 4, 0x0f0b0702, 0x110c0804), (12, 4, 0x100c0803, 0x0e0a0601), (16, 2, 0x1104, 0x0f02)):
            R.op(f's_mul_i32 s{sK4}, s{sIH}, {hex((t1 - t0) & 0xffffffff)}\ns_add_u32 s{sK4}, s{sK4}, {hex(t0)}')
            for p in range(n):
                d = TB + base + p
                R.op(f'''s_add_u32 s{d}, s{sK3}, {p}
                s_and_b32 s{d}, s{d}, {n - 1}
                s_lshl_b32 s{d}, s{d}, 3
                s_lshr_b32 s{d}, s{sK4}, s{d}
                s_and_b32 s{d}, s{d}, 0xff
                s_lshl_b32 s{d}, s{d}, 14''')

    def c_tables(self, R):
        for k in range(8):
            R.op(f's_add_u32 s{KQ + k}, s{sIL}, {k}\ns_and_b32 s{KQ + k}, s{KQ + k}, 7\ns_mul_i32 s{KQ + k}, s{KQ + k}, {72 * 1152}')

    def news(self):
        pool = [sT0, sT1, sT3] + ([sEPS] if self.sq_busy else [SQ, SQ + 1, SQ + 2]) + ([] if self.in_b or self.kq_busy else [KQ + k for k in range(9)])
        self.spool += 1
        return pool[self.spool % len(pool)]

    def addr(self, R, reg, off, **kw):
        cur = self.base[reg]
        if not (0 <= off - cur and off - cur + 4096 < 65536):
            chunk = off // self.CH
            new = chunk * self.CH
            d = new - cur
            R.op(f'v_add_u32 v{reg}, {d}, v{reg}' if d > 0 else f'v_subrev_u32 v{reg}, {-d}, v{reg}', prio=50, **kw)
            self.base[reg] = cur = new
        return off - cur

    LN_ONES, LN_SEL0, LN_SEL1, LN_VAR = PQ, PQ + 4, PQ + 8, T + 10
    LN_XO, LN_XP, LN_R0, LN_R1 = T + 14, T + 15, T + 16, T + 17

    def ln_consts(self, R):
        ONES, SEL0, SEL1, VAR = self.LN_ONES, self.LN_SEL0, self.LN_SEL1, self.LN_VAR
        vXO, vXP, vR0, vR1 = self.LN_XO, self.LN_XP, self.LN_R0, self.LN_R1
        R.op(f'''v_mov_b32 v{ONES}, 0x3f803f80
        v_mov_b32 v{ONES + 1}, 0x3f803f80
        v_mov_b32 v{ONES + 2}, 0x3f803f80
        v_mov_b32 v{ONES + 3}, 0x3f803f80
        v_and_b32 v{VAR}, 15, v{vLANE}
        v_lshrrev_b32 v{VAR + 1}, 4, v{vLANE}
        v_bfe_u32 v{vR0}, v{vLANE}, 1, 2
        v_lshlrev_b32 v{vR0}, 1, v{vR0}
        v_xor_b32 v{vR0}, v{vR0}, v{VAR + 1}
        v_lshlrev_b32 v{vR0}, 4, v{vR0}
        v_lshl_add_u32 v{vR0}, v{VAR}, 7, v{vR0}
        s_mov_b32 s{sT0}, s{sM2}
        v_add_u32 v{vR0}, s{sT0}, v{vR0}
        v_xor_b32 v{vR1}, 64, v{vR0}
        v_lshlrev_b32 v{VAR + 1}, 3, v{VAR + 1}
        v_sub_u32 v{VAR}, v{VAR}, v{VAR + 1}
        v_mov_b32 v{VAR + 1}, 0x3f80
        v_mov_b32 v{vXO}, 0x3f800000''')
        for sel, add in ((SEL0, 0), (SEL1, 16)):
            for k in range(4):
                R.op(f'''v_cmp_eq_u32 vcc, {2 * k - add}, v{VAR}
                v_cmp_eq_u32 s[{sK3}:{sK4}], {2 * k + 1 - add}, v{VAR}
                v_mov_b32 v{VAR + 2}, 0
                v_cndmask_b32 v{sel + k}, 0, v{VAR + 1}, vcc
                v_cndmask_b32 v{sel + k}, v{sel + k}, v{vXO}, s[{sK3}:{sK4}]''')
        R.op(f'''v_add_u32 v{vXO}, s{sT0}, v{vL16}
        s_xor_b32 s{sT1}, s{sWV}, 1
        s_mul_i32 s{sT1}, s{sT1}, {XR_}
        s_add_u32 s{sT1}, s{sT1}, 16384
        v_add_u32 v{vXP}, s{sT1}, v{vL16}
        v_mov_b32 v{VAR}, 0
        v_mov_b32 v{VAR + 1}, 0
        v_mov_b32 v{VAR + 3}, 0''')

    def ln_center(self, R, rho, t, d0, pk, addr, off, after=(), cap=None, prio=5):
        SEL0, SEL1, VAR = self.LN_SEL0, self.LN_SEL1, self.LN_VAR
        nm = self.LN_NM[rho]
        R.mfma(f'{MF} {vr(d0)}, {vr(SEL0)}, {vr(self.raw(rho, t))}, {vr(nm)}', cap=cap)
        R.mfma(f'{MF} {vr(d0 + 4)}, {vr(SEL1)}, {vr(self.raw(rho, t))}, {vr(nm)}', cap=cap)
        for k in range(4):
            R.op(f'v_cvt_pk_bf16_f32 v{pk + k}, v{d0 + 2 * k}, v{d0 + 2 * k + 1}', prio=prio)
        if self.o.get('ownw', 3) >> rho & 1:
            n = 4 * t + rho
            for k in range(4):
                R.op(f'v_accvgpr_write_b32 a{4 * n + k}, v{pk + k}' if n < 64 else f'v_mov_b32 v{XNV + 4 * (n - 64) + k}, v{pk + k}')
        w = lambda aft: R.op(f'ds_write_b128 v{addr}, {vr(pk)} offset:{off}', after=aft, prio=prio)
        if after is not None:
            w = w(after)
        if self.o.get('vfma', 0) >> rho & 1:
            g = self.LN_G[rho]
            for k in range(8):
                x = d0 + k
                R.op(f'v_fmac_f32 v{g + (k & 3)}, v{x}, v{x}' if t or k >= 4 else f'v_mul_f32 v{g + k}, v{x}, v{x}', prio=prio - 1)
            self.ln_gram(R)
            return w
        self.ln_gram(R)
        self.gram_pend = (rho, t, pk)
        return w

    gram_pend = None
    LN_G = [V_G0, V_G1]

    def ln_gram(self, R):
        if self.gram_pend:
            rho, t, pk = self.gram_pend
            g = vr(self.LN_G[rho])
            R.mfma(f'{MF} {g}, {vr(pk)}, {vr(pk)}, {g if t else 0}')
            self.gram_pend = None

    LN_NM = [PQ + 12, T + 2]

    def layernorm(self):
        R = Region(cap=5, backlog=self.o['backlog'], pipe0=-100000)
        ONES, VAR = self.LN_ONES, self.LN_VAR
        vXO, vXP, vR0, vR1 = self.LN_XO, self.LN_XP, self.LN_R0, self.LN_R1
        NM = self.LN_NM
        D = RING + 16
        PK = [T + 18, SC] if self.o.get('probe') else [T + 18, T + 22, SC]
        rawrd = {}

        def raw_reads(rho, lo):
            for u in range(9):
                if u % 3 == 0 or u < 3:
                    w = R.wait([self.xl[rho, uu, hf] for uu in range(u, (u + 1 if u < 2 else u // 3 * 3 + 3)) for hf in range(2)],
                               late=False, wr=['xw'], lo=None if lo is None else lo + u * self.o.get('r1st', 1))
                for s1 in range(2):
                    rawrd[rho, 2 * u + s1] = R.op(f'ds_read_b128 {vr(self.raw(rho, 2 * u + s1))}, v{vR1 if s1 else vR0} offset:{2048 * u}', after=[w], prio=20)

        def mean(rho, t):
            w = R.wait([rawrd[rho, k] for k in range(t, t + 3)], dist=1) if t % 3 == 0 else None
            R.mfma(f'{MF} {vr(NM[rho])}, {vr(ONES)}, {vr(self.raw(rho, t))}, {vr(NM[rho]) if t else 0}', after=[w] if w else [])
            return w

        for o in self.x_pend:
            o.prio = 10
            o.hi = 17
            R.add(o)
        for o in self.dma_ops(0):
            o.prio = 10
            o.hi = self.o.get('w0hi', 26)
            o.lo = self.o.get('w0lo', 24)
            R.add(o)
        raw_reads(0, None)
        for t in range(18):
            mean(0, t)
        R.op(f's_sub_u32 s{sT0}, s{sCNT2}, s{sM2}\nv_add_u32 v{vR0}, s{sT0}, v{vR0}\nv_add_u32 v{vR1}, s{sT0}, v{vR1}')
        raw_reads(1, self.o.get('r1lo', 44))
        self.stamp(R, 'ctr0')
        for k in range(4):
            R.op(f'v_mul_f32 v{NM[0] + k}, {hex(0xbae38e39)}, v{NM[0] + k}')
        reads = []
        cnt = 0
        for kg in range(3):
            writes = []
            for t in range(6 * kg, 6 * kg + 6):
                writes.append(self.ln_center(R, 0, t, D + 8 * (cnt & 1), PK[cnt % len(PK)], vXO, 1024 * t))
                cnt += 1
                if self.o.get('m1late', 1):
                    if kg == 2:
                        for tt in range(3 * (t % 6), 3 * (t % 6) + 3):
                            mean(1, tt)
                elif kg > 0:
                    tm = 6 * (kg - 1) + t % 6
                    for tt in ((3 * tm) // 2, (3 * tm) // 2 + 1)[:1 + (tm & 1)]:
                        mean(1, tt)
            extra = [rawrd[1, k] for k in range(18)] if kg == self.o.get('wkg', 2) else []
            w = R.wait(writes + extra, late=False, prio=30, dist=self.o.get('dlw', 5))
            bar = R.op('s_barrier', after=[w], wr=['bar'], prio=30)
            for t in range(6 * kg, 6 * kg + 6):
                if not self.o.get('ownw', 3) & 1:
                    reads.append(R.op(f'ds_read_b128 {xn(4 * t)}, v{vXO} offset:{t * 1024}', after=[bar], prio=8))
                reads.append(R.op(f'ds_read_b128 {xn(4 * t + 2)}, v{vXP} offset:{t * 1024}', after=[bar], prio=8))
        self.stamp(R, 'ctr1')
        for k in range(4):
            R.op(f'v_mul_f32 v{NM[1] + k}, {hex(0xbae38e39)}, v{NM[1] + k}')
        R.op(f'''s_lshl_b32 s{sT0}, s{sWV}, 10
        s_add_u32 s{sT0}, s{sT0}, {self.KVX}
        v_add_u32 v{vR0}, s{sT0}, v{vL16}
        v_xor_b32 v{vR1}, 1024, v{vR0}''')
        writes = []
        for t in range(4):
            writes.append(self.ln_center(R, 1, t, D + 8 * (cnt & 1), PK[cnt % len(PK)], vR0, 4096 * t))
            cnt += 1
        self.ln_gram(R)
        self.ln_last = reads + writes
        x = self.o.get('lnx', 0)
        drop = set()
        for o in R.ops:
            t = o.ins[0].text if o.ins else ''
            if (x & 1 and t.startswith('ds_write')) or (x & 2 and t.startswith('ds_read_b128 a')) or (x & 8 and t.startswith('v_accvgpr')) \
                    or (x & 16 and t.startswith('v_cvt')) or (x & 32 and t.startswith('s_barrier')):
                o.ins = [Ins('s_nop 0')]
        return R

    def ln_reads1(self, R, n, bar):
        out = []
        for t in (2 * n, 2 * n + 1):
            if not self.o.get('ownw', 3) & 2:
                out.append(R.op(f'ds_read_b128 {xn(4 * t + 1)}, v{self.LN_R0} offset:{4096 * (t & 3)}', after=[bar], prio=12))
            out.append(R.op(f'ds_read_b128 {xn(4 * t + 3)}, v{self.LN_R1} offset:{4096 * (t & 3)}', after=[bar], prio=12))
        return out

    def ln_finish(self, R, bar):
        VAR = self.LN_VAR
        a, ad, ep = T + 18, T + 19, T + 20
        R.op(f'v_and_b32 v{ad}, 15, v{vLANE}')
        R.op(f's_lshl_b32 s{sT0}, s{sWV}, 7\ns_add_u32 s{sT0}, s{sT0}, {RS}')
        R.op(f'v_lshl_add_u32 v{ad}, v{ad}, 2, s{sT0}')
        R.op(f's_mov_b32 s{sT1}, {hex(0x3ae38e39)}')
        R.op(f'v_mov_b32 v{ep}, {hex(0x3727c5ac)}')
        self.ln_gram(R)
        for rho in range(2):
            v = self.LN_G[rho]
            if self.o.get('vfma', 0) >> rho & 1:
                R.op(f'v_add_f32 v{v}, v{v}, v{v + 1}\nv_add_f32 v{v + 2}, v{v + 2}, v{v + 3}\nv_add_f32 v{v}, v{v}, v{v + 2}')
            for k in range(1, 1 if self.o.get('vfma', 0) >> rho & 1 else 4):
                R.op(f's_mov_b32 vcc_lo, {hex(0x11111111 << k)}\ns_mov_b32 vcc_hi, {hex(0x11111111 << k)}\nv_cndmask_b32 v{v}, v{v}, v{v + k}, vcc')
            if not self.o.get('vfma', 0) >> rho & 1:
                R.op(f's_mov_b32 vcc_lo, 0x00f0000f\ns_mov_b32 vcc_hi, 0xf0000f00\nv_cndmask_b32 v{v}, 0, v{v}, vcc')
            R.op(f'v_mov_b32 v{a}, v{v}')
            R.op(f'v_permlane32_swap_b32 v{a}, v{v}')
            R.op(f'v_add_f32 v{v}, v{a}, v{v}')
            R.op(f'v_mov_b32 v{a}, v{v}')
            R.op(f'v_permlane16_swap_b32 v{a}, v{v}')
            R.op(f'v_add_f32 v{v}, v{a}, v{v}')
            R.op(f'v_fma_f32 v{v}, v{v}, s{sT1}, v{ep}')
            R.op(f'v_rsq_f32 v{v}, v{v}')
            self.pre_bar.append((R.op(f'ds_write_b32 v{ad}, v{v} offset:{64 * rho}', after=[bar]), 3))
        self.post_bar.append(lambda b_: self.load_scales(R, [b_]))

    def stamp(self, R, name=''):
        if R:
            self.marks.append((R, R.here, name))
        if not self.stamps or (self.o.get('lite') and name != 'end'):
            return
        k = self.nstamp
        self.nstamp += 1
        t = Op(f's_memrealtime vcc\ns_memtime s[0:1]\ns_waitcnt lgkmcnt(0)\nv_mov_b32 v{T + 26}, vcc_lo\nv_mov_b32 v{T + 27}, s0\ns_lshl_b32 s0, s2, 10\ns_add_u32 s0, s0, {DUMP_BASE + 8 * k}\nbuffer_store_dwordx2 v[{T + 26}:{T + 27}], v{vFST}, {sr(SW)}, s0 offen',
               lo=R.here if R else None, hi=R.here if R else None)
        self.stamp_names.append(name)
        if R:
            R.add(t)
        else:
            self.lin.op(t)

    def poll(self, R, name, srd, addr_text, mask, val, lo, check_lo, after=(), mul=4, defer=False):
        vp = T + 19
        if name != 'p':
            check_lo = lo + self.o.get(f'pd_{name}{self.ns}', self.o.get('pd', check_lo - lo))
        cmp = 'v_cmp_ne_u32' if val == 1 else 'v_cmp_gt_u32'
        if addr_text:
            R.op(addr_text, lo=lo - 30)
        so = f's{sT2}' if addr_text else '0'
        R.op(f'v_and_b32 v{vPOLL}, {mask}, v{vLANE}', lo=lo - 30)
        if defer:
            R.op(f'v_max_u32 v{vPOLL}, 1, v{vPOLL}\nv_add_u32 v{vPOLL}, s{sJJ}, v{vPOLL}\nv_and_b32 v{vPOLL}, 3, v{vPOLL}', lo=lo - 30)
        R.op(f'v_mul_u32_u24 v{vPOLL}, {mul}, v{vPOLL}', lo=lo - 30)
        ld = R.op(f'buffer_load_dword v{vp}, v{vPOLL}, {sr(srd)}, {so} offen sc1', lo=lo, hi=lo + 6, after=after)
        if defer:
            return lambda lo2, aft: self.poll_check(R, name, srd, so, cmp, val, ld, lo2, aft)
        return self.poll_check(R, name, srd, so, cmp, val, ld, check_lo, [])

    def poll_check(self, R, name, srd, so, cmp, val, ld, check_lo, aft):
        vp = T + 19
        w = R.wait([ld], late=False, lo=check_lo, hi=check_lo + 4, tag='poll_' + name, after=aft)
        br = 's_nop 0' if self.o.get('nopoll') else f's_cbranch_vccnz L_slow_{name}{self.sfx}'
        chk = R.op(f'{cmp} vcc, {val}, v{vp}\n{br}\nL_back_{name}{self.sfx}:', after=[w],
                   rd=[f'v{vPOLL}', f's{sT2}'], wr=[f'v{vp}'], hi=check_lo + 4, atomic=True)
        rec = ''
        if self.stamps:
            rec = f'v_mov_b32 v{T + 26}, s{sCNT}\ns_lshl_b32 s{sCNT}, s2, 10\ns_add_u32 s{sCNT}, s{sCNT}, {DUMP_BASE + 768 + 4 * len(self.slow)}\nbuffer_store_dword v{T + 26}, v{vFST}, {sr(SW)}, s{sCNT} offen\ns_waitcnt vmcnt(0)'
        self.slow.append(f'''L_slow_{name}{self.sfx}:
        s_mov_b32 s{sCNT}, 0
        L_spin_{name}{self.sfx}:
        buffer_load_dword v{vp}, v{vPOLL}, {sr(srd)}, {so} offen sc1
        s_waitcnt vmcnt(0)
        {cmp} vcc, {val}, v{vp}
        s_add_u32 s{sCNT}, s{sCNT}, 1
        s_cbranch_vccz L_exit_{name}{self.sfx}
        s_cmp_lt_u32 s{sCNT}, {self.o['spin']}
        s_cbranch_scc1 L_spin_{name}{self.sfx}
        L_exit_{name}{self.sfx}:
        {rec}
        s_branch L_back_{name}{self.sfx}''')
        return chk

    def set_flag(self, R, f, after):
        t0, t1 = self.news(), self.news()
        R.op(self.flag_addr(f, True, t0, t1), lo=after[0].lo - 40)
        self.flags[f] = R.op(f'buffer_store_dword v{vONE}, v{vFST}, {sr(SW)}, s{t0} offen sc1', after=after + [self.chk0], hi=after[0].lo + 2)

    def chunk_enter(self, R, n, lo, pre=()):
        if n in self.paired:
            self.unfreed.append(n)
            self.bars[n] = self.bars[n - 1]
            return self.bars[n]
        name = self.stream[n][0]
        if n + 1 in self.dmas and ((name == 'C' and self.o.get('barc', 1)) or (self.o.get('bar2', 0) and name != 'A0' and self.stream[n + 1][0] not in ('O', 'C'))):
            self.paired.add(n + 1)
            self.dmas[n] = self.dmas[n] + self.dmas[n + 1]
        nd = len(self.dmas[n])
        dd, sg = (self.o.get('ddc', 24), 1) if self.stream[n][0] == 'C' else (self.o['ddma'], self.o.get('stag', 6))
        waits = [(o, dd + sg * (nd - 1 - k)) for k, o in enumerate(self.dmas[n])] + self.pre_bar
        self.pre_bar = []
        nm = '%s%d' % self.stream[n] + ('+' if len(waits) > nd else '')
        w = R.wait(waits, late=False, lo=lo, hi=lo, tag=nm) if waits else None
        dep = list(pre) + ([w] if w else [])
        freed = [k for k in self.unfreed if self.lastwait.get(k) is not None]
        dep += [self.lastwait[k] for k in freed]
        bar = R.op('s_barrier', after=dep, wr=['bar'], lo=lo, prio=100, tag=nm)
        for k in freed:
            self.unfreed.remove(k)
            self.free_bar[k] = bar
            m = self.next_user.get(k)
            if m is not None:
                for o in self.dma_ops(m):
                    if 'dma' in o.kinds():
                        o.after.append((bar, 0))
                    o.lo = lo - 8
                    R.add(o)
                pf = {self.PF[k]: v for k, v in zip(hex(self.o.get('pfat', 0x1283))[2:], (('d', 0), ('o', 0), ('d', 1), ('o', 1)))}.get(self.stream[m])
                if pf:
                    self.prefetch_late(R, pf[0], pf[1], lo, self.dmas[m][-1:])
        fns, self.post_bar = self.post_bar, []
        for fn in fns:
            fn(bar)
        self.unfreed.append(n)
        self.bars[n] = bar
        return bar

    def tr_pair(self, R, dst, reg, off, step, after, prio=10, lo=None):
        o = self.addr(R, reg, off, lo=lo)
        return [R.op(f'ds_read_b64_tr_b16 {vr(dst, 2)}, v{reg} offset:{o}', after=after, prio=prio, lo=lo),
                R.op(f'ds_read_b64_tr_b16 {vr(dst + 2, 2)}, v{reg} offset:{o + step}', after=after, prio=prio, lo=lo)]

    def p_reads(self, R, name, n, t, buf, after):
        cb = self.slot[n] * self.CH
        out = []
        if name == 'Q':
            base = cb + 8192 * (t & 1)
            for f in range(4):
                out += self.tr_pair(R, buf + 4 * f, VQ[f], base, 4096, after)
        else:
            base = cb + 8192 * (t & 1)
            for f in range(4):
                out += self.tr_pair(R, buf + 4 * f, vLA1 if f & 1 else vLA0, base + 1024 * (f >> 1), 4096, after)
        return out

    def epi_glu(self, R, acc, wrap=0):
        stores = []
        hs = (' sc1', '', ' nt')[self.o.get('hst', 0)]
        ps = 90 if self.o.get('hst') else P_S
        if True:
            for rs in range(4):
                G = [acc + (tt * 4 + rs) * 4 for tt in range(2)]
                U = [acc + ((2 + tt) * 4 + rs) * 4 for tt in range(2)]
                for tt in range(2):
                    self.glu4(R, G[tt], U[tt], SC + rs)
                for k in range(4):
                    g = G[k >> 1] + 2 * (k & 1)
                    R.op(f'v_cvt_pk_bf16_f32 v{U[0] + k}, v{g}, v{g + 1}')
                stores.append(R.op(f'buffer_store_dwordx4 {vr(U[0])}, v{vL16}, {sr(SW)}, s{sH0 + (rs >> 1)} offen offset:{1024 * (rs & 1)}{hs}', pipe=ps))
            inc = '16384'
            if wrap:
                t = sCNT2X
                R.op(f's_mul_i32 s{t}, s{sIH}, {16384 * wrap}\ns_add_u32 s{t}, s{t}, 16384')
                inc = f's{t}'
            R.op(f's_add_u32 s{sH0}, s{sH0}, {inc}')
            R.op(f's_add_u32 s{sH1}, s{sH1}, {inc}')
        return stores

    @staticmethod
    def glu4(R, G, U, sc):
        for e in range(4):
            g = G + e
            R.op(f'v_mul_f32 v{g}, v{sc}, v{g}')
            R.op(f'v_exp_f32 v{g}, v{g}')
            R.op(f'v_add_f32 v{g}, 1.0, v{g}')
            R.op(f'v_rcp_f32 v{g}, v{g}')
            R.op(f'v_mul_f32 v{g}, v{g}, v{U + e}')

    @staticmethod
    def phi(R, x, tmp, prio=0):
        R.op(f'v_mul_f32 v{tmp}, {hex(LOG2E)}, v{x}', prio=prio)
        R.op(f'v_exp_f32 v{tmp}, v{tmp} clamp', prio=prio)
        R.op(f'v_max_f32 v{x}, 0, v{x}', prio=prio)
        R.op(f'v_add_f32 v{x}, {hex(EPS6)}, v{x}', prio=prio)
        R.op(f'v_add_f32 v{x}, v{x}, v{tmp}', prio=prio)

    def load_scales(self, R, after):
        a0, a1 = T + 20, T + 21
        R.op(f'v_and_b32 v{a0}, 15, v{vLANE}')
        R.op(f's_lshl_b32 s{sT0}, s{sWV}, 7\ns_add_u32 s{sT0}, s{sT0}, {RS}')
        R.op(f'v_lshl_add_u32 v{a0}, v{a0}, 2, s{sT0}')
        R.op(f'v_xor_b32 v{a1}, 128, v{a0}')
        lds = [R.op(f'ds_read_b32 v{SC + rs}, v{a0 if rs < 2 else a1} offset:{64 * (rs & 1)}', after=after) for rs in range(4)]
        w = R.wait(lds, late=False, dist=6)
        for rs in range(4):
            R.op(f'v_mul_f32 v{SC + rs}, {hex(NLOG2E)}, v{SC + rs}', after=[w])

    def epi_qkv(self, R, acc):
        KM = [acc + 4 * rs for rs in range(4)]
        VM = [acc + 16 + 4 * rs for rs in range(4)]
        QM = [PQ + 4 * rs for rs in range(4)]
        LRP = [acc + 32, acc + 36]
        LL = [acc + 48 + 4 * rs for rs in range(4)]
        a0, a1, aq = T + 20, T + 21, T + 22
        R4 = [T, T + 4]
        LR = T + 8
        TM = [T + 12, T + 13, T + 14, T + 15]
        r1 = T + 16
        R.op(f's_mov_b32 s{sEPS}, {hex(EPS6)}')
        R.op(f'v_lshrrev_b32 v{a0}, 4, v{vLANE}')
        R.op(f's_lshl_b32 s{sT0}, s{sWV}, 7\ns_add_u32 s{sT0}, s{sT0}, {RS}')
        R.op(f'v_lshl_add_u32 v{a0}, v{a0}, 4, s{sT0}')
        R.op(f'v_xor_b32 v{a1}, 128, v{a0}')
        for l in f'''v_and_b32 v{aq}, 3, v{vLANE}
        v_lshlrev_b32 v{aq}, 5, v{aq}
        v_lshrrev_b32 v{r1}, 4, v{vLANE}
        v_lshl_add_u32 v{aq}, v{r1}, 3, v{aq}
        s_lshl_b32 s{sT1}, s{sWV}, 9
        s_add_u32 s{sT1}, s{sT1}, {QL}
        v_add_u32 v{aq}, s{sT1}, v{aq}
        v_lshlrev_b32 v{r1}, 3, v{vLANE}
        v_add_u32 v{r1}, {DUMMY}, v{r1}
        v_bfe_u32 v{TM[0]}, v{vLANE}, 2, 2'''.split('\n'):
            R.op(l)
        R.op(f'v_cmp_eq_u32 vcc, 2, v{TM[0]}\nv_cndmask_b32 v{aq}, v{r1}, v{aq}, vcc')
        self.ql_writes = []
        tm = 0
        one = f's[{sMASKONE}:{sMASKONE + 1}]'
        ld = [R.op(f'ds_read_b128 {vr(R4[rs])}, v{a0} offset:{64 * rs}') for rs in range(2)]
        w = R.wait(ld, late=False, dist=6)
        for rs in range(2):
            for e in range(4):
                R.op(f'v_mul_f32 v{LL[rs] + e}, v{R4[rs] + e}, v{LL[rs] + e}', after=[w], prio=60)
            for k in range(2):
                R.op(f'v_cvt_pk_bf16_f32 v{LRP[0] + 2 * rs + k}, v{LL[rs] + 2 * k}, v{LL[rs] + 2 * k + 1}', prio=60)
            for e in range(4):
                self.phi(R, LL[rs] + e, TM[tm & 3], prio=60); tm += 1
            for k in range(2):
                R.op(f'v_cvt_pk_bf16_f32 v{LL[0] + 2 * rs + k}, v{LL[rs] + 2 * k}, v{LL[rs] + 2 * k + 1}', prio=60)
            self.ql_writes.append(R.op(f'ds_write_b64 v{aq}, {vr(LL[0] + 2 * rs, 2)} offset:{128 * rs}'))
        e0, e1, c1 = LR, LR + 1, LR + 2
        R.op(f'''s_mul_i32 s{sT0}, s{sWV}, 3072
        s_add_u32 s{sT0}, s{sT0}, {self.KVX}
        v_add_u32 v{e0}, s{sT0}, v{vL16}
        s_xor_b32 s{sT1}, s{sWV}, 1
        s_mul_i32 s{sT1}, s{sT1}, 3072
        s_add_u32 s{sT1}, s{sT1}, {self.KVX}
        v_add_u32 v{e1}, s{sT1}, v{vL16}
        v_mov_b32 v{c1}, 0x3f803f80''')
        self.l_writes = [R.op(f'ds_write_b128 v{e0}, {vr(X)} offset:{1024 * k}', prio=60) for k, X in enumerate((LL[0], LRP[0]))]

        def l_read(bar):
            rd = [R.op(f'ds_read_b128 {vr(X)}, v{e1} offset:{1024 * k}', after=[bar], prio=60) for k, X in enumerate((LL[2], LRP[1]))]
            w2 = R.wait(rd, late=False, dist=6)
            self.pre_bar += [(o, 6) for o in rd]
            self.post_bar.append(lambda b_: setattr(self, 'l_free', b_))
            for k in range(8):
                R.op(f'v_cndmask_b32 v{LRP[0] + k}, v{LRP[0] + k}, v{c1}, {one}', after=[w2])
        self.l_read = l_read
        for rs in range(4):
            r4 = R4[rs & 1]
            if rs >= 2:
                w = R.wait([R.op(f'ds_read_b128 {vr(r4)}, v{a1} offset:{64 * (rs & 1)}')], late=False, dist=6)
            for e in range(4):
                R.op(f'v_fma_f32 v{KM[rs] + e}, v{r4 + e}, v{KM[rs] + e}, s{sEPS}', after=[w])
                self.phi_eps(R, KM[rs] + e, TM[tm & 3]); tm += 1
                R.op(f'v_mul_f32 v{VM[rs] + e}, v{r4 + e}, v{VM[rs] + e}', after=[w])
            P, h = rs >> 1, 2 * (rs & 1)
            for X in (KM, VM):
                R.op(f'v_cvt_pk_bf16_f32 v{X[2 * P] + h}, v{X[rs]}, v{X[rs] + 1}')
                R.op(f'v_cvt_pk_bf16_f32 v{X[2 * P] + h + 1}, v{X[rs] + 2}, v{X[rs] + 3}')
        self.kv_in = dict(km=[KM[0], KM[2]], vm=[VM[0], VM[2]], lp=[LL[0], LL[2]], lr=LRP)
        self.kv_d = dict(mm=T, ml=T + 4, lm=T + 8, ll=T + 12)

    def epi_q(self, R):
        r1, tm = T + 16, (T + 21, T + 22)
        for rs in range(4):
            R.op(f'v_mul_f32 v{r1}, {hex(0xbf317218)}, v{SC + rs}')
            for e in range(4):
                x = PQ + 4 * rs + e
                R.op(f'v_fma_f32 v{x}, v{r1}, v{x}, s{sEPS}')
                self.phi_eps(R, x, tm[e & 1])
            R.op(f'v_cvt_pk_bf16_f32 v{PQ + 4 * rs}, v{PQ + 4 * rs}, v{PQ + 4 * rs + 1}')
            R.op(f'v_cvt_pk_bf16_f32 v{PQ + 4 * rs + 1}, v{PQ + 4 * rs + 2}, v{PQ + 4 * rs + 3}')

    @staticmethod
    def phi_eps(R, x, tmp):
        R.op(f'v_mul_f32 v{tmp}, {hex(LOG2E)}, v{x}')
        R.op(f'v_exp_f32 v{tmp}, v{tmp} clamp')
        R.op(f'v_max_f32 v{x}, s{sEPS}, v{x}')
        R.op(f'v_add_f32 v{x}, v{x}, v{tmp}')

    def kv_mfmas(self, R):
        I, D = self.kv_in, self.kv_d
        for P in range(2):
            for d, a, b in (('mm', 'km', 'vm'), ('ml', 'km', 'lr'), ('lm', 'lp', 'vm'), ('ll', 'lp', 'lr')):
                R.mfma(f'{MF} {vr(D[d])}, {vr(I[a][P])}, {vr(I[b][P])}, {vr(D[d]) if P else 0}')

    def kv_exchange(self, R, X, tmp, then):
        a0, a1 = T + 17, T + 18
        t0, t1 = self.news(), self.news()
        R.op(f's_mul_i32 s{t0}, s{sWV}, 3072\ns_add_u32 s{t0}, s{t0}, {self.KVX}')
        R.op(f'v_add_u32 v{a0}, s{t0}, v{vL16}')
        R.op(f's_xor_b32 s{t1}, s{sWV}, 2\ns_mul_i32 s{t1}, s{t1}, 3072\ns_add_u32 s{t1}, s{t1}, {self.KVX}')
        R.op(f'v_add_u32 v{a1}, s{t1}, v{vL16}')
        ws = [R.op(f'ds_write_b128 v{a0}, {vr(X[k])} offset:{1024 * k}', prio=5, after=[self.l_free]) for k in range(3)]
        self.pre_bar += [(o, 4) for o in ws]

        def after_bar(bar):
            for k in range(3):
                rd = R.op(f'ds_read_b128 {vr(tmp[k])}, v{a1} offset:{1024 * k}', after=[bar], prio=5)
                w = R.wait([rd], late=False, dist=6)
                for e in range(4):
                    R.op(f'v_add_f32 v{X[k] + e}, v{X[k] + e}, v{tmp[k] + e}', after=[w], prio=5)
            then()
        self.post_bar.append(after_bar)

    def kv_publish(self, R):
        D = self.kv_d
        mc = f's[{sMASKC}:{sMASKC + 1}]'
        for k, src in enumerate((D['lm'], D['lm'] + 1, D['ll'], D['ll'] + 1)):
            R.op(f'v_cndmask_b32 v{D["lm"] + k}, v{src}, v{src + 2}, {mc}', prio=5)
        X = [D['mm'], D['ml'], D['lm']]

        def store():
            a = T + 17
            sT0, sT1 = self.news(), self.news()
            R.op(f'''s_lshl_b32 s{sT0}, s{sJ}, 1
            s_add_u32 s{sT0}, s{sT0}, s{sC}
            s_lshl_b32 s{sT0}, s{sT0}, 4
            s_add_u32 s{sT0}, s{sT0}, s{sI}
            s_lshl_b32 s{sT0}, s{sT0}, 10
            s_add_u32 s{sT0}, s{sT0}, {KV_BASE}''')
            R.op(f's_lshl_b32 s{sT1}, s{sR}, 31')
            R.op(f'v_or_b32 v{a}, s{sT1}, v{vL16}')
            for k in range(6):
                R.op(f'v_cvt_pk_bf16_f32 v{T + k}, v{T + 2 * k}, v{T + 2 * k + 1}')
            R.op(f'''v_lshrrev_b32 v{a + 1}, 4, v{vLANE}
            v_min_u32 v{a + 1}, 1, v{a + 1}
            v_lshlrev_b32 v{a + 1}, 31, v{a + 1}
            v_lshl_or_b32 v{a + 1}, v{vLANE}, 3, v{a + 1}
            v_or_b32 v{a + 1}, s{sT1}, v{a + 1}
            s_lshr_b32 s{sT1}, s{sT0}, 3
            s_add_u32 s{sT1}, s{sT1}, {KV2_BASE - KV_BASE // 8}''')
            self.kv_stores = [R.op(f'buffer_store_dwordx4 {vr(T)}, v{a}, {sr(SW)}, s{sT0} offen sc1', prio=5, pipe=P_S // 2),
                              R.op(f'buffer_store_dwordx2 {vr(T + 4, 2)}, v{a + 1}, {sr(SW)}, s{sT1} offen sc1', prio=5, pipe=10)]
        self.kv_exchange(R, X, [T + 12] * 3, store)

    def sel_regs(self, R, base, a, **kw):
        R.op(f'''v_and_b32 v{a}, 15, v{vLANE}
        v_lshrrev_b32 v{base}, 4, v{vLANE}
        v_lshlrev_b32 v{base}, 2, v{base}
        v_sub_u32 v{a}, v{a}, v{base}
        v_and_b32 v{base}, 1, v{a}
        v_lshlrev_b32 v{base}, 4, v{base}
        v_mov_b32 v{base + 1}, 0x3f80
        v_lshlrev_b32 v{base + 1}, v{base}, v{base + 1}
        v_lshrrev_b32 v{a}, 1, v{a}
        v_cmp_eq_u32 vcc, 0, v{a}
        v_cndmask_b32 v{base + 2}, 0, v{base + 1}, vcc
        v_cmp_eq_u32 vcc, 1, v{a}
        v_cndmask_b32 v{base + 3}, 0, v{base + 1}, vcc
        v_mov_b32 v{base}, 0
        v_mov_b32 v{base + 1}, 0
        v_mov_b32 v{base + 4}, 0
        v_mov_b32 v{base + 5}, 0''', **kw)

    def kv_gather(self, R, buf, after):
        t, t2 = self.news(), self.news()
        R.op(f'''s_lshl_b32 s{t}, s{sJQ}, 1
        s_add_u32 s{t}, s{t}, s{sC}
        s_lshl_b32 s{t}, s{t}, 1
        s_add_u32 s{t}, s{t}, s{sR}
        s_lshl_b32 s{t}, s{t}, 13
        s_lshr_b32 s{t2}, s{t}, 3
        s_add_u32 s{t2}, s{t2}, {KV2_BASE}
        s_add_u32 s{t}, s{t}, {KV_BASE}''')
        a, X2 = T + 24, T + 20
        R.op(f'''v_and_b32 v{a}, 15, v{vLANE}
        v_lshlrev_b32 v{a}, 3, v{a}
        v_lshrrev_b32 v{X2}, 4, v{vLANE}
        v_lshl_add_u32 v{a}, v{X2}, 8, v{a}''')
        self.kv_ld = [R.op(f'buffer_load_dwordx2 {vr(X2 + 2 * k, 2)}, v{a}, {sr(SW)}, s{t2} offen offset:{128 * k} sc1', after=after, pipe=40) for k in range(2)]
        for p in range(8):
            if p == 4:
                R.op(f's_add_u32 s{t}, s{t}, 4096')
            self.kv_ld.append(R.op(f'buffer_load_dwordx4 {vr(buf + 4 * p)}, v{vL16}, {sr(SW)}, s{t} offen offset:{1024 * (p & 3)} sc1', after=after, pipe=self.o.get('pkv', 140)))
        self.kv_buf = buf
        self.sel_regs(R, T + 12, T + 18)
        R.op(f'''v_and_b32 v{T + 18}, 15, v{vLANE}
        v_and_b32 v{T + 8}, 1, v{T + 18}
        v_lshlrev_b32 v{T + 8}, 4, v{T + 8}
        v_mov_b32 v{T + 9}, 0x3f80
        v_lshlrev_b32 v{T + 9}, v{T + 8}, v{T + 9}
        v_lshrrev_b32 v{T + 18}, 1, v{T + 18}
        v_cmp_eq_u32 vcc, 0, v{T + 18}
        v_cndmask_b32 v{T + 4}, 0, v{T + 9}, vcc
        v_cmp_eq_u32 vcc, 1, v{T + 18}
        v_cndmask_b32 v{T + 5}, 0, v{T + 9}, vcc
        v_mov_b32 v{T + 6}, v{T + 4}
        v_mov_b32 v{T + 7}, v{T + 5}''')

    def kv_sum(self, R):
        buf, A1, A0 = self.kv_buf, T + 12, T + 14
        w = R.wait([(o, self.o.get('dkv', 50) + 5 * (9 - k)) for k, o in enumerate(self.kv_ld)], tag='kvld')
        R.mfma(f'{MF} {vr(T + 8)}, {vr(T + 4)}, {vr(T + 20)}, 0', after=[w])
        for p in range(8):
            for k, a in enumerate((A0, A1)):
                R.mfma(f'{MF} {vr(T + 4 * k)}, {vr(a)}, {vr(buf + 4 * p)}, {vr(T + 4 * k) if p else 0}')

    def kv_finish(self, R, tmp):
        S = T
        KVM, KVL = T + 12, tmp[0]

        def pack():
            m2, m3 = f's[{sMK2}:{sMK2 + 1}]', f's[{sMK3}:{sMK3 + 1}]'
            R.op(f's_and_b32 s{sMK3}, s{sMASKC}, 0xffff\ns_mov_b32 s{sMK3 + 1}, 0\ns_xor_b32 s{sMK2}, s{sMK3}, 0xffff\ns_mov_b32 s{sMK2 + 1}, 0', after=[self.chk0])
            R.op(f'v_cvt_pk_bf16_f32 v{KVM}, v{S}, v{S + 1}')
            R.op(f'v_cvt_pk_bf16_f32 v{KVM + 1}, v{S + 2}, v{S + 3}')
            R.op(f'v_cvt_pk_bf16_f32 v{KVM + 3}, v{S + 8}, v{S + 9}')
            R.op(f'v_cndmask_b32 v{KVM + 2}, 0, v{KVM + 3}, {m2}')
            R.op(f'v_cndmask_b32 v{KVM + 3}, 0, v{KVM + 3}, {m3}')
            R.op(f'v_cvt_pk_bf16_f32 v{S}, v{S + 4}, v{S + 5}')
            R.op(f'v_cvt_pk_bf16_f32 v{S + 1}, v{S + 6}, v{S + 7}')
            R.op(f'v_cvt_pk_bf16_f32 v{S + 3}, v{S + 10}, v{S + 11}')
            R.op(f'v_cndmask_b32 v{S + 2}, 0, v{S + 3}, {m2}')
            R.op(f'v_cndmask_b32 v{S + 3}, 0, v{S + 3}, {m3}')
            sT1 = self.news()
            aq = T + 16
            R.op(f'v_and_b32 v{aq}, 15, v{vLANE}')
            R.op(f's_lshl_b32 s{sT1}, s{sWV}, 9\ns_add_u32 s{sT1}, s{sT1}, {QL}')
            R.op(f'v_lshl_add_u32 v{aq}, v{aq}, 3, s{sT1}')
            R.op(f's_mul_i32 s{sT1}, s{sC}, -1024\ns_add_u32 s{sT1}, s{sT1}, 512\nv_add_u32 v{aq + 1}, s{sT1}, v{aq}')
            rd = [R.op(f'ds_read_b64_tr_b16 {vr(PQ + 4 * rs + 2, 2)}, v{aq + (rs >> 1)} offset:{128 * (rs & 1)}', after=[self.l_free]) for rs in range(4)]
            self.pq_wait = R.wait(rd, late=False, dist=6)
            self.kv_frags = (KVM, S)
        self.kv_exchange(R, [S, S + 4, S + 8], tmp, pack)

    def o_mfmas(self, R, buf):
        KVM, KVL = self.kv_frags
        for rs in range(4):
            R.mfma(f'{MF} {vr(buf + 8 * rs)}, {vr(KVM)}, {vr(PQ + 4 * rs)}, 0', after=[self.pq_wait])
            R.mfma(f'{MF} {vr(buf + 8 * rs + 4)}, {vr(KVL)}, {vr(PQ + 4 * rs)}, 0')
        a = T + 16
        R.op(f'v_and_b32 v{a}, 15, v{vLANE}')
        R.op(f'v_lshlrev_b32 v{a}, 2, v{a}')
        R.op(f'v_mov_b32 v{a + 1}, {OOB}')
        R.op(f'v_lshrrev_b32 v{a + 2}, 4, v{vLANE}')
        R.op(f'v_cmp_eq_u32 vcc, 1, v{a + 2}\nv_cndmask_b32 v{a}, v{a + 1}, v{a}, vcc')
        st = []
        mc = f's[{sMASKC}:{sMASKC + 1}]'
        for P in range(2):
            sT0, sT1, sT3 = self.news(), self.news(), self.news()
            R.op(f'''s_xor_b32 s{sT0}, s{sWV}, {P}
            s_lshl_b32 s{sT1}, s{sI}, 2
            s_add_u32 s{sT0}, s{sT0}, s{sT1}
            s_lshl_b32 s{sT3}, s{sJQ}, 1
            s_add_u32 s{sT3}, s{sT3}, s{sC}''')
            R.op(f'''s_lshl_b32 s{sT1}, s{sT0}, 6
            s_add_u32 s{sT1}, s{sT1}, s{sT3}
            s_lshl_b32 s{sT1}, s{sT1}, 6
            s_add_u32 s{sT1}, s{sT1}, {OL_BASE}''')
            R.op(f'''s_lshl_b32 s{sT0}, s{sT0}, 5
            s_add_u32 s{sT0}, s{sT0}, s{sT3}
            s_lshl_b32 s{sT0}, s{sT0}, 10
            s_add_u32 s{sT0}, s{sT0}, {O_BASE}''')
            for k in range(2):
                rs = 2 * P + k
                m, l = buf + 8 * rs, buf + 8 * rs + 4
                tq = a + 2
                R.op(f'v_cndmask_b32 v{tq}, v{l + 2}, v{l}, {mc}')
                R.op(f'v_cndmask_b32 v{l}, v{l}, v{l + 2}, {mc}')
                R.op(f'v_cndmask_b32 v{l + 1}, v{l + 1}, v{l + 3}, {mc}')
                R.op(f'v_add_f32 v{l + 2}, {hex(EPS6)}, v{tq}')
                R.op(f'v_rcp_f32 v{l + 2}, v{l + 2}')
                for e in (m, m + 1, m + 2, m + 3, l, l + 1):
                    R.op(f'v_mul_f32 v{e}, v{l + 2}, v{e}')
                R.op(f'v_cvt_pk_bf16_f32 v{buf + 16 * P + 2 * k}, v{m}, v{m + 1}')
                R.op(f'v_cvt_pk_bf16_f32 v{buf + 16 * P + 2 * k + 1}, v{m + 2}, v{m + 3}')
                R.op(f'v_cvt_pk_bf16_f32 v{l}, v{l}, v{l + 1}')
                st.append(R.op(f'buffer_store_dword v{l}, v{a}, {sr(SW)}, s{sT1} offen offset:{2048 * k} sc1', pipe=20))
            st.append(R.op(f'buffer_store_dwordx4 {vr(buf + 16 * P)}, v{vL16}, {sr(SW)}, s{sT0} offen sc1', pipe=P_S))
        return st

    def flag_later(self, R, f, stores):
        if not (self.o.get('nostw') and f != '3'):
            n = len(stores)
            self.pre_bar += [(o, self.o['dst'] + (0 if f == '3' else self.o.get('sst', 8) * min(n - 1 - k, 5))) for k, o in enumerate(stores)]
        self.post_bar.append(lambda bar: self.set_flag(R, f, [bar]))

    def main(self):
        R = Region(cap=2, backlog=self.o['backlog'], hwq=self.o.get('hwq', 200), spread=self.o.get('spread', 1), vprio=self.o.get('vprio', 200), vfrom=self.o.get('vfrom', 0))
        self.pre_bar = list(self.ln_last)
        self.post_bar, self.unfreed = [], []
        self.lastwait, self.free_bar, self.bars = {}, {}, {}
        self.paired, self.single = set(), set()
        ks = []
        n0 = 0
        for name in self.order:
            ks += [(name, t, n0 + (t >> 1)) for t in range(18)]
            n0 += 9
        accs = {'A0': ACC0, 'Q': ACC1, 'A1': ACC0, 'A2': ACC1, 'A3': ACC0, 'A4': ACC1}
        last = self.order[-1]
        self.span = 28
        w0 = R.wait(self.pre_bar + self.dmas[0], late=False)
        self.pre_bar = []
        bar = R.op('s_barrier', after=[w0], wr=['bar'])
        self.bars[0] = bar
        self.unfreed = [0]
        for m in range(1, self.NCH):
            for o in self.dma_ops(m):
                if 'dma' in o.kinds():
                    o.after.append((bar, 0))
                R.add(o)
        reads = self.p_reads(R, 'A0', 0, 0, RING, [bar])
        reads = self.ln_reads1(R, 0, bar) + reads
        hst = {}
        self.ln_wr = {}
        for x, (name, t, n) in enumerate(ks):
            buf = RING + 16 * (x & 1)
            nbuf = RING + 16 * ((x + 1) & 1)
            w = R.wait(reads, dist=4)
            last_in_chunk = x + 1 == len(ks) or ks[x + 1][2] != n
            if last_in_chunk:
                self.lastwait[n] = w
            g0 = R.here
            if t == 0 or (self.o.get('fine') and t % self.o['fine'] == 0):
                self.stamp(R, f'{name}.{t}')
            if x + 1 < len(ks):
                nn, nt, nc = ks[x + 1]
                dep = [w]
                if nc != n:
                    self.span = 28 if name != 'A4' else 28
                    dep = [self.chunk_enter(R, nc, g0 + 1, [w]), w]
                reads = self.p_reads(R, nn, nc, nt, nbuf, dep)
                if nn == 'A0' and nc != n:
                    reads += self.ln_reads1(R, nc, dep[0])
                    if nc == 8:
                        self.ln_finish(R, dep[0])
            else:
                self.b_prepare(R, n0, w, g0)
            acc = accs[name]
            nf = 4
            for f in range(nf):
                for rs in range(2 if (name == 'Q' and f == 3) else 4):
                    d = vr(PQ + 4 * rs if (name == 'Q' and f == 2) else acc + (f * 4 + rs) * 4)
                    c = d if t else '0'
                    a_, b_ = vr(buf + 4 * f), xn(4 * t + rs)
                    if name == 'Q' and f != 2:
                        a_, b_ = b_, a_
                    R.mfma(f'{MF} {d}, {a_}, {b_}, {c}', after=[w] if (f == 0 and rs == 0) else [])
            if name == 'A0' and t <= 13:
                tc = t + 4
                bar_ = self.bars.get(tc // 2 - 1)
                wr = self.ln_center(R, 1, tc, (ACC1 + 56 if self.o.get('probe') else T + 18, ACC1 + 56)[t & 1], (PQ, PQ + 12, SC)[t % 3],
                                    self.LN_R0, 4096 * (tc & 3), after=[bar_] if bar_ else None)
                if bar_:
                    self.ln_wr[tc] = wr
                else:
                    self.post_bar.append(lambda b_, tc=tc, wr=wr: self.ln_wr.__setitem__(tc, wr([b_])))
            if name == 'A0' and t % 2 == 0 and 2 <= t <= 14:
                self.pre_bar += [(self.ln_wr[k], 8) for k in (t + 2, t + 3)]
            g1 = R.here
            o = self.o
            if t == 17:
                if name == 'Q':
                    self.epi_qkv(R, acc)
                else:
                    hst[name] = self.epi_glu(R, acc, (self.jump + (0,))[int(name[1])])
            if name == 'Q' and t == 0:
                self.b_tables(R)
            if name == 'A0' and t == o.get('tclr', 15):
                Z, a_ = T + 20, T + 24
                R.op(f'''s_or_b32 s{sT0}, s{sJ}, s{sWV}
                s_min_u32 s{sT0}, s{sT0}, 1
                s_lshl_b32 s{sT0}, s{sT0}, 31
                v_or_b32 v{a_}, s{sT0}, v{vL16}
                v_or_b32 v{vPOLL}, s{sT0}, v{vFST}
                s_lshl_b32 s{sT0}, s{sI}, 12
                s_lshl_b32 s{sT3}, s{sI}, 2
                v_mov_b32 v{Z}, 0
                v_mov_b32 v{Z + 1}, 0
                v_mov_b32 v{Z + 2}, 0
                v_mov_b32 v{Z + 3}, 0''')
                clr = [R.op(f'buffer_store_dwordx4 {vr(Z)}, v{a_}, {sr(SW)}, s{sT0} offen offset:{1024 * k} sc1', hi=g1 + 20 + 4 * k, pipe=20) for k in range(3)]
                wclr = R.wait(clr, late=False, lo=g1 + 110, hi=g1 + 114)
                R.op(f'buffer_store_dword v{vONE}, v{vPOLL}, {sr(SB)}, s{sT3} offen sc1', after=[wclr], hi=g1 + 118)
            if name == 'A1' and t == o.get('lx', 6):
                self.pre_bar += [(o_, 6) for o_ in self.l_writes + self.ql_writes]
                self.post_bar.append(self.l_read)
            if name == 'A1' and t == 0:
                R.op(self.pat_b(vPOLL, T + 19), prio=100)
            if name == 'A2' and t == 0:
                self.epi_q(R)
            if name == 'A2' and t == 1:
                self.chk0 = self.poll(R, 'clr', SB, '', 15, 1, g1, g1 + 60)
            if name == 'A1' and t == o.get('kvm', 15):
                self.kv_mfmas(R)
                self.kv_publish(R)
            if name == 'A2' and t == o.get('f1', 7):
                self.flag_later(R, '1', self.kv_stores)
            if name == 'A2' and t == o.get('f2a', 14):
                self.flag_later(R, '2a', hst['A0'] + hst['A1'])
            if name == 'A3' and t == o.get('p1', 6):
                self.chk1 = self.poll(R, 'kv', SW, self.flag_addr('1', False, sT2), 15, 1, g1, g1 + 40, after=[self.chk0, self.flags['1']])
                self.kv_gather(R, ACC1 + 32, [self.chk1])
            if name == last and t == o.get('p2a', 0):
                self.chk2a = self.poll(R, 'ha', SW, self.flag_addr('2a', False, sT2), 3, 1, g1, g1 + 40, after=[self.flags['2a']])
            if name == 'A3' and t == o.get('kvs', 17):
                self.kv_sum(R)
                self.kv_finish(R, [T + 20] * 3)
            if name == 'A3' and t == o.get('f2b', 16):
                self.flag_later(R, '2b', hst['A2'])
            if name == 'A4' and t == o.get('p2b5', 8):
                self.chk2b = self.poll(R, 'hb', SW, self.flag_addr('2b', False, sT2), 3, 1, g1, g1 + 40, after=[self.flags['2b']])
            if name == 'A4' and t == o.get('om5', 12):
                self.o_stores = self.o_mfmas(R, ACC0)
                R.op(self.pat_cl())
            if name == 'A4' and t == o.get('f2c5', 14):
                self.flag_later(R, '2c', hst['A3'])
            if name == last and t >= o.get('h0', 3):
                p_ = t - o.get('h0', 3)
                if p_ < 8 or (p_ < o.get('hpre5', 10) and hasattr(self, 'chk2b')):
                    self.h_loads(R, p_, [self.chk2a if p_ < 8 else self.chk2b], g1)
        self.hst = hst
        self.phase_b(R, n0)
        return R

    @staticmethod
    def hreg(pos, hh, rho, lo=0, cnt=4):
        return xn(4 * (pos & 15) + 2 * hh + rho)

    PF = {'1': ('A1', 4), '2': ('A2', 0), '3': ('A2', 5), '4': ('A3', 0), '5': ('A1', 0), '6': ('A0', 4), '7': ('A3', 4), '8': ('A2', 4), '9': ('A1', 7), 'a': ('A2', 2), 'b': ('A2', 7), 'c': ('A3', 2)}

    def prefetch_late(self, R, which, part, lo, after):
        if not self.o.get('pf1', 0):
            return
        a, d = T + 24, T + 23
        t, t2 = self.news(), self.news()
        per, step, srd = (36, 18, SD) if which == 'd' else (18, 9, SWO)
        nl = 2 if self.nt == 8 else 3
        sub = f's_mov_b32 s{t}, -1024' if which == 'd' else f's_mul_i32 s{t}, s{sR}, {4 * 1152}\ns_sub_u32 s{t}, s{t}, 1024'
        R.op(sub, lo=lo - 60)
        R.op(f's_lshl_b32 s{t2}, s{sIL}, 2\ns_add_u32 s{t2}, s{t2}, s{sWV}\ns_mul_i32 s{t2}, s{t2}, {per * 1152}\ns_sub_u32 s{t2}, s{t2}, s{t}\ns_xor_b32 s{t}, s{sIH}, {part}\ns_mul_i32 s{t}, s{t}, {step * 1152}\ns_add_u32 s{t2}, s{t2}, s{t}', lo=lo - 60)
        if nl == 3:
            R.op(f's_mul_i32 s{t}, s{sQ_}, -128\ns_add_u32 s{t}, s{t}, 128\ns_add_u32 s{t2}, s{t2}, s{t}', lo=lo - 60)
        R.op(f'v_min_u32 v{a}, {step * nl - 1}, v{vLANE}\nv_mul_u32_u24 v{d}, {128 if nl == 2 else 86}, v{a}\nv_lshrrev_b32 v{d}, 8, v{d}\nv_lshlrev_b32 v{a}, 7, v{a}\nv_mul_u32_u24 v{d}, {1152 - nl * 128}, v{d}\nv_add3_u32 v{a}, v{a}, v{d}, s{t2}', lo=lo - 60)
        R.op(f'buffer_load_dword v{T + 24 if self.o.get(PRB) else T + 25}, v{a}, {sr(srd)}, 0 offen', after=after, prio=500, hi=lo + self.o.get('pfd', 60), pipe=self.o['ppf'] if part == 0 else self.o.get('ppf2', 300))

    def h_loads(self, R, pos, after, lo):
        if pos in self.hl:
            return
        t = TB + pos
        if not hasattr(self, 'vH'):
            self.vH = vLL
            t2 = self.news()
            R.op(f's_lshl_b32 s{t2}, s{sWV}, 12\ns_add_u32 s{t2}, s{t2}, s{sHB}\nv_add_u32 v{self.vH}, s{t2}, v{vL16}', lo=lo - 100, prio=300)
        ops = []
        hsc = '' if self.o.get('hplain') else ' sc1'
        for hh in range(2):
            for rho in range(2):
                ops.append(R.op(f'buffer_load_dwordx4 {self.hreg(pos, hh, rho)}, v{self.vH}, {sr(SW)}, s{t} offen offset:{2048 * hh + 1024 * rho}{hsc}', after=after, lo=lo, pipe=P_H))
        if self.o.get('noh'):
            for o in ops:
                R.ops.remove(o)
            ops = []
        self.hl[pos] = ops

    hl = {}
    in_b = False
    kq_busy = False
    p3 = None
    sq_busy = False

    def b_prepare(self, R, n0, w, g0):
        t = self.news()
        R.op(f's_lshl_b32 s{t}, s{sC}, 6', lo=g0 - 40)
        cur = self.base[vLA0]
        if self.base[vLA1] != cur:
            d = cur - self.base[vLA1]
            R.op(f'v_add_u32 v{vLA1}, {d}, v{vLA1}' if d > 0 else f'v_subrev_u32 v{vLA1}, {-d}, v{vLA1}')
        R.op(f'v_xor_b32 v{vLA0}, s{t}, v{vLA0}\nv_xor_b32 v{vLA1}, s{t}, v{vLA1}\nv_xor_b32 v{vLB}, 64, v{vLA0}\nv_xor_b32 v{vA0}, 64, v{vLA1}', prio=50)
        self.vLT = [vLA0, vLA1, vLB, vA0]
        self.vLH = [vA1, T + 24]
        for r_ in self.vLT:
            self.base[r_] = cur
        if self.nt > 8:
            R.op(f'''v_lshrrev_b32 v{T + 24}, 2, v{vLANE}
            v_lshlrev_b32 v{T + 24}, 6, v{T + 24}
            v_bfe_u32 v{vA1}, v{vLANE}, 4, 1
            v_lshl_add_u32 v{T + 24}, v{vA1}, 5, v{T + 24}
            v_and_b32 v{vA1}, 3, v{vLANE}
            v_lshl_add_u32 v{vA1}, v{vA1}, 3, v{T + 24}
            v_xor_b32 v{T + 24}, 32, v{vA1}''', lo=g0 - 60)
            self.base[vA1] = self.base[T + 24] = 0
        self.bbar = self.chunk_enter(R, n0, g0 + 1, [w])
        self.bq = []
        self.b_ring = [RING + 4 * k for k in range(8)] + [XNV + 16 + 4 * k for k in range(self.o.get('ring', 8) - 8)]
        self.b_next = 0
        self.b_n0 = n0
        for _ in range(4):
            self.b_read(R, g0 + 1)

    def b_order(self):
        nt = self.o['ntail']
        seq = [(k, t) for k in range(36 - nt) for t in range(self.nt)]
        seq += [(k, t) for t in range(self.nt) for k in range(36 - nt, 36)]
        return seq

    def b_read(self, R, lo):
        seq = self.b_order()
        k, t = seq[self.b_next]
        n = self.b_n0 + (k >> 1)
        if n not in self.bars:
            self.span = 30
            self.chunk_enter(R, n, lo)
        reg, off, step = self.tile_addr(n, k, t)
        slot = self.b_ring[self.b_next % len(self.b_ring)]
        self.bq.append(self.tr_pair(R, slot, reg, off, step, [self.bars[n]], lo=lo))
        self.b_next += 1

    b_ring = [RING + 4 * k for k in range(8)]

    def tile_addr(self, n, k, t):
        cb = self.slot[n] * self.CH
        if t < 8:
            return self.vLT[t & 3], cb + 8192 * (k & 1) + 1024 * (t >> 2), 4096
        return self.vLH[t - 8], cb + 16384 + 2048 * (k & 1), 1024

    def bacc(self, t, rho):
        i = 2 * t + rho
        return self.OB + 4 * i if i < 16 else XNV + 4 * (i - 16)

    def phase_b(self, R, n0):
        self.in_b = True
        seq = self.b_order()
        AH, WG = self.o.get('ah', 6), self.o.get('wg', 3)
        lastuse = {}
        for x, (k, t) in enumerate(seq):
            lastuse[k >> 1] = x
        sT0 = KA
        R.op(f'''s_lshl_b32 s{sH0}, s{sI}, 2
        s_add_u32 s{sH0}, s{sH0}, s{sQ_}
        s_lshl_b32 s{sH0}, s{sH0}, 2
        s_add_u32 s{sH0}, s{sH0}, s{sWV}
        s_lshl_b32 s{sH0}, s{sH0}, 2
        s_add_u32 s{sH0}, s{sH0}, s{sJJ}
        s_mul_i32 s{sH0}, s{sH0}, {PSTR}
        s_add_u32 s{sH0}, s{sH0}, {PART_BASE}''', lo=R.here + 300)
        R.op(f's_add_u32 s{sH1}, s{sH0}, 4096', lo=R.here + 300)
        R.op(f's_add_u32 s{sT0}, s{sH0}, 8192', lo=R.here + 300)
        self.part_stores = []
        self.own_writes = []
        vST, vOW, sOWN = T + 11, T + 12, KA + 3 + 1
        self.own = self.o.get('own', 1)
        if not self.own:
            vST = vL16

        def put(X, so, imm, piece, hi):
            self.part_stores.append(R.op(f'buffer_store_dwordx4 {vr(X)}, v{vST}, {sr(SW)}, s{so} offen offset:{imm} sc1', prio=400, pipe=P_S * (3 if self.own else 4) // 4, hi=hi))
            if self.own:
                self.own_writes.append(R.op(f's_mov_b64 exec, s[{SQ}:{SQ + 1}]\nds_write_b128 v{vOW}, {vr(X)} offset:{1024 * piece}\ns_mov_b64 exec, -1', atomic=True, noexec=True, hi=hi + 6))
        done = {}
        seen = set()
        hw = {}
        w = None
        for x, (k, t) in enumerate(seq):
            g0 = R.here
            while self.b_next < min(len(seq), x + 1 + AH):
                self.b_read(R, g0)
            if self.b_next == len(seq) and x == len(seq) - 4:
                self.c_prepare(R, n0 + 18, g0)
            dep = []
            if x % WG == 0:
                w = R.wait(sum(self.bq[x:x + WG], []), dist=3)
                dep.append(w)
                for c_, lu in lastuse.items():
                    if x <= lu < x + WG:
                        self.lastwait[n0 + c_] = w
            pos = k >> 1
            if pos not in hw and (pos == 0 or (self.o.get('fine') and pos % 3 == 0)):
                self.stamp(R, f'B.{pos}')
            if pos not in hw:
                o = self.o
                hw[pos] = R.wait([(q_, o['dh'] + o.get('stag', 6) * (len(self.hl[pos]) - 1 - k_)) for k_, q_ in enumerate(self.hl[pos])], tag=f'h{pos}')
                dep.append(hw[pos])
                if pos == 1:
                    self.c_tables(R)
                five = self.ns == 5
                if self.own and pos == 12:
                    R.op(f's_cmp_eq_u32 s{sWV}, s{sJJ}\ns_cselect_b32 s{SQ}, -1, 0\ns_mov_b32 s{SQ + 1}, s{SQ}', atomic=True)
                    R.op(f's_lshl_b32 s{SQ + 2}, s{SQ}, 31\nv_or_b32 v{vST}, s{SQ + 2}, v{vL16}\nv_add_u32 v{vOW}, {self.KVX}, v{vL16}')
                    self.sq_busy = True
                if not five and pos == o.get('om', 5):
                    self.o_stores = self.o_mfmas(R, ACC0)
                    R.op(self.pat_cl())
                if not five and pos == o.get('p2b', 2):
                    self.chk2b = self.poll(R, 'hb', SW, self.flag_addr('2b', False, sT2), 3, 1, g0, g0 + 40, after=[self.flags['2b']])
                if pos == o.get('f2l', 6):
                    self.flag_later(R, '2d' if five else '2c', self.hst[self.order[-1]])
                if pos == (o.get('p2c5', 5) if five else o.get('p2c', 8)):
                    self.chk2c = self.poll(R, 'hc', SW, self.flag_addr('2c', False, sT2), 3, 1, g0, g0 + 40, after=[self.flags['2c']])
                if pos == (o.get('f2o5', 1) if five else o.get('f2o', 9)):
                    self.flag_later(R, '2o', self.o_stores)
                if pos == (o.get('p2d5', 10) if five else o.get('p2d', 13)):
                    self.chk2d = self.poll(R, 'hd', SW, self.flag_addr('2d', False, sT2), 1, 1, g0, g0 + 34, after=[self.flags['2d']] if five else [], mul=12)
                if pos == (o.get('p2o5', 12) if five else o.get('p2o', 12)):
                    self.chk2o = self.poll(R, 'o', SW, self.flag_addr('2o', False, sT2), 15, 1, g0, g0 + 30, after=[self.flags['2o']])
                    self.o_stage_load(R, g0)
                for nxt in range(pos + 1, min(18, pos + o['hlook'] + 1)):
                    chk = 'chk2a' if nxt < 8 else 'chk2b' if nxt < 12 else 'chk2c' if nxt < 16 else 'chk2d'
                    if hasattr(self, chk):
                        self.h_loads(R, nxt, [getattr(self, chk)], g0)
            slot = self.b_ring[x % len(self.b_ring)]
            for rho in range(2):
                d = vr(self.bacc(t, rho))
                R.mfma(f'{MF} {d}, {vr(slot)}, {self.hreg(pos, k & 1, rho)}, {d if (t, rho) in seen else 0}', after=dep)
                seen.add((t, rho))
                dep = []
            if k == 35:
                done[t] = True
                if t >= 8:
                    X = self.bacc(t, 0)
                    for rho in range(2):
                        a = self.bacc(t, rho)
                        R.op(f'v_cvt_pk_bf16_f32 v{X + 2 * rho}, v{a}, v{a + 1}', prio=40)
                        R.op(f'v_cvt_pk_bf16_f32 v{X + 2 * rho + 1}, v{a + 2}, v{a + 3}', prio=40)
                    put(X, sT0, 1024 * (t - 8), t, R.here + 8)
                elif t & 1:
                    for rho in range(2):
                        X, Y = self.bacc(t - 1, rho), self.bacc(t, rho)
                        for kk, a in enumerate((X, X + 2, Y, Y + 2)):
                            R.op(f'v_cvt_pk_bf16_f32 v{X + kk}, v{a}, v{a + 1}', prio=40)
                        put(X, sH0 + rho, 1024 * (t >> 1), 4 * rho + (t >> 1), R.here + 8 + 3 * rho + (0 if self.o['ntail'] else 3 * t))
        self.phase_c(R, n0 + 18)

    def o_stage_load(self, R, lo):
        buf = self.LB
        sT0, sT1 = KA + 1, KA + 2
        R.op(f'''s_lshl_b32 s{sT0}, s{sI}, 2
        s_add_u32 s{sT0}, s{sT0}, s{sJJ}
        s_lshl_b32 s{sT1}, s{sT0}, 15
        s_add_u32 s{sT1}, s{sT1}, {O_BASE}''', lo=lo - 10)
        self.o_ld = []
        for k in range(2):
            sT3 = KA + 3 + k
            R.op(f'''s_lshl_b32 s{sT3}, s{sWV}, 1
            s_add_u32 s{sT3}, s{sT3}, s{sIL}
            s_add_u32 s{sT3}, s{sT3}, {k}
            s_and_b32 s{sT3}, s{sT3}, 7
            s_lshl_b32 s{sT3}, s{sT3}, 12
            s_add_u32 s{sT3}, s{sT3}, s{sT1}''', lo=lo - 10)
            for p in range(4):
                self.o_ld.append(R.op(f'buffer_load_dwordx4 {vr(buf + 16 * k + 4 * p)}, v{vL16}, {sr(SW)}, s{sT3} offen offset:{1024 * p} sc1', after=[self.chk2o], lo=lo, pipe=P_H))
        a = T + 16
        R.op(f'v_lshrrev_b32 v{a}, 4, v{vLANE}', lo=lo - 10)
        R.op(f'v_lshlrev_b32 v{a}, 8, v{a}', lo=lo - 10)
        R.op(f'v_and_b32 v{a + 1}, 15, v{vLANE}', lo=lo - 10)
        R.op(f'v_lshl_add_u32 v{a}, v{a + 1}, 2, v{a}', lo=lo - 10)
        R.op(f'''s_lshl_b32 s{sT0}, s{sT0}, 1
        s_add_u32 s{sT0}, s{sT0}, s{sC}
        s_lshl_b32 s{sT0}, s{sT0}, 1
        s_add_u32 s{sT0}, s{sT0}, s{sR}
        s_lshl_b32 s{sT0}, s{sT0}, 10
        s_add_u32 s{sT0}, s{sT0}, {OL_BASE}''', lo=lo - 10)
        for p in range(4):
            self.o_ld.append(R.op(f'buffer_load_dword v{XNV + 16 + p}, v{a}, {sr(SW)}, s{sT0} offen offset:{64 * p} sc1', after=[self.chk2o], lo=lo, pipe=30))

    def final_prefetch(self, R, lo):
        XR = self.LB + 36
        sT0 = KA + 5
        self.vXa, self.vXb = SC + 2, SC + 3
        a, b_ = T + 23, T + 22
        R.op(f'''v_and_b32 v{a}, 15, v{vLANE}
        s_lshl_b32 s{sT0}, s{sI}, 2
        s_add_u32 s{sT0}, s{sT0}, s{sJJ}
        s_lshl_b32 s{sT0}, s{sT0}, 5
        v_add_u32 v{self.vXb}, s{sT0}, v{a}
        v_mul_u32_u24 v{self.vXb}, 1152, v{self.vXb}
        v_lshrrev_b32 v{b_}, 5, v{vLANE}
        v_lshl_add_u32 v{self.vXb}, v{b_}, 4, v{self.vXb}
        s_lshl_b32 s{sT0}, s{sQ_}, 3
        s_lshr_b32 s{sT0}, 0x0e0a0400, s{sT0}
        s_and_b32 s{sT0}, s{sT0}, 0xff
        s_add_u32 s{sT0}, s{sT0}, s{sWV}
        s_lshl_b32 s{sT0}, s{sT0}, 6
        v_bfe_u32 v{b_}, v{vLANE}, 4, 1
        v_lshl_add_u32 v{self.vXa}, v{b_}, 5, v{self.vXb}
        v_add_u32 v{self.vXa}, s{sT0}, v{self.vXa}''', lo=lo - 150)
        self.xo = [(self.vXa, '0', 0), (self.vXa, f's{KA + 7}', 0)]
        if self.nt > 8:
            R.op(f'''v_mul_u32_u24 v{b_}, {16 * 1152}, v{b_}
            s_lshl_b32 s{sT0}, s{sQ_}, 1
            s_add_u32 s{sT0}, s{sT0}, s{sC}
            s_lshl_b32 s{sT0}, s{sT0}, 5
            v_add3_u32 v{self.vXb}, v{b_}, v{self.vXb}, s{sT0}
            s_lshl_b32 s{sT0}, s{sR}, 31
            v_or_b32 v{self.vXb}, s{sT0}, v{self.vXb}''', lo=lo - 150)
            self.xo.append((self.vXb, '0', 448))
        R.op(f'''s_lshl_b32 s{sT0}, s{sJJ}, 7
        s_add_u32 s{sT0}, s{sT0}, {RS}
        v_lshl_add_u32 v{a}, v{a}, 2, s{sT0}
        s_mov_b32 s{KA + 7}, {16 * 1152}''', lo=lo - 150)
        self.x_ld = [R.op(f'buffer_load_dwordx4 {vr(XR + 4 * p)}, v{va}, {sr(SX)}, {so} offen offset:{imm}', lo=lo, pipe=160)
                     for p, (va, so, imm) in enumerate(self.xo)]
        self.rs_ld = [R.op(f'ds_read_b32 v{SC + rho}, v{a} offset:{64 * rho}', lo=lo - 100) for rho in range(2)]
        self.XR = XR


    def partial_loads(self, R, chk, lo):
        t = KA + 8
        self.PBS = [self.OB + 16 * k for k in range(3)]
        R.op(f'''s_lshl_b32 s{t}, s{sI}, 2
        s_add_u32 s{t}, s{t}, s{sQ_}
        s_lshl_b32 s{t}, s{t}, 2
        s_add_u32 s{t}, s{t}, s{sJJ}
        s_mul_i32 s{t}, s{t}, {4 * PSTR}
        s_add_u32 s{t}, s{t}, {PART_BASE}
        s_lshl_b32 s{sK5}, s{sWV}, 10
        v_add_u32 v{vA0}, s{sK5}, v{vL16}
        v_add_u32 v{vA1}, 4096, v{vA0}
        s_mul_i32 s{sK5}, s{sWV}, {hex(0x40000400)}
        s_and_b32 s{sK5}, s{sK5}, {hex(0x80000400)}
        s_add_u32 s{sK5}, s{sK5}, 8192
        v_add_u32 v{vLL}, s{sK5}, v{vL16}''', lo=lo - 40)
        for k in range(4):
            R.op(f's_add_u32 s{KA + k}, s{sJJ}, {k}\ns_and_b32 s{KA + k}, s{KA + k}, 3\ns_mul_i32 s{KA + k}, s{KA + k}, {PSTR}\ns_add_u32 s{KA + k}, s{KA + k}, s{t}', lo=lo - 40)
        for piece, va in enumerate((vA0, vA1, vLL)[:len(self.xo)]):
            for k in range(1 if self.own else 0, 4):
                R.op(f'buffer_load_dwordx4 {vr(self.PBS[piece] + 4 * k)}, v{va}, {sr(SW)}, s{KA + k} offen sc1', after=[chk], prio=100)
        if self.own:
            a = T + 12
            R.op(f'v_add_u32 v{a}, {self.KVX}, v{vA0}\nv_and_b32 v{a + 1}, 0xffff, v{vLL}\nv_add_u32 v{a + 1}, {self.KVX}, v{a + 1}')
            for piece in range(len(self.xo)):
                R.op(f'ds_read_b128 {vr(self.PBS[piece])}, v{a + (piece >> 1)} offset:{4096 * (piece & 1)}', after=[self.own_bar])

    def c_prepare(self, R, nO, g0):
        pass

    def phase_c(self, R, nO):
        g0 = R.here
        ost = self.slot[nO] * self.CH
        assert self.slot[nO + 1] == self.slot[nO] + 1
        a = T + 16
        buf = self.LB
        sT0 = KA + 6
        R.op(f's_lshl_b32 s{sT0}, s{sWV}, 13\ns_add_u32 s{sT0}, s{sT0}, {ost}', lo=g0 - 120)
        R.op(f'v_add_u32 v{a}, s{sT0}, v{vL16}', lo=g0 - 120)
        R.op(f's_lshl_b32 s{sT0}, s{sWV}, 10\ns_add_u32 s{sT0}, s{sT0}, {ost + 32768}', lo=g0 - 120)
        R.op(f'v_add_u32 v{a + 1}, s{sT0}, v{vL16}', lo=g0 - 120)
        fb = [self.free_bar[self.prev_user[nO]], self.free_bar[self.prev_user[nO + 1]]]
        wl = R.wait([(o, self.o.get('dol', 60) + 5 * (11 - k)) for k, o in enumerate(self.o_ld)], late=False, lo=g0 - 70, tag='old')
        R.op(f'v_add_u32 v{a + 2}, 8, v{a}', lo=g0 - 120)
        ws = [R.op(f'ds_write2st64_b64 v{a + 2 * (p & 1)}, {vr(buf + 4 * p, 2)}, {vr(buf + 4 * p + 2, 2)} offset0:{4 * (p >> 1)} offset1:{4 * (p >> 1) + 2}', after=fb + [wl], lo=g0 - 70) for p in range(8)]
        ws.append(R.op(f'ds_write_b128 v{a + 1}, {vr(XNV + 16)}', after=fb + [wl], lo=g0 - 70))
        vO0 = T + 17
        R.op(f'v_add_u32 v{vO0}, {ost}, v{vL16}', lo=g0 - 30)
        vC = [T + 8, T + 9, T + 10]
        R.op(f's_lshl_b32 s{sT0}, s{sC}, 6\nv_xor_b32 v{vC[0]}, s{sT0}, v{vLA0}\ns_lshl_b32 s{sT0}, s{sR}, 10\nv_add_u32 v{vC[0]}, s{sT0}, v{vC[0]}\nv_xor_b32 v{vC[1]}, 32, v{vC[0]}', lo=g0 - 12)
        self.base[vC[0]] = self.base[vC[1]] = self.base[vLA0]
        nf = 2
        if self.nt > 8:
            nf = 3
            R.op(f's_lshl_b32 s{sT0}, s{sC}, 5\nv_xor_b32 v{vC[2]}, s{sT0}, v{vA1}', lo=g0 - 12)
            self.base[vC[2]] = self.base[vA1]
        self.pre_bar += [(o, 4) for o in ws]

        self.span = 8
        nC = nO + 2
        NB = self.o.get('cah', 1) + 1
        AB = [('a', 32 + 12 * k) for k in range(NB)]
        BB = [96 + 8 * k for k in range(NB)]
        self.SA = lambda rho, f: XNV + 16 + 8 * rho + 4 * f if f < 2 else T + 4 * rho

        def reads(k, lo):
            n = nC + (k >> 1)
            if n not in self.bars:
                self.chunk_enter(R, n, lo)
            bar = self.bars[n]
            cb = self.slot[n] * self.CH
            out = []
            for f in range(nf):
                off, step = (cb + 8192 * (k & 1), 4096) if f < 2 else (cb + 16384 + 2048 * (k & 1), 1024)
                d = AB[k % NB][1] + 4 * f
                o_ = self.addr(R, vC[f], off, lo=lo)
                out.append(R.op(f'ds_read_b64_tr_b16 a[{d}:{d + 1}], v{vC[f]} offset:{o_}', after=[bar], prio=10, lo=lo))
                out.append(R.op(f'ds_read_b64_tr_b16 a[{d + 2}:{d + 3}], v{vC[f]} offset:{o_ + step}', after=[bar], prio=10, lo=lo))
            for rho in range(2):
                d = BB[k % NB] + 4 * rho
                out.append(R.op(f'ds_read_b128 a[{d}:{d + 3}], v{vO0} offset:{2048 * k + 1024 * rho}', after=[bar], lo=lo, prio=10))
            return out
        rds = {k: reads(k, g0 - 3) for k in range(NB - 1)}
        self.stamp(R, 'C')
        for k in range(18):
            w = R.wait(rds[k], dist=2)
            if k & 1:
                self.lastwait[nC + (k >> 1)] = w
            g = R.here
            if k in (6, 12) and self.o.get('fine'):
                self.stamp(R, f'C.{k}')
            if k == self.o.get('xk', 6):
                self.final_prefetch(R, g)
                self.sel_regs(R, PQ + 8, T + 20, lo=g - 200)
            if k == self.o.get('f3k', 11):
                self.flag_later(R, '3', self.part_stores)
                self.pre_bar += [(o_, 4) for o_ in self.own_writes]
                self.post_bar.append(lambda b_: setattr(self, 'own_bar', b_))
            if self.o.get('p3e', 0):
                if k == self.o.get('p3i', 0):
                    self.p3 = self.poll(R, 'p', SW, self.flag_addr('3', False, sT2, own_ok=True), 3, 1, g, g, defer=True)
                if '3' in self.flags and self.p3:
                    chk = self.p3(g, [self.flags['3']])
                    self.p3 = None
                    self.partial_loads(R, chk, g)
            elif k == self.o.get('p3k', 13):
                chk = self.poll(R, 'p', SW, self.flag_addr('3', False, sT2), 3, 1, g, g + self.o.get('p3d', 4) * 2 * nf, after=[self.flags['3']])
                self.partial_loads(R, chk, g)
            if k + NB - 1 < 18:
                rds[k + NB - 1] = reads(k + NB - 1, g + 1)
                for q_, o in enumerate(rds[k + NB - 1]):
                    o.after.append((w, 0))
                    o.hi = g + 1 + (q_ + 1) // 2
            for f in range(nf):
                for rho in range(2):
                    d = vr(self.SA(rho, f))
                    R.mfma(f'{MF} {d}, a[{AB[k % NB][1] + 4 * f}:{AB[k % NB][1] + 4 * f + 3}], a[{BB[k % NB] + 4 * rho}:{BB[k % NB] + 4 * rho + 3}], {d if k else 0}', after=[w] if f + rho == 0 else [], cap=3)
        self.marks.append((R, R.here, 'Cend'))

    def final(self):
        L = self.lin.text
        vp = T + 19
        self.stamp(None, 'Cend')
        PBS = self.PBS
        NP = len(self.xo)
        for p in range(NP):
            L(f'v_permlane16_swap_b32 v{self.XR + 4 * p}, v{self.XR + 4 * p + 2}\nv_permlane16_swap_b32 v{self.XR + 4 * p + 1}, v{self.XR + 4 * p + 3}')
        A1, A0 = PQ + 8, PQ + 10
        MS = self.LB
        red = [[f'{MF} {vr(MS + 8 * piece + 4 * half)}, {vr(A1 if half else A0)}, {vr(PBS[piece] + 4 * pj)}, {vr(MS + 8 * piece + 4 * half) if pj else 0}'
                for pj in range(4) for half in range(2)] for piece in range(NP)]
        for x in red[0]:
            L(x)
        R = Region(cap=1000)
        tm = RING
        for piece in range(NP):
            for half in range(2):
                rho, u = (piece, half) if piece < 2 else (half, 2)
                S = self.SA(rho, u)
                X = self.XR + 4 * piece + 2 * half
                M = MS + 8 * piece + 4 * half
                for e in range(4):
                    m = M + e
                    t0 = tm + 2 * e + 8 * (half)
                    R.op(f'v_mul_f32 v{m}, v{SC + rho}, v{m}')
                    R.op(f'v_mul_f32 v{t0}, {hex(NLOG2E)}, v{m}')
                    R.op(f'v_exp_f32 v{t0}, v{t0}')
                    R.op(f'v_mul_f32 v{m}, v{m}, v{S + e}')
                    R.op(f'v_add_f32 v{t0}, 1.0, v{t0}')
                    R.op(f'v_rcp_f32 v{t0}, v{t0}')
                    src = X + (e >> 1)
                    R.op(f'v_and_b32 v{t0 + 1}, 0xffff0000, v{src}' if e & 1 else f'v_lshlrev_b32 v{t0 + 1}, 16, v{src}')
                    R.op(f'v_fma_f32 v{m}, v{m}, v{t0}, v{t0 + 1}')
                nxt = red[piece + 1][4 * half:4 * half + 4] if piece + 1 < NP else []
                for k_, o in enumerate(self.interleave(R.ops)):
                    self.lin.op(o)
                    if nxt and k_ % 6 == 3:
                        L(nxt.pop(0))
                R.ops = []
                Z = MS + 8 * piece
                L(f'v_cvt_pk_bf16_f32 v{Z + 2 * half}, v{M}, v{M + 1}\nv_cvt_pk_bf16_f32 v{Z + 2 * half + 1}, v{M + 2}, v{M + 3}')
            va, so, imm = self.xo[piece]
            L(f'v_permlane16_swap_b32 v{Z}, v{Z + 2}\nv_permlane16_swap_b32 v{Z + 1}, v{Z + 3}')
            L(f'buffer_store_dwordx4 {vr(Z)}, v{va}, {sr(SO)}, {so} offen offset:{imm}{" sc1" if self.o.get("osc1") else ""}')
        self.stamp(None, 'end')

    @staticmethod
    def interleave(ops):
        per = len(ops) // 4
        return [ops[e * per + k] for k in range(per) for e in range(4)]

    def build(self):
        self.hl = {}
        self.flags = {}
        self.build_stream()
        self.setup()
        for fn in (self.layernorm, self.main):
            R = fn()
            if self.o.get('probe') and (fn == self.main or self.o.get('probe') == 3):
                self.lin.probe_vm = self.o['probe'] >= 2
                if self.lin.probe is None:
                    self.lin.probe_skip = self.o.get('pskip', 0)
                self.lin.probe = PRV
                self.o['pf_dummy'] = 1
            for o in R.schedule(self.log):
                self.lin.op(o)
            if self.o.get('prof'):
                ld = R.loads
                for g in range(0, R.nspine, 48):
                    xs = [ld[k] for k in range(g, min(g + 48, R.nspine))]
                    self.log.append(f'{g:5d} sum={sum(xs):4d} ' + ''.join(str(min(9, v)) for v in xs))
        if self.o.get('probe'):
            if self.lin.probe_open:
                self.lin._probe_end()
            self.lin._emit_wait(None, 0)
            self.lin.probe = None
            self.lin.text(f's_lshl_b32 s0, s{sI}, 4\ns_add_u32 s0, s0, s{sJ}\ns_lshl_b32 s0, s0, 2\ns_add_u32 s0, s0, s{sWV}\ns_mul_i32 s0, s0, 768\ns_add_u32 s0, s0, {DUMP_BASE}\nv_lshlrev_b32 v{vPOLL}, 2, v{vLANE}')
            for k in range(3):
                self.lin.text(f'buffer_store_dword v{PRV + k}, v{vPOLL}, {sr(SW)}, s0 offen offset:{256 * k}')
            self.stamp_names = ['probe'] + self.lin.probe_names
        prev = None
        for R_, g, nm in self.marks:
            cur = (R_, R_.time_at[g], R_.slot_t[g], g)
            if prev and prev[0] is R_:
                cat = {}
                for o in R_.ops:
                    if o.pipe and prev[3] < o.gap <= g:
                        k = o.ins[0].kind + (o.tag[0] if o.tag else '')
                        cat[k] = cat.get(k, 0) + o.pipe
                self.log.append(f'  model {nm}: with pipe {cur[1] - prev[1]:.0f}  issue only {cur[2] - prev[2]:.0f} pipe {sum(cat.values())} {cat}')
            prev = cur
        self.final()
        self.lin.text('s_endpgm')
        body = list(self.lin.out)
        for s in self.slow:
            body += [l.strip() for l in s.split('\n')]
        body += [f'L_stop{self.sfx}:', 's_endpgm']
        self.log.append(f'nops={self.lin.nops} autowaits={len(self.lin.autowaits)} instrs={len(body)}')
        return body


def assemble(gens):
    body = ['s_cmp_ge_u32 s2, 256', 's_cbranch_scc0 L_go', 's_endpgm', 'L_go:']
    body += ['s_bitcmp1_b32 s2, 7'] if gens[0].o.get('hicls', 0) else ['s_add_u32 s3, s2, 8', 's_bitcmp1_b32 s3, 4']
    body += ['s_cbranch_scc1 L_four']
    body += gens[0].build() + ['.p2align 6', 'L_four:'] + gens[1].build()
    hdr = open('cdna_kernels/' + NAME + '.s.ref').read().split('\n')
    head = [l for l in hdr if l.startswith(';')][:11]
    K = NAME + '_kernel'
    txt = head + [f'; @launch grid=(256,1,1) block=(256,1,1) lds={LDS_BYTES}',
                  '.amdgcn_target "amdgcn-amd-amdhsa--gfx950"', '.text', f'.globl {K}', '.p2align 8',
                  f'.type {K},@function', f'{K}:']
    txt += [l.replace(' offset:0 ', ' ').replace(', ', ',') for l in body]
    txt += ['.section .rodata,"a"', '.p2align 6', f'.amdhsa_kernel {K}', '  .amdhsa_next_free_vgpr 512',
            '  .amdhsa_next_free_sgpr 102', '  .amdhsa_accum_offset 256', '  .amdhsa_group_segment_fixed_size 0',
            '  .amdhsa_kernarg_size 80', '  .amdhsa_float_denorm_mode_32 3', '  .amdhsa_user_sgpr_count 2',
            '  .amdhsa_user_sgpr_kernarg_segment_ptr 1', '  .amdhsa_system_sgpr_workgroup_id_x 1',
            '.end_amdhsa_kernel']
    return '\n'.join(txt) + '\n'


if __name__ == '__main__':
    import argparse
    ap = argparse.ArgumentParser()
    ap.add_argument('out')
    ap.add_argument('--stamps', action='store_true')
    ap.add_argument('-o', action='append', default=[])
    a = ap.parse_args()
    opts = {k: int(v, 0) for k, v in (x.split('=') for x in a.o)}
    gens = [Gen(5, stamps=a.stamps, opts=opts), Gen(4, stamps=a.stamps, opts=opts)]
    open(a.out, 'w').write(assemble(gens))
    open(a.out + '.names', 'w').write(' '.join(gens[0].stamp_names) + '\n' + ' '.join(gens[1].stamp_names))
    for g in gens:
        print('\n'.join(g.log))
        for t in g.lin.autowaits:
            if not t.startswith(('v_mfma', 'v_permlane')):
                print('  autowait:', t)
```

```python
import sys
from sched import Region, Linear, Op, Ins

NAME = 'recurrent_scan__linear_attn_block__glu_gated_glu__prompt'
MF = 'v_mfma_f32_16x16x32_bf16'
LOG2E = 0x3fb8aa3b
NLOG2E = 0xbfb8aa3b
EPS6 = 0x358637bd
OOB = 0x80000000

F1, F2A, F2B, F3, F2O, F2C = 0, 4096, 4096 + 8192, 4096 + 16384, 4096 + 24576, 4096 + 32768
F2D = 4096 + 40960
KV2_BASE = 0x100000
KV_BASE, OL_BASE, O_BASE, PART_BASE, H_BASE = 0x20000, 0x200000, 0x300000, 0x500000, 0x1000000
DUMP_BASE = 0x2400000
WS_SIZE = 0x4000000
RS = 159744
QL = 160256
DUMMY = 162304
LDS_BYTES = 163840

SX, SG, SU, SQ, SD, SW, SO, SB, SWO = 4, 8, 12, 16, 20, 24, 28, 32, 36
sI, sJ, sJJ, sQ_, sIL, sWV, sR, sC = 40, 41, 42, 43, 44, 45, 46, 47
KA, KQ, TB = 48, 57, 66
sMA, sM2, sH0, sH1, sT0, sT1, sT2, sT3 = 84, 85, 86, 87, 88, 89, 90, 91
sMASKC, sMASKONE, sMK2, sMK3 = 92, 94, 32, 34
sHB, sCNT, sK3, sK4, sK5 = 96, 97, 98, 99, 100
sS0 = 0
sJQ = 101
sEPS = SQ + 3
sIH = 3
sCNT2 = TB + 9
sCL2 = sM2
sCNT2X = sM2
sST = 76
ACC0, ACC1, XNV, RING = 0, 64, 128, 160
PQ = 192
SC = 208
vL16, vA0, vA1, vLA0, vLA1, vLB, vLL = 212, 213, 214, 215, 216, 217, 218
P_A, P_AH, P_Q, P_B, P_H, P_S = 76, 160, 175, 100, 80, 240
V288 = 219
vFST, vONE, vLANE, vPOLL = 224, 225, 226, 227
T = 228
NT = 28
PSTR = 10240
XR_ = 18432
PRB = 'probe'
PRV = T + 25
V_G0, V_G1 = T + 10, T + 6
VQ = [vLL, T, T + 1, V288 + 4]


def vr(b, n=4):
    return f'v[{b}:{b + n - 1}]' if n > 1 else f'v{b}'


def sr(b, n=4):
    return f's[{b}:{b + n - 1}]'


def xn(n, lo=0, cnt=4):
    if n < 64:
        return f'a[{4 * n + lo}:{4 * n + lo + cnt - 1}]'
    return vr(XNV + 4 * (n - 64) + lo, cnt)


class Gen:
    def __init__(self, ns, stamps=False, opts=None):
        self.ns = ns
        self.nt = 8 if ns == 5 else 10
        self.CH, self.NCH = (18432, 8) if ns == 5 else (20480, 7)
        self.KVX = self.CH * self.NCH
        self.order = ('A0', 'Q', 'A1', 'A2', 'A3', 'A4')[:ns + 1]
        self.LB, self.OB = (ACC1, ACC0) if ns == 5 else (ACC0, ACC1)
        self.sfx = f'_{ns}'
        self.jump = (2, 0, -4, 0) if ns == 5 else (1, 0, -3)
        self.stamps = stamps
        self.o = dict(ntail=4, f3k=3, ppf=600, hlook=7, pkv=90, warm=True, spin=200000, ddma=50, dst=70, backlog=60, dh=50, dm=110)
        self.o.update(opts or {})
        self.lin = Linear()
        self.slow = []
        self.log = []
        self.nstamp = 0
        self.marks = []
        self.spool = 0
        self.stamp_names = []

    def setup(self):
        L = self.lin.text
        st = self.stamps
        hi = self.o.get('hicls', 0)
        L(f'''
        {'s_memrealtime s[76:77]' if st else ''}
        s_load_dwordx4 s[4:7], s[0:1], 0
        s_load_dwordx4 s[32:35], s[0:1], 64
        s_getpc_b64 s[{sT2}:{sT3}]
        L_pc{self.sfx}:
        s_lshr_b32 s{sT1}, s2, 3
        v_and_b32 v{vLANE}, 63, v0
        v_lshrrev_b32 v1, 6, v0
        {f's_and_b32 s{sT0}, s{sT1}, 15' if hi else f's_lshr_b32 s{sT0}, s2, 4'}
        {'' if hi else f's_and_b32 s{sT0}, s{sT0}, 14'}
        {'' if hi else f's_bfe_u32 s{sK3}, s2, 0x10003'}
        {'' if hi else f's_or_b32 s{sT0}, s{sT0}, s{sK3}'}
        v_lshl_add_u32 v2, v{vLANE}, 4, s{sT0}
        v_readfirstlane_b32 s{sWV}, v1
        v_lshlrev_b32 v2, 7, v2
        v_min_u32 v2, L_stop{self.sfx}-L_pc{self.sfx}, v2
        v_cmp_gt_u32 vcc, {32 if self.o['warm'] else 0}, v0
        s_and_saveexec_b64 s[{sK3}:{sK4}], vcc
        s_cbranch_execz L_nowarm{self.sfx}
        global_load_dword v{T + 27}, v2, s[{sT2}:{sT3}]
        L_nowarm{self.sfx}:
        s_mov_b64 exec, -1''')
        self.lin.vm.pop()
        L(f'''
        s_and_b32 s{sQ_}, s{sT1}, {1 if hi else 3}
        {(f's_mul_i32 s{sQ_}, s{sQ_}, 3' if self.ns == 5 else f's_add_u32 s{sQ_}, s{sQ_}, 1') if hi else ''}
        {f's_bfe_u32 s{sIL}, s{sT1}, 0x30001' if hi else f's_lshr_b32 s{sIL}, s{sT1}, 2'}
        s_and_b32 s{sT0}, s2, 1
        s_lshl_b32 s{sT0}, s{sT0}, 3
        s_add_u32 s{sI}, s{sT0}, s{sIL}
        s_lshl_b32 s{sT0}, s{sQ_}, 1
        s_add_u32 s{sT0}, s{sT0}, s{sIL}
        s_sub_u32 s{sT2}, s{sT0}, 9
        s_cselect_b32 s{sT0}, s{sT0}, s{sT2}
        s_lshl_b32 s{TB}, s{sT0}, 7
        s_lshl_b32 s{sT1}, s{sI}, 2
        s_add_u32 s{sT1}, s{sT1}, s{sWV}
        s_lshl_b32 s{sT1}, s{sT1}, 5
        v_lshrrev_b32 v4, 3, v{vLANE}
        v_add_u32 v4, s{sT1}, v4
        v_mul_u32_u24 v4, 1152, v4
        v_bfe_u32 v5, v{vLANE}, 4, 2
        v_lshlrev_b32 v5, 1, v5
        v_and_b32 v6, 7, v{vLANE}
        v_xor_b32 v{vA0}, v5, v6
        v_lshl_add_u32 v{T + 2}, v{vA0}, 4, v4
        v_add_u32 v{T + 3}, {8 * 1152 - 1024}, v{T + 2}
        v_add_u32 v{T + 4}, {16 * 1152}, v{T + 2}
        v_add_u32 v{T + 5}, {24 * 1152 - 1024}, v{T + 2}
        s_mul_i32 s{sM2}, s{sWV}, {XR_}
        s_add_u32 s{sM2}, s{sM2}, 16384
        s_add_u32 s{sCNT2}, s{sM2}, {4 * XR_}
        v_mov_b32 v{T + 25}, v0''')
        for u in range(1, 9):
            L(f'''s_add_u32 s{TB + u}, s{TB + u - 1}, 128
            s_cmp_eq_u32 s{TB + u}, 1152
            s_cselect_b32 s{TB + u}, 0, s{TB + u}''')
        L(f'''
        s_load_dwordx2 s[36:37], s[0:1], 16
        s_load_dwordx4 s[8:11], s[0:1], 32
        s_load_dwordx4 s[20:23], s[0:1], 48
        {'s_memrealtime s[78:79]' if st else ''}
        s_waitcnt lgkmcnt(0)
        {'s_memrealtime s[80:81]' if st else ''}
        s_mov_b32 s{SQ}, s6
        s_mov_b32 s{SQ + 1}, s7
        s_mov_b32 s6, {2048 * 1152}
        s_mov_b32 s7, 0x20000''')
        self.xl = {}
        nf = self.o.get('xfirst', 3)
        order = [(0, u) for u in range(nf)] + [(1, u) for u in range(nf)]
        order += [(0, u) for u in range(nf, 9)] + [(1, u) for u in range(nf, 9)]
        pend = []
        for rho, u in order:
            pend.append(Op(f's_add_u32 m0, s{sCNT2 if rho else sM2}, {2048 * u}'))
            for hf in range(2):
                op = Op(f'buffer_load_dwordx4 v{T + 2 + 2 * rho + hf}, {sr(SX)}, s{TB + u} offen offset:{1024 * hf} lds')
                self.xl[rho, u, hf] = op
                pend.append(op)
        for _ in range(6 * nf):
            self.lin.op(pend.pop(0))
        if st:
            L('s_memrealtime s[82:83]')
        S = Region()
        L = S.op
        L(f'''
        s_mov_b32 s{SW}, s34
        s_mov_b32 s{SW + 1}, s35
        s_mov_b32 s{SW + 2}, {WS_SIZE}
        s_mov_b32 s{SW + 3}, 0x20000
        s_bfe_u32 s{sJJ}, s2, 0x20001
        s_lshl_b32 s{sJ}, s{sJJ}, 2
        s_and_b32 s{sT0}, s{sQ_}, 2
        s_add_u32 s{sJ}, s{sJ}, s{sT0}
        s_lshr_b32 s{sT0}, s{sJJ}, 1
        s_xor_b32 s{sT0}, s{sT0}, {(self.ns - 4) ^ self.o.get('qflip', 1)}
        s_add_u32 s{sJ}, s{sJ}, s{sT0}
        s_lshr_b32 s{sIH}, s{sI}, 3
        s_and_b32 s{sIH}, s{sIH}, {self.o.get('ihoff', 1)}
        s_xor_b32 s{sJQ}, s{sJ}, {self.o.get('qswap', 1)}
        s_lshr_b32 s{sR}, s{sWV}, 1
        s_and_b32 s{sC}, s{sWV}, 1
        v_mov_b32 v{vONE}, 1
        v_min_u32 v{vFST}, 1, v{T + 25}
        v_lshlrev_b32 v{vFST}, 31, v{vFST}
        v_lshlrev_b32 v{vL16}, 4, v{vLANE}''')
        if self.o.get('defer', 1):
            self.ln_consts(S)
        nearly = len(S.ops)
        for u in range(9):
            L(f's_mul_i32 s{KA + u}, s{TB + u}, {64 * 9216 // 128}\ns_mul_i32 s{KQ + u}, s{TB + u}, {64 * 3456 // 128}')
        L(f'''
        s_mov_b32 s{SU}, s10
        s_mov_b32 s{SU + 1}, s11
        s_mov_b32 s{SO}, s22
        s_mov_b32 s{SO + 1}, s23
        s_mov_b32 s{SO + 2}, {2048 * 1152}
        s_mov_b32 s{SO + 3}, 0x20000
        s_mov_b32 s{SB + 2}, 256
        s_mov_b32 s{SB + 3}, 0x20000
        s_lshl_b32 s{sT1}, s{sQ_}, 3
        s_lshr_b32 s{sCNT}, 0x0d090500, s{sT1}
        s_and_b32 s{sCNT}, s{sCNT}, 0xff
        s_lshl_b32 s{sT0}, s{sCNT}, 7
        s_mul_i32 s{sT1}, s{sJJ}, 2304
        s_add_u32 s{sT0}, s{sT0}, s{sT1}
        s_add_u32 s{SG}, s{SG}, s{sT0}
        s_addc_u32 s{SG + 1}, s{SG + 1}, 0
        s_sub_u32 s{SG + 2}, {576 * 9216}, s{sT0}
        s_mov_b32 s{SG + 3}, 0x20000
        s_add_u32 s{SU}, s{SU}, s{sT0}
        s_addc_u32 s{SU + 1}, s{SU + 1}, 0
        s_sub_u32 s{SU}, s{SU}, 1024
        s_subb_u32 s{SU + 1}, s{SU + 1}, 0
        s_sub_u32 s{SU + 2}, {576 * 9216 + 1024}, s{sT0}
        s_mov_b32 s{SU + 3}, 0x20000
        s_mov_b32 s{SQ + 2}, {576 * 3456}
        s_mov_b32 s{SQ + 3}, 0x20000
        s_lshl_b32 s{sT1}, s{sQ_}, 3
        s_lshr_b32 s{sT0}, 0x07050200, s{sT1}
        s_and_b32 s{sT0}, s{sT0}, 0xff
        s_lshl_b32 s{sT0}, s{sT0}, 7
        s_mul_i32 s{sT1}, s{sR}, {4 * 1152}
        s_add_u32 s{sT1}, s{sT1}, s{sT0}
        s_add_u32 s{SWO}, s{SWO}, s{sT1}
        s_addc_u32 s{SWO + 1}, s{SWO + 1}, 0
        s_sub_u32 s{SWO}, s{SWO}, 1024
        s_subb_u32 s{SWO + 1}, s{SWO + 1}, 0
        s_sub_u32 s{SWO + 2}, {576 * 1152 + 1024}, s{sT1}
        s_mov_b32 s{SWO + 3}, 0x20000
        s_mul_i32 s{sT1}, s{sJJ}, {1152 * 1152}
        s_add_u32 s{sT0}, s{sT0}, s{sT1}
        s_add_u32 s{SD}, s{SD}, s{sT0}
        s_addc_u32 s{SD + 1}, s{SD + 1}, 0
        s_sub_u32 s{SD}, s{SD}, 1024
        s_subb_u32 s{SD + 1}, s{SD + 1}, 0
        s_sub_u32 s{SD + 2}, {4608 * 1152 + 1024}, s{sT0}
        s_mov_b32 s{SD + 3}, 0x20000
        s_lshl_b32 s{sMA}, s{sWV}, 11
        v_lshrrev_b32 v{T + 9}, 3, v{vLANE}
        s_lshl_b32 s{sT0}, s{sWV}, 3
        v_add_u32 v{T + 9}, s{sT0}, v{T + 9}
        v_mul_u32_u24 v{T + 9}, 9216, v{T + 9}
        v_lshl_add_u32 v{vA0}, v{vA0}, 4, v{T + 9}
        v_add_u32 v{vA1}, {32 * 9216}, v{vA0}
        v_lshrrev_b32 v{T + 8}, 2, v{vLANE}
        v_lshrrev_b32 v{T + 9}, 5, v{vLANE}
        v_lshlrev_b32 v{T + 9}, 11, v{T + 9}
        v_and_b32 v{T + 7}, 7, v{T + 8}
        v_lshl_add_u32 v{T + 9}, v{T + 7}, 7, v{T + 9}
        v_bfe_u32 v{T + 7}, v{vLANE}, 3, 2
        s_lshl_b32 s{sT0}, s{sC}, 1
        v_xor_b32 v{T + 7}, s{sT0}, v{T + 7}
        v_lshl_add_u32 v{T + 9}, v{T + 7}, 5, v{T + 9}
        v_and_b32 v{T + 7}, 3, v{vLANE}
        v_lshl_add_u32 v{vLA0}, v{T + 7}, 3, v{T + 9}
        v_xor_b32 v{vLA1}, 32, v{vLA0}
        s_sub_u32 s{sMASKC}, 0, s{sC}
        s_mov_b32 s{sMASKC + 1}, s{sMASKC}
        s_lshl_b32 s{sT0}, s{sC}, 1
        s_lshr_b32 s{sMASKONE}, 0x44444444, s{sT0}
        s_mov_b32 s{sMASKONE + 1}, s{sMASKONE}
        s_lshl_b32 s{sT0}, s{sI}, 2
        s_add_u32 s{sT0}, s{sT0}, s{sJJ}
        s_mul_i32 s{sHB}, s{sT0}, {18 * 16384}
        s_add_u32 s{sHB}, s{sHB}, {H_BASE}
        s_lshl_b32 s{sT0}, s{sCNT}, 14
        s_add_u32 s{sT0}, s{sT0}, s{sHB}
        s_lshl_b32 s{sT1}, s{sC}, 11
        s_add_u32 s{sT0}, s{sT0}, s{sT1}
        s_lshl_b32 s{sT1}, s{sWV}, 12
        s_add_u32 s{sH0}, s{sT0}, s{sT1}
        s_xor_b32 s{sT1}, s{sT1}, 4096
        s_add_u32 s{sH1}, s{sT0}, s{sT1}''')
        qd, qr = self.pat_qkv()
        L(qd)
        L(qr)
        if not self.o.get('defer', 1):
            self.ln_consts(S)
            nearly = len(S.ops)
        for o in S.ops[:nearly]:
            self.lin.op(o)
        rest = S.ops[nearly:]
        if st:
            self.lin.text('s_waitcnt lgkmcnt(0)')
            for k, nm in enumerate(('entry', 'karg0', 'karg1', 'xa')):
                self.stamp_names.append(nm)
                self.lin.text(f'v_mov_b32 v{T + 26}, s{sST + 2 * k}\nv_mov_b32 v{T + 27}, 0\ns_lshl_b32 s{sT2}, s2, 10\ns_add_u32 s{sT2}, s{sT2}, {DUMP_BASE + 8 * k}\nbuffer_store_dwordx2 v[{T + 26}:{T + 27}], v{vFST}, {sr(SW)}, s{sT2} offen')
            self.nstamp = 4
        self.stamp(None, 'setup')
        k = 3 * (9 - nf)
        per = -(-len(rest) // (9 - nf))
        for g in range(9 - nf):
            ops = pend[3 * g:3 * g + 2] + rest[per * g:per * g + per // 2] + [pend[3 * g + 2]] + rest[per * g + per // 2:per * (g + 1)]
            for o in ops:
                self.lin.op(o)
        self.x_pend = pend[k:]
        self.base = {vLA0: 0, vLA1: 0}
        self.base.update({r: 0 for r in VQ})

    @staticmethod
    def raw(rho, t):
        if rho == 0:
            return ACC0 + 4 * t if t < 16 else ACC1 + 56 + 4 * (t - 16)
        return RING + 4 * t if t < 4 else ACC1 + 4 * (t - 4)

    def flag_addr(self, f, own, dst, sT1=sT1, own_ok=False):
        t = dst
        if f == '1':
            blk, grp, line, mem = (sJ if own else sJQ), None, 21, sI
        elif f == '2o':
            blk, grp, line, mem = sI, None, 20, sJ
        elif f == '3':
            blk, grp, line, mem = sI, sQ_, 16, sJJ
        else:
            blk, grp, line, mem = sI, sJJ, 4 * 'abcd'.index(f[1]), sQ_
        s = f's_lshl_b32 s{t}, s{blk}, 5\n'
        if grp is not None:
            s += f's_add_u32 s{t}, s{t}, s{grp}\n'
        if line:
            s += f's_add_u32 s{t}, s{t}, {line}\n'
        if own:
            s += f's_lshl_b32 s{t}, s{t}, 5\ns_add_u32 s{t}, s{t}, s{mem}\ns_lshl_b32 s{t}, s{t}, 2\n'
        else:
            s += f's_lshl_b32 s{t}, s{t}, 7\n'
        return s

    def pat_b(self, a, b):
        s = f'''v_lshrrev_b32 v{a}, 3, v{vLANE}
        s_lshl_b32 s{sK5}, s{sWV}, 3
        v_add_u32 v{a}, s{sK5}, v{a}
        v_mul_u32_u24 v{a}, 1152, v{a}
        v_bfe_u32 v{b}, v{vLANE}, 4, 2
        v_lshlrev_b32 v{b}, 1, v{b}
        v_and_b32 v{V288}, 7, v{vLANE}
        v_xor_b32 v{b}, v{b}, v{V288}
        v_lshl_add_u32 v{a}, v{b}, 4, v{a}
        v_add_u32 v{V288}, 1024, v{a}
        v_add_u32 v{V288 + 1}, 128, v{a}
        v_add_u32 v{V288 + 2}, {1024 + 32 * 1152}, v{a}
        v_add_u32 v{V288 + 3}, {128 + 32 * 1152}, v{a}
        '''
        if self.nt > 8:
            s += f'''v_lshrrev_b32 v{a}, 2, v{vLANE}
            s_lshl_b32 s{sK5}, s{sWV}, 4
            v_add_u32 v{a}, s{sK5}, v{a}
            v_mul_u32_u24 v{a}, 1152, v{a}
            v_bfe_u32 v{b}, v{vLANE}, 4, 1
            v_lshlrev_b32 v{b}, 1, v{b}
            v_and_b32 v{V288 + 4}, 3, v{vLANE}
            v_xor_b32 v{b}, v{b}, v{V288 + 4}
            v_lshl_add_u32 v{a}, v{b}, 4, v{a}
            s_mul_i32 s{sK5}, s{sQ_}, -320
            s_add_u32 s{sK5}, s{sK5}, {1024 + 576}
            v_add_u32 v{V288 + 4}, s{sK5}, v{a}
            '''
        return s

    def pat_c(self):
        s = f'v_add_u32 v{V288 + 2}, {4 * 1152}, v{V288 + 2}\nv_add_u32 v{V288 + 3}, {4 * 1152}, v{V288 + 3}\n'
        if self.nt > 8:
            s += f's_mul_i32 s{sK5}, s{sC}, {4 * 1152}\nv_add_u32 v{V288 + 4}, s{sK5}, v{V288 + 4}\n'
        return s

    def pat_cl(self, a=T + 20):
        s = f'v_lshrrev_b32 v{a}, 5, v{vLANE}\nv_mul_u32_u24 v{a}, {68 * 1152}, v{a}\n'
        for k in range(4):
            s += f'v_add_u32 v{PQ + k}, v{a}, v{V288 + k}\n'
            if k >= 2:
                s += f'v_add_u32 v{PQ + k}, {256 * 1152}, v{PQ + k}\n'
        s += f'''s_mul_i32 s{KQ + 8}, s{sC}, 136
        s_lshl_b32 s{sK5}, s{sR}, 4
        s_add_u32 s{KQ + 8}, s{KQ + 8}, s{sK5}
        s_add_u32 s{KQ + 8}, s{KQ + 8}, 16
        s_mul_i32 s{KQ + 8}, s{KQ + 8}, 1152
        '''
        if self.nt > 8:
            s += f'''v_lshrrev_b32 v{a}, 4, v{vLANE}
            v_mul_u32_u24 v{a}, {68 * 1152}, v{a}
            v_add_u32 v{PQ + 4}, v{a}, v{V288 + 4}
            s_mul_i32 s{sCL2}, s{sR}, 252
            s_mul_i32 s{sK5}, s{sC}, 20
            s_add_u32 s{sCL2}, s{sCL2}, s{sK5}
            s_add_u32 s{sCL2}, s{sCL2}, 16
            s_mul_i32 s{sCL2}, s{sCL2}, 1152
            '''
        return s

    def pat_qkv(self, a=T + 20, b=T + 21, c=T + 22, d=T + 23, e=T + 24):
        s = f'''s_mul_i32 s{sK3}, s{sJQ}, 72
        s_and_b32 s{sK3}, s{sK3}, -16
        v_mov_b32 v{e}, s{sK3}
        s_mul_i32 s{sK3}, s{sJ}, 72
        s_and_b32 s{sK3}, s{sK3}, -16
        '''
        for n in range(4):
            s += f'''v_lshrrev_b32 v{a}, 4, v{vLANE}
            v_add_u32 v{a}, {4 * n}, v{a}
            v_and_b32 v{b}, 7, v{a}
            v_lshlrev_b32 v{b}, 1, v{b}
            v_and_b32 v{c}, 15, v{vLANE}
            v_xor_b32 v{b}, v{b}, v{c}
            v_mul_u32_u24 v{c}, 52, v{b}
            v_lshrrev_b32 v{c}, 8, v{c}
            v_mul_u32_u24 v{d}, 5, v{c}
            v_sub_u32 v{b}, v{b}, v{d}
            v_lshlrev_b32 v{b}, 4, v{b}
            v_add_u32 v{d}, 1, v{c}
            v_mul_u32_u24 v{d}, 1152, v{d}
            v_add_u32 v{d}, s{sK3}, v{d}
            v_cmp_eq_u32 vcc, 2, v{c}
            v_cndmask_b32 v{d}, v{d}, v{e}, vcc
            v_add_u32 v{b}, v{b}, v{d}
            v_add_u32 v{c}, 1, v{c}
            v_lshrrev_b32 v{c}, 2, v{c}
            v_lshl_or_b32 v{b}, v{c}, 31, v{b}
            s_lshl_b32 s{sK5}, s{sWV}, 4
            v_add_u32 v{a}, s{sK5}, v{a}
            v_mul_u32_u24 v{a}, 3456, v{a}
            v_add_u32 v{V288 + n}, v{a}, v{b}
            '''
            if n:
                s += f'v_subrev_u32 v{V288 + n}, {1024 * n}, v{V288 + n}\n'
        r = f'''s_and_b32 s{sK3}, s{sJ}, 1
        s_lshl_b32 s{sK3}, s{sK3}, 3
        s_mul_i32 s{sK4}, s{sC}, 40
        s_and_b32 s{sK5}, s{sJQ}, 1
        s_lshl_b32 s{sK5}, s{sK5}, 3
        s_add_u32 s{sK5}, s{sK5}, s{sK4}
        s_add_u32 s{sK4}, s{sK4}, s{sK3}
        s_add_u32 s{sK3}, s{sK3}, 32
        '''
        for f in range(4):
            r += f'v_and_b32 v{a}, 3, v{vLANE}\n'
            if f < 3:
                r += f'v_lshl_add_u32 v{a}, v{a}, 3, s{sK5 if f == 2 else sK4}\nv_add_u32 v{a}, {80 * f}, v{a}\n'
            else:
                r += f'v_min_u32 v{a}, 2, v{a}\nv_lshrrev_b32 v{c}, 1, v{a}\nv_mul_u32_u24 v{a}, 80, v{a}\nv_add_u32 v{a}, s{sK3}, v{a}\nv_lshlrev_b32 v{c}, 3, v{c}\nv_and_b32 v{c}, {8 * self.o.get("qswap", 1)}, v{c}\nv_xor_b32 v{a}, v{a}, v{c}\n'
            r += f'''v_bfe_u32 v{b}, v{vLANE}, 2, 3
            v_lshlrev_b32 v{b}, 5, v{b}
            v_xor_b32 v{a}, v{a}, v{b}
            v_lshrrev_b32 v{b}, 2, v{vLANE}
            v_lshl_add_u32 v{VQ[f]}, v{b}, 8, v{a}
            '''
        return s, r

    def build_stream(self):
        st = []
        for name in self.order:
            st += [(name, u) for u in range(9)]
        st += [('B', u) for u in range(18)]
        st += [('O', 0), ('O', 1)]
        st += [('C', u) for u in range(9)]
        self.stream = st
        self.dmas = {}
        nC = len(st) - 9
        nO = nC - 2
        npin, tpin = self.o.get('npin', 0), self.o.get('tpin', 40)
        order = [n for n in range(len(st)) if not nC <= n < nC + npin]
        order[tpin:tpin] = list(range(nC, nC + npin))
        self.slot, self.next_user = {}, {}
        for k in range(self.NCH):
            self.slot[order[k]] = k
        release = [n for n in range(len(st)) if n not in (nO, nO + 1)]
        for m, k in zip(order[self.NCH:], release):
            self.slot[m] = self.slot[k]
            self.next_user[k] = m
        self.prev_user = {m: k for k, m in self.next_user.items()}

    def dma_ops(self, n):
        name, u = self.stream[n]
        cb = self.slot[n] * self.CH
        ops = []
        if name[0] == 'A':
            if u == 0 and name != 'A0' and self.jump[int(name[1]) - 1]:
                ops.append(Op(f's_mul_i32 s{sK3}, s{sIH}, {128 * self.jump[int(name[1]) - 1]}\ns_add_u32 s{sK3}, s{sK3}, 128\ns_ashr_i32 s{sK4}, s{sK3}, 31'))
                for s_ in (SG, SU):
                    ops.append(Op(f's_add_u32 s{s_}, s{s_}, s{sK3}\ns_addc_u32 s{s_ + 1}, s{s_ + 1}, s{sK4}\ns_sub_u32 s{s_ + 2}, s{s_ + 2}, s{sK3}'))
            elif u == 0 and name != 'A0':
                for s_ in (SG, SU):
                    ops.append(Op(f's_add_u32 s{s_}, s{s_}, 128\ns_addc_u32 s{s_ + 1}, s{s_ + 1}, 0\ns_sub_u32 s{s_ + 2}, s{s_ + 2}, 128'))
            for hh in range(2):
                va = vA1 if hh else vA0
                ops.append(Op(f's_add_u32 m0, s{sMA}, {cb + 8192 * hh}'))
                ops.append(Op(f'buffer_load_dwordx4 v{va}, {sr(SG)}, s{KA + u} offen lds', pipe=P_A))
                ops.append(Op(f'buffer_load_dwordx4 v{va}, {sr(SU)}, s{KA + u} offen offset:1024 lds', pipe=P_A))
        elif name == 'O':
            pass
        elif name == 'Q':
            ops.append(Op(f's_lshl_b32 s{sK5}, s{sMA}, 1'))
            ops.append(Op(f's_add_u32 m0, s{sK5}, {cb}'))
            for k in range(4):
                ops.append(Op(f'buffer_load_dwordx4 v{V288 + k}, {sr(SQ)}, s{KQ + u} offen offset:{1024 * k} lds', pipe=P_Q if (self.ns - 4) ^ self.o.get('qflip', 1) else 140))
        else:
            if name == 'B':
                ops.append(Op(f's_mul_i32 s{sK3}, s{TB + u}, 9'))
                ops.append(Op(f's_lshr_b32 s{sK3}, s{sK3}, 1'))
                so, srd, vb = f's{sK3}', SD, V288
            else:
                so, srd, vb = f's{KQ + u}', SWO, (V288 if u < 8 else PQ)
                if u == 0:
                    ops += [Op(l) for l in self.pat_c().split('\n') if l]
            for hh in range(2):
                ops.append(Op(f's_add_u32 m0, s{sMA}, {cb + 8192 * hh}'))
                for ln in range(2):
                    ops.append(Op(f'buffer_load_dwordx4 v{vb + 2 * hh + ln}, {sr(srd)}, {so} offen offset:{1024 * ln} lds', pipe=P_A))
            if self.nt > 8:
                ops.append(Op(f's_lshr_b32 s{sK4}, s{sMA}, 1'))
                ops.append(Op(f's_add_u32 m0, s{sK4}, {cb + 16384}'))
                ops.append(Op(f'buffer_load_dwordx4 v{vb + 4}, {sr(srd)}, {f"s{sCL2}" if (name, u) == ("C", 8) else so} offen lds', pipe=P_AH))
        self.dmas[n] = [o for o in ops if 'dma' in o.kinds()]
        for o in self.dmas[n]:
            o.tag = f'{name}{u}'
        return ops

    def b_tables(self, R):
        R.op(f's_lshl_b32 s{sK3}, s{sQ_}, 1\ns_add_u32 s{sK3}, s{sK3}, s{sIL}')
        R.op(f's_mul_i32 s{sK4}, s{sIH}, {hex(0x100b0703 - 0x0e0a0601)}\ns_add_u32 s{sK4}, s{sK4}, 0x0e0a0601')
        for p in range(8):
            d = TB + p
            R.op(f'''s_add_u32 s{d}, s{sK3}, {p}
            s_bitcmp1_b32 s{d}, 0
            s_cselect_b32 s{sK5}, s{sK4}, 0x0d090500
            s_and_b32 s{d}, s{d}, 6
            s_lshl_b32 s{d}, s{d}, 2
            s_lshr_b32 s{d}, s{sK5}, s{d}
            s_and_b32 s{d}, s{d}, 0xff
            s_lshl_b32 s{d}, s{d}, 14''')
        R.op(f's_add_u32 s{sK3}, s{sIL}, s{sQ_}')
        for base, n, t0, t1 in ((8, 4, 0x0f0b0702, 0x110c0804), (12, 4, 0x100c0803, 0x0e0a0601), (16, 2, 0x1104, 0x0f02)):
            R.op(f's_mul_i32 s{sK4}, s{sIH}, {hex((t1 - t0) & 0xffffffff)}\ns_add_u32 s{sK4}, s{sK4}, {hex(t0)}')
            for p in range(n):
                d = TB + base + p
                R.op(f'''s_add_u32 s{d}, s{sK3}, {p}
                s_and_b32 s{d}, s{d}, {n - 1}
                s_lshl_b32 s{d}, s{d}, 3
                s_lshr_b32 s{d}, s{sK4}, s{d}
                s_and_b32 s{d}, s{d}, 0xff
                s_lshl_b32 s{d}, s{d}, 14''')

    def c_tables(self, R):
        for k in range(8):
            R.op(f's_add_u32 s{KQ + k}, s{sIL}, {k}\ns_and_b32 s{KQ + k}, s{KQ + k}, 7\ns_mul_i32 s{KQ + k}, s{KQ + k}, {72 * 1152}')

    def news(self):
        pool = [sT0, sT1, sT3] + ([sEPS] if self.sq_busy else [SQ, SQ + 1, SQ + 2]) + ([] if self.in_b or self.kq_busy else [KQ + k for k in range(9)])
        self.spool += 1
        return pool[self.spool % len(pool)]

    def addr(self, R, reg, off, **kw):
        cur = self.base[reg]
        if not (0 <= off - cur and off - cur + 4096 < 65536):
            chunk = off // self.CH
            new = chunk * self.CH
            d = new - cur
            R.op(f'v_add_u32 v{reg}, {d}, v{reg}' if d > 0 else f'v_subrev_u32 v{reg}, {-d}, v{reg}', prio=50, **kw)
            self.base[reg] = cur = new
        return off - cur

    LN_ONES, LN_SEL0, LN_SEL1, LN_VAR = PQ, PQ + 4, PQ + 8, T + 10
    LN_XO, LN_XP, LN_R0, LN_R1 = T + 14, T + 15, T + 16, T + 17

    def ln_consts(self, R):
        ONES, SEL0, SEL1, VAR = self.LN_ONES, self.LN_SEL0, self.LN_SEL1, self.LN_VAR
        vXO, vXP, vR0, vR1 = self.LN_XO, self.LN_XP, self.LN_R0, self.LN_R1
        R.op(f'''v_mov_b32 v{ONES}, 0x3f803f80
        v_mov_b32 v{ONES + 1}, 0x3f803f80
        v_mov_b32 v{ONES + 2}, 0x3f803f80
        v_mov_b32 v{ONES + 3}, 0x3f803f80
        v_and_b32 v{VAR}, 15, v{vLANE}
        v_lshrrev_b32 v{VAR + 1}, 4, v{vLANE}
        v_bfe_u32 v{vR0}, v{vLANE}, 1, 2
        v_lshlrev_b32 v{vR0}, 1, v{vR0}
        v_xor_b32 v{vR0}, v{vR0}, v{VAR + 1}
        v_lshlrev_b32 v{vR0}, 4, v{vR0}
        v_lshl_add_u32 v{vR0}, v{VAR}, 7, v{vR0}
        s_mov_b32 s{sT0}, s{sM2}
        v_add_u32 v{vR0}, s{sT0}, v{vR0}
        v_xor_b32 v{vR1}, 64, v{vR0}
        v_lshlrev_b32 v{VAR + 1}, 3, v{VAR + 1}
        v_sub_u32 v{VAR}, v{VAR}, v{VAR + 1}
        v_mov_b32 v{VAR + 1}, 0x3f80
        v_mov_b32 v{vXO}, 0x3f800000''')
        for sel, add in ((SEL0, 0), (SEL1, 16)):
            for k in range(4):
                R.op(f'''v_cmp_eq_u32 vcc, {2 * k - add}, v{VAR}
                v_cmp_eq_u32 s[{sK3}:{sK4}], {2 * k + 1 - add}, v{VAR}
                v_mov_b32 v{VAR + 2}, 0
                v_cndmask_b32 v{sel + k}, 0, v{VAR + 1}, vcc
                v_cndmask_b32 v{sel + k}, v{sel + k}, v{vXO}, s[{sK3}:{sK4}]''')
        R.op(f'''v_add_u32 v{vXO}, s{sT0}, v{vL16}
        s_xor_b32 s{sT1}, s{sWV}, 1
        s_mul_i32 s{sT1}, s{sT1}, {XR_}
        s_add_u32 s{sT1}, s{sT1}, 16384
        v_add_u32 v{vXP}, s{sT1}, v{vL16}
        v_mov_b32 v{VAR}, 0
        v_mov_b32 v{VAR + 1}, 0
        v_mov_b32 v{VAR + 3}, 0''')

    def ln_center(self, R, rho, t, d0, pk, addr, off, after=(), cap=None, prio=5):
        SEL0, SEL1, VAR = self.LN_SEL0, self.LN_SEL1, self.LN_VAR
        nm = self.LN_NM[rho]
        R.mfma(f'{MF} {vr(d0)}, {vr(SEL0)}, {vr(self.raw(rho, t))}, {vr(nm)}', cap=cap)
        R.mfma(f'{MF} {vr(d0 + 4)}, {vr(SEL1)}, {vr(self.raw(rho, t))}, {vr(nm)}', cap=cap)
        for k in range(4):
            R.op(f'v_cvt_pk_bf16_f32 v{pk + k}, v{d0 + 2 * k}, v{d0 + 2 * k + 1}', prio=prio)
        if self.o.get('ownw', 3) >> rho & 1:
            n = 4 * t + rho
            for k in range(4):
                R.op(f'v_accvgpr_write_b32 a{4 * n + k}, v{pk + k}' if n < 64 else f'v_mov_b32 v{XNV + 4 * (n - 64) + k}, v{pk + k}')
        w = lambda aft: R.op(f'ds_write_b128 v{addr}, {vr(pk)} offset:{off}', after=aft, prio=prio)
        if after is not None:
            w = w(after)
        if self.o.get('vfma', 0) >> rho & 1:
            g = self.LN_G[rho]
            for k in range(8):
                x = d0 + k
                R.op(f'v_fmac_f32 v{g + (k & 3)}, v{x}, v{x}' if t or k >= 4 else f'v_mul_f32 v{g + k}, v{x}, v{x}', prio=prio - 1)
            self.ln_gram(R)
            return w
        self.ln_gram(R)
        self.gram_pend = (rho, t, pk)
        return w

    gram_pend = None
    LN_G = [V_G0, V_G1]

    def ln_gram(self, R):
        if self.gram_pend:
            rho, t, pk = self.gram_pend
            g = vr(self.LN_G[rho])
            R.mfma(f'{MF} {g}, {vr(pk)}, {vr(pk)}, {g if t else 0}')
            self.gram_pend = None

    LN_NM = [PQ + 12, T + 2]

    def layernorm(self):
        R = Region(cap=5, backlog=self.o['backlog'], pipe0=-100000)
        ONES, VAR = self.LN_ONES, self.LN_VAR
        vXO, vXP, vR0, vR1 = self.LN_XO, self.LN_XP, self.LN_R0, self.LN_R1
        NM = self.LN_NM
        D = RING + 16
        PK = [T + 18, SC] if self.o.get('probe') else [T + 18, T + 22, SC]
        rawrd = {}

        def raw_reads(rho, lo):
            for u in range(9):
                if u % 3 == 0 or u < 3:
                    w = R.wait([self.xl[rho, uu, hf] for uu in range(u, (u + 1 if u < 2 else u // 3 * 3 + 3)) for hf in range(2)],
                               late=False, wr=['xw'], lo=None if lo is None else lo + u * self.o.get('r1st', 1))
                for s1 in range(2):
                    rawrd[rho, 2 * u + s1] = R.op(f'ds_read_b128 {vr(self.raw(rho, 2 * u + s1))}, v{vR1 if s1 else vR0} offset:{2048 * u}', after=[w], prio=20)

        def mean(rho, t):
            w = R.wait([rawrd[rho, k] for k in range(t, t + 3)], dist=1) if t % 3 == 0 else None
            R.mfma(f'{MF} {vr(NM[rho])}, {vr(ONES)}, {vr(self.raw(rho, t))}, {vr(NM[rho]) if t else 0}', after=[w] if w else [])
            return w

        for o in self.x_pend:
            o.prio = 10
            o.hi = 17
            R.add(o)
        for o in self.dma_ops(0):
            o.prio = 10
            o.hi = self.o.get('w0hi', 26)
            o.lo = self.o.get('w0lo', 24)
            R.add(o)
        raw_reads(0, None)
        for t in range(18):
            mean(0, t)
        R.op(f's_sub_u32 s{sT0}, s{sCNT2}, s{sM2}\nv_add_u32 v{vR0}, s{sT0}, v{vR0}\nv_add_u32 v{vR1}, s{sT0}, v{vR1}')
        raw_reads(1, self.o.get('r1lo', 44))
        self.stamp(R, 'ctr0')
        for k in range(4):
            R.op(f'v_mul_f32 v{NM[0] + k}, {hex(0xbae38e39)}, v{NM[0] + k}')
        reads = []
        cnt = 0
        for kg in range(3):
            writes = []
            for t in range(6 * kg, 6 * kg + 6):
                writes.append(self.ln_center(R, 0, t, D + 8 * (cnt & 1), PK[cnt % len(PK)], vXO, 1024 * t))
                cnt += 1
                if self.o.get('m1late', 1):
                    if kg == 2:
                        for tt in range(3 * (t % 6), 3 * (t % 6) + 3):
                            mean(1, tt)
                elif kg > 0:
                    tm = 6 * (kg - 1) + t % 6
                    for tt in ((3 * tm) // 2, (3 * tm) // 2 + 1)[:1 + (tm & 1)]:
                        mean(1, tt)
            extra = [rawrd[1, k] for k in range(18)] if kg == self.o.get('wkg', 2) else []
            w = R.wait(writes + extra, late=False, prio=30, dist=self.o.get('dlw', 5))
            bar = R.op('s_barrier', after=[w], wr=['bar'], prio=30)
            for t in range(6 * kg, 6 * kg + 6):
                if not self.o.get('ownw', 3) & 1:
                    reads.append(R.op(f'ds_read_b128 {xn(4 * t)}, v{vXO} offset:{t * 1024}', after=[bar], prio=8))
                reads.append(R.op(f'ds_read_b128 {xn(4 * t + 2)}, v{vXP} offset:{t * 1024}', after=[bar], prio=8))
        self.stamp(R, 'ctr1')
        for k in range(4):
            R.op(f'v_mul_f32 v{NM[1] + k}, {hex(0xbae38e39)}, v{NM[1] + k}')
        R.op(f'''s_lshl_b32 s{sT0}, s{sWV}, 10
        s_add_u32 s{sT0}, s{sT0}, {self.KVX}
        v_add_u32 v{vR0}, s{sT0}, v{vL16}
        v_xor_b32 v{vR1}, 1024, v{vR0}''')
        writes = []
        for t in range(4):
            writes.append(self.ln_center(R, 1, t, D + 8 * (cnt & 1), PK[cnt % len(PK)], vR0, 4096 * t))
            cnt += 1
        self.ln_gram(R)
        self.ln_last = reads + writes
        x = self.o.get('lnx', 0)
        drop = set()
        for o in R.ops:
            t = o.ins[0].text if o.ins else ''
            if (x & 1 and t.startswith('ds_write')) or (x & 2 and t.startswith('ds_read_b128 a')) or (x & 8 and t.startswith('v_accvgpr')) \
                    or (x & 16 and t.startswith('v_cvt')) or (x & 32 and t.startswith('s_barrier')):
                o.ins = [Ins('s_nop 0')]
        return R

    def ln_reads1(self, R, n, bar):
        out = []
        for t in (2 * n, 2 * n + 1):
            if not self.o.get('ownw', 3) & 2:
                out.append(R.op(f'ds_read_b128 {xn(4 * t + 1)}, v{self.LN_R0} offset:{4096 * (t & 3)}', after=[bar], prio=12))
            out.append(R.op(f'ds_read_b128 {xn(4 * t + 3)}, v{self.LN_R1} offset:{4096 * (t & 3)}', after=[bar], prio=12))
        return out

    def ln_finish(self, R, bar):
        VAR = self.LN_VAR
        a, ad, ep = T + 18, T + 19, T + 20
        R.op(f'v_and_b32 v{ad}, 15, v{vLANE}')
        R.op(f's_lshl_b32 s{sT0}, s{sWV}, 7\ns_add_u32 s{sT0}, s{sT0}, {RS}')
        R.op(f'v_lshl_add_u32 v{ad}, v{ad}, 2, s{sT0}')
        R.op(f's_mov_b32 s{sT1}, {hex(0x3ae38e39)}')
        R.op(f'v_mov_b32 v{ep}, {hex(0x3727c5ac)}')
        self.ln_gram(R)
        for rho in range(2):
            v = self.LN_G[rho]
            if self.o.get('vfma', 0) >> rho & 1:
                R.op(f'v_add_f32 v{v}, v{v}, v{v + 1}\nv_add_f32 v{v + 2}, v{v + 2}, v{v + 3}\nv_add_f32 v{v}, v{v}, v{v + 2}')
            for k in range(1, 1 if self.o.get('vfma', 0) >> rho & 1 else 4):
                R.op(f's_mov_b32 vcc_lo, {hex(0x11111111 << k)}\ns_mov_b32 vcc_hi, {hex(0x11111111 << k)}\nv_cndmask_b32 v{v}, v{v}, v{v + k}, vcc')
            if not self.o.get('vfma', 0) >> rho & 1:
                R.op(f's_mov_b32 vcc_lo, 0x00f0000f\ns_mov_b32 vcc_hi, 0xf0000f00\nv_cndmask_b32 v{v}, 0, v{v}, vcc')
            R.op(f'v_mov_b32 v{a}, v{v}')
            R.op(f'v_permlane32_swap_b32 v{a}, v{v}')
            R.op(f'v_add_f32 v{v}, v{a}, v{v}')
            R.op(f'v_mov_b32 v{a}, v{v}')
            R.op(f'v_permlane16_swap_b32 v{a}, v{v}')
            R.op(f'v_add_f32 v{v}, v{a}, v{v}')
            R.op(f'v_fma_f32 v{v}, v{v}, s{sT1}, v{ep}')
            R.op(f'v_rsq_f32 v{v}, v{v}')
            self.pre_bar.append((R.op(f'ds_write_b32 v{ad}, v{v} offset:{64 * rho}', after=[bar]), 3))
        self.post_bar.append(lambda b_: self.load_scales(R, [b_]))

    def stamp(self, R, name=''):
        if R:
            self.marks.append((R, R.here, name))
        if not self.stamps or (self.o.get('lite') and name != 'end'):
            return
        k = self.nstamp
        self.nstamp += 1
        t = Op(f's_memrealtime vcc\ns_memtime s[0:1]\ns_waitcnt lgkmcnt(0)\nv_mov_b32 v{T + 26}, vcc_lo\nv_mov_b32 v{T + 27}, s0\ns_lshl_b32 s0, s2, 10\ns_add_u32 s0, s0, {DUMP_BASE + 8 * k}\nbuffer_store_dwordx2 v[{T + 26}:{T + 27}], v{vFST}, {sr(SW)}, s0 offen',
               lo=R.here if R else None, hi=R.here if R else None)
        self.stamp_names.append(name)
        if R:
            R.add(t)
        else:
            self.lin.op(t)

    def poll(self, R, name, srd, addr_text, mask, val, lo, check_lo, after=(), mul=4, defer=False):
        vp = T + 19
        if name != 'p':
            check_lo = lo + self.o.get(f'pd_{name}{self.ns}', self.o.get('pd', check_lo - lo))
        cmp = 'v_cmp_ne_u32' if val == 1 else 'v_cmp_gt_u32'
        if addr_text:
            R.op(addr_text, lo=lo - 30)
        so = f's{sT2}' if addr_text else '0'
        R.op(f'v_and_b32 v{vPOLL}, {mask}, v{vLANE}', lo=lo - 30)
        if defer:
            R.op(f'v_max_u32 v{vPOLL}, 1, v{vPOLL}\nv_add_u32 v{vPOLL}, s{sJJ}, v{vPOLL}\nv_and_b32 v{vPOLL}, 3, v{vPOLL}', lo=lo - 30)
        R.op(f'v_mul_u32_u24 v{vPOLL}, {mul}, v{vPOLL}', lo=lo - 30)
        ld = R.op(f'buffer_load_dword v{vp}, v{vPOLL}, {sr(srd)}, {so} offen sc1', lo=lo, hi=lo + 6, after=after)
        if defer:
            return lambda lo2, aft: self.poll_check(R, name, srd, so, cmp, val, ld, lo2, aft)
        return self.poll_check(R, name, srd, so, cmp, val, ld, check_lo, [])

    def poll_check(self, R, name, srd, so, cmp, val, ld, check_lo, aft):
        vp = T + 19
        w = R.wait([ld], late=False, lo=check_lo, hi=check_lo + 4, tag='poll_' + name, after=aft)
        br = 's_nop 0' if self.o.get('nopoll') else f's_cbranch_vccnz L_slow_{name}{self.sfx}'
        chk = R.op(f'{cmp} vcc, {val}, v{vp}\n{br}\nL_back_{name}{self.sfx}:', after=[w],
                   rd=[f'v{vPOLL}', f's{sT2}'], wr=[f'v{vp}'], hi=check_lo + 4, atomic=True)
        rec = ''
        if self.stamps:
            rec = f'v_mov_b32 v{T + 26}, s{sCNT}\ns_lshl_b32 s{sCNT}, s2, 10\ns_add_u32 s{sCNT}, s{sCNT}, {DUMP_BASE + 768 + 4 * len(self.slow)}\nbuffer_store_dword v{T + 26}, v{vFST}, {sr(SW)}, s{sCNT} offen\ns_waitcnt vmcnt(0)'
        self.slow.append(f'''L_slow_{name}{self.sfx}:
        s_mov_b32 s{sCNT}, 0
        L_spin_{name}{self.sfx}:
        buffer_load_dword v{vp}, v{vPOLL}, {sr(srd)}, {so} offen sc1
        s_waitcnt vmcnt(0)
        {cmp} vcc, {val}, v{vp}
        s_add_u32 s{sCNT}, s{sCNT}, 1
        s_cbranch_vccz L_exit_{name}{self.sfx}
        s_cmp_lt_u32 s{sCNT}, {self.o['spin']}
        s_cbranch_scc1 L_spin_{name}{self.sfx}
        L_exit_{name}{self.sfx}:
        {rec}
        s_branch L_back_{name}{self.sfx}''')
        return chk

    def set_flag(self, R, f, after):
        t0, t1 = self.news(), self.news()
        R.op(self.flag_addr(f, True, t0, t1), lo=after[0].lo - 40)
        self.flags[f] = R.op(f'buffer_store_dword v{vONE}, v{vFST}, {sr(SW)}, s{t0} offen sc1', after=after + [self.chk0], hi=after[0].lo + 2)

    def chunk_enter(self, R, n, lo, pre=()):
        if n in self.paired:
            self.unfreed.append(n)
            self.bars[n] = self.bars[n - 1]
            return self.bars[n]
        name = self.stream[n][0]
        if n + 1 in self.dmas and ((name == 'C' and self.o.get('barc', 1)) or (self.o.get('bar2', 0) and name != 'A0' and self.stream[n + 1][0] not in ('O', 'C'))):
            self.paired.add(n + 1)
            self.dmas[n] = self.dmas[n] + self.dmas[n + 1]
        nd = len(self.dmas[n])
        dd, sg = (self.o.get('ddc', 24), 1) if self.stream[n][0] == 'C' else (self.o['ddma'], self.o.get('stag', 6))
        waits = [(o, dd + sg * (nd - 1 - k)) for k, o in enumerate(self.dmas[n])] + self.pre_bar
        self.pre_bar = []
        nm = '%s%d' % self.stream[n] + ('+' if len(waits) > nd else '')
        w = R.wait(waits, late=False, lo=lo, hi=lo, tag=nm) if waits else None
        dep = list(pre) + ([w] if w else [])
        freed = [k for k in self.unfreed if self.lastwait.get(k) is not None]
        dep += [self.lastwait[k] for k in freed]
        bar = R.op('s_barrier', after=dep, wr=['bar'], lo=lo, prio=100, tag=nm)
        for k in freed:
            self.unfreed.remove(k)
            self.free_bar[k] = bar
            m = self.next_user.get(k)
            if m is not None:
                for o in self.dma_ops(m):
                    if 'dma' in o.kinds():
                        o.after.append((bar, 0))
                    o.lo = lo - 8
                    R.add(o)
                pf = {self.PF[k]: v for k, v in zip(hex(self.o.get('pfat', 0x1283))[2:], (('d', 0), ('o', 0), ('d', 1), ('o', 1)))}.get(self.stream[m])
                if pf:
                    self.prefetch_late(R, pf[0], pf[1], lo, self.dmas[m][-1:])
        fns, self.post_bar = self.post_bar, []
        for fn in fns:
            fn(bar)
        self.unfreed.append(n)
        self.bars[n] = bar
        return bar

    def tr_pair(self, R, dst, reg, off, step, after, prio=10, lo=None):
        o = self.addr(R, reg, off, lo=lo)
        return [R.op(f'ds_read_b64_tr_b16 {vr(dst, 2)}, v{reg} offset:{o}', after=after, prio=prio, lo=lo),
                R.op(f'ds_read_b64_tr_b16 {vr(dst + 2, 2)}, v{reg} offset:{o + step}', after=after, prio=prio, lo=lo)]

    def p_reads(self, R, name, n, t, buf, after):
        cb = self.slot[n] * self.CH
        out = []
        if name == 'Q':
            base = cb + 8192 * (t & 1)
            for f in range(4):
                out += self.tr_pair(R, buf + 4 * f, VQ[f], base, 4096, after)
        else:
            base = cb + 8192 * (t & 1)
            for f in range(4):
                out += self.tr_pair(R, buf + 4 * f, vLA1 if f & 1 else vLA0, base + 1024 * (f >> 1), 4096, after)
        return out

    def epi_glu(self, R, acc, wrap=0):
        stores = []
        hs = (' sc1', '', ' nt')[self.o.get('hst', 0)]
        ps = 90 if self.o.get('hst') else P_S
        if True:
            for rs in range(4):
                G = [acc + (tt * 4 + rs) * 4 for tt in range(2)]
                U = [acc + ((2 + tt) * 4 + rs) * 4 for tt in range(2)]
                for tt in range(2):
                    self.glu4(R, G[tt], U[tt], SC + rs)
                for k in range(4):
                    g = G[k >> 1] + 2 * (k & 1)
                    R.op(f'v_cvt_pk_bf16_f32 v{U[0] + k}, v{g}, v{g + 1}')
                stores.append(R.op(f'buffer_store_dwordx4 {vr(U[0])}, v{vL16}, {sr(SW)}, s{sH0 + (rs >> 1)} offen offset:{1024 * (rs & 1)}{hs}', pipe=ps))
            inc = '16384'
            if wrap:
                t = sCNT2X
                R.op(f's_mul_i32 s{t}, s{sIH}, {16384 * wrap}\ns_add_u32 s{t}, s{t}, 16384')
                inc = f's{t}'
            R.op(f's_add_u32 s{sH0}, s{sH0}, {inc}')
            R.op(f's_add_u32 s{sH1}, s{sH1}, {inc}')
        return stores

    @staticmethod
    def glu4(R, G, U, sc):
        for e in range(4):
            g = G + e
            R.op(f'v_mul_f32 v{g}, v{sc}, v{g}')
            R.op(f'v_exp_f32 v{g}, v{g}')
            R.op(f'v_add_f32 v{g}, 1.0, v{g}')
            R.op(f'v_rcp_f32 v{g}, v{g}')
            R.op(f'v_mul_f32 v{g}, v{g}, v{U + e}')

    @staticmethod
    def phi(R, x, tmp, prio=0):
        R.op(f'v_mul_f32 v{tmp}, {hex(LOG2E)}, v{x}', prio=prio)
        R.op(f'v_exp_f32 v{tmp}, v{tmp} clamp', prio=prio)
        R.op(f'v_max_f32 v{x}, 0, v{x}', prio=prio)
        R.op(f'v_add_f32 v{x}, {hex(EPS6)}, v{x}', prio=prio)
        R.op(f'v_add_f32 v{x}, v{x}, v{tmp}', prio=prio)

    def load_scales(self, R, after):
        a0, a1 = T + 20, T + 21
        R.op(f'v_and_b32 v{a0}, 15, v{vLANE}')
        R.op(f's_lshl_b32 s{sT0}, s{sWV}, 7\ns_add_u32 s{sT0}, s{sT0}, {RS}')
        R.op(f'v_lshl_add_u32 v{a0}, v{a0}, 2, s{sT0}')
        R.op(f'v_xor_b32 v{a1}, 128, v{a0}')
        lds = [R.op(f'ds_read_b32 v{SC + rs}, v{a0 if rs < 2 else a1} offset:{64 * (rs & 1)}', after=after) for rs in range(4)]
        w = R.wait(lds, late=False, dist=6)
        for rs in range(4):
            R.op(f'v_mul_f32 v{SC + rs}, {hex(NLOG2E)}, v{SC + rs}', after=[w])

    def epi_qkv(self, R, acc):
        KM = [acc + 4 * rs for rs in range(4)]
        VM = [acc + 16 + 4 * rs for rs in range(4)]
        QM = [PQ + 4 * rs for rs in range(4)]
        LRP = [acc + 32, acc + 36]
        LL = [acc + 48 + 4 * rs for rs in range(4)]
        a0, a1, aq = T + 20, T + 21, T + 22
        R4 = [T, T + 4]
        LR = T + 8
        TM = [T + 12, T + 13, T + 14, T + 15]
        r1 = T + 16
        R.op(f's_mov_b32 s{sEPS}, {hex(EPS6)}')
        R.op(f'v_lshrrev_b32 v{a0}, 4, v{vLANE}')
        R.op(f's_lshl_b32 s{sT0}, s{sWV}, 7\ns_add_u32 s{sT0}, s{sT0}, {RS}')
        R.op(f'v_lshl_add_u32 v{a0}, v{a0}, 4, s{sT0}')
        R.op(f'v_xor_b32 v{a1}, 128, v{a0}')
        for l in f'''v_and_b32 v{aq}, 3, v{vLANE}
        v_lshlrev_b32 v{aq}, 5, v{aq}
        v_lshrrev_b32 v{r1}, 4, v{vLANE}
        v_lshl_add_u32 v{aq}, v{r1}, 3, v{aq}
        s_lshl_b32 s{sT1}, s{sWV}, 9
        s_add_u32 s{sT1}, s{sT1}, {QL}
        v_add_u32 v{aq}, s{sT1}, v{aq}
        v_lshlrev_b32 v{r1}, 3, v{vLANE}
        v_add_u32 v{r1}, {DUMMY}, v{r1}
        v_bfe_u32 v{TM[0]}, v{vLANE}, 2, 2'''.split('\n'):
            R.op(l)
        R.op(f'v_cmp_eq_u32 vcc, 2, v{TM[0]}\nv_cndmask_b32 v{aq}, v{r1}, v{aq}, vcc')
        self.ql_writes = []
        tm = 0
        one = f's[{sMASKONE}:{sMASKONE + 1}]'
        ld = [R.op(f'ds_read_b128 {vr(R4[rs])}, v{a0} offset:{64 * rs}') for rs in range(2)]
        w = R.wait(ld, late=False, dist=6)
        for rs in range(2):
            for e in range(4):
                R.op(f'v_mul_f32 v{LL[rs] + e}, v{R4[rs] + e}, v{LL[rs] + e}', after=[w], prio=60)
            for k in range(2):
                R.op(f'v_cvt_pk_bf16_f32 v{LRP[0] + 2 * rs + k}, v{LL[rs] + 2 * k}, v{LL[rs] + 2 * k + 1}', prio=60)
            for e in range(4):
                self.phi(R, LL[rs] + e, TM[tm & 3], prio=60); tm += 1
            for k in range(2):
                R.op(f'v_cvt_pk_bf16_f32 v{LL[0] + 2 * rs + k}, v{LL[rs] + 2 * k}, v{LL[rs] + 2 * k + 1}', prio=60)
            self.ql_writes.append(R.op(f'ds_write_b64 v{aq}, {vr(LL[0] + 2 * rs, 2)} offset:{128 * rs}'))
        e0, e1, c1 = LR, LR + 1, LR + 2
        R.op(f'''s_mul_i32 s{sT0}, s{sWV}, 3072
        s_add_u32 s{sT0}, s{sT0}, {self.KVX}
        v_add_u32 v{e0}, s{sT0}, v{vL16}
        s_xor_b32 s{sT1}, s{sWV}, 1
        s_mul_i32 s{sT1}, s{sT1}, 3072
        s_add_u32 s{sT1}, s{sT1}, {self.KVX}
        v_add_u32 v{e1}, s{sT1}, v{vL16}
        v_mov_b32 v{c1}, 0x3f803f80''')
        self.l_writes = [R.op(f'ds_write_b128 v{e0}, {vr(X)} offset:{1024 * k}', prio=60) for k, X in enumerate((LL[0], LRP[0]))]

        def l_read(bar):
            rd = [R.op(f'ds_read_b128 {vr(X)}, v{e1} offset:{1024 * k}', after=[bar], prio=60) for k, X in enumerate((LL[2], LRP[1]))]
            w2 = R.wait(rd, late=False, dist=6)
            self.pre_bar += [(o, 6) for o in rd]
            self.post_bar.append(lambda b_: setattr(self, 'l_free', b_))
            for k in range(8):
                R.op(f'v_cndmask_b32 v{LRP[0] + k}, v{LRP[0] + k}, v{c1}, {one}', after=[w2])
        self.l_read = l_read
        for rs in range(4):
            r4 = R4[rs & 1]
            if rs >= 2:
                w = R.wait([R.op(f'ds_read_b128 {vr(r4)}, v{a1} offset:{64 * (rs & 1)}')], late=False, dist=6)
            for e in range(4):
                R.op(f'v_fma_f32 v{KM[rs] + e}, v{r4 + e}, v{KM[rs] + e}, s{sEPS}', after=[w])
                self.phi_eps(R, KM[rs] + e, TM[tm & 3]); tm += 1
                R.op(f'v_mul_f32 v{VM[rs] + e}, v{r4 + e}, v{VM[rs] + e}', after=[w])
            P, h = rs >> 1, 2 * (rs & 1)
            for X in (KM, VM):
                R.op(f'v_cvt_pk_bf16_f32 v{X[2 * P] + h}, v{X[rs]}, v{X[rs] + 1}')
                R.op(f'v_cvt_pk_bf16_f32 v{X[2 * P] + h + 1}, v{X[rs] + 2}, v{X[rs] + 3}')
        self.kv_in = dict(km=[KM[0], KM[2]], vm=[VM[0], VM[2]], lp=[LL[0], LL[2]], lr=LRP)
        self.kv_d = dict(mm=T, ml=T + 4, lm=T + 8, ll=T + 12)

    def epi_q(self, R):
        r1, tm = T + 16, (T + 21, T + 22)
        for rs in range(4):
            R.op(f'v_mul_f32 v{r1}, {hex(0xbf317218)}, v{SC + rs}')
            for e in range(4):
                x = PQ + 4 * rs + e
                R.op(f'v_fma_f32 v{x}, v{r1}, v{x}, s{sEPS}')
                self.phi_eps(R, x, tm[e & 1])
            R.op(f'v_cvt_pk_bf16_f32 v{PQ + 4 * rs}, v{PQ + 4 * rs}, v{PQ + 4 * rs + 1}')
            R.op(f'v_cvt_pk_bf16_f32 v{PQ + 4 * rs + 1}, v{PQ + 4 * rs + 2}, v{PQ + 4 * rs + 3}')

    @staticmethod
    def phi_eps(R, x, tmp):
        R.op(f'v_mul_f32 v{tmp}, {hex(LOG2E)}, v{x}')
        R.op(f'v_exp_f32 v{tmp}, v{tmp} clamp')
        R.op(f'v_max_f32 v{x}, s{sEPS}, v{x}')
        R.op(f'v_add_f32 v{x}, v{x}, v{tmp}')

    def kv_mfmas(self, R):
        I, D = self.kv_in, self.kv_d
        for P in range(2):
            for d, a, b in (('mm', 'km', 'vm'), ('ml', 'km', 'lr'), ('lm', 'lp', 'vm'), ('ll', 'lp', 'lr')):
                R.mfma(f'{MF} {vr(D[d])}, {vr(I[a][P])}, {vr(I[b][P])}, {vr(D[d]) if P else 0}')

    def kv_exchange(self, R, X, tmp, then):
        a0, a1 = T + 17, T + 18
        t0, t1 = self.news(), self.news()
        R.op(f's_mul_i32 s{t0}, s{sWV}, 3072\ns_add_u32 s{t0}, s{t0}, {self.KVX}')
        R.op(f'v_add_u32 v{a0}, s{t0}, v{vL16}')
        R.op(f's_xor_b32 s{t1}, s{sWV}, 2\ns_mul_i32 s{t1}, s{t1}, 3072\ns_add_u32 s{t1}, s{t1}, {self.KVX}')
        R.op(f'v_add_u32 v{a1}, s{t1}, v{vL16}')
        ws = [R.op(f'ds_write_b128 v{a0}, {vr(X[k])} offset:{1024 * k}', prio=5, after=[self.l_free]) for k in range(3)]
        self.pre_bar += [(o, 4) for o in ws]

        def after_bar(bar):
            for k in range(3):
                rd = R.op(f'ds_read_b128 {vr(tmp[k])}, v{a1} offset:{1024 * k}', after=[bar], prio=5)
                w = R.wait([rd], late=False, dist=6)
                for e in range(4):
                    R.op(f'v_add_f32 v{X[k] + e}, v{X[k] + e}, v{tmp[k] + e}', after=[w], prio=5)
            then()
        self.post_bar.append(after_bar)

    def kv_publish(self, R):
        D = self.kv_d
        mc = f's[{sMASKC}:{sMASKC + 1}]'
        for k, src in enumerate((D['lm'], D['lm'] + 1, D['ll'], D['ll'] + 1)):
            R.op(f'v_cndmask_b32 v{D["lm"] + k}, v{src}, v{src + 2}, {mc}', prio=5)
        X = [D['mm'], D['ml'], D['lm']]

        def store():
            a = T + 17
            sT0, sT1 = self.news(), self.news()
            R.op(f'''s_lshl_b32 s{sT0}, s{sJ}, 1
            s_add_u32 s{sT0}, s{sT0}, s{sC}
            s_lshl_b32 s{sT0}, s{sT0}, 4
            s_add_u32 s{sT0}, s{sT0}, s{sI}
            s_lshl_b32 s{sT0}, s{sT0}, 10
            s_add_u32 s{sT0}, s{sT0}, {KV_BASE}''')
            R.op(f's_lshl_b32 s{sT1}, s{sR}, 31')
            R.op(f'v_or_b32 v{a}, s{sT1}, v{vL16}')
            for k in range(6):
                R.op(f'v_cvt_pk_bf16_f32 v{T + k}, v{T + 2 * k}, v{T + 2 * k + 1}')
            R.op(f'''v_lshrrev_b32 v{a + 1}, 4, v{vLANE}
            v_min_u32 v{a + 1}, 1, v{a + 1}
            v_lshlrev_b32 v{a + 1}, 31, v{a + 1}
            v_lshl_or_b32 v{a + 1}, v{vLANE}, 3, v{a + 1}
            v_or_b32 v{a + 1}, s{sT1}, v{a + 1}
            s_lshr_b32 s{sT1}, s{sT0}, 3
            s_add_u32 s{sT1}, s{sT1}, {KV2_BASE - KV_BASE // 8}''')
            self.kv_stores = [R.op(f'buffer_store_dwordx4 {vr(T)}, v{a}, {sr(SW)}, s{sT0} offen sc1', prio=5, pipe=P_S // 2),
                              R.op(f'buffer_store_dwordx2 {vr(T + 4, 2)}, v{a + 1}, {sr(SW)}, s{sT1} offen sc1', prio=5, pipe=10)]
        self.kv_exchange(R, X, [T + 12] * 3, store)

    def sel_regs(self, R, base, a, **kw):
        R.op(f'''v_and_b32 v{a}, 15, v{vLANE}
        v_lshrrev_b32 v{base}, 4, v{vLANE}
        v_lshlrev_b32 v{base}, 2, v{base}
        v_sub_u32 v{a}, v{a}, v{base}
        v_and_b32 v{base}, 1, v{a}
        v_lshlrev_b32 v{base}, 4, v{base}
        v_mov_b32 v{base + 1}, 0x3f80
        v_lshlrev_b32 v{base + 1}, v{base}, v{base + 1}
        v_lshrrev_b32 v{a}, 1, v{a}
        v_cmp_eq_u32 vcc, 0, v{a}
        v_cndmask_b32 v{base + 2}, 0, v{base + 1}, vcc
        v_cmp_eq_u32 vcc, 1, v{a}
        v_cndmask_b32 v{base + 3}, 0, v{base + 1}, vcc
        v_mov_b32 v{base}, 0
        v_mov_b32 v{base + 1}, 0
        v_mov_b32 v{base + 4}, 0
        v_mov_b32 v{base + 5}, 0''', **kw)

    def kv_gather(self, R, buf, after):
        t, t2 = self.news(), self.news()
        R.op(f'''s_lshl_b32 s{t}, s{sJQ}, 1
        s_add_u32 s{t}, s{t}, s{sC}
        s_lshl_b32 s{t}, s{t}, 1
        s_add_u32 s{t}, s{t}, s{sR}
        s_lshl_b32 s{t}, s{t}, 13
        s_lshr_b32 s{t2}, s{t}, 3
        s_add_u32 s{t2}, s{t2}, {KV2_BASE}
        s_add_u32 s{t}, s{t}, {KV_BASE}''')
        a, X2 = T + 24, T + 20
        R.op(f'''v_and_b32 v{a}, 15, v{vLANE}
        v_lshlrev_b32 v{a}, 3, v{a}
        v_lshrrev_b32 v{X2}, 4, v{vLANE}
        v_lshl_add_u32 v{a}, v{X2}, 8, v{a}''')
        self.kv_ld = [R.op(f'buffer_load_dwordx2 {vr(X2 + 2 * k, 2)}, v{a}, {sr(SW)}, s{t2} offen offset:{128 * k} sc1', after=after, pipe=40) for k in range(2)]
        for p in range(8):
            if p == 4:
                R.op(f's_add_u32 s{t}, s{t}, 4096')
            self.kv_ld.append(R.op(f'buffer_load_dwordx4 {vr(buf + 4 * p)}, v{vL16}, {sr(SW)}, s{t} offen offset:{1024 * (p & 3)} sc1', after=after, pipe=self.o.get('pkv', 140)))
        self.kv_buf = buf
        self.sel_regs(R, T + 12, T + 18)
        R.op(f'''v_and_b32 v{T + 18}, 15, v{vLANE}
        v_and_b32 v{T + 8}, 1, v{T + 18}
        v_lshlrev_b32 v{T + 8}, 4, v{T + 8}
        v_mov_b32 v{T + 9}, 0x3f80
        v_lshlrev_b32 v{T + 9}, v{T + 8}, v{T + 9}
        v_lshrrev_b32 v{T + 18}, 1, v{T + 18}
        v_cmp_eq_u32 vcc, 0, v{T + 18}
        v_cndmask_b32 v{T + 4}, 0, v{T + 9}, vcc
        v_cmp_eq_u32 vcc, 1, v{T + 18}
        v_cndmask_b32 v{T + 5}, 0, v{T + 9}, vcc
        v_mov_b32 v{T + 6}, v{T + 4}
        v_mov_b32 v{T + 7}, v{T + 5}''')

    def kv_sum(self, R):
        buf, A1, A0 = self.kv_buf, T + 12, T + 14
        w = R.wait([(o, self.o.get('dkv', 50) + 5 * (9 - k)) for k, o in enumerate(self.kv_ld)], tag='kvld')
        R.mfma(f'{MF} {vr(T + 8)}, {vr(T + 4)}, {vr(T + 20)}, 0', after=[w])
        for p in range(8):
            for k, a in enumerate((A0, A1)):
                R.mfma(f'{MF} {vr(T + 4 * k)}, {vr(a)}, {vr(buf + 4 * p)}, {vr(T + 4 * k) if p else 0}')

    def kv_finish(self, R, tmp):
        S = T
        KVM, KVL = T + 12, tmp[0]

        def pack():
            m2, m3 = f's[{sMK2}:{sMK2 + 1}]', f's[{sMK3}:{sMK3 + 1}]'
            R.op(f's_and_b32 s{sMK3}, s{sMASKC}, 0xffff\ns_mov_b32 s{sMK3 + 1}, 0\ns_xor_b32 s{sMK2}, s{sMK3}, 0xffff\ns_mov_b32 s{sMK2 + 1}, 0', after=[self.chk0])
            R.op(f'v_cvt_pk_bf16_f32 v{KVM}, v{S}, v{S + 1}')
            R.op(f'v_cvt_pk_bf16_f32 v{KVM + 1}, v{S + 2}, v{S + 3}')
            R.op(f'v_cvt_pk_bf16_f32 v{KVM + 3}, v{S + 8}, v{S + 9}')
            R.op(f'v_cndmask_b32 v{KVM + 2}, 0, v{KVM + 3}, {m2}')
            R.op(f'v_cndmask_b32 v{KVM + 3}, 0, v{KVM + 3}, {m3}')
            R.op(f'v_cvt_pk_bf16_f32 v{S}, v{S + 4}, v{S + 5}')
            R.op(f'v_cvt_pk_bf16_f32 v{S + 1}, v{S + 6}, v{S + 7}')
            R.op(f'v_cvt_pk_bf16_f32 v{S + 3}, v{S + 10}, v{S + 11}')
            R.op(f'v_cndmask_b32 v{S + 2}, 0, v{S + 3}, {m2}')
            R.op(f'v_cndmask_b32 v{S + 3}, 0, v{S + 3}, {m3}')
            sT1 = self.news()
            aq = T + 16
            R.op(f'v_and_b32 v{aq}, 15, v{vLANE}')
            R.op(f's_lshl_b32 s{sT1}, s{sWV}, 9\ns_add_u32 s{sT1}, s{sT1}, {QL}')
            R.op(f'v_lshl_add_u32 v{aq}, v{aq}, 3, s{sT1}')
            R.op(f's_mul_i32 s{sT1}, s{sC}, -1024\ns_add_u32 s{sT1}, s{sT1}, 512\nv_add_u32 v{aq + 1}, s{sT1}, v{aq}')
            rd = [R.op(f'ds_read_b64_tr_b16 {vr(PQ + 4 * rs + 2, 2)}, v{aq + (rs >> 1)} offset:{128 * (rs & 1)}', after=[self.l_free]) for rs in range(4)]
            self.pq_wait = R.wait(rd, late=False, dist=6)
            self.kv_frags = (KVM, S)
        self.kv_exchange(R, [S, S + 4, S + 8], tmp, pack)

    def o_mfmas(self, R, buf):
        KVM, KVL = self.kv_frags
        for rs in range(4):
            R.mfma(f'{MF} {vr(buf + 8 * rs)}, {vr(KVM)}, {vr(PQ + 4 * rs)}, 0', after=[self.pq_wait])
            R.mfma(f'{MF} {vr(buf + 8 * rs + 4)}, {vr(KVL)}, {vr(PQ + 4 * rs)}, 0')
        a = T + 16
        R.op(f'v_and_b32 v{a}, 15, v{vLANE}')
        R.op(f'v_lshlrev_b32 v{a}, 2, v{a}')
        R.op(f'v_mov_b32 v{a + 1}, {OOB}')
        R.op(f'v_lshrrev_b32 v{a + 2}, 4, v{vLANE}')
        R.op(f'v_cmp_eq_u32 vcc, 1, v{a + 2}\nv_cndmask_b32 v{a}, v{a + 1}, v{a}, vcc')
        st = []
        mc = f's[{sMASKC}:{sMASKC + 1}]'
        for P in range(2):
            sT0, sT1, sT3 = self.news(), self.news(), self.news()
            R.op(f'''s_xor_b32 s{sT0}, s{sWV}, {P}
            s_lshl_b32 s{sT1}, s{sI}, 2
            s_add_u32 s{sT0}, s{sT0}, s{sT1}
            s_lshl_b32 s{sT3}, s{sJQ}, 1
            s_add_u32 s{sT3}, s{sT3}, s{sC}''')
            R.op(f'''s_lshl_b32 s{sT1}, s{sT0}, 6
            s_add_u32 s{sT1}, s{sT1}, s{sT3}
            s_lshl_b32 s{sT1}, s{sT1}, 6
            s_add_u32 s{sT1}, s{sT1}, {OL_BASE}''')
            R.op(f'''s_lshl_b32 s{sT0}, s{sT0}, 5
            s_add_u32 s{sT0}, s{sT0}, s{sT3}
            s_lshl_b32 s{sT0}, s{sT0}, 10
            s_add_u32 s{sT0}, s{sT0}, {O_BASE}''')
            for k in range(2):
                rs = 2 * P + k
                m, l = buf + 8 * rs, buf + 8 * rs + 4
                tq = a + 2
                R.op(f'v_cndmask_b32 v{tq}, v{l + 2}, v{l}, {mc}')
                R.op(f'v_cndmask_b32 v{l}, v{l}, v{l + 2}, {mc}')
                R.op(f'v_cndmask_b32 v{l + 1}, v{l + 1}, v{l + 3}, {mc}')
                R.op(f'v_add_f32 v{l + 2}, {hex(EPS6)}, v{tq}')
                R.op(f'v_rcp_f32 v{l + 2}, v{l + 2}')
                for e in (m, m + 1, m + 2, m + 3, l, l + 1):
                    R.op(f'v_mul_f32 v{e}, v{l + 2}, v{e}')
                R.op(f'v_cvt_pk_bf16_f32 v{buf + 16 * P + 2 * k}, v{m}, v{m + 1}')
                R.op(f'v_cvt_pk_bf16_f32 v{buf + 16 * P + 2 * k + 1}, v{m + 2}, v{m + 3}')
                R.op(f'v_cvt_pk_bf16_f32 v{l}, v{l}, v{l + 1}')
                st.append(R.op(f'buffer_store_dword v{l}, v{a}, {sr(SW)}, s{sT1} offen offset:{2048 * k} sc1', pipe=20))
            st.append(R.op(f'buffer_store_dwordx4 {vr(buf + 16 * P)}, v{vL16}, {sr(SW)}, s{sT0} offen sc1', pipe=P_S))
        return st

    def flag_later(self, R, f, stores):
        if not (self.o.get('nostw') and f != '3'):
            n = len(stores)
            self.pre_bar += [(o, self.o['dst'] + (0 if f == '3' else self.o.get('sst', 8) * min(n - 1 - k, 5))) for k, o in enumerate(stores)]
        self.post_bar.append(lambda bar: self.set_flag(R, f, [bar]))

    def main(self):
        R = Region(cap=2, backlog=self.o['backlog'], hwq=self.o.get('hwq', 200), spread=self.o.get('spread', 1), vprio=self.o.get('vprio', 200), vfrom=self.o.get('vfrom', 0))
        self.pre_bar = list(self.ln_last)
        self.post_bar, self.unfreed = [], []
        self.lastwait, self.free_bar, self.bars = {}, {}, {}
        self.paired, self.single = set(), set()
        ks = []
        n0 = 0
        for name in self.order:
            ks += [(name, t, n0 + (t >> 1)) for t in range(18)]
            n0 += 9
        accs = {'A0': ACC0, 'Q': ACC1, 'A1': ACC0, 'A2': ACC1, 'A3': ACC0, 'A4': ACC1}
        last = self.order[-1]
        self.span = 28
        w0 = R.wait(self.pre_bar + self.dmas[0], late=False)
        self.pre_bar = []
        bar = R.op('s_barrier', after=[w0], wr=['bar'])
        self.bars[0] = bar
        self.unfreed = [0]
        for m in range(1, self.NCH):
            for o in self.dma_ops(m):
                if 'dma' in o.kinds():
                    o.after.append((bar, 0))
                R.add(o)
        reads = self.p_reads(R, 'A0', 0, 0, RING, [bar])
        reads = self.ln_reads1(R, 0, bar) + reads
        hst = {}
        self.ln_wr = {}
        for x, (name, t, n) in enumerate(ks):
            buf = RING + 16 * (x & 1)
            nbuf = RING + 16 * ((x + 1) & 1)
            w = R.wait(reads, dist=4)
            last_in_chunk = x + 1 == len(ks) or ks[x + 1][2] != n
            if last_in_chunk:
                self.lastwait[n] = w
            g0 = R.here
            if t == 0 or (self.o.get('fine') and t % self.o['fine'] == 0):
                self.stamp(R, f'{name}.{t}')
            if x + 1 < len(ks):
                nn, nt, nc = ks[x + 1]
                dep = [w]
                if nc != n:
                    self.span = 28 if name != 'A4' else 28
                    dep = [self.chunk_enter(R, nc, g0 + 1, [w]), w]
                reads = self.p_reads(R, nn, nc, nt, nbuf, dep)
                if nn == 'A0' and nc != n:
                    reads += self.ln_reads1(R, nc, dep[0])
                    if nc == 8:
                        self.ln_finish(R, dep[0])
            else:
                self.b_prepare(R, n0, w, g0)
            acc = accs[name]
            nf = 4
            for f in range(nf):
                for rs in range(2 if (name == 'Q' and f == 3) else 4):
                    d = vr(PQ + 4 * rs if (name == 'Q' and f == 2) else acc + (f * 4 + rs) * 4)
                    c = d if t else '0'
                    a_, b_ = vr(buf + 4 * f), xn(4 * t + rs)
                    if name == 'Q' and f != 2:
                        a_, b_ = b_, a_
                    R.mfma(f'{MF} {d}, {a_}, {b_}, {c}', after=[w] if (f == 0 and rs == 0) else [])
            if name == 'A0' and t <= 13:
                tc = t + 4
                bar_ = self.bars.get(tc // 2 - 1)
                wr = self.ln_center(R, 1, tc, (ACC1 + 56 if self.o.get('probe') else T + 18, ACC1 + 56)[t & 1], (PQ, PQ + 12, SC)[t % 3],
                                    self.LN_R0, 4096 * (tc & 3), after=[bar_] if bar_ else None)
                if bar_:
                    self.ln_wr[tc] = wr
                else:
                    self.post_bar.append(lambda b_, tc=tc, wr=wr: self.ln_wr.__setitem__(tc, wr([b_])))
            if name == 'A0' and t % 2 == 0 and 2 <= t <= 14:
                self.pre_bar += [(self.ln_wr[k], 8) for k in (t + 2, t + 3)]
            g1 = R.here
            o = self.o
            if t == 17:
                if name == 'Q':
                    self.epi_qkv(R, acc)
                else:
                    hst[name] = self.epi_glu(R, acc, (self.jump + (0,))[int(name[1])])
            if name == 'Q' and t == 0:
                self.b_tables(R)
            if name == 'A0' and t == o.get('tclr', 15):
                Z, a_ = T + 20, T + 24
                R.op(f'''s_or_b32 s{sT0}, s{sJ}, s{sWV}
                s_min_u32 s{sT0}, s{sT0}, 1
                s_lshl_b32 s{sT0}, s{sT0}, 31
                v_or_b32 v{a_}, s{sT0}, v{vL16}
                v_or_b32 v{vPOLL}, s{sT0}, v{vFST}
                s_lshl_b32 s{sT0}, s{sI}, 12
                s_lshl_b32 s{sT3}, s{sI}, 2
                v_mov_b32 v{Z}, 0
                v_mov_b32 v{Z + 1}, 0
                v_mov_b32 v{Z + 2}, 0
                v_mov_b32 v{Z + 3}, 0''')
                clr = [R.op(f'buffer_store_dwordx4 {vr(Z)}, v{a_}, {sr(SW)}, s{sT0} offen offset:{1024 * k} sc1', hi=g1 + 20 + 4 * k, pipe=20) for k in range(3)]
                wclr = R.wait(clr, late=False, lo=g1 + 110, hi=g1 + 114)
                R.op(f'buffer_store_dword v{vONE}, v{vPOLL}, {sr(SB)}, s{sT3} offen sc1', after=[wclr], hi=g1 + 118)
            if name != 'A0' and t == o.get('cpt', 2):
                self.code_ahead(R, g1)
            if name == 'A1' and t == o.get('lx', 6):
                self.pre_bar += [(o_, 6) for o_ in self.l_writes + self.ql_writes]
                self.post_bar.append(self.l_read)
            if name == 'A1' and t == 0:
                R.op(self.pat_b(vPOLL, T + 19), prio=100)
            if name == 'A2' and t == 0:
                self.epi_q(R)
            if name == 'A2' and t == 1:
                self.chk0 = self.poll(R, 'clr', SB, '', 15, 1, g1, g1 + 60)
            if name == 'A1' and t == o.get('kvm', 15):
                self.kv_mfmas(R)
                self.kv_publish(R)
            if name == 'A2' and t == o.get('f1', 7):
                self.flag_later(R, '1', self.kv_stores)
            if name == 'A2' and t == o.get('f2a', 14):
                self.flag_later(R, '2a', hst['A0'] + hst['A1'])
            if name == 'A3' and t == o.get('p1', 6):
                self.chk1 = self.poll(R, 'kv', SW, self.flag_addr('1', False, sT2), 15, 1, g1, g1 + 40, after=[self.chk0, self.flags['1']])
                self.kv_gather(R, ACC1 + 32, [self.chk1])
            if name == last and t == o.get('p2a', 0):
                self.chk2a = self.poll(R, 'ha', SW, self.flag_addr('2a', False, sT2), 3, 1, g1, g1 + 40, after=[self.flags['2a']])
            if name == 'A3' and t == o.get('kvs', 17):
                self.kv_sum(R)
                self.kv_finish(R, [T + 20] * 3)
            if name == 'A3' and t == o.get('f2b', 16):
                self.flag_later(R, '2b', hst['A2'])
            if name == 'A4' and t == o.get('p2b5', 8):
                self.chk2b = self.poll(R, 'hb', SW, self.flag_addr('2b', False, sT2), 3, 1, g1, g1 + 40, after=[self.flags['2b']])
            if name == 'A4' and t == o.get('om5', 12):
                self.o_stores = self.o_mfmas(R, ACC0)
                R.op(self.pat_cl())
            if name == 'A4' and t == o.get('f2c5', 14):
                self.flag_later(R, '2c', hst['A3'])
            if name == last and t >= o.get('h0', 3):
                p_ = t - o.get('h0', 3)
                if p_ < 8 or (p_ < o.get('hpre5', 10) and hasattr(self, 'chk2b')):
                    self.h_loads(R, p_, [self.chk2a if p_ < 8 else self.chk2b], g1)
        self.hst = hst
        self.phase_b(R, n0)
        return R

    @staticmethod
    def hreg(pos, hh, rho, lo=0, cnt=4):
        return xn(4 * (pos & 15) + 2 * hh + rho)

    PF = {'1': ('A1', 4), '2': ('A2', 0), '3': ('A2', 5), '4': ('A3', 0), '5': ('A1', 0), '6': ('A0', 4), '7': ('A3', 4), '8': ('A2', 4), '9': ('A1', 7), 'a': ('A2', 2), 'b': ('A2', 7), 'c': ('A3', 2)}

    def prefetch_late(self, R, which, part, lo, after):
        if not self.o.get('pf1', 0):
            return
        a, d = T + 24, T + 23
        t, t2 = self.news(), self.news()
        per, step, srd = (36, 18, SD) if which == 'd' else (18, 9, SWO)
        nl = 2 if self.nt == 8 else 3
        sub = f's_mov_b32 s{t}, -1024' if which == 'd' else f's_mul_i32 s{t}, s{sR}, {4 * 1152}\ns_sub_u32 s{t}, s{t}, 1024'
        R.op(sub, lo=lo - 60)
        R.op(f's_lshl_b32 s{t2}, s{sIL}, 2\ns_add_u32 s{t2}, s{t2}, s{sWV}\ns_mul_i32 s{t2}, s{t2}, {per * 1152}\ns_sub_u32 s{t2}, s{t2}, s{t}\ns_xor_b32 s{t}, s{sIH}, {part}\ns_mul_i32 s{t}, s{t}, {step * 1152}\ns_add_u32 s{t2}, s{t2}, s{t}', lo=lo - 60)
        if nl == 3:
            R.op(f's_mul_i32 s{t}, s{sQ_}, -128\ns_add_u32 s{t}, s{t}, 128\ns_add_u32 s{t2}, s{t2}, s{t}', lo=lo - 60)
        R.op(f'v_min_u32 v{a}, {step * nl - 1}, v{vLANE}\nv_mul_u32_u24 v{d}, {128 if nl == 2 else 86}, v{a}\nv_lshrrev_b32 v{d}, 8, v{d}\nv_lshlrev_b32 v{a}, 7, v{a}\nv_mul_u32_u24 v{d}, {1152 - nl * 128}, v{d}\nv_add3_u32 v{a}, v{a}, v{d}, s{t2}', lo=lo - 60)
        R.op(f'buffer_load_dword v{T + 24 if self.o.get(PRB) else T + 25}, v{a}, {sr(srd)}, 0 offen', after=after, prio=500, hi=lo + self.o.get('pfd', 60), pipe=self.o['ppf'] if part == 0 else self.o.get('ppf2', 300))

    def code_ahead(self, R, lo):
        nl = self.o.get('cpn', 2)
        if not nl:
            return
        vb, va = T + 25, T + 26
        if not self.ncp:
            t, t2 = sT0, sT1
            R.op(f'''s_lshl_b32 s{t}, s{sIL}, 1
            s_and_b32 s{t2}, s{sQ_}, 1
            s_add_u32 s{t}, s{t}, s{t2}
            s_lshl_b32 s{t2}, s{sWV}, 4
            s_add_u32 s{t}, s{t}, s{t2}
            v_min_u32 v{vb}, {nl - 1}, v{vLANE}
            v_lshl_add_u32 v{vb}, v{vb}, 6, s{t}
            v_lshlrev_b32 v{vb}, 7, v{vb}
            v_add_u32 v{vb}, {self.o.get('cpd', 2048)}, v{vb}''')
        self.ncp += 1
        lab = f'L_cp{self.ncp}{self.sfx}'
        R.op(f's_getpc_b64 s[0:1]\n{lab}:\nv_min_u32 v{va}, L_stop{self.sfx}-{lab}, v{vb}\nglobal_load_dword v{va + 1}, v{va}, s[0:1]', atomic=True, lo=lo, hi=lo + 10, pipe=40)

    ncp = 0

    def h_loads(self, R, pos, after, lo):
        if pos in self.hl:
            return
        t = TB + pos
        if not hasattr(self, 'vH'):
            self.vH = vLL
            t2 = self.news()
            R.op(f's_lshl_b32 s{t2}, s{sWV}, 12\ns_add_u32 s{t2}, s{t2}, s{sHB}\nv_add_u32 v{self.vH}, s{t2}, v{vL16}', lo=lo - 100, prio=300)
        ops = []
        hsc = '' if self.o.get('hplain') else ' sc1'
        for hh in range(2):
            for rho in range(2):
                ops.append(R.op(f'buffer_load_dwordx4 {self.hreg(pos, hh, rho)}, v{self.vH}, {sr(SW)}, s{t} offen offset:{2048 * hh + 1024 * rho}{hsc}', after=after, lo=lo, pipe=P_H))
        if self.o.get('noh'):
            for o in ops:
                R.ops.remove(o)
            ops = []
        self.hl[pos] = ops

    hl = {}
    in_b = False
    kq_busy = False
    p3 = None
    sq_busy = False

    def b_prepare(self, R, n0, w, g0):
        t = self.news()
        R.op(f's_lshl_b32 s{t}, s{sC}, 6', lo=g0 - 40)
        cur = self.base[vLA0]
        if self.base[vLA1] != cur:
            d = cur - self.base[vLA1]
            R.op(f'v_add_u32 v{vLA1}, {d}, v{vLA1}' if d > 0 else f'v_subrev_u32 v{vLA1}, {-d}, v{vLA1}')
        R.op(f'v_xor_b32 v{vLA0}, s{t}, v{vLA0}\nv_xor_b32 v{vLA1}, s{t}, v{vLA1}\nv_xor_b32 v{vLB}, 64, v{vLA0}\nv_xor_b32 v{vA0}, 64, v{vLA1}', prio=50)
        self.vLT = [vLA0, vLA1, vLB, vA0]
        self.vLH = [vA1, T + 24]
        for r_ in self.vLT:
            self.base[r_] = cur
        if self.nt > 8:
            R.op(f'''v_lshrrev_b32 v{T + 24}, 2, v{vLANE}
            v_lshlrev_b32 v{T + 24}, 6, v{T + 24}
            v_bfe_u32 v{vA1}, v{vLANE}, 4, 1
            v_lshl_add_u32 v{T + 24}, v{vA1}, 5, v{T + 24}
            v_and_b32 v{vA1}, 3, v{vLANE}
            v_lshl_add_u32 v{vA1}, v{vA1}, 3, v{T + 24}
            v_xor_b32 v{T + 24}, 32, v{vA1}''', lo=g0 - 60)
            self.base[vA1] = self.base[T + 24] = 0
        self.bbar = self.chunk_enter(R, n0, g0 + 1, [w])
        self.bq = []
        self.b_ring = [RING + 4 * k for k in range(8)] + [XNV + 16 + 4 * k for k in range(self.o.get('ring', 8) - 8)]
        self.b_next = 0
        self.b_n0 = n0
        for _ in range(4):
            self.b_read(R, g0 + 1)

    def b_order(self):
        nt = self.o['ntail']
        seq = [(k, t) for k in range(36 - nt) for t in range(self.nt)]
        seq += [(k, t) for t in range(self.nt) for k in range(36 - nt, 36)]
        return seq

    def b_read(self, R, lo):
        seq = self.b_order()
        k, t = seq[self.b_next]
        n = self.b_n0 + (k >> 1)
        if n not in self.bars:
            self.span = 30
            self.chunk_enter(R, n, lo)
        reg, off, step = self.tile_addr(n, k, t)
        slot = self.b_ring[self.b_next % len(self.b_ring)]
        self.bq.append(self.tr_pair(R, slot, reg, off, step, [self.bars[n]], lo=lo))
        self.b_next += 1

    b_ring = [RING + 4 * k for k in range(8)]

    def tile_addr(self, n, k, t):
        cb = self.slot[n] * self.CH
        if t < 8:
            return self.vLT[t & 3], cb + 8192 * (k & 1) + 1024 * (t >> 2), 4096
        return self.vLH[t - 8], cb + 16384 + 2048 * (k & 1), 1024

    def bacc(self, t, rho):
        i = 2 * t + rho
        return self.OB + 4 * i if i < 16 else XNV + 4 * (i - 16)

    def phase_b(self, R, n0):
        self.in_b = True
        seq = self.b_order()
        AH, WG = self.o.get('ah', 6), self.o.get('wg', 3)
        lastuse = {}
        for x, (k, t) in enumerate(seq):
            lastuse[k >> 1] = x
        sT0 = KA
        R.op(f'''s_lshl_b32 s{sH0}, s{sI}, 2
        s_add_u32 s{sH0}, s{sH0}, s{sQ_}
        s_lshl_b32 s{sH0}, s{sH0}, 2
        s_add_u32 s{sH0}, s{sH0}, s{sWV}
        s_lshl_b32 s{sH0}, s{sH0}, 2
        s_add_u32 s{sH0}, s{sH0}, s{sJJ}
        s_mul_i32 s{sH0}, s{sH0}, {PSTR}
        s_add_u32 s{sH0}, s{sH0}, {PART_BASE}''', lo=R.here + 300)
        R.op(f's_add_u32 s{sH1}, s{sH0}, 4096', lo=R.here + 300)
        R.op(f's_add_u32 s{sT0}, s{sH0}, 8192', lo=R.here + 300)
        self.part_stores = []
        self.own_writes = []
        vST, vOW, sOWN = T + 11, T + 12, KA + 3 + 1
        self.own = self.o.get('own', 1)
        if not self.own:
            vST = vL16

        def put(X, so, imm, piece, hi):
            self.part_stores.append(R.op(f'buffer_store_dwordx4 {vr(X)}, v{vST}, {sr(SW)}, s{so} offen offset:{imm} sc1', prio=400, pipe=P_S * (3 if self.own else 4) // 4, hi=hi))
            if self.own:
                self.own_writes.append(R.op(f's_mov_b64 exec, s[{SQ}:{SQ + 1}]\nds_write_b128 v{vOW}, {vr(X)} offset:{1024 * piece}\ns_mov_b64 exec, -1', atomic=True, noexec=True, hi=hi + 6))
        done = {}
        seen = set()
        hw = {}
        w = None
        for x, (k, t) in enumerate(seq):
            g0 = R.here
            while self.b_next < min(len(seq), x + 1 + AH):
                self.b_read(R, g0)
            if self.b_next == len(seq) and x == len(seq) - 4:
                self.c_prepare(R, n0 + 18, g0)
            dep = []
            if x % WG == 0:
                w = R.wait(sum(self.bq[x:x + WG], []), dist=3)
                dep.append(w)
                for c_, lu in lastuse.items():
                    if x <= lu < x + WG:
                        self.lastwait[n0 + c_] = w
            pos = k >> 1
            if pos not in hw and (pos == 0 or (self.o.get('fine') and pos % 3 == 0)):
                self.stamp(R, f'B.{pos}')
            if pos not in hw:
                o = self.o
                hw[pos] = R.wait([(q_, o['dh'] + o.get('stag', 6) * (len(self.hl[pos]) - 1 - k_)) for k_, q_ in enumerate(self.hl[pos])], tag=f'h{pos}')
                dep.append(hw[pos])
                if pos == 1:
                    self.c_tables(R)
                five = self.ns == 5
                if pos in (0, 8):
                    self.code_ahead(R, g0)
                if self.own and pos == 12:
                    R.op(f's_cmp_eq_u32 s{sWV}, s{sJJ}\ns_cselect_b32 s{SQ}, -1, 0\ns_mov_b32 s{SQ + 1}, s{SQ}', atomic=True)
                    R.op(f's_lshl_b32 s{SQ + 2}, s{SQ}, 31\nv_or_b32 v{vST}, s{SQ + 2}, v{vL16}\nv_add_u32 v{vOW}, {self.KVX}, v{vL16}')
                    self.sq_busy = True
                if not five and pos == o.get('om', 5):
                    self.o_stores = self.o_mfmas(R, ACC0)
                    R.op(self.pat_cl())
                if not five and pos == o.get('p2b', 2):
                    self.chk2b = self.poll(R, 'hb', SW, self.flag_addr('2b', False, sT2), 3, 1, g0, g0 + 40, after=[self.flags['2b']])
                if pos == o.get('f2l', 6):
                    self.flag_later(R, '2d' if five else '2c', self.hst[self.order[-1]])
                if pos == (o.get('p2c5', 5) if five else o.get('p2c', 8)):
                    self.chk2c = self.poll(R, 'hc', SW, self.flag_addr('2c', False, sT2), 3, 1, g0, g0 + 40, after=[self.flags['2c']])
                if pos == (o.get('f2o5', 1) if five else o.get('f2o', 9)):
                    self.flag_later(R, '2o', self.o_stores)
                if pos == (o.get('p2d5', 10) if five else o.get('p2d', 13)):
                    self.chk2d = self.poll(R, 'hd', SW, self.flag_addr('2d', False, sT2), 1, 1, g0, g0 + 34, after=[self.flags['2d']] if five else [], mul=12)
                if pos == (o.get('p2o5', 12) if five else o.get('p2o', 12)):
                    self.chk2o = self.poll(R, 'o', SW, self.flag_addr('2o', False, sT2), 15, 1, g0, g0 + 30, after=[self.flags['2o']])
                    self.o_stage_load(R, g0)
                for nxt in range(pos + 1, min(18, pos + o['hlook'] + 1)):
                    chk = 'chk2a' if nxt < 8 else 'chk2b' if nxt < 12 else 'chk2c' if nxt < 16 else 'chk2d'
                    if hasattr(self, chk):
                        self.h_loads(R, nxt, [getattr(self, chk)], g0)
            slot = self.b_ring[x % len(self.b_ring)]
            for rho in range(2):
                d = vr(self.bacc(t, rho))
                R.mfma(f'{MF} {d}, {vr(slot)}, {self.hreg(pos, k & 1, rho)}, {d if (t, rho) in seen else 0}', after=dep)
                seen.add((t, rho))
                dep = []
            if k == 35:
                done[t] = True
                if t >= 8:
                    X = self.bacc(t, 0)
                    for rho in range(2):
                        a = self.bacc(t, rho)
                        R.op(f'v_cvt_pk_bf16_f32 v{X + 2 * rho}, v{a}, v{a + 1}', prio=40)
                        R.op(f'v_cvt_pk_bf16_f32 v{X + 2 * rho + 1}, v{a + 2}, v{a + 3}', prio=40)
                    put(X, sT0, 1024 * (t - 8), t, R.here + 8)
                elif t & 1:
                    for rho in range(2):
                        X, Y = self.bacc(t - 1, rho), self.bacc(t, rho)
                        for kk, a in enumerate((X, X + 2, Y, Y + 2)):
                            R.op(f'v_cvt_pk_bf16_f32 v{X + kk}, v{a}, v{a + 1}', prio=40)
                        put(X, sH0 + rho, 1024 * (t >> 1), 4 * rho + (t >> 1), R.here + 8 + 3 * rho + (0 if self.o['ntail'] else 3 * t))
        self.phase_c(R, n0 + 18)

    def o_stage_load(self, R, lo):
        buf = self.LB
        sT0, sT1 = KA + 1, KA + 2
        R.op(f'''s_lshl_b32 s{sT0}, s{sI}, 2
        s_add_u32 s{sT0}, s{sT0}, s{sJJ}
        s_lshl_b32 s{sT1}, s{sT0}, 15
        s_add_u32 s{sT1}, s{sT1}, {O_BASE}''', lo=lo - 10)
        self.o_ld = []
        for k in range(2):
            sT3 = KA + 3 + k
            R.op(f'''s_lshl_b32 s{sT3}, s{sWV}, 1
            s_add_u32 s{sT3}, s{sT3}, s{sIL}
            s_add_u32 s{sT3}, s{sT3}, {k}
            s_and_b32 s{sT3}, s{sT3}, 7
            s_lshl_b32 s{sT3}, s{sT3}, 12
            s_add_u32 s{sT3}, s{sT3}, s{sT1}''', lo=lo - 10)
            for p in range(4):
                self.o_ld.append(R.op(f'buffer_load_dwordx4 {vr(buf + 16 * k + 4 * p)}, v{vL16}, {sr(SW)}, s{sT3} offen offset:{1024 * p} sc1', after=[self.chk2o], lo=lo, pipe=P_H))
        a = T + 16
        R.op(f'v_lshrrev_b32 v{a}, 4, v{vLANE}', lo=lo - 10)
        R.op(f'v_lshlrev_b32 v{a}, 8, v{a}', lo=lo - 10)
        R.op(f'v_and_b32 v{a + 1}, 15, v{vLANE}', lo=lo - 10)
        R.op(f'v_lshl_add_u32 v{a}, v{a + 1}, 2, v{a}', lo=lo - 10)
        R.op(f'''s_lshl_b32 s{sT0}, s{sT0}, 1
        s_add_u32 s{sT0}, s{sT0}, s{sC}
        s_lshl_b32 s{sT0}, s{sT0}, 1
        s_add_u32 s{sT0}, s{sT0}, s{sR}
        s_lshl_b32 s{sT0}, s{sT0}, 10
        s_add_u32 s{sT0}, s{sT0}, {OL_BASE}''', lo=lo - 10)
        for p in range(4):
            self.o_ld.append(R.op(f'buffer_load_dword v{XNV + 16 + p}, v{a}, {sr(SW)}, s{sT0} offen offset:{64 * p} sc1', after=[self.chk2o], lo=lo, pipe=30))

    def final_prefetch(self, R, lo):
        XR = self.LB + 36
        sT0 = KA + 5
        self.vXa, self.vXb = SC + 2, SC + 3
        a, b_ = T + 23, T + 22
        R.op(f'''v_and_b32 v{a}, 15, v{vLANE}
        s_lshl_b32 s{sT0}, s{sI}, 2
        s_add_u32 s{sT0}, s{sT0}, s{sJJ}
        s_lshl_b32 s{sT0}, s{sT0}, 5
        v_add_u32 v{self.vXb}, s{sT0}, v{a}
        v_mul_u32_u24 v{self.vXb}, 1152, v{self.vXb}
        v_lshrrev_b32 v{b_}, 5, v{vLANE}
        v_lshl_add_u32 v{self.vXb}, v{b_}, 4, v{self.vXb}
        s_lshl_b32 s{sT0}, s{sQ_}, 3
        s_lshr_b32 s{sT0}, 0x0e0a0400, s{sT0}
        s_and_b32 s{sT0}, s{sT0}, 0xff
        s_add_u32 s{sT0}, s{sT0}, s{sWV}
        s_lshl_b32 s{sT0}, s{sT0}, 6
        v_bfe_u32 v{b_}, v{vLANE}, 4, 1
        v_lshl_add_u32 v{self.vXa}, v{b_}, 5, v{self.vXb}
        v_add_u32 v{self.vXa}, s{sT0}, v{self.vXa}''', lo=lo - 150)
        self.xo = [(self.vXa, '0', 0), (self.vXa, f's{KA + 7}', 0)]
        if self.nt > 8:
            R.op(f'''v_mul_u32_u24 v{b_}, {16 * 1152}, v{b_}
            s_lshl_b32 s{sT0}, s{sQ_}, 1
            s_add_u32 s{sT0}, s{sT0}, s{sC}
            s_lshl_b32 s{sT0}, s{sT0}, 5
            v_add3_u32 v{self.vXb}, v{b_}, v{self.vXb}, s{sT0}
            s_lshl_b32 s{sT0}, s{sR}, 31
            v_or_b32 v{self.vXb}, s{sT0}, v{self.vXb}''', lo=lo - 150)
            self.xo.append((self.vXb, '0', 448))
        R.op(f'''s_lshl_b32 s{sT0}, s{sJJ}, 7
        s_add_u32 s{sT0}, s{sT0}, {RS}
        v_lshl_add_u32 v{a}, v{a}, 2, s{sT0}
        s_mov_b32 s{KA + 7}, {16 * 1152}''', lo=lo - 150)
        self.x_ld = [R.op(f'buffer_load_dwordx4 {vr(XR + 4 * p)}, v{va}, {sr(SX)}, {so} offen offset:{imm}', lo=lo, pipe=160)
                     for p, (va, so, imm) in enumerate(self.xo)]
        self.rs_ld = [R.op(f'ds_read_b32 v{SC + rho}, v{a} offset:{64 * rho}', lo=lo - 100) for rho in range(2)]
        self.XR = XR


    def partial_loads(self, R, chk, lo):
        t = KA + 8
        self.PBS = [self.OB + 16 * k for k in range(3)]
        R.op(f'''s_lshl_b32 s{t}, s{sI}, 2
        s_add_u32 s{t}, s{t}, s{sQ_}
        s_lshl_b32 s{t}, s{t}, 2
        s_add_u32 s{t}, s{t}, s{sJJ}
        s_mul_i32 s{t}, s{t}, {4 * PSTR}
        s_add_u32 s{t}, s{t}, {PART_BASE}
        s_lshl_b32 s{sK5}, s{sWV}, 10
        v_add_u32 v{vA0}, s{sK5}, v{vL16}
        v_add_u32 v{vA1}, 4096, v{vA0}
        s_mul_i32 s{sK5}, s{sWV}, {hex(0x40000400)}
        s_and_b32 s{sK5}, s{sK5}, {hex(0x80000400)}
        s_add_u32 s{sK5}, s{sK5}, 8192
        v_add_u32 v{vLL}, s{sK5}, v{vL16}''', lo=lo - 40)
        for k in range(4):
            R.op(f's_add_u32 s{KA + k}, s{sJJ}, {k}\ns_and_b32 s{KA + k}, s{KA + k}, 3\ns_mul_i32 s{KA + k}, s{KA + k}, {PSTR}\ns_add_u32 s{KA + k}, s{KA + k}, s{t}', lo=lo - 40)
        for piece, va in enumerate((vA0, vA1, vLL)[:len(self.xo)]):
            for k in range(1 if self.own else 0, 4):
                R.op(f'buffer_load_dwordx4 {vr(self.PBS[piece] + 4 * k)}, v{va}, {sr(SW)}, s{KA + k} offen sc1', after=[chk], prio=100)
        if self.own:
            a = T + 12
            R.op(f'v_add_u32 v{a}, {self.KVX}, v{vA0}\nv_and_b32 v{a + 1}, 0xffff, v{vLL}\nv_add_u32 v{a + 1}, {self.KVX}, v{a + 1}')
            for piece in range(len(self.xo)):
                R.op(f'ds_read_b128 {vr(self.PBS[piece])}, v{a + (piece >> 1)} offset:{4096 * (piece & 1)}', after=[self.own_bar])

    def c_prepare(self, R, nO, g0):
        pass

    def phase_c(self, R, nO):
        g0 = R.here
        ost = self.slot[nO] * self.CH
        assert self.slot[nO + 1] == self.slot[nO] + 1
        a = T + 16
        buf = self.LB
        sT0 = KA + 6
        R.op(f's_lshl_b32 s{sT0}, s{sWV}, 13\ns_add_u32 s{sT0}, s{sT0}, {ost}', lo=g0 - 120)
        R.op(f'v_add_u32 v{a}, s{sT0}, v{vL16}', lo=g0 - 120)
        R.op(f's_lshl_b32 s{sT0}, s{sWV}, 10\ns_add_u32 s{sT0}, s{sT0}, {ost + 32768}', lo=g0 - 120)
        R.op(f'v_add_u32 v{a + 1}, s{sT0}, v{vL16}', lo=g0 - 120)
        fb = [self.free_bar[self.prev_user[nO]], self.free_bar[self.prev_user[nO + 1]]]
        wl = R.wait([(o, self.o.get('dol', 60) + 5 * (11 - k)) for k, o in enumerate(self.o_ld)], late=False, lo=g0 - 70, tag='old')
        R.op(f'v_add_u32 v{a + 2}, 8, v{a}', lo=g0 - 120)
        ws = [R.op(f'ds_write2st64_b64 v{a + 2 * (p & 1)}, {vr(buf + 4 * p, 2)}, {vr(buf + 4 * p + 2, 2)} offset0:{4 * (p >> 1)} offset1:{4 * (p >> 1) + 2}', after=fb + [wl], lo=g0 - 70) for p in range(8)]
        ws.append(R.op(f'ds_write_b128 v{a + 1}, {vr(XNV + 16)}', after=fb + [wl], lo=g0 - 70))
        vO0 = T + 17
        R.op(f'v_add_u32 v{vO0}, {ost}, v{vL16}', lo=g0 - 30)
        vC = [T + 8, T + 9, T + 10]
        R.op(f's_lshl_b32 s{sT0}, s{sC}, 6\nv_xor_b32 v{vC[0]}, s{sT0}, v{vLA0}\ns_lshl_b32 s{sT0}, s{sR}, 10\nv_add_u32 v{vC[0]}, s{sT0}, v{vC[0]}\nv_xor_b32 v{vC[1]}, 32, v{vC[0]}', lo=g0 - 12)
        self.base[vC[0]] = self.base[vC[1]] = self.base[vLA0]
        nf = 2
        if self.nt > 8:
            nf = 3
            R.op(f's_lshl_b32 s{sT0}, s{sC}, 5\nv_xor_b32 v{vC[2]}, s{sT0}, v{vA1}', lo=g0 - 12)
            self.base[vC[2]] = self.base[vA1]
        self.pre_bar += [(o, 4) for o in ws]

        self.span = 8
        nC = nO + 2
        NB = self.o.get('cah', 1) + 1
        AB = [('a', 32 + 12 * k) for k in range(NB)]
        BB = [96 + 8 * k for k in range(NB)]
        self.SA = lambda rho, f: XNV + 16 + 8 * rho + 4 * f if f < 2 else T + 4 * rho

        def reads(k, lo):
            n = nC + (k >> 1)
            if n not in self.bars:
                self.chunk_enter(R, n, lo)
            bar = self.bars[n]
            cb = self.slot[n] * self.CH
            out = []
            for f in range(nf):
                off, step = (cb + 8192 * (k & 1), 4096) if f < 2 else (cb + 16384 + 2048 * (k & 1), 1024)
                d = AB[k % NB][1] + 4 * f
                o_ = self.addr(R, vC[f], off, lo=lo)
                out.append(R.op(f'ds_read_b64_tr_b16 a[{d}:{d + 1}], v{vC[f]} offset:{o_}', after=[bar], prio=10, lo=lo))
                out.append(R.op(f'ds_read_b64_tr_b16 a[{d + 2}:{d + 3}], v{vC[f]} offset:{o_ + step}', after=[bar], prio=10, lo=lo))
            for rho in range(2):
                d = BB[k % NB] + 4 * rho
                out.append(R.op(f'ds_read_b128 a[{d}:{d + 3}], v{vO0} offset:{2048 * k + 1024 * rho}', after=[bar], lo=lo, prio=10))
            return out
        rds = {k: reads(k, g0 - 3) for k in range(NB - 1)}
        self.stamp(R, 'C')
        for k in range(18):
            w = R.wait(rds[k], dist=2)
            if k & 1:
                self.lastwait[nC + (k >> 1)] = w
            g = R.here
            if k in (6, 12) and self.o.get('fine'):
                self.stamp(R, f'C.{k}')
            if k == self.o.get('xk', 6):
                self.final_prefetch(R, g)
                self.sel_regs(R, PQ + 8, T + 20, lo=g - 200)
            if k == self.o.get('f3k', 11):
                self.flag_later(R, '3', self.part_stores)
                self.pre_bar += [(o_, 4) for o_ in self.own_writes]
                self.post_bar.append(lambda b_: setattr(self, 'own_bar', b_))
            if self.o.get('p3e', 0):
                if k == self.o.get('p3i', 0):
                    self.p3 = self.poll(R, 'p', SW, self.flag_addr('3', False, sT2, own_ok=True), 3, 1, g, g, defer=True)
                if '3' in self.flags and self.p3:
                    chk = self.p3(g, [self.flags['3']])
                    self.p3 = None
                    self.partial_loads(R, chk, g)
            elif k == self.o.get('p3k', 13):
                chk = self.poll(R, 'p', SW, self.flag_addr('3', False, sT2), 3, 1, g, g + self.o.get('p3d', 4) * 2 * nf, after=[self.flags['3']])
                self.partial_loads(R, chk, g)
            if k + NB - 1 < 18:
                rds[k + NB - 1] = reads(k + NB - 1, g + 1)
                for q_, o in enumerate(rds[k + NB - 1]):
                    o.after.append((w, 0))
                    o.hi = g + 1 + (q_ + 1) // 2
            for f in range(nf):
                for rho in range(2):
                    d = vr(self.SA(rho, f))
                    R.mfma(f'{MF} {d}, a[{AB[k % NB][1] + 4 * f}:{AB[k % NB][1] + 4 * f + 3}], a[{BB[k % NB] + 4 * rho}:{BB[k % NB] + 4 * rho + 3}], {d if k else 0}', after=[w] if f + rho == 0 else [], cap=3)
        self.marks.append((R, R.here, 'Cend'))

    def final(self):
        L = self.lin.text
        vp = T + 19
        self.stamp(None, 'Cend')
        PBS = self.PBS
        NP = len(self.xo)
        for p in range(NP):
            L(f'v_permlane16_swap_b32 v{self.XR + 4 * p}, v{self.XR + 4 * p + 2}\nv_permlane16_swap_b32 v{self.XR + 4 * p + 1}, v{self.XR + 4 * p + 3}')
        A1, A0 = PQ + 8, PQ + 10
        MS = self.LB
        red = [[f'{MF} {vr(MS + 8 * piece + 4 * half)}, {vr(A1 if half else A0)}, {vr(PBS[piece] + 4 * pj)}, {vr(MS + 8 * piece + 4 * half) if pj else 0}'
                for pj in range(4) for half in range(2)] for piece in range(NP)]
        for x in red[0]:
            L(x)
        R = Region(cap=1000)
        tm = RING
        for piece in range(NP):
            for half in range(2):
                rho, u = (piece, half) if piece < 2 else (half, 2)
                S = self.SA(rho, u)
                X = self.XR + 4 * piece + 2 * half
                M = MS + 8 * piece + 4 * half
                for e in range(4):
                    m = M + e
                    t0 = tm + 2 * e + 8 * (half)
                    R.op(f'v_mul_f32 v{m}, v{SC + rho}, v{m}')
                    R.op(f'v_mul_f32 v{t0}, {hex(NLOG2E)}, v{m}')
                    R.op(f'v_exp_f32 v{t0}, v{t0}')
                    R.op(f'v_mul_f32 v{m}, v{m}, v{S + e}')
                    R.op(f'v_add_f32 v{t0}, 1.0, v{t0}')
                    R.op(f'v_rcp_f32 v{t0}, v{t0}')
                    src = X + (e >> 1)
                    R.op(f'v_and_b32 v{t0 + 1}, 0xffff0000, v{src}' if e & 1 else f'v_lshlrev_b32 v{t0 + 1}, 16, v{src}')
                    R.op(f'v_fma_f32 v{m}, v{m}, v{t0}, v{t0 + 1}')
                nxt = red[piece + 1][4 * half:4 * half + 4] if piece + 1 < NP else []
                for k_, o in enumerate(self.interleave(R.ops)):
                    self.lin.op(o)
                    if nxt and k_ % 6 == 3:
                        L(nxt.pop(0))
                R.ops = []
                Z = MS + 8 * piece
                L(f'v_cvt_pk_bf16_f32 v{Z + 2 * half}, v{M}, v{M + 1}\nv_cvt_pk_bf16_f32 v{Z + 2 * half + 1}, v{M + 2}, v{M + 3}')
            va, so, imm = self.xo[piece]
            L(f'v_permlane16_swap_b32 v{Z}, v{Z + 2}\nv_permlane16_swap_b32 v{Z + 1}, v{Z + 3}')
            L(f'buffer_store_dwordx4 {vr(Z)}, v{va}, {sr(SO)}, {so} offen offset:{imm}{("", " sc1", " nt", " sc0 sc1", " sc1 nt")[self.o.get("osc1", 0)]}')
        self.stamp(None, 'end')

    @staticmethod
    def interleave(ops):
        per = len(ops) // 4
        return [ops[e * per + k] for k in range(per) for e in range(4)]

    def build(self):
        self.hl = {}
        self.flags = {}
        self.build_stream()
        self.setup()
        for fn in (self.layernorm, self.main):
            R = fn()
            if self.o.get('probe') and (fn == self.main or self.o.get('probe') == 3):
                self.lin.probe_vm = self.o['probe'] >= 2
                if self.lin.probe is None:
                    self.lin.probe_skip = self.o.get('pskip', 0)
                self.lin.probe = PRV
                self.o['pf_dummy'] = 1
            for o in R.schedule(self.log):
                self.lin.op(o)
            if self.o.get('prof'):
                ld = R.loads
                for g in range(0, R.nspine, 48):
                    xs = [ld[k] for k in range(g, min(g + 48, R.nspine))]
                    self.log.append(f'{g:5d} sum={sum(xs):4d} ' + ''.join(str(min(9, v)) for v in xs))
        if self.o.get('probe'):
            if self.lin.probe_open:
                self.lin._probe_end()
            self.lin._emit_wait(None, 0)
            self.lin.probe = None
            self.lin.text(f's_lshl_b32 s0, s{sI}, 4\ns_add_u32 s0, s0, s{sJ}\ns_lshl_b32 s0, s0, 2\ns_add_u32 s0, s0, s{sWV}\ns_mul_i32 s0, s0, 768\ns_add_u32 s0, s0, {DUMP_BASE}\nv_lshlrev_b32 v{vPOLL}, 2, v{vLANE}')
            for k in range(3):
                self.lin.text(f'buffer_store_dword v{PRV + k}, v{vPOLL}, {sr(SW)}, s0 offen offset:{256 * k}')
            self.stamp_names = ['probe'] + self.lin.probe_names
        prev = None
        for R_, g, nm in self.marks:
            cur = (R_, R_.time_at[g], R_.slot_t[g], g)
            if prev and prev[0] is R_:
                cat = {}
                for o in R_.ops:
                    if o.pipe and prev[3] < o.gap <= g:
                        k = o.ins[0].kind + (o.tag[0] if o.tag else '')
                        cat[k] = cat.get(k, 0) + o.pipe
                self.log.append(f'  model {nm}: with pipe {cur[1] - prev[1]:.0f}  issue only {cur[2] - prev[2]:.0f} pipe {sum(cat.values())} {cat}')
            prev = cur
        self.final()
        self.lin.text('s_endpgm')
        body = list(self.lin.out)
        for s in self.slow:
            body += [l.strip() for l in s.split('\n')]
        body += [f'L_stop{self.sfx}:', 's_endpgm']
        self.log.append(f'nops={self.lin.nops} autowaits={len(self.lin.autowaits)} instrs={len(body)}')
        return body


def assemble(gens):
    body = ['s_cmp_ge_u32 s2, 256', 's_cbranch_scc0 L_go', 's_endpgm', 'L_go:']
    body += ['s_bitcmp1_b32 s2, 7'] if gens[0].o.get('hicls', 0) else ['s_add_u32 s3, s2, 8', 's_bitcmp1_b32 s3, 4']
    body += ['s_cbranch_scc1 L_four']
    body += gens[0].build() + ['.p2align 6', 'L_four:'] + gens[1].build()
    hdr = open('cdna_kernels/' + NAME + '.s.ref').read().split('\n')
    head = [l for l in hdr if l.startswith(';')][:11]
    K = NAME + '_kernel'
    txt = head + [f'; @launch grid=(256,1,1) block=(256,1,1) lds={LDS_BYTES}',
                  '.amdgcn_target "amdgcn-amd-amdhsa--gfx950"', '.text', f'.globl {K}', '.p2align 8',
                  f'.type {K},@function', f'{K}:']
    txt += [l.replace(' offset:0 ', ' ').replace(', ', ',') for l in body]
    txt += ['.section .rodata,"a"', '.p2align 6', f'.amdhsa_kernel {K}', '  .amdhsa_next_free_vgpr 512',
            '  .amdhsa_next_free_sgpr 102', '  .amdhsa_accum_offset 256', '  .amdhsa_group_segment_fixed_size 0',
            '  .amdhsa_kernarg_size 80', '  .amdhsa_float_denorm_mode_32 3', '  .amdhsa_user_sgpr_count 2',
            '  .amdhsa_user_sgpr_kernarg_segment_ptr 1', '  .amdhsa_system_sgpr_workgroup_id_x 1',
            '.end_amdhsa_kernel']
    return '\n'.join(txt) + '\n'


if __name__ == '__main__':
    import argparse
    ap = argparse.ArgumentParser()
    ap.add_argument('out')
    ap.add_argument('--stamps', action='store_true')
    ap.add_argument('-o', action='append', default=[])
    a = ap.parse_args()
    opts = {k: int(v, 0) for k, v in (x.split('=') for x in a.o)}
    gens = [Gen(5, stamps=a.stamps, opts=opts), Gen(4, stamps=a.stamps, opts=opts)]
    open(a.out, 'w').write(assemble(gens))
    open(a.out + '.names', 'w').write(' '.join(gens[0].stamp_names) + '\n' + ' '.join(gens[1].stamp_names))
    for g in gens:
        print('\n'.join(g.log))
        for t in g.lin.autowaits:
            if not t.startswith(('v_mfma', 'v_permlane')):
                print('  autowait:', t)
```

```python
import sys
from sched import Region, Linear, Op, Ins

NAME = 'recurrent_scan__linear_attn_block__glu_gated_glu__prompt'
MF = 'v_mfma_f32_16x16x32_bf16'
LOG2E = 0x3fb8aa3b
NLOG2E = 0xbfb8aa3b
EPS6 = 0x358637bd
OOB = 0x80000000

F1, F2A, F2B, F3, F2O, F2C = 0, 4096, 4096 + 8192, 4096 + 16384, 4096 + 24576, 4096 + 32768
F2D = 4096 + 40960
KV2_BASE = 0x100000
KV_BASE, OL_BASE, O_BASE, PART_BASE, H_BASE = 0x20000, 0x200000, 0x300000, 0x500000, 0x1000000
DUMP_BASE = 0x2400000
WS_SIZE = 0x4000000
RS = 159744
QL = 160256
DUMMY = 162304
LDS_BYTES = 163840

SX, SG, SU, SQ, SD, SW, SO, SB, SWO = 4, 8, 12, 16, 20, 24, 28, 32, 36
sI, sJ, sJJ, sQ_, sIL, sWV, sR, sC = 40, 41, 42, 43, 44, 45, 46, 47
KA, KQ, TB = 48, 57, 66
sMA, sM2, sH0, sH1, sT0, sT1, sT2, sT3 = 84, 85, 86, 87, 88, 89, 90, 91
sMASKC, sMASKONE, sMK2, sMK3 = 92, 94, 32, 34
sHB, sCNT, sK3, sK4, sK5 = 96, 97, 98, 99, 100
sS0 = 0
sJQ = 101
sEPS = SQ + 3
sIH = 3
sCNT2 = TB + 9
sCL2 = sM2
sCNT2X = sM2
sST = 76
ACC0, ACC1, XNV, RING = 0, 64, 128, 160
PQ = 192
SC = 208
vL16, vA0, vA1, vLA0, vLA1, vLB, vLL = 212, 213, 214, 215, 216, 217, 218
P_A, P_AH, P_Q, P_B, P_H, P_S = 76, 160, 175, 100, 72, 200
V288 = 219
vFST, vONE, vLANE, vPOLL = 224, 225, 226, 227
T = 228
NT = 28
PSTR = 10240
XR_ = 18432
PRB = 'probe'
PRV = T + 25
V_G0, V_G1 = T + 10, T + 6
VQ = [vLL, T, T + 1, V288 + 4]


def vr(b, n=4):
    return f'v[{b}:{b + n - 1}]' if n > 1 else f'v{b}'


def sr(b, n=4):
    return f's[{b}:{b + n - 1}]'


def xn(n, lo=0, cnt=4):
    if n < 64:
        return f'a[{4 * n + lo}:{4 * n + lo + cnt - 1}]'
    return vr(XNV + 4 * (n - 64) + lo, cnt)


class Gen:
    def __init__(self, ns, stamps=False, opts=None):
        self.ns = ns
        self.nt = 8 if ns == 5 else 10
        self.CH, self.NCH = (18432, 8) if ns == 5 else (20480, 7)
        self.KVX = self.CH * self.NCH
        self.order = ('A0', 'Q', 'A1', 'A2', 'A3', 'A4')[:ns + 1]
        self.LB, self.OB = (ACC1, ACC0) if ns == 5 else (ACC0, ACC1)
        self.sfx = f'_{ns}'
        self.jump = (2, 0, -4, 0) if ns == 5 else (1, 0, -3)
        self.stamps = stamps
        self.o = dict(ntail=4, f3k=3, ppf=600, hlook=7, pkv=90, warm=True, spin=200000, ddma=50, dst=70, backlog=60, dh=50, dm=110)
        self.o.update(opts or {})
        self.lin = Linear()
        self.slow = []
        self.log = []
        self.nstamp = 0
        self.marks = []
        self.spool = 0
        self.stamp_names = []

    def setup(self):
        L = self.lin.text
        st = self.stamps
        hi = self.o.get('hicls', 0)
        L(f'''
        {'s_memrealtime s[76:77]' if st else ''}
        s_getpc_b64 s[{sT2}:{sT3}]
        L_pc{self.sfx}:
        s_lshr_b32 s{sT1}, s2, 3
        v_and_b32 v{vLANE}, 63, v0
        v_lshrrev_b32 v1, 6, v0
        {f's_and_b32 s{sT0}, s{sT1}, 15' if hi else f's_lshr_b32 s{sT0}, s2, 4'}
        {'' if hi else f's_and_b32 s{sT0}, s{sT0}, 14'}
        {'' if hi else f's_bfe_u32 s{sK3}, s2, 0x10003'}
        {'' if hi else f's_or_b32 s{sT0}, s{sT0}, s{sK3}'}
        v_lshl_add_u32 v2, v{vLANE}, 4, s{sT0}
        v_readfirstlane_b32 s{sWV}, v1
        v_lshlrev_b32 v2, 7, v2
        v_min_u32 v2, L_stop{self.sfx}-L_pc{self.sfx}, v2
        v_cmp_gt_u32 vcc, {32 if self.o['warm'] else 0}, v0
        s_and_saveexec_b64 s[{sK3}:{sK4}], vcc
        s_cbranch_execz L_nowarm{self.sfx}
        global_load_dword v{T + 27}, v2, s[{sT2}:{sT3}]
        L_nowarm{self.sfx}:
        s_mov_b64 exec, -1''')
        self.lin.vm.pop()
        L(f'''
        s_and_b32 s{sQ_}, s{sT1}, {1 if hi else 3}
        {(f's_mul_i32 s{sQ_}, s{sQ_}, 3' if self.ns == 5 else f's_add_u32 s{sQ_}, s{sQ_}, 1') if hi else ''}
        {f's_bfe_u32 s{sIL}, s{sT1}, 0x30001' if hi else f's_lshr_b32 s{sIL}, s{sT1}, 2'}
        s_and_b32 s{sT0}, s2, 1
        s_lshl_b32 s{sT0}, s{sT0}, 3
        s_add_u32 s{sI}, s{sT0}, s{sIL}
        s_lshl_b32 s{sT0}, s{sQ_}, 1
        s_add_u32 s{sT0}, s{sT0}, s{sIL}
        s_sub_u32 s{sT2}, s{sT0}, 9
        s_cselect_b32 s{sT0}, s{sT0}, s{sT2}
        s_lshl_b32 s{TB}, s{sT0}, 7
        s_lshl_b32 s{sT1}, s{sI}, 2
        s_add_u32 s{sT1}, s{sT1}, s{sWV}
        s_lshl_b32 s{sT1}, s{sT1}, 5
        v_lshrrev_b32 v4, 3, v{vLANE}
        v_add_u32 v4, s{sT1}, v4
        v_mul_u32_u24 v4, 1152, v4
        v_bfe_u32 v5, v{vLANE}, 4, 2
        v_lshlrev_b32 v5, 1, v5
        v_and_b32 v6, 7, v{vLANE}
        v_xor_b32 v{vA0}, v5, v6
        v_lshl_add_u32 v{T + 2}, v{vA0}, 4, v4
        v_add_u32 v{T + 3}, {8 * 1152 - 1024}, v{T + 2}
        v_add_u32 v{T + 4}, {16 * 1152}, v{T + 2}
        v_add_u32 v{T + 5}, {24 * 1152 - 1024}, v{T + 2}
        s_mul_i32 s{sM2}, s{sWV}, {XR_}
        s_add_u32 s{sM2}, s{sM2}, 16384
        s_add_u32 s{sCNT2}, s{sM2}, {4 * XR_}
        v_mov_b32 v{T + 25}, v0''')
        L(f'''
        {'s_memrealtime s[78:79]' if st else ''}
        s_waitcnt lgkmcnt(0)
        {'s_memrealtime s[80:81]' if st else ''}
        s_mov_b32 s{SQ}, s6
        s_mov_b32 s{SQ + 1}, s7
        s_mov_b32 s6, {2048 * 1152}
        s_mov_b32 s7, 0x20000''')
        self.xl = {}
        nf = self.o.get('xfirst', 3)
        order = [(0, u) for u in range(nf)] + [(1, u) for u in range(nf)]
        order += [(0, u) for u in range(nf, 9)] + [(1, u) for u in range(nf, 9)]
        pend = []
        for rho, u in order:
            pend.append(Op(f's_add_u32 m0, s{sCNT2 if rho else sM2}, {2048 * u}'))
            for hf in range(2):
                op = Op(f'buffer_load_dwordx4 v{T + 2 + 2 * rho + hf}, {sr(SX)}, s{TB + u} offen offset:{1024 * hf} lds')
                self.xl[rho, u, hf] = op
                pend.append(op)
        nxt = lambda u: L(f's_add_u32 s{TB + u}, s{TB + u - 1}, 128\ns_cmp_eq_u32 s{TB + u}, 1152\ns_cselect_b32 s{TB + u}, 0, s{TB + u}')
        for g in range(2 * nf):
            for _ in range(3):
                self.lin.op(pend.pop(0))
            if g + 1 < nf:
                nxt(g + 1)
        for u in range(nf, 9):
            nxt(u)
        if st:
            L('s_memrealtime s[82:83]')
        S = Region()
        L = S.op
        L(f'''
        s_mov_b32 s{SW}, s34
        s_mov_b32 s{SW + 1}, s35
        s_mov_b32 s{SW + 2}, {WS_SIZE}
        s_mov_b32 s{SW + 3}, 0x20000
        s_bfe_u32 s{sJJ}, s2, 0x20001
        s_lshl_b32 s{sJ}, s{sJJ}, 2
        s_and_b32 s{sT0}, s{sQ_}, 2
        s_add_u32 s{sJ}, s{sJ}, s{sT0}
        s_lshr_b32 s{sT0}, s{sJJ}, 1
        s_xor_b32 s{sT0}, s{sT0}, {(self.ns - 4) ^ self.o.get('qflip', 1)}
        s_add_u32 s{sJ}, s{sJ}, s{sT0}
        s_lshr_b32 s{sIH}, s{sI}, 3
        s_and_b32 s{sIH}, s{sIH}, {self.o.get('ihoff', 1)}
        s_xor_b32 s{sJQ}, s{sJ}, {self.o.get('qswap', 1)}
        s_lshr_b32 s{sR}, s{sWV}, 1
        s_and_b32 s{sC}, s{sWV}, 1
        v_mov_b32 v{vONE}, 1
        v_min_u32 v{vFST}, 1, v{T + 25}
        v_lshlrev_b32 v{vFST}, 31, v{vFST}
        v_lshlrev_b32 v{vL16}, 4, v{vLANE}''')
        if self.o.get('defer', 1):
            self.ln_consts(S)
        nearly = len(S.ops)
        for u in range(9):
            L(f's_mul_i32 s{KA + u}, s{TB + u}, {64 * 9216 // 128}\ns_mul_i32 s{KQ + u}, s{TB + u}, {64 * 3456 // 128}')
        L(f'''
        s_mov_b32 s{SU}, s10
        s_mov_b32 s{SU + 1}, s11
        s_mov_b32 s{SO}, s22
        s_mov_b32 s{SO + 1}, s23
        s_mov_b32 s{SO + 2}, {2048 * 1152}
        s_mov_b32 s{SO + 3}, 0x20000
        s_mov_b32 s{SB + 2}, 256
        s_mov_b32 s{SB + 3}, 0x20000
        s_lshl_b32 s{sT1}, s{sQ_}, 3
        s_lshr_b32 s{sCNT}, 0x0d090500, s{sT1}
        s_and_b32 s{sCNT}, s{sCNT}, 0xff
        s_lshl_b32 s{sT0}, s{sCNT}, 7
        s_mul_i32 s{sT1}, s{sJJ}, 2304
        s_add_u32 s{sT0}, s{sT0}, s{sT1}
        s_add_u32 s{SG}, s{SG}, s{sT0}
        s_addc_u32 s{SG + 1}, s{SG + 1}, 0
        s_sub_u32 s{SG + 2}, {576 * 9216}, s{sT0}
        s_mov_b32 s{SG + 3}, 0x20000
        s_add_u32 s{SU}, s{SU}, s{sT0}
        s_addc_u32 s{SU + 1}, s{SU + 1}, 0
        s_sub_u32 s{SU}, s{SU}, 1024
        s_subb_u32 s{SU + 1}, s{SU + 1}, 0
        s_sub_u32 s{SU + 2}, {576 * 9216 + 1024}, s{sT0}
        s_mov_b32 s{SU + 3}, 0x20000
        s_mov_b32 s{SQ + 2}, {576 * 3456}
        s_mov_b32 s{SQ + 3}, 0x20000
        s_lshl_b32 s{sT1}, s{sQ_}, 3
        s_lshr_b32 s{sT0}, 0x07050200, s{sT1}
        s_and_b32 s{sT0}, s{sT0}, 0xff
        s_lshl_b32 s{sT0}, s{sT0}, 7
        s_mul_i32 s{sT1}, s{sR}, {4 * 1152}
        s_add_u32 s{sT1}, s{sT1}, s{sT0}
        s_add_u32 s{SWO}, s{SWO}, s{sT1}
        s_addc_u32 s{SWO + 1}, s{SWO + 1}, 0
        s_sub_u32 s{SWO}, s{SWO}, 1024
        s_subb_u32 s{SWO + 1}, s{SWO + 1}, 0
        s_sub_u32 s{SWO + 2}, {576 * 1152 + 1024}, s{sT1}
        s_mov_b32 s{SWO + 3}, 0x20000
        s_mul_i32 s{sT1}, s{sJJ}, {1152 * 1152}
        s_add_u32 s{sT0}, s{sT0}, s{sT1}
        s_add_u32 s{SD}, s{SD}, s{sT0}
        s_addc_u32 s{SD + 1}, s{SD + 1}, 0
        s_sub_u32 s{SD}, s{SD}, 1024
        s_subb_u32 s{SD + 1}, s{SD + 1}, 0
        s_sub_u32 s{SD + 2}, {4608 * 1152 + 1024}, s{sT0}
        s_mov_b32 s{SD + 3}, 0x20000
        s_lshl_b32 s{sMA}, s{sWV}, 11
        v_lshrrev_b32 v{T + 9}, 3, v{vLANE}
        s_lshl_b32 s{sT0}, s{sWV}, 3
        v_add_u32 v{T + 9}, s{sT0}, v{T + 9}
        v_mul_u32_u24 v{T + 9}, 9216, v{T + 9}
        v_lshl_add_u32 v{vA0}, v{vA0}, 4, v{T + 9}
        v_add_u32 v{vA1}, {32 * 9216}, v{vA0}
        v_lshrrev_b32 v{T + 8}, 2, v{vLANE}
        v_lshrrev_b32 v{T + 9}, 5, v{vLANE}
        v_lshlrev_b32 v{T + 9}, 11, v{T + 9}
        v_and_b32 v{T + 7}, 7, v{T + 8}
        v_lshl_add_u32 v{T + 9}, v{T + 7}, 7, v{T + 9}
        v_bfe_u32 v{T + 7}, v{vLANE}, 3, 2
        s_lshl_b32 s{sT0}, s{sC}, 1
        v_xor_b32 v{T + 7}, s{sT0}, v{T + 7}
        v_lshl_add_u32 v{T + 9}, v{T + 7}, 5, v{T + 9}
        v_and_b32 v{T + 7}, 3, v{vLANE}
        v_lshl_add_u32 v{vLA0}, v{T + 7}, 3, v{T + 9}
        v_xor_b32 v{vLA1}, 32, v{vLA0}
        s_sub_u32 s{sMASKC}, 0, s{sC}
        s_mov_b32 s{sMASKC + 1}, s{sMASKC}
        s_lshl_b32 s{sT0}, s{sC}, 1
        s_lshr_b32 s{sMASKONE}, 0x44444444, s{sT0}
        s_mov_b32 s{sMASKONE + 1}, s{sMASKONE}
        s_lshl_b32 s{sT0}, s{sI}, 2
        s_add_u32 s{sT0}, s{sT0}, s{sJJ}
        s_mul_i32 s{sHB}, s{sT0}, {18 * 16384}
        s_add_u32 s{sHB}, s{sHB}, {H_BASE}
        s_lshl_b32 s{sT0}, s{sCNT}, 14
        s_add_u32 s{sT0}, s{sT0}, s{sHB}
        s_lshl_b32 s{sT1}, s{sC}, 11
        s_add_u32 s{sT0}, s{sT0}, s{sT1}
        s_lshl_b32 s{sT1}, s{sWV}, 12
        s_add_u32 s{sH0}, s{sT0}, s{sT1}
        s_xor_b32 s{sT1}, s{sT1}, 4096
        s_add_u32 s{sH1}, s{sT0}, s{sT1}''')
        qd, qr = self.pat_qkv()
        L(qd)
        L(qr)
        if not self.o.get('defer', 1):
            self.ln_consts(S)
            nearly = len(S.ops)
        for o in S.ops[:nearly]:
            self.lin.op(o)
        rest = S.ops[nearly:]
        if st:
            self.lin.text('s_waitcnt lgkmcnt(0)')
            for k, nm in enumerate(('entry', 'karg0', 'karg1', 'xa')):
                self.stamp_names.append(nm)
                self.lin.text(f'v_mov_b32 v{T + 26}, s{sST + 2 * k}\nv_mov_b32 v{T + 27}, 0\ns_lshl_b32 s{sT2}, s2, 10\ns_add_u32 s{sT2}, s{sT2}, {DUMP_BASE + 8 * k}\nbuffer_store_dwordx2 v[{T + 26}:{T + 27}], v{vFST}, {sr(SW)}, s{sT2} offen')
            self.nstamp = 4
        self.stamp(None, 'setup')
        k = 3 * (9 - nf)
        per = -(-len(rest) // (9 - nf))
        for g in range(9 - nf):
            ops = pend[3 * g:3 * g + 2] + rest[per * g:per * g + per // 2] + [pend[3 * g + 2]] + rest[per * g + per // 2:per * (g + 1)]
            for o in ops:
                self.lin.op(o)
        self.x_pend = pend[k:]
        self.base = {vLA0: 0, vLA1: 0}
        self.base.update({r: 0 for r in VQ})

    @staticmethod
    def raw(rho, t):
        if rho == 0:
            return ACC0 + 4 * t if t < 16 else ACC1 + 56 + 4 * (t - 16)
        return RING + 4 * t if t < 4 else ACC1 + 4 * (t - 4)

    def flag_addr(self, f, own, dst, sT1=sT1, own_ok=False):
        t = dst
        if f == '1':
            blk, grp, line, mem = (sJ if own else sJQ), None, 21, sI
        elif f == '2o':
            blk, grp, line, mem = sI, None, 20, sJ
        elif f == '3':
            blk, grp, line, mem = sI, sQ_, 16, sJJ
        else:
            blk, grp, line, mem = sI, sJJ, 4 * 'abcd'.index(f[1]), sQ_
        s = f's_lshl_b32 s{t}, s{blk}, 5\n'
        if grp is not None:
            s += f's_add_u32 s{t}, s{t}, s{grp}\n'
        if line:
            s += f's_add_u32 s{t}, s{t}, {line}\n'
        if own:
            s += f's_lshl_b32 s{t}, s{t}, 5\ns_add_u32 s{t}, s{t}, s{mem}\ns_lshl_b32 s{t}, s{t}, 2\n'
        else:
            s += f's_lshl_b32 s{t}, s{t}, 7\n'
        return s

    def pat_b(self, a, b):
        s = f'''v_lshrrev_b32 v{a}, 3, v{vLANE}
        s_lshl_b32 s{sK5}, s{sWV}, 3
        v_add_u32 v{a}, s{sK5}, v{a}
        v_mul_u32_u24 v{a}, 1152, v{a}
        v_bfe_u32 v{b}, v{vLANE}, 4, 2
        v_lshlrev_b32 v{b}, 1, v{b}
        v_and_b32 v{V288}, 7, v{vLANE}
        v_xor_b32 v{b}, v{b}, v{V288}
        v_lshl_add_u32 v{a}, v{b}, 4, v{a}
        v_add_u32 v{V288}, 1024, v{a}
        v_add_u32 v{V288 + 1}, 128, v{a}
        v_add_u32 v{V288 + 2}, {1024 + 32 * 1152}, v{a}
        v_add_u32 v{V288 + 3}, {128 + 32 * 1152}, v{a}
        '''
        if self.nt > 8:
            s += f'''v_lshrrev_b32 v{a}, 2, v{vLANE}
            s_lshl_b32 s{sK5}, s{sWV}, 4
            v_add_u32 v{a}, s{sK5}, v{a}
            v_mul_u32_u24 v{a}, 1152, v{a}
            v_bfe_u32 v{b}, v{vLANE}, 4, 1
            v_lshlrev_b32 v{b}, 1, v{b}
            v_and_b32 v{V288 + 4}, 3, v{vLANE}
            v_xor_b32 v{b}, v{b}, v{V288 + 4}
            v_lshl_add_u32 v{a}, v{b}, 4, v{a}
            s_mul_i32 s{sK5}, s{sQ_}, -320
            s_add_u32 s{sK5}, s{sK5}, {1024 + 576}
            v_add_u32 v{V288 + 4}, s{sK5}, v{a}
            '''
        return s

    def pat_c(self):
        s = f'v_add_u32 v{V288 + 2}, {4 * 1152}, v{V288 + 2}\nv_add_u32 v{V288 + 3}, {4 * 1152}, v{V288 + 3}\n'
        if self.nt > 8:
            s += f's_mul_i32 s{sK5}, s{sC}, {4 * 1152}\nv_add_u32 v{V288 + 4}, s{sK5}, v{V288 + 4}\n'
        return s

    def pat_cl(self, a=T + 20):
        s = f'v_lshrrev_b32 v{a}, 5, v{vLANE}\nv_mul_u32_u24 v{a}, {68 * 1152}, v{a}\n'
        for k in range(4):
            s += f'v_add_u32 v{PQ + k}, v{a}, v{V288 + k}\n'
            if k >= 2:
                s += f'v_add_u32 v{PQ + k}, {256 * 1152}, v{PQ + k}\n'
        s += f'''s_mul_i32 s{KQ + 8}, s{sC}, 136
        s_lshl_b32 s{sK5}, s{sR}, 4
        s_add_u32 s{KQ + 8}, s{KQ + 8}, s{sK5}
        s_add_u32 s{KQ + 8}, s{KQ + 8}, 16
        s_mul_i32 s{KQ + 8}, s{KQ + 8}, 1152
        '''
        if self.nt > 8:
            s += f'''v_lshrrev_b32 v{a}, 4, v{vLANE}
            v_mul_u32_u24 v{a}, {68 * 1152}, v{a}
            v_add_u32 v{PQ + 4}, v{a}, v{V288 + 4}
            s_mul_i32 s{sCL2}, s{sR}, 252
            s_mul_i32 s{sK5}, s{sC}, 20
            s_add_u32 s{sCL2}, s{sCL2}, s{sK5}
            s_add_u32 s{sCL2}, s{sCL2}, 16
            s_mul_i32 s{sCL2}, s{sCL2}, 1152
            '''
        return s

    def pat_qkv(self, a=T + 20, b=T + 21, c=T + 22, d=T + 23, e=T + 24):
        s = f'''s_mul_i32 s{sK3}, s{sJQ}, 72
        s_and_b32 s{sK3}, s{sK3}, -16
        v_mov_b32 v{e}, s{sK3}
        s_mul_i32 s{sK3}, s{sJ}, 72
        s_and_b32 s{sK3}, s{sK3}, -16
        '''
        for n in range(4):
            s += f'''v_lshrrev_b32 v{a}, 4, v{vLANE}
            v_add_u32 v{a}, {4 * n}, v{a}
            v_and_b32 v{b}, 7, v{a}
            v_lshlrev_b32 v{b}, 1, v{b}
            v_and_b32 v{c}, 15, v{vLANE}
            v_xor_b32 v{b}, v{b}, v{c}
            v_mul_u32_u24 v{c}, 52, v{b}
            v_lshrrev_b32 v{c}, 8, v{c}
            v_mul_u32_u24 v{d}, 5, v{c}
            v_sub_u32 v{b}, v{b}, v{d}
            v_lshlrev_b32 v{b}, 4, v{b}
            v_add_u32 v{d}, 1, v{c}
            v_mul_u32_u24 v{d}, 1152, v{d}
            v_add_u32 v{d}, s{sK3}, v{d}
            v_cmp_eq_u32 vcc, 2, v{c}
            v_cndmask_b32 v{d}, v{d}, v{e}, vcc
            v_add_u32 v{b}, v{b}, v{d}
            v_add_u32 v{c}, 1, v{c}
            v_lshrrev_b32 v{c}, 2, v{c}
            v_lshl_or_b32 v{b}, v{c}, 31, v{b}
            s_lshl_b32 s{sK5}, s{sWV}, 4
            v_add_u32 v{a}, s{sK5}, v{a}
            v_mul_u32_u24 v{a}, 3456, v{a}
            v_add_u32 v{V288 + n}, v{a}, v{b}
            '''
            if n:
                s += f'v_subrev_u32 v{V288 + n}, {1024 * n}, v{V288 + n}\n'
        r = f'''s_and_b32 s{sK3}, s{sJ}, 1
        s_lshl_b32 s{sK3}, s{sK3}, 3
        s_mul_i32 s{sK4}, s{sC}, 40
        s_and_b32 s{sK5}, s{sJQ}, 1
        s_lshl_b32 s{sK5}, s{sK5}, 3
        s_add_u32 s{sK5}, s{sK5}, s{sK4}
        s_add_u32 s{sK4}, s{sK4}, s{sK3}
        s_add_u32 s{sK3}, s{sK3}, 32
        '''
        for f in range(4):
            r += f'v_and_b32 v{a}, 3, v{vLANE}\n'
            if f < 3:
                r += f'v_lshl_add_u32 v{a}, v{a}, 3, s{sK5 if f == 2 else sK4}\nv_add_u32 v{a}, {80 * f}, v{a}\n'
            else:
                r += f'v_min_u32 v{a}, 2, v{a}\nv_lshrrev_b32 v{c}, 1, v{a}\nv_mul_u32_u24 v{a}, 80, v{a}\nv_add_u32 v{a}, s{sK3}, v{a}\nv_lshlrev_b32 v{c}, 3, v{c}\nv_and_b32 v{c}, {8 * self.o.get("qswap", 1)}, v{c}\nv_xor_b32 v{a}, v{a}, v{c}\n'
            r += f'''v_bfe_u32 v{b}, v{vLANE}, 2, 3
            v_lshlrev_b32 v{b}, 5, v{b}
            v_xor_b32 v{a}, v{a}, v{b}
            v_lshrrev_b32 v{b}, 2, v{vLANE}
            v_lshl_add_u32 v{VQ[f]}, v{b}, 8, v{a}
            '''
        return s, r

    def build_stream(self):
        st = []
        for name in self.order:
            st += [(name, u) for u in range(9)]
        st += [('B', u) for u in range(18)]
        st += [('O', 0), ('O', 1)]
        st += [('C', u) for u in range(9)]
        self.stream = st
        self.dmas = {}
        nC = len(st) - 9
        nO = nC - 2
        npin, tpin = self.o.get('npin', 0), self.o.get('tpin', 40)
        order = [n for n in range(len(st)) if not nC <= n < nC + npin]
        order[tpin:tpin] = list(range(nC, nC + npin))
        self.slot, self.next_user = {}, {}
        first = [0] + list(range(5, self.NCH)) + [1, 2, 3, 4] if self.o.get('npre', 9) > 1 else list(range(self.NCH))
        self.npre = min(self.o.get('npre', 9), self.NCH - 4)
        for k in range(self.NCH):
            self.slot[order[k]] = first[k]
        release = [n for n in range(len(st)) if n not in (nO, nO + 1)]
        for m, k in zip(order[self.NCH:], release):
            self.slot[m] = self.slot[k]
            self.next_user[k] = m
        self.prev_user = {m: k for k, m in self.next_user.items()}

    def dma_ops(self, n):
        name, u = self.stream[n]
        cb = self.slot[n] * self.CH
        ops = []
        if name[0] == 'A':
            if u == 0 and name != 'A0' and self.jump[int(name[1]) - 1]:
                ops.append(Op(f's_mul_i32 s{sK3}, s{sIH}, {128 * self.jump[int(name[1]) - 1]}\ns_add_u32 s{sK3}, s{sK3}, 128\ns_ashr_i32 s{sK4}, s{sK3}, 31'))
                for s_ in (SG, SU):
                    ops.append(Op(f's_add_u32 s{s_}, s{s_}, s{sK3}\ns_addc_u32 s{s_ + 1}, s{s_ + 1}, s{sK4}\ns_sub_u32 s{s_ + 2}, s{s_ + 2}, s{sK3}'))
            elif u == 0 and name != 'A0':
                for s_ in (SG, SU):
                    ops.append(Op(f's_add_u32 s{s_}, s{s_}, 128\ns_addc_u32 s{s_ + 1}, s{s_ + 1}, 0\ns_sub_u32 s{s_ + 2}, s{s_ + 2}, 128'))
            for hh in range(2):
                va = vA1 if hh else vA0
                ops.append(Op(f's_add_u32 m0, s{sMA}, {cb + 8192 * hh}'))
                ops.append(Op(f'buffer_load_dwordx4 v{va}, {sr(SG)}, s{KA + u} offen lds', pipe=P_A))
                ops.append(Op(f'buffer_load_dwordx4 v{va}, {sr(SU)}, s{KA + u} offen offset:1024 lds', pipe=P_A))
        elif name == 'O':
            pass
        elif name == 'Q':
            ops.append(Op(f's_lshl_b32 s{sK5}, s{sMA}, 1'))
            ops.append(Op(f's_add_u32 m0, s{sK5}, {cb}'))
            for k in range(4):
                ops.append(Op(f'buffer_load_dwordx4 v{V288 + k}, {sr(SQ)}, s{KQ + u} offen offset:{1024 * k} lds', pipe=(P_Q if (self.ns - 4) ^ self.o.get('qflip', 1) else 140) * self.o.get('pq', 100) // 100))
        else:
            if name == 'B':
                ops.append(Op(f's_mul_i32 s{sK3}, s{TB + u}, 9'))
                ops.append(Op(f's_lshr_b32 s{sK3}, s{sK3}, 1'))
                so, srd, vb = f's{sK3}', SD, V288
            else:
                so, srd, vb = f's{KQ + u}', SWO, (V288 if u < 8 else PQ)
                if u == 0:
                    ops += [Op(l) for l in self.pat_c().split('\n') if l]
            for hh in range(2):
                ops.append(Op(f's_add_u32 m0, s{sMA}, {cb + 8192 * hh}'))
                for ln in range(2):
                    ops.append(Op(f'buffer_load_dwordx4 v{vb + 2 * hh + ln}, {sr(srd)}, {so} offen offset:{1024 * ln} lds', pipe=P_A))
            if self.nt > 8:
                ops.append(Op(f's_lshr_b32 s{sK4}, s{sMA}, 1'))
                ops.append(Op(f's_add_u32 m0, s{sK4}, {cb + 16384}'))
                ops.append(Op(f'buffer_load_dwordx4 v{vb + 4}, {sr(srd)}, {f"s{sCL2}" if (name, u) == ("C", 8) else so} offen lds', pipe=P_AH))
        self.dmas[n] = [o for o in ops if 'dma' in o.kinds()]
        for o in self.dmas[n]:
            o.tag = f'{name}{u}'
        return ops

    def b_tables(self, R):
        R.op(f's_lshl_b32 s{sK3}, s{sQ_}, 1\ns_add_u32 s{sK3}, s{sK3}, s{sIL}')
        R.op(f's_mul_i32 s{sK4}, s{sIH}, {hex(0x100b0703 - 0x0e0a0601)}\ns_add_u32 s{sK4}, s{sK4}, 0x0e0a0601')
        for p in range(8):
            d = TB + p
            R.op(f'''s_add_u32 s{d}, s{sK3}, {p}
            s_bitcmp1_b32 s{d}, 0
            s_cselect_b32 s{sK5}, s{sK4}, 0x0d090500
            s_and_b32 s{d}, s{d}, 6
            s_lshl_b32 s{d}, s{d}, 2
            s_lshr_b32 s{d}, s{sK5}, s{d}
            s_and_b32 s{d}, s{d}, 0xff
            s_lshl_b32 s{d}, s{d}, 14''')
        R.op(f's_add_u32 s{sK3}, s{sIL}, s{sQ_}')
        for base, n, t0, t1 in ((8, 4, 0x0f0b0702, 0x110c0804), (12, 4, 0x100c0803, 0x0e0a0601), (16, 2, 0x1104, 0x0f02)):
            R.op(f's_mul_i32 s{sK4}, s{sIH}, {hex((t1 - t0) & 0xffffffff)}\ns_add_u32 s{sK4}, s{sK4}, {hex(t0)}')
            for p in range(n):
                d = TB + base + p
                R.op(f'''s_add_u32 s{d}, s{sK3}, {p}
                s_and_b32 s{d}, s{d}, {n - 1}
                s_lshl_b32 s{d}, s{d}, 3
                s_lshr_b32 s{d}, s{sK4}, s{d}
                s_and_b32 s{d}, s{d}, 0xff
                s_lshl_b32 s{d}, s{d}, 14''')

    def c_tables(self, R):
        for k in range(8):
            R.op(f's_add_u32 s{KQ + k}, s{sIL}, {k}\ns_and_b32 s{KQ + k}, s{KQ + k}, 7\ns_mul_i32 s{KQ + k}, s{KQ + k}, {72 * 1152}')

    def news(self):
        pool = [sT0, sT1, sT3] + ([sEPS] if self.sq_busy else [SQ, SQ + 1, SQ + 2]) + ([] if self.in_b or self.kq_busy else [KQ + k for k in range(9)])
        self.spool += 1
        return pool[self.spool % len(pool)]

    def addr(self, R, reg, off, **kw):
        cur = self.base[reg]
        if not (0 <= off - cur and off - cur + 4096 < 65536):
            chunk = off // self.CH
            new = chunk * self.CH
            d = new - cur
            R.op(f'v_add_u32 v{reg}, {d}, v{reg}' if d > 0 else f'v_subrev_u32 v{reg}, {-d}, v{reg}', prio=50, **kw)
            self.base[reg] = cur = new
        return off - cur

    LN_ONES, LN_SEL0, LN_SEL1, LN_VAR = PQ, PQ + 4, PQ + 8, T + 10
    LN_XO, LN_XP, LN_R0, LN_R1 = T + 14, T + 15, T + 16, T + 17

    def ln_consts(self, R):
        ONES, SEL0, SEL1, VAR = self.LN_ONES, self.LN_SEL0, self.LN_SEL1, self.LN_VAR
        vXO, vXP, vR0, vR1 = self.LN_XO, self.LN_XP, self.LN_R0, self.LN_R1
        R.op(f'''v_mov_b32 v{ONES}, 0x3f803f80
        v_mov_b32 v{ONES + 1}, 0x3f803f80
        v_mov_b32 v{ONES + 2}, 0x3f803f80
        v_mov_b32 v{ONES + 3}, 0x3f803f80
        v_and_b32 v{VAR}, 15, v{vLANE}
        v_lshrrev_b32 v{VAR + 1}, 4, v{vLANE}
        v_bfe_u32 v{vR0}, v{vLANE}, 1, 2
        v_lshlrev_b32 v{vR0}, 1, v{vR0}
        v_xor_b32 v{vR0}, v{vR0}, v{VAR + 1}
        v_lshlrev_b32 v{vR0}, 4, v{vR0}
        v_lshl_add_u32 v{vR0}, v{VAR}, 7, v{vR0}
        s_mov_b32 s{sT0}, s{sM2}
        v_add_u32 v{vR0}, s{sT0}, v{vR0}
        v_xor_b32 v{vR1}, 64, v{vR0}
        v_lshlrev_b32 v{VAR + 1}, 3, v{VAR + 1}
        v_sub_u32 v{VAR}, v{VAR}, v{VAR + 1}
        v_mov_b32 v{VAR + 1}, 0x3f80
        v_mov_b32 v{vXO}, 0x3f800000''')
        for sel, add in ((SEL0, 0), (SEL1, 16)):
            for k in range(4):
                R.op(f'''v_cmp_eq_u32 vcc, {2 * k - add}, v{VAR}
                v_cmp_eq_u32 s[{sK3}:{sK4}], {2 * k + 1 - add}, v{VAR}
                v_mov_b32 v{VAR + 2}, 0
                v_cndmask_b32 v{sel + k}, 0, v{VAR + 1}, vcc
                v_cndmask_b32 v{sel + k}, v{sel + k}, v{vXO}, s[{sK3}:{sK4}]''')
        R.op(f'''v_add_u32 v{vXO}, s{sT0}, v{vL16}
        s_xor_b32 s{sT1}, s{sWV}, 1
        s_mul_i32 s{sT1}, s{sT1}, {XR_}
        s_add_u32 s{sT1}, s{sT1}, 16384
        v_add_u32 v{vXP}, s{sT1}, v{vL16}
        v_mov_b32 v{VAR}, 0
        v_mov_b32 v{VAR + 1}, 0
        v_mov_b32 v{VAR + 3}, 0''')

    def ln_center(self, R, rho, t, d0, pk, addr, off, after=(), cap=None, prio=5):
        SEL0, SEL1, VAR = self.LN_SEL0, self.LN_SEL1, self.LN_VAR
        nm = self.LN_NM[rho]
        R.mfma(f'{MF} {vr(d0)}, {vr(SEL0)}, {vr(self.raw(rho, t))}, {vr(nm)}', cap=cap)
        R.mfma(f'{MF} {vr(d0 + 4)}, {vr(SEL1)}, {vr(self.raw(rho, t))}, {vr(nm)}', cap=cap)
        for k in range(4):
            R.op(f'v_cvt_pk_bf16_f32 v{pk + k}, v{d0 + 2 * k}, v{d0 + 2 * k + 1}', prio=prio)
        if self.o.get('ownw', 3) >> rho & 1:
            n = 4 * t + rho
            for k in range(4):
                R.op(f'v_accvgpr_write_b32 a{4 * n + k}, v{pk + k}' if n < 64 else f'v_mov_b32 v{XNV + 4 * (n - 64) + k}, v{pk + k}')
        w = lambda aft: R.op(f'ds_write_b128 v{addr}, {vr(pk)} offset:{off}', after=aft, prio=prio)
        if after is not None:
            w = w(after)
        if self.o.get('vfma', 0) >> rho & 1:
            g = self.LN_G[rho]
            for k in range(8):
                x = d0 + k
                R.op(f'v_fmac_f32 v{g + (k & 3)}, v{x}, v{x}' if t or k >= 4 else f'v_mul_f32 v{g + k}, v{x}, v{x}', prio=prio - 1)
            self.ln_gram(R)
            return w
        self.ln_gram(R)
        self.gram_pend = (rho, t, pk)
        return w

    gram_pend = None
    LN_G = [V_G0, V_G1]

    def ln_gram(self, R):
        if self.gram_pend:
            rho, t, pk = self.gram_pend
            g = vr(self.LN_G[rho])
            R.mfma(f'{MF} {g}, {vr(pk)}, {vr(pk)}, {g if t else 0}')
            self.gram_pend = None

    LN_NM = [PQ + 12, T + 2]

    def layernorm(self):
        R = Region(cap=5, backlog=self.o['backlog'], pipe0=-100000)
        ONES, VAR = self.LN_ONES, self.LN_VAR
        vXO, vXP, vR0, vR1 = self.LN_XO, self.LN_XP, self.LN_R0, self.LN_R1
        NM = self.LN_NM
        D = RING + 16
        PK = [T + 18, SC] if self.o.get('probe') else [T + 18, T + 22, SC]
        rawrd = {}

        def raw_reads(rho, lo):
            for u in range(9):
                if u % 3 == 0 or u < 3:
                    w = R.wait([self.xl[rho, uu, hf] for uu in range(u, (u + 1 if u < 2 else u // 3 * 3 + 3)) for hf in range(2)],
                               late=False, wr=['xw'], lo=None if lo is None else lo + u * self.o.get('r1st', 1))
                for s1 in range(2):
                    rawrd[rho, 2 * u + s1] = R.op(f'ds_read_b128 {vr(self.raw(rho, 2 * u + s1))}, v{vR1 if s1 else vR0} offset:{2048 * u}', after=[w], prio=20)

        def mean(rho, t):
            w = R.wait([rawrd[rho, k] for k in range(t, t + 3)], dist=1) if t % 3 == 0 else None
            R.mfma(f'{MF} {vr(NM[rho])}, {vr(ONES)}, {vr(self.raw(rho, t))}, {vr(NM[rho]) if t else 0}', after=[w] if w else [])
            return w

        for o in self.x_pend:
            o.prio = 10
            o.hi = 17
            R.add(o)
        for o in self.dma_ops(0):
            o.prio = 10
            o.hi = self.o.get('w0hi', 26)
            o.lo = self.o.get('w0lo', 24)
            R.add(o)
        raw_reads(0, None)
        for t in range(18):
            mean(0, t)
        R.op(f's_sub_u32 s{sT0}, s{sCNT2}, s{sM2}\nv_add_u32 v{vR0}, s{sT0}, v{vR0}\nv_add_u32 v{vR1}, s{sT0}, v{vR1}')
        raw_reads(1, self.o.get('r1lo', 44))
        self.stamp(R, 'ctr0')
        for k in range(4):
            R.op(f'v_mul_f32 v{NM[0] + k}, {hex(0xbae38e39)}, v{NM[0] + k}')
        reads = []
        cnt = 0
        for kg in range(3):
            writes = []
            for t in range(6 * kg, 6 * kg + 6):
                writes.append(self.ln_center(R, 0, t, D + 8 * (cnt & 1), PK[cnt % len(PK)], vXO, 1024 * t))
                cnt += 1
                if self.o.get('m1late', 1):
                    if kg == 2:
                        for tt in range(3 * (t % 6), 3 * (t % 6) + 3):
                            mean(1, tt)
                elif kg > 0:
                    tm = 6 * (kg - 1) + t % 6
                    for tt in ((3 * tm) // 2, (3 * tm) // 2 + 1)[:1 + (tm & 1)]:
                        mean(1, tt)
            extra = [rawrd[1, k] for k in range(18)] if kg == self.o.get('wkg', 1) else []
            w = R.wait(writes + extra, late=False, prio=30, dist=self.o.get('dlw', 5))
            bar = R.op('s_barrier', after=[w], wr=['bar'], prio=30)
            if extra:
                raw1_bar = bar
                for n in range(1, self.npre):
                    for o in self.dma_ops(n):
                        o.after.append((bar, 0))
                        o.prio = 30
                        R.add(o)
            for t in range(6 * kg, 6 * kg + 6):
                if not self.o.get('ownw', 3) & 1:
                    reads.append(R.op(f'ds_read_b128 {xn(4 * t)}, v{vXO} offset:{t * 1024}', after=[bar], prio=8))
                reads.append(R.op(f'ds_read_b128 {xn(4 * t + 2)}, v{vXP} offset:{t * 1024}', after=[bar], prio=8))
        self.stamp(R, 'ctr1')
        for k in range(4):
            R.op(f'v_mul_f32 v{NM[1] + k}, {hex(0xbae38e39)}, v{NM[1] + k}')
        R.op(f'''s_lshl_b32 s{sT0}, s{sWV}, 10
        s_add_u32 s{sT0}, s{sT0}, {self.KVX}
        v_add_u32 v{vR0}, s{sT0}, v{vL16}
        v_xor_b32 v{vR1}, 1024, v{vR0}''')
        writes = []
        for t in range(4):
            writes.append(self.ln_center(R, 1, t, D + 8 * (cnt & 1), PK[cnt % len(PK)], vR0, 4096 * t, after=[raw1_bar]))
            cnt += 1
        self.ln_gram(R)
        self.ln_last = reads + writes
        x = self.o.get('lnx', 0)
        drop = set()
        for o in R.ops:
            t = o.ins[0].text if o.ins else ''
            if (x & 1 and t.startswith('ds_write')) or (x & 2 and t.startswith('ds_read_b128 a')) or (x & 8 and t.startswith('v_accvgpr')) \
                    or (x & 16 and t.startswith('v_cvt')) or (x & 32 and t.startswith('s_barrier')):
                o.ins = [Ins('s_nop 0')]
        return R

    def ln_reads1(self, R, n, bar):
        out = []
        for t in (2 * n, 2 * n + 1):
            if not self.o.get('ownw', 3) & 2:
                out.append(R.op(f'ds_read_b128 {xn(4 * t + 1)}, v{self.LN_R0} offset:{4096 * (t & 3)}', after=[bar], prio=12))
            out.append(R.op(f'ds_read_b128 {xn(4 * t + 3)}, v{self.LN_R1} offset:{4096 * (t & 3)}', after=[bar], prio=12))
        return out

    def ln_finish(self, R, bar):
        VAR = self.LN_VAR
        a, ad, ep = T + 18, T + 19, T + 20
        R.op(f'v_and_b32 v{ad}, 15, v{vLANE}')
        R.op(f's_lshl_b32 s{sT0}, s{sWV}, 7\ns_add_u32 s{sT0}, s{sT0}, {RS}')
        R.op(f'v_lshl_add_u32 v{ad}, v{ad}, 2, s{sT0}')
        R.op(f's_mov_b32 s{sT1}, {hex(0x3ae38e39)}')
        R.op(f'v_mov_b32 v{ep}, {hex(0x3727c5ac)}')
        self.ln_gram(R)
        for rho in range(2):
            v = self.LN_G[rho]
            if self.o.get('vfma', 0) >> rho & 1:
                R.op(f'v_add_f32 v{v}, v{v}, v{v + 1}\nv_add_f32 v{v + 2}, v{v + 2}, v{v + 3}\nv_add_f32 v{v}, v{v}, v{v + 2}')
            for k in range(1, 1 if self.o.get('vfma', 0) >> rho & 1 else 4):
                R.op(f's_mov_b32 vcc_lo, {hex(0x11111111 << k)}\ns_mov_b32 vcc_hi, {hex(0x11111111 << k)}\nv_cndmask_b32 v{v}, v{v}, v{v + k}, vcc')
            if not self.o.get('vfma', 0) >> rho & 1:
                R.op(f's_mov_b32 vcc_lo, 0x00f0000f\ns_mov_b32 vcc_hi, 0xf0000f00\nv_cndmask_b32 v{v}, 0, v{v}, vcc')
            R.op(f'v_mov_b32 v{a}, v{v}')
            R.op(f'v_permlane32_swap_b32 v{a}, v{v}')
            R.op(f'v_add_f32 v{v}, v{a}, v{v}')
            R.op(f'v_mov_b32 v{a}, v{v}')
            R.op(f'v_permlane16_swap_b32 v{a}, v{v}')
            R.op(f'v_add_f32 v{v}, v{a}, v{v}')
            R.op(f'v_fma_f32 v{v}, v{v}, s{sT1}, v{ep}')
            R.op(f'v_rsq_f32 v{v}, v{v}')
            self.pre_bar.append((R.op(f'ds_write_b32 v{ad}, v{v} offset:{64 * rho}', after=[bar]), 3))
        self.post_bar.append(lambda b_: self.load_scales(R, [b_]))

    def stamp(self, R, name=''):
        if R:
            self.marks.append((R, R.here, name))
        if not self.stamps or (self.o.get('lite') and name != 'end'):
            return
        k = self.nstamp
        self.nstamp += 1
        t = Op(f's_memrealtime vcc\ns_memtime s[0:1]\ns_waitcnt lgkmcnt(0)\nv_mov_b32 v{T + 26}, vcc_lo\nv_mov_b32 v{T + 27}, s0\ns_lshl_b32 s0, s2, 10\ns_add_u32 s0, s0, {DUMP_BASE + 8 * k}\nbuffer_store_dwordx2 v[{T + 26}:{T + 27}], v{vFST}, {sr(SW)}, s0 offen',
               lo=R.here if R else None, hi=R.here if R else None)
        self.stamp_names.append(name)
        if R:
            R.add(t)
        else:
            self.lin.op(t)

    def poll(self, R, name, srd, addr_text, mask, val, lo, check_lo, after=(), mul=4, defer=False):
        vp = T + 19
        if name != 'p':
            check_lo = lo + self.o.get(f'pd_{name}{self.ns}', self.o.get('pd', check_lo - lo))
        cmp = 'v_cmp_ne_u32' if val == 1 else 'v_cmp_gt_u32'
        if addr_text:
            R.op(addr_text, lo=lo - 30)
        so = f's{sT2}' if addr_text else '0'
        R.op(f'v_and_b32 v{vPOLL}, {mask}, v{vLANE}', lo=lo - 30)
        if defer:
            R.op(f'v_max_u32 v{vPOLL}, 1, v{vPOLL}\nv_add_u32 v{vPOLL}, s{sJJ}, v{vPOLL}\nv_and_b32 v{vPOLL}, 3, v{vPOLL}', lo=lo - 30)
        R.op(f'v_mul_u32_u24 v{vPOLL}, {mul}, v{vPOLL}', lo=lo - 30)
        ld = R.op(f'buffer_load_dword v{vp}, v{vPOLL}, {sr(srd)}, {so} offen sc1', lo=lo, hi=lo + 6, after=after)
        if defer:
            return lambda lo2, aft: self.poll_check(R, name, srd, so, cmp, val, ld, lo2, aft)
        return self.poll_check(R, name, srd, so, cmp, val, ld, check_lo, [])

    def poll_check(self, R, name, srd, so, cmp, val, ld, check_lo, aft):
        vp = T + 19
        w = R.wait([ld], late=False, lo=check_lo, hi=check_lo + 4, tag='poll_' + name, after=aft)
        br = 's_nop 0' if self.o.get('nopoll') else f's_cbranch_vccnz L_slow_{name}{self.sfx}'
        chk = R.op(f'{cmp} vcc, {val}, v{vp}\n{br}\nL_back_{name}{self.sfx}:', after=[w],
                   rd=[f'v{vPOLL}', f's{sT2}'], wr=[f'v{vp}'], hi=check_lo + 4, atomic=True)
        rec = ''
        if self.stamps:
            rec = f'v_mov_b32 v{T + 26}, s{sCNT}\ns_lshl_b32 s{sCNT}, s2, 10\ns_add_u32 s{sCNT}, s{sCNT}, {DUMP_BASE + 768 + 4 * len(self.slow)}\nbuffer_store_dword v{T + 26}, v{vFST}, {sr(SW)}, s{sCNT} offen\ns_waitcnt vmcnt(0)'
        self.slow.append(f'''L_slow_{name}{self.sfx}:
        s_mov_b32 s{sCNT}, 0
        L_spin_{name}{self.sfx}:
        buffer_load_dword v{vp}, v{vPOLL}, {sr(srd)}, {so} offen sc1
        s_waitcnt vmcnt(0)
        {cmp} vcc, {val}, v{vp}
        s_add_u32 s{sCNT}, s{sCNT}, 1
        s_cbranch_vccz L_exit_{name}{self.sfx}
        s_cmp_lt_u32 s{sCNT}, {self.o['spin']}
        s_cbranch_scc1 L_spin_{name}{self.sfx}
        L_exit_{name}{self.sfx}:
        {rec}
        s_branch L_back_{name}{self.sfx}''')
        return chk

    def set_flag(self, R, f, after):
        t0, t1 = self.news(), self.news()
        R.op(self.flag_addr(f, True, t0, t1), lo=after[0].lo - 40)
        self.flags[f] = R.op(f'buffer_store_dword v{vONE}, v{vFST}, {sr(SW)}, s{t0} offen sc1', after=after + [self.chk0], hi=after[0].lo + 2)

    def chunk_enter(self, R, n, lo, pre=()):
        if n in self.paired:
            self.unfreed.append(n)
            self.bars[n] = self.bars[n - 1]
            return self.bars[n]
        name = self.stream[n][0]
        if n + 1 in self.dmas and ((name == 'C' and self.o.get('barc', 1)) or (self.o.get('bar2', 0x1f) >> ('Q', 'A1', 'A2', 'A3', 'A4', 'B', 'A0', 'C').index(name) & 1 and self.stream[n + 1][0] not in ('O', 'C'))):
            self.paired.add(n + 1)
            self.dmas[n] = self.dmas[n] + self.dmas[n + 1]
        nd = len(self.dmas[n])
        dd, sg = (self.o.get('ddc', 24), 1) if self.stream[n][0] == 'C' else (self.o['ddma'], self.o.get('stag', 6))
        waits = [(o, dd + sg * (nd - 1 - k)) for k, o in enumerate(self.dmas[n])] + self.pre_bar
        self.pre_bar = []
        nm = '%s%d' % self.stream[n] + ('+' if len(waits) > nd else '')
        w = R.wait(waits, late=False, lo=lo, hi=lo, tag=nm) if waits else None
        dep = list(pre) + ([w] if w else [])
        freed = [k for k in self.unfreed if self.lastwait.get(k) is not None]
        dep += [self.lastwait[k] for k in freed]
        bar = R.op('s_barrier', after=dep, wr=['bar'], lo=lo, prio=100, tag=nm)
        for k in freed:
            self.unfreed.remove(k)
            self.free_bar[k] = bar
            m = self.next_user.get(k)
            if m is not None:
                for o in self.dma_ops(m):
                    if 'dma' in o.kinds():
                        o.after.append((bar, 0))
                    o.lo = lo - 8
                    R.add(o)
                pf = {self.PF[k]: v for k, v in zip(hex(self.o.get('pfat', 0x1283))[2:], (('d', 0), ('o', 0), ('d', 1), ('o', 1)))}.get(self.stream[m])
                if pf:
                    self.prefetch_late(R, pf[0], pf[1], lo, self.dmas[m][-1:])
        fns, self.post_bar = self.post_bar, []
        for fn in fns:
            fn(bar)
        self.unfreed.append(n)
        self.bars[n] = bar
        return bar

    def tr_pair(self, R, dst, reg, off, step, after, prio=10, lo=None):
        o = self.addr(R, reg, off, lo=lo)
        return [R.op(f'ds_read_b64_tr_b16 {vr(dst, 2)}, v{reg} offset:{o}', after=after, prio=prio, lo=lo),
                R.op(f'ds_read_b64_tr_b16 {vr(dst + 2, 2)}, v{reg} offset:{o + step}', after=after, prio=prio, lo=lo)]

    def p_reads(self, R, name, n, t, buf, after):
        cb = self.slot[n] * self.CH
        out = []
        if name == 'Q':
            base = cb + 8192 * (t & 1)
            for f in range(4):
                out += self.tr_pair(R, buf + 4 * f, VQ[f], base, 4096, after)
        else:
            base = cb + 8192 * (t & 1)
            for f in range(4):
                out += self.tr_pair(R, buf + 4 * f, vLA1 if f & 1 else vLA0, base + 1024 * (f >> 1), 4096, after)
        return out

    def epi_glu(self, R, acc, wrap=0):
        stores = []
        hs = (' sc1', '', ' nt')[self.o.get('hst', 0)]
        ps = 90 if self.o.get('hst') else P_S
        if True:
            for rs in range(4):
                G = [acc + (tt * 4 + rs) * 4 for tt in range(2)]
                U = [acc + ((2 + tt) * 4 + rs) * 4 for tt in range(2)]
                for tt in range(2):
                    self.glu4(R, G[tt], U[tt], SC + rs)
                for k in range(4):
                    g = G[k >> 1] + 2 * (k & 1)
                    R.op(f'v_cvt_pk_bf16_f32 v{U[0] + k}, v{g}, v{g + 1}')
                stores.append(R.op(f'buffer_store_dwordx4 {vr(U[0])}, v{vL16}, {sr(SW)}, s{sH0 + (rs >> 1)} offen offset:{1024 * (rs & 1)}{hs}', pipe=ps))
            inc = '16384'
            if wrap:
                t = sCNT2X
                R.op(f's_mul_i32 s{t}, s{sIH}, {16384 * wrap}\ns_add_u32 s{t}, s{t}, 16384')
                inc = f's{t}'
            R.op(f's_add_u32 s{sH0}, s{sH0}, {inc}')
            R.op(f's_add_u32 s{sH1}, s{sH1}, {inc}')
        return stores

    @staticmethod
    def glu4(R, G, U, sc):
        for e in range(4):
            g = G + e
            R.op(f'v_mul_f32 v{g}, v{sc}, v{g}')
            R.op(f'v_exp_f32 v{g}, v{g}')
            R.op(f'v_add_f32 v{g}, 1.0, v{g}')
            R.op(f'v_rcp_f32 v{g}, v{g}')
            R.op(f'v_mul_f32 v{g}, v{g}, v{U + e}')

    @staticmethod
    def phi(R, x, tmp, prio=0):
        R.op(f'v_mul_f32 v{tmp}, {hex(LOG2E)}, v{x}', prio=prio)
        R.op(f'v_exp_f32 v{tmp}, v{tmp} clamp', prio=prio)
        R.op(f'v_max_f32 v{x}, 0, v{x}', prio=prio)
        R.op(f'v_add_f32 v{x}, {hex(EPS6)}, v{x}', prio=prio)
        R.op(f'v_add_f32 v{x}, v{x}, v{tmp}', prio=prio)

    def load_scales(self, R, after):
        a0, a1 = T + 20, T + 21
        R.op(f'v_and_b32 v{a0}, 15, v{vLANE}')
        R.op(f's_lshl_b32 s{sT0}, s{sWV}, 7\ns_add_u32 s{sT0}, s{sT0}, {RS}')
        R.op(f'v_lshl_add_u32 v{a0}, v{a0}, 2, s{sT0}')
        R.op(f'v_xor_b32 v{a1}, 128, v{a0}')
        lds = [R.op(f'ds_read_b32 v{SC + rs}, v{a0 if rs < 2 else a1} offset:{64 * (rs & 1)}', after=after) for rs in range(4)]
        w = R.wait(lds, late=False, dist=6)
        for rs in range(4):
            R.op(f'v_mul_f32 v{SC + rs}, {hex(NLOG2E)}, v{SC + rs}', after=[w])

    def epi_qkv(self, R, acc):
        KM = [acc + 4 * rs for rs in range(4)]
        VM = [acc + 16 + 4 * rs for rs in range(4)]
        QM = [PQ + 4 * rs for rs in range(4)]
        LRP = [acc + 32, acc + 36]
        LL = [acc + 48 + 4 * rs for rs in range(4)]
        a0, a1, aq = T + 20, T + 21, T + 22
        R4 = [T, T + 4]
        LR = T + 8
        TM = [T + 12, T + 13, T + 14, T + 15]
        r1 = T + 16
        R.op(f's_mov_b32 s{sEPS}, {hex(EPS6)}')
        R.op(f'v_lshrrev_b32 v{a0}, 4, v{vLANE}')
        R.op(f's_lshl_b32 s{sT0}, s{sWV}, 7\ns_add_u32 s{sT0}, s{sT0}, {RS}')
        R.op(f'v_lshl_add_u32 v{a0}, v{a0}, 4, s{sT0}')
        R.op(f'v_xor_b32 v{a1}, 128, v{a0}')
        for l in f'''v_and_b32 v{aq}, 3, v{vLANE}
        v_lshlrev_b32 v{aq}, 5, v{aq}
        v_lshrrev_b32 v{r1}, 4, v{vLANE}
        v_lshl_add_u32 v{aq}, v{r1}, 3, v{aq}
        s_lshl_b32 s{sT1}, s{sWV}, 9
        s_add_u32 s{sT1}, s{sT1}, {QL}
        v_add_u32 v{aq}, s{sT1}, v{aq}
        v_lshlrev_b32 v{r1}, 3, v{vLANE}
        v_add_u32 v{r1}, {DUMMY}, v{r1}
        v_bfe_u32 v{TM[0]}, v{vLANE}, 2, 2'''.split('\n'):
            R.op(l)
        R.op(f'v_cmp_eq_u32 vcc, 2, v{TM[0]}\nv_cndmask_b32 v{aq}, v{r1}, v{aq}, vcc')
        self.ql_writes = []
        tm = 0
        one = f's[{sMASKONE}:{sMASKONE + 1}]'
        ld = [R.op(f'ds_read_b128 {vr(R4[rs])}, v{a0} offset:{64 * rs}') for rs in range(2)]
        w = R.wait(ld, late=False, dist=6)
        for rs in range(2):
            for e in range(4):
                R.op(f'v_mul_f32 v{LL[rs] + e}, v{R4[rs] + e}, v{LL[rs] + e}', after=[w], prio=60)
            for k in range(2):
                R.op(f'v_cvt_pk_bf16_f32 v{LRP[0] + 2 * rs + k}, v{LL[rs] + 2 * k}, v{LL[rs] + 2 * k + 1}', prio=60)
            for e in range(4):
                self.phi(R, LL[rs] + e, TM[tm & 3], prio=60); tm += 1
            for k in range(2):
                R.op(f'v_cvt_pk_bf16_f32 v{LL[0] + 2 * rs + k}, v{LL[rs] + 2 * k}, v{LL[rs] + 2 * k + 1}', prio=60)
            self.ql_writes.append(R.op(f'ds_write_b64 v{aq}, {vr(LL[0] + 2 * rs, 2)} offset:{128 * rs}'))
        e0, e1, c1 = LR, LR + 1, LR + 2
        R.op(f'''s_mul_i32 s{sT0}, s{sWV}, 3072
        s_add_u32 s{sT0}, s{sT0}, {self.KVX}
        v_add_u32 v{e0}, s{sT0}, v{vL16}
        s_xor_b32 s{sT1}, s{sWV}, 1
        s_mul_i32 s{sT1}, s{sT1}, 3072
        s_add_u32 s{sT1}, s{sT1}, {self.KVX}
        v_add_u32 v{e1}, s{sT1}, v{vL16}
        v_mov_b32 v{c1}, 0x3f803f80''')
        self.l_writes = [R.op(f'ds_write_b128 v{e0}, {vr(X)} offset:{1024 * k}', prio=60) for k, X in enumerate((LL[0], LRP[0]))]

        def l_read(bar):
            rd = [R.op(f'ds_read_b128 {vr(X)}, v{e1} offset:{1024 * k}', after=[bar], prio=60) for k, X in enumerate((LL[2], LRP[1]))]
            w2 = R.wait(rd, late=False, dist=6)
            self.pre_bar += [(o, 6) for o in rd]
            self.post_bar.append(lambda b_: setattr(self, 'l_free', b_))
            for k in range(8):
                R.op(f'v_cndmask_b32 v{LRP[0] + k}, v{LRP[0] + k}, v{c1}, {one}', after=[w2])
        self.l_read = l_read
        for rs in range(4):
            r4 = R4[rs & 1]
            if rs >= 2:
                w = R.wait([R.op(f'ds_read_b128 {vr(r4)}, v{a1} offset:{64 * (rs & 1)}')], late=False, dist=6)
            for e in range(4):
                R.op(f'v_fma_f32 v{KM[rs] + e}, v{r4 + e}, v{KM[rs] + e}, s{sEPS}', after=[w])
                self.phi_eps(R, KM[rs] + e, TM[tm & 3]); tm += 1
                R.op(f'v_mul_f32 v{VM[rs] + e}, v{r4 + e}, v{VM[rs] + e}', after=[w])
            P, h = rs >> 1, 2 * (rs & 1)
            for X in (KM, VM):
                R.op(f'v_cvt_pk_bf16_f32 v{X[2 * P] + h}, v{X[rs]}, v{X[rs] + 1}')
                R.op(f'v_cvt_pk_bf16_f32 v{X[2 * P] + h + 1}, v{X[rs] + 2}, v{X[rs] + 3}')
        self.kv_in = dict(km=[KM[0], KM[2]], vm=[VM[0], VM[2]], lp=[LL[0], LL[2]], lr=LRP)
        self.kv_d = dict(mm=T, ml=T + 4, lm=T + 8, ll=T + 12)

    def epi_q(self, R):
        r1, tm = T + 16, (T + 21, T + 22)
        for rs in range(4):
            R.op(f'v_mul_f32 v{r1}, {hex(0xbf317218)}, v{SC + rs}')
            for e in range(4):
                x = PQ + 4 * rs + e
                R.op(f'v_fma_f32 v{x}, v{r1}, v{x}, s{sEPS}')
                self.phi_eps(R, x, tm[e & 1])
            R.op(f'v_cvt_pk_bf16_f32 v{PQ + 4 * rs}, v{PQ + 4 * rs}, v{PQ + 4 * rs + 1}')
            R.op(f'v_cvt_pk_bf16_f32 v{PQ + 4 * rs + 1}, v{PQ + 4 * rs + 2}, v{PQ + 4 * rs + 3}')

    @staticmethod
    def phi_eps(R, x, tmp):
        R.op(f'v_mul_f32 v{tmp}, {hex(LOG2E)}, v{x}')
        R.op(f'v_exp_f32 v{tmp}, v{tmp} clamp')
        R.op(f'v_max_f32 v{x}, s{sEPS}, v{x}')
        R.op(f'v_add_f32 v{x}, v{x}, v{tmp}')

    def kv_mfmas(self, R):
        I, D = self.kv_in, self.kv_d
        for P in range(2):
            for d, a, b in (('mm', 'km', 'vm'), ('ml', 'km', 'lr'), ('lm', 'lp', 'vm'), ('ll', 'lp', 'lr')):
                R.mfma(f'{MF} {vr(D[d])}, {vr(I[a][P])}, {vr(I[b][P])}, {vr(D[d]) if P else 0}')

    def kv_exchange(self, R, X, tmp, then):
        a0, a1 = T + 17, T + 18
        t0, t1 = self.news(), self.news()
        R.op(f's_mul_i32 s{t0}, s{sWV}, 3072\ns_add_u32 s{t0}, s{t0}, {self.KVX}')
        R.op(f'v_add_u32 v{a0}, s{t0}, v{vL16}')
        R.op(f's_xor_b32 s{t1}, s{sWV}, 2\ns_mul_i32 s{t1}, s{t1}, 3072\ns_add_u32 s{t1}, s{t1}, {self.KVX}')
        R.op(f'v_add_u32 v{a1}, s{t1}, v{vL16}')
        ws = [R.op(f'ds_write_b128 v{a0}, {vr(X[k])} offset:{1024 * k}', prio=5, after=[self.l_free]) for k in range(3)]
        self.pre_bar += [(o, 4) for o in ws]

        def after_bar(bar):
            for k in range(3):
                rd = R.op(f'ds_read_b128 {vr(tmp[k])}, v{a1} offset:{1024 * k}', after=[bar], prio=5)
                w = R.wait([rd], late=False, dist=6)
                for e in range(4):
                    R.op(f'v_add_f32 v{X[k] + e}, v{X[k] + e}, v{tmp[k] + e}', after=[w], prio=5)
            then()
        self.post_bar.append(after_bar)

    def kv_publish(self, R):
        D = self.kv_d
        mc = f's[{sMASKC}:{sMASKC + 1}]'
        for k, src in enumerate((D['lm'], D['lm'] + 1, D['ll'], D['ll'] + 1)):
            R.op(f'v_cndmask_b32 v{D["lm"] + k}, v{src}, v{src + 2}, {mc}', prio=5)
        X = [D['mm'], D['ml'], D['lm']]

        def store():
            a = T + 17
            sT0, sT1 = self.news(), self.news()
            R.op(f'''s_lshl_b32 s{sT0}, s{sJ}, 1
            s_add_u32 s{sT0}, s{sT0}, s{sC}
            s_lshl_b32 s{sT0}, s{sT0}, 4
            s_add_u32 s{sT0}, s{sT0}, s{sI}
            s_lshl_b32 s{sT0}, s{sT0}, 10
            s_add_u32 s{sT0}, s{sT0}, {KV_BASE}''')
            R.op(f's_lshl_b32 s{sT1}, s{sR}, 31')
            R.op(f'v_or_b32 v{a}, s{sT1}, v{vL16}')
            for k in range(6):
                R.op(f'v_cvt_pk_bf16_f32 v{T + k}, v{T + 2 * k}, v{T + 2 * k + 1}')
            R.op(f'''v_lshrrev_b32 v{a + 1}, 4, v{vLANE}
            v_min_u32 v{a + 1}, 1, v{a + 1}
            v_lshlrev_b32 v{a + 1}, 31, v{a + 1}
            v_lshl_or_b32 v{a + 1}, v{vLANE}, 3, v{a + 1}
            v_or_b32 v{a + 1}, s{sT1}, v{a + 1}
            s_lshr_b32 s{sT1}, s{sT0}, 3
            s_add_u32 s{sT1}, s{sT1}, {KV2_BASE - KV_BASE // 8}''')
            self.kv_stores = [R.op(f'buffer_store_dwordx4 {vr(T)}, v{a}, {sr(SW)}, s{sT0} offen sc1', prio=5, pipe=P_S // 2),
                              R.op(f'buffer_store_dwordx2 {vr(T + 4, 2)}, v{a + 1}, {sr(SW)}, s{sT1} offen sc1', prio=5, pipe=10)]
        self.kv_exchange(R, X, [T + 12] * 3, store)

    def sel_regs(self, R, base, a, **kw):
        R.op(f'''v_and_b32 v{a}, 15, v{vLANE}
        v_lshrrev_b32 v{base}, 4, v{vLANE}
        v_lshlrev_b32 v{base}, 2, v{base}
        v_sub_u32 v{a}, v{a}, v{base}
        v_and_b32 v{base}, 1, v{a}
        v_lshlrev_b32 v{base}, 4, v{base}
        v_mov_b32 v{base + 1}, 0x3f80
        v_lshlrev_b32 v{base + 1}, v{base}, v{base + 1}
        v_lshrrev_b32 v{a}, 1, v{a}
        v_cmp_eq_u32 vcc, 0, v{a}
        v_cndmask_b32 v{base + 2}, 0, v{base + 1}, vcc
        v_cmp_eq_u32 vcc, 1, v{a}
        v_cndmask_b32 v{base + 3}, 0, v{base + 1}, vcc
        v_mov_b32 v{base}, 0
        v_mov_b32 v{base + 1}, 0
        v_mov_b32 v{base + 4}, 0
        v_mov_b32 v{base + 5}, 0''', **kw)

    def kv_gather(self, R, buf, after):
        t, t2 = self.news(), self.news()
        R.op(f'''s_lshl_b32 s{t}, s{sJQ}, 1
        s_add_u32 s{t}, s{t}, s{sC}
        s_lshl_b32 s{t}, s{t}, 1
        s_add_u32 s{t}, s{t}, s{sR}
        s_lshl_b32 s{t}, s{t}, 13
        s_lshr_b32 s{t2}, s{t}, 3
        s_add_u32 s{t2}, s{t2}, {KV2_BASE}
        s_add_u32 s{t}, s{t}, {KV_BASE}''')
        a, X2 = T + 24, T + 20
        R.op(f'''v_and_b32 v{a}, 15, v{vLANE}
        v_lshlrev_b32 v{a}, 3, v{a}
        v_lshrrev_b32 v{X2}, 4, v{vLANE}
        v_lshl_add_u32 v{a}, v{X2}, 8, v{a}''')
        self.kv_ld = [R.op(f'buffer_load_dwordx2 {vr(X2 + 2 * k, 2)}, v{a}, {sr(SW)}, s{t2} offen offset:{128 * k} sc1', after=after, pipe=40) for k in range(2)]
        for p in range(8):
            if p == 4:
                R.op(f's_add_u32 s{t}, s{t}, 4096')
            self.kv_ld.append(R.op(f'buffer_load_dwordx4 {vr(buf + 4 * p)}, v{vL16}, {sr(SW)}, s{t} offen offset:{1024 * (p & 3)} sc1', after=after, pipe=self.o.get('pkv', 140)))
        self.kv_buf = buf
        self.sel_regs(R, T + 12, T + 18)
        R.op(f'''v_and_b32 v{T + 18}, 15, v{vLANE}
        v_and_b32 v{T + 8}, 1, v{T + 18}
        v_lshlrev_b32 v{T + 8}, 4, v{T + 8}
        v_mov_b32 v{T + 9}, 0x3f80
        v_lshlrev_b32 v{T + 9}, v{T + 8}, v{T + 9}
        v_lshrrev_b32 v{T + 18}, 1, v{T + 18}
        v_cmp_eq_u32 vcc, 0, v{T + 18}
        v_cndmask_b32 v{T + 4}, 0, v{T + 9}, vcc
        v_cmp_eq_u32 vcc, 1, v{T + 18}
        v_cndmask_b32 v{T + 5}, 0, v{T + 9}, vcc
        v_mov_b32 v{T + 6}, v{T + 4}
        v_mov_b32 v{T + 7}, v{T + 5}''')

    def kv_sum(self, R):
        buf, A1, A0 = self.kv_buf, T + 12, T + 14
        w = R.wait([(o, self.o.get('dkv', 50) + 5 * (9 - k)) for k, o in enumerate(self.kv_ld)], tag='kvld')
        R.mfma(f'{MF} {vr(T + 8)}, {vr(T + 4)}, {vr(T + 20)}, 0', after=[w])
        for p in range(8):
            for k, a in enumerate((A0, A1)):
                R.mfma(f'{MF} {vr(T + 4 * k)}, {vr(a)}, {vr(buf + 4 * p)}, {vr(T + 4 * k) if p else 0}')

    def kv_finish(self, R, tmp):
        S = T
        KVM, KVL = T + 12, tmp[0]

        def pack():
            m2, m3 = f's[{sMK2}:{sMK2 + 1}]', f's[{sMK3}:{sMK3 + 1}]'
            R.op(f's_and_b32 s{sMK3}, s{sMASKC}, 0xffff\ns_mov_b32 s{sMK3 + 1}, 0\ns_xor_b32 s{sMK2}, s{sMK3}, 0xffff\ns_mov_b32 s{sMK2 + 1}, 0', after=[self.chk0])
            R.op(f'v_cvt_pk_bf16_f32 v{KVM}, v{S}, v{S + 1}')
            R.op(f'v_cvt_pk_bf16_f32 v{KVM + 1}, v{S + 2}, v{S + 3}')
            R.op(f'v_cvt_pk_bf16_f32 v{KVM + 3}, v{S + 8}, v{S + 9}')
            R.op(f'v_cndmask_b32 v{KVM + 2}, 0, v{KVM + 3}, {m2}')
            R.op(f'v_cndmask_b32 v{KVM + 3}, 0, v{KVM + 3}, {m3}')
            R.op(f'v_cvt_pk_bf16_f32 v{S}, v{S + 4}, v{S + 5}')
            R.op(f'v_cvt_pk_bf16_f32 v{S + 1}, v{S + 6}, v{S + 7}')
            R.op(f'v_cvt_pk_bf16_f32 v{S + 3}, v{S + 10}, v{S + 11}')
            R.op(f'v_cndmask_b32 v{S + 2}, 0, v{S + 3}, {m2}')
            R.op(f'v_cndmask_b32 v{S + 3}, 0, v{S + 3}, {m3}')
            sT1 = self.news()
            aq = T + 16
            R.op(f'v_and_b32 v{aq}, 15, v{vLANE}')
            R.op(f's_lshl_b32 s{sT1}, s{sWV}, 9\ns_add_u32 s{sT1}, s{sT1}, {QL}')
            R.op(f'v_lshl_add_u32 v{aq}, v{aq}, 3, s{sT1}')
            R.op(f's_mul_i32 s{sT1}, s{sC}, -1024\ns_add_u32 s{sT1}, s{sT1}, 512\nv_add_u32 v{aq + 1}, s{sT1}, v{aq}')
            rd = [R.op(f'ds_read_b64_tr_b16 {vr(PQ + 4 * rs + 2, 2)}, v{aq + (rs >> 1)} offset:{128 * (rs & 1)}', after=[self.l_free]) for rs in range(4)]
            self.pq_wait = R.wait(rd, late=False, dist=6)
            self.kv_frags = (KVM, S)
        self.kv_exchange(R, [S, S + 4, S + 8], tmp, pack)

    def o_mfmas(self, R, buf):
        KVM, KVL = self.kv_frags
        for rs in range(4):
            R.mfma(f'{MF} {vr(buf + 8 * rs)}, {vr(KVM)}, {vr(PQ + 4 * rs)}, 0', after=[self.pq_wait])
            R.mfma(f'{MF} {vr(buf + 8 * rs + 4)}, {vr(KVL)}, {vr(PQ + 4 * rs)}, 0')
        a = T + 16
        R.op(f'v_and_b32 v{a}, 15, v{vLANE}')
        R.op(f'v_lshlrev_b32 v{a}, 2, v{a}')
        R.op(f'v_mov_b32 v{a + 1}, {OOB}')
        R.op(f'v_lshrrev_b32 v{a + 2}, 4, v{vLANE}')
        R.op(f'v_cmp_eq_u32 vcc, 1, v{a + 2}\nv_cndmask_b32 v{a}, v{a + 1}, v{a}, vcc')
        st = []
        mc = f's[{sMASKC}:{sMASKC + 1}]'
        for P in range(2):
            sT0, sT1, sT3 = self.news(), self.news(), self.news()
            R.op(f'''s_xor_b32 s{sT0}, s{sWV}, {P}
            s_lshl_b32 s{sT1}, s{sI}, 2
            s_add_u32 s{sT0}, s{sT0}, s{sT1}
            s_lshl_b32 s{sT3}, s{sJQ}, 1
            s_add_u32 s{sT3}, s{sT3}, s{sC}''')
            R.op(f'''s_lshl_b32 s{sT1}, s{sT0}, 6
            s_add_u32 s{sT1}, s{sT1}, s{sT3}
            s_lshl_b32 s{sT1}, s{sT1}, 6
            s_add_u32 s{sT1}, s{sT1}, {OL_BASE}''')
            R.op(f'''s_lshl_b32 s{sT0}, s{sT0}, 5
            s_add_u32 s{sT0}, s{sT0}, s{sT3}
            s_lshl_b32 s{sT0}, s{sT0}, 10
            s_add_u32 s{sT0}, s{sT0}, {O_BASE}''')
            for k in range(2):
                rs = 2 * P + k
                m, l = buf + 8 * rs, buf + 8 * rs + 4
                tq = a + 2
                R.op(f'v_cndmask_b32 v{tq}, v{l + 2}, v{l}, {mc}')
                R.op(f'v_cndmask_b32 v{l}, v{l}, v{l + 2}, {mc}')
                R.op(f'v_cndmask_b32 v{l + 1}, v{l + 1}, v{l + 3}, {mc}')
                R.op(f'v_add_f32 v{l + 2}, {hex(EPS6)}, v{tq}')
                R.op(f'v_rcp_f32 v{l + 2}, v{l + 2}')
                for e in (m, m + 1, m + 2, m + 3, l, l + 1):
                    R.op(f'v_mul_f32 v{e}, v{l + 2}, v{e}')
                R.op(f'v_cvt_pk_bf16_f32 v{buf + 16 * P + 2 * k}, v{m}, v{m + 1}')
                R.op(f'v_cvt_pk_bf16_f32 v{buf + 16 * P + 2 * k + 1}, v{m + 2}, v{m + 3}')
                R.op(f'v_cvt_pk_bf16_f32 v{l}, v{l}, v{l + 1}')
                st.append(R.op(f'buffer_store_dword v{l}, v{a}, {sr(SW)}, s{sT1} offen offset:{2048 * k} sc1', pipe=20))
            st.append(R.op(f'buffer_store_dwordx4 {vr(buf + 16 * P)}, v{vL16}, {sr(SW)}, s{sT0} offen sc1', pipe=P_S))
        return st

    def flag_later(self, R, f, stores):
        if not (self.o.get('nostw') and f != '3'):
            n = len(stores)
            self.pre_bar += [(o, self.o['dst'] + (0 if f == '3' else self.o.get('sst', 8) * min(n - 1 - k, 5))) for k, o in enumerate(stores)]
        self.post_bar.append(lambda bar: self.set_flag(R, f, [bar]))

    def main(self):
        R = Region(cap=2, backlog=self.o['backlog'], hwq=self.o.get('hwq', 200), spread=self.o.get('spread', 1), vprio=self.o.get('vprio', 200), vfrom=self.o.get('vfrom', 0))
        self.pre_bar = list(self.ln_last)
        self.post_bar, self.unfreed = [], []
        self.lastwait, self.free_bar, self.bars = {}, {}, {}
        self.paired, self.single = set(), set()
        ks = []
        n0 = 0
        for name in self.order:
            ks += [(name, t, n0 + (t >> 1)) for t in range(18)]
            n0 += 9
        accs = {'A0': ACC0, 'Q': ACC1, 'A1': ACC0, 'A2': ACC1, 'A3': ACC0, 'A4': ACC1}
        last = self.order[-1]
        self.span = 28
        w0 = R.wait(self.pre_bar + self.dmas[0], late=False)
        self.pre_bar = []
        bar = R.op('s_barrier', after=[w0], wr=['bar'])
        self.bars[0] = bar
        self.unfreed = [0]
        for m in range(self.npre, self.NCH):
            for o in self.dma_ops(m):
                if 'dma' in o.kinds():
                    o.after.append((bar, 0))
                R.add(o)
        reads = self.p_reads(R, 'A0', 0, 0, RING, [bar])
        reads = self.ln_reads1(R, 0, bar) + reads
        hst = {}
        self.ln_wr = {}
        for x, (name, t, n) in enumerate(ks):
            buf = RING + 16 * (x & 1)
            nbuf = RING + 16 * ((x + 1) & 1)
            w = R.wait(reads, dist=4)
            last_in_chunk = x + 1 == len(ks) or ks[x + 1][2] != n
            if last_in_chunk:
                self.lastwait[n] = w
            g0 = R.here
            if t == 0 or (self.o.get('fine') and t % self.o['fine'] == 0):
                self.stamp(R, f'{name}.{t}')
            if x + 1 < len(ks):
                nn, nt, nc = ks[x + 1]
                dep = [w]
                if nc != n:
                    self.span = 28 if name != 'A4' else 28
                    dep = [self.chunk_enter(R, nc, g0 + 1, [w]), w]
                reads = self.p_reads(R, nn, nc, nt, nbuf, dep)
                if nn == 'A0' and nc != n:
                    reads += self.ln_reads1(R, nc, dep[0])
                    if nc == 8:
                        self.ln_finish(R, dep[0])
            else:
                self.b_prepare(R, n0, w, g0)
            acc = accs[name]
            nf = 4
            for f in range(nf):
                for rs in range(2 if (name == 'Q' and f == 3) else 4):
                    d = vr(PQ + 4 * rs if (name == 'Q' and f == 2) else acc + (f * 4 + rs) * 4)
                    c = d if t else '0'
                    a_, b_ = vr(buf + 4 * f), xn(4 * t + rs)
                    if name == 'Q' and f != 2:
                        a_, b_ = b_, a_
                    R.mfma(f'{MF} {d}, {a_}, {b_}, {c}', after=[w] if (f == 0 and rs == 0) else [], tag='lds2' if self.o.get('lds2a') else '')
            if name == 'A0' and t <= 13:
                tc = t + 4
                bar_ = self.bars.get(tc // 2 - 1)
                wr = self.ln_center(R, 1, tc, (ACC1 + 56 if self.o.get('probe') else T + 18, ACC1 + 56)[t & 1], (PQ, PQ + 12, SC)[t % 3],
                                    self.LN_R0, 4096 * (tc & 3), after=[bar_] if bar_ else None)
                if bar_:
                    self.ln_wr[tc] = wr
                else:
                    self.post_bar.append(lambda b_, tc=tc, wr=wr: self.ln_wr.__setitem__(tc, wr([b_])))
            if name == 'A0' and t % 2 == 0 and 2 <= t <= 14:
                self.pre_bar += [(self.ln_wr[k], 8) for k in (t + 2, t + 3)]
            g1 = R.here
            o = self.o
            if t == 17:
                if name == 'Q':
                    self.epi_qkv(R, acc)
                else:
                    hst[name] = self.epi_glu(R, acc, (self.jump + (0,))[int(name[1])])
            if name == 'Q' and t == 0:
                self.b_tables(R)
            if name == 'A0' and t == o.get('tclr', 15):
                Z, a_ = T + 20, T + 24
                R.op(f'''s_or_b32 s{sT0}, s{sJ}, s{sWV}
                s_min_u32 s{sT0}, s{sT0}, 1
                s_lshl_b32 s{sT0}, s{sT0}, 31
                v_or_b32 v{a_}, s{sT0}, v{vL16}
                v_or_b32 v{vPOLL}, s{sT0}, v{vFST}
                s_lshl_b32 s{sT0}, s{sI}, 12
                s_lshl_b32 s{sT3}, s{sI}, 2
                v_mov_b32 v{Z}, 0
                v_mov_b32 v{Z + 1}, 0
                v_mov_b32 v{Z + 2}, 0
                v_mov_b32 v{Z + 3}, 0''')
                clr = [R.op(f'buffer_store_dwordx4 {vr(Z)}, v{a_}, {sr(SW)}, s{sT0} offen offset:{1024 * k} sc1', hi=g1 + 20 + 4 * k, pipe=20) for k in range(3)]
                wclr = R.wait(clr, late=False, lo=g1 + 110, hi=g1 + 114)
                R.op(f'buffer_store_dword v{vONE}, v{vPOLL}, {sr(SB)}, s{sT3} offen sc1', after=[wclr], hi=g1 + 118)
            if (name != 'A0' or t > 14) and t % o.get('cpe', 18) == o.get('cpt', 2):
                self.code_ahead(R, g1)
            if name == 'A1' and t == o.get('lx', 6):
                self.pre_bar += [(o_, 6) for o_ in self.l_writes + self.ql_writes]
                self.post_bar.append(self.l_read)
            if name == 'A1' and t == 0:
                R.op(self.pat_b(vPOLL, T + 19), prio=100)
            if name == 'A2' and t == 0:
                self.epi_q(R)
            if name == 'A2' and t == o.get('tfill', 8) and o.get('sent', 0):
                self.prefill(R)
            if name == 'A2' and t == 1:
                self.chk0 = self.poll(R, 'clr', SB, '', 15, 1, g1, g1 + 60)
            if name == 'A1' and t == o.get('kvm', 15):
                self.kv_mfmas(R)
                self.kv_publish(R)
            if name == 'A2' and t == o.get('f1', 7):
                self.flag_later(R, '1', self.kv_stores)
            if name == 'A2' and t == o.get('f2a', 14):
                self.flag_later(R, '2a', hst['A0'] + hst['A1'])
            if name == 'A3' and t == o.get('p1', 6):
                self.chk1 = self.poll(R, 'kv', SW, self.flag_addr('1', False, sT2), 15, 1, g1, g1 + 40, after=[self.chk0, self.flags['1']])
                self.kv_gather(R, ACC1 + 32, [self.chk1])
            if name == last and t == o.get('p2a', 0):
                self.chk2a = self.poll(R, 'ha', SW, self.flag_addr('2a', False, sT2), 3, 1, g1, g1 + 40, after=[self.flags['2a']])
            if name == 'A3' and t == o.get('kvs', 17):
                self.kv_sum(R)
                self.kv_finish(R, [T + 20] * 3)
            if name == 'A3' and t == o.get('f2b', 16):
                self.flag_later(R, '2b', hst['A2'])
            if name == 'A4' and t == o.get('p2b5', 8):
                self.chk2b = self.poll(R, 'hb', SW, self.flag_addr('2b', False, sT2), 3, 1, g1, g1 + 40, after=[self.flags['2b']])
            if name == 'A4' and t == o.get('om5', 12):
                self.o_stores = self.o_mfmas(R, ACC0)
                R.op(self.pat_cl())
            if name == 'A4' and t == o.get('f2c5', 14):
                self.flag_later(R, '2c', hst['A3'])
            if name == last and t >= o.get('h0', 3):
                p_ = t - o.get('h0', 3)
                if p_ < 8 or (p_ < o.get('hpre5', 10) and hasattr(self, 'chk2b')):
                    self.h_loads(R, p_, [self.chk2a if p_ < 8 else self.chk2b], g1)
        x = self.o.get('a0x', 0)
        for o_ in R.ops[:1500]:
            t_ = o_.ins[0].text if o_.ins else ''
            if (x & 1 and t_.startswith(f'ds_write_b128 v{self.LN_R0}')) or (x & 2 and t_.startswith('ds_read_b128 a')) or (x & 8 and t_.startswith('v_accvgpr')) \
                    or (x & 4 and o_.spine and (f', {vr(self.LN_SEL0)},' in t_ or f', {vr(self.LN_SEL1)},' in t_ or t_.startswith(f'{MF} {vr(V_G1)}'))):
                o_.ins = [Ins('s_nop 0')]
        self.hst = hst
        self.phase_b(R, n0)
        return R

    @staticmethod
    def hreg(pos, hh, rho, lo=0, cnt=4):
        return xn(4 * (pos & 15) + 2 * hh + rho)

    PF = {'1': ('A1', 4), '2': ('A2', 0), '3': ('A2', 5), '4': ('A3', 0), '5': ('A1', 0), '6': ('A0', 4), '7': ('A3', 4), '8': ('A2', 4), '9': ('A1', 7), 'a': ('A2', 2), 'b': ('A2', 7), 'c': ('A3', 2)}

    def prefetch_late(self, R, which, part, lo, after):
        if not self.o.get('pf1', 0):
            return
        a, d = T + 24, T + 23
        t, t2 = self.news(), self.news()
        per, step, srd = (36, 18, SD) if which == 'd' else (18, 9, SWO)
        nl = 2 if self.nt == 8 else 3
        sub = f's_mov_b32 s{t}, -1024' if which == 'd' else f's_mul_i32 s{t}, s{sR}, {4 * 1152}\ns_sub_u32 s{t}, s{t}, 1024'
        R.op(sub, lo=lo - 60)
        R.op(f's_lshl_b32 s{t2}, s{sIL}, 2\ns_add_u32 s{t2}, s{t2}, s{sWV}\ns_mul_i32 s{t2}, s{t2}, {per * 1152}\ns_sub_u32 s{t2}, s{t2}, s{t}\ns_xor_b32 s{t}, s{sIH}, {part}\ns_mul_i32 s{t}, s{t}, {step * 1152}\ns_add_u32 s{t2}, s{t2}, s{t}', lo=lo - 60)
        if nl == 3:
            R.op(f's_mul_i32 s{t}, s{sQ_}, -128\ns_add_u32 s{t}, s{t}, 128\ns_add_u32 s{t2}, s{t2}, s{t}', lo=lo - 60)
        R.op(f'v_min_u32 v{a}, {step * nl - 1}, v{vLANE}\nv_mul_u32_u24 v{d}, {128 if nl == 2 else 86}, v{a}\nv_lshrrev_b32 v{d}, 8, v{d}\nv_lshlrev_b32 v{a}, 7, v{a}\nv_mul_u32_u24 v{d}, {1152 - nl * 128}, v{d}\nv_add3_u32 v{a}, v{a}, v{d}, s{t2}', lo=lo - 60)
        R.op(f'buffer_load_dword v{T + 24 if self.o.get(PRB) else T + 25}, v{a}, {sr(srd)}, 0 offen', after=after, prio=500, hi=lo + self.o.get('pfd', 60), pipe=self.o['ppf'] if part == 0 else self.o.get('ppf2', 300))

    def code_ahead(self, R, lo):
        nl = self.o.get('cpn', 2)
        if not nl:
            return
        vb, va = T + 25, T + 26
        if not self.ncp:
            t, t2 = sT0, sT1
            R.op(f'''s_lshl_b32 s{t}, s{sIL}, 1
            s_and_b32 s{t2}, s{sQ_}, 1
            s_add_u32 s{t}, s{t}, s{t2}
            s_lshl_b32 s{t2}, s{sWV}, 4
            s_add_u32 s{t}, s{t}, s{t2}
            v_min_u32 v{vb}, {nl - 1}, v{vLANE}
            v_lshl_add_u32 v{vb}, v{vb}, 6, s{t}
            v_lshlrev_b32 v{vb}, 7, v{vb}
            v_add_u32 v{vb}, {self.o.get('cpd', 2048)}, v{vb}''')
        self.ncp += 1
        lab = f'L_cp{self.ncp}{self.sfx}'
        R.op(f's_getpc_b64 s[0:1]\n{lab}:\nv_min_u32 v{va}, L_stop{self.sfx}-{lab}, v{vb}\nglobal_load_dword v{va + 1}, v{va}, s[0:1]', atomic=True, lo=lo, hi=lo + 10, pipe=40)

    ncp = 0

    def h_loads(self, R, pos, after, lo):
        if pos in self.hl:
            return
        t = TB + pos
        if not hasattr(self, 'vH'):
            self.vH = vLL
            t2 = self.news()
            R.op(f's_lshl_b32 s{t2}, s{sWV}, 12\ns_add_u32 s{t2}, s{t2}, s{sHB}\nv_add_u32 v{self.vH}, s{t2}, v{vL16}', lo=lo - 100, prio=300)
        ops = []
        hsc = '' if self.o.get('hplain') else ' sc1'
        for hh in range(2):
            for rho in range(2):
                ops.append(R.op(f'buffer_load_dwordx4 {self.hreg(pos, hh, rho)}, v{self.vH}, {sr(SW)}, s{t} offen offset:{2048 * hh + 1024 * rho}{hsc}', after=after, lo=lo, pipe=P_H))
        if self.o.get('noh'):
            for o in ops:
                R.ops.remove(o)
            ops = []
        self.hl[pos] = ops

    hl = {}
    in_b = False
    kq_busy = False
    p3 = None
    fill = []
    sq_busy = False

    def b_prepare(self, R, n0, w, g0):
        t = self.news()
        R.op(f's_lshl_b32 s{t}, s{sC}, 6', lo=g0 - 40)
        cur = self.base[vLA0]
        if self.base[vLA1] != cur:
            d = cur - self.base[vLA1]
            R.op(f'v_add_u32 v{vLA1}, {d}, v{vLA1}' if d > 0 else f'v_subrev_u32 v{vLA1}, {-d}, v{vLA1}')
        R.op(f'v_xor_b32 v{vLA0}, s{t}, v{vLA0}\nv_xor_b32 v{vLA1}, s{t}, v{vLA1}\nv_xor_b32 v{vLB}, 64, v{vLA0}\nv_xor_b32 v{vA0}, 64, v{vLA1}', prio=50)
        self.vLT = [vLA0, vLA1, vLB, vA0]
        self.vLH = [vA1, T + 24]
        for r_ in self.vLT:
            self.base[r_] = cur
        if self.nt > 8:
            R.op(f'''v_lshrrev_b32 v{T + 24}, 2, v{vLANE}
            v_lshlrev_b32 v{T + 24}, 6, v{T + 24}
            v_bfe_u32 v{vA1}, v{vLANE}, 4, 1
            v_lshl_add_u32 v{T + 24}, v{vA1}, 5, v{T + 24}
            v_and_b32 v{vA1}, 3, v{vLANE}
            v_lshl_add_u32 v{vA1}, v{vA1}, 3, v{T + 24}
            v_xor_b32 v{T + 24}, 32, v{vA1}''', lo=g0 - 60)
            self.base[vA1] = self.base[T + 24] = 0
        self.bbar = self.chunk_enter(R, n0, g0 + 1, [w])
        self.bq = []
        self.b_ring = [RING + 4 * k for k in range(8)] + [XNV + 16 + 4 * k for k in range(self.o.get('ring', 8) - 8)]
        self.b_next = 0
        self.b_n0 = n0
        for _ in range(4):
            self.b_read(R, g0 + 1)

    def b_order(self):
        nt = self.o['ntail']
        seq = [(k, t) for k in range(36 - nt) for t in range(self.nt)]
        seq += [(k, t) for t in range(self.nt) for k in range(36 - nt, 36)]
        return seq

    def b_read(self, R, lo):
        seq = self.b_order()
        k, t = seq[self.b_next]
        n = self.b_n0 + (k >> 1)
        if n not in self.bars:
            self.span = 30
            self.chunk_enter(R, n, lo)
        reg, off, step = self.tile_addr(n, k, t)
        slot = self.b_ring[self.b_next % len(self.b_ring)]
        self.bq.append(self.tr_pair(R, slot, reg, off, step, [self.bars[n]], lo=lo))
        self.b_next += 1

    b_ring = [RING + 4 * k for k in range(8)]

    def tile_addr(self, n, k, t):
        cb = self.slot[n] * self.CH
        if t < 8:
            return self.vLT[t & 3], cb + 8192 * (k & 1) + 1024 * (t >> 2), 4096
        return self.vLH[t - 8], cb + 16384 + 2048 * (k & 1), 1024

    def bacc(self, t, rho):
        i = 2 * t + rho
        return self.OB + 4 * i if i < 16 else XNV + 4 * (i - 16)

    def phase_b(self, R, n0):
        self.in_b = True
        seq = self.b_order()
        AH, WG = self.o.get('ah', 6), self.o.get('wg', 4)
        lastuse = {}
        for x, (k, t) in enumerate(seq):
            lastuse[k >> 1] = x
        sT0 = KA
        R.op(f'''s_lshl_b32 s{sH0}, s{sI}, 2
        s_add_u32 s{sH0}, s{sH0}, s{sQ_}
        s_lshl_b32 s{sH0}, s{sH0}, 2
        s_add_u32 s{sH0}, s{sH0}, s{sWV}
        s_lshl_b32 s{sH0}, s{sH0}, 2
        s_add_u32 s{sH0}, s{sH0}, s{sJJ}
        s_mul_i32 s{sH0}, s{sH0}, {PSTR}
        s_add_u32 s{sH0}, s{sH0}, {PART_BASE}''', lo=R.here + 300)
        R.op(f's_add_u32 s{sH1}, s{sH0}, 4096', lo=R.here + 300)
        R.op(f's_add_u32 s{sT0}, s{sH0}, 8192', lo=R.here + 300)
        self.part_stores = []
        self.own_writes = []
        vST, vOW, sOWN = T + 11, T + 12, KA + 3 + 1
        self.own = self.o.get('own', 1)
        if not self.own:
            vST = vL16

        def put(X, so, imm, piece, hi):
            self.part_stores.append(R.op(f'buffer_store_dwordx4 {vr(X)}, v{vST}, {sr(SW)}, s{so} offen offset:{imm} sc1', prio=400, pipe=P_S * (3 if self.own else 4) // 4, hi=hi, after=[self.chk2o]))
            if self.own:
                self.own_writes.append(R.op(f's_mov_b64 exec, s[{SQ}:{SQ + 1}]\nds_write_b128 v{vOW}, {vr(X)} offset:{1024 * piece}\ns_mov_b64 exec, -1', atomic=True, noexec=True, hi=hi + 6))
        done = {}
        seen = set()
        hw = {}
        w = None
        for x, (k, t) in enumerate(seq):
            g0 = R.here
            while self.b_next < min(len(seq), x + 1 + AH):
                self.b_read(R, g0)
            if self.b_next == len(seq) and x == len(seq) - 4:
                self.c_prepare(R, n0 + 18, g0)
            dep = []
            if x % WG == 0:
                w = R.wait(sum(self.bq[x:x + WG], []), dist=3)
                dep.append(w)
                for c_, lu in lastuse.items():
                    if x <= lu < x + WG:
                        self.lastwait[n0 + c_] = w
            pos = k >> 1
            if pos not in hw and (pos == 0 or (self.o.get('fine') and pos % 3 == 0)):
                self.stamp(R, f'B.{pos}')
            if pos not in hw:
                o = self.o
                hw[pos] = R.wait([(q_, o['dh'] + o.get('stag', 6) * (len(self.hl[pos]) - 1 - k_)) for k_, q_ in enumerate(self.hl[pos])], tag=f'h{pos}')
                dep.append(hw[pos])
                if pos == 1:
                    self.c_tables(R)
                five = self.ns == 5
                if pos % o.get('cpb', 8) == 0 and pos < 17:
                    self.code_ahead(R, g0)
                if self.own and pos == 12:
                    R.op(f's_cmp_eq_u32 s{sWV}, s{sJJ}\ns_cselect_b32 s{SQ}, -1, 0\ns_mov_b32 s{SQ + 1}, s{SQ}', atomic=True)
                    R.op(f's_lshl_b32 s{SQ + 2}, s{SQ}, 31\nv_or_b32 v{vST}, s{SQ + 2}, v{vL16}\nv_add_u32 v{vOW}, {self.KVX}, v{vL16}')
                    self.sq_busy = True
                if not five and pos == o.get('om', 5):
                    self.o_stores = self.o_mfmas(R, ACC0)
                    R.op(self.pat_cl())
                if not five and pos == o.get('p2b', 2):
                    self.chk2b = self.poll(R, 'hb', SW, self.flag_addr('2b', False, sT2), 3, 1, g0, g0 + 40, after=[self.flags['2b']])
                if pos == o.get('f2l', 6):
                    self.flag_later(R, '2d' if five else '2c', self.hst[self.order[-1]])
                if pos == (o.get('p2c5', 5) if five else o.get('p2c', 8)):
                    self.chk2c = self.poll(R, 'hc', SW, self.flag_addr('2c', False, sT2), 3, 1, g0, g0 + 40, after=[self.flags['2c']])
                if pos == (o.get('f2o5', 1) if five else o.get('f2o', 9)):
                    self.flag_later(R, '2o', self.fill + self.o_stores)
                if pos == (o.get('p2d5', 10) if five else o.get('p2d', 13)):
                    self.chk2d = self.poll(R, 'hd', SW, self.flag_addr('2d', False, sT2), 1, 1, g0, g0 + 34, after=[self.flags['2d']] if five else [], mul=12)
                if pos == (o.get('p2o5', 12) if five else o.get('p2o', 12)):
                    self.chk2o = self.poll(R, 'o', SW, self.flag_addr('2o', False, sT2), 15, 1, g0, g0 + 30, after=[self.flags['2o']])
                    self.o_stage_load(R, g0)
                for nxt in range(pos + 1, min(18, pos + o['hlook'] + 1)):
                    chk = 'chk2a' if nxt < 8 else 'chk2b' if nxt < 12 else 'chk2c' if nxt < 16 else 'chk2d'
                    if hasattr(self, chk):
                        self.h_loads(R, nxt, [getattr(self, chk)], g0)
            slot = self.b_ring[x % len(self.b_ring)]
            for rho in range(2):
                d = vr(self.bacc(t, rho))
                R.mfma(f'{MF} {d}, {vr(slot)}, {self.hreg(pos, k & 1, rho)}, {d if (t, rho) in seen else 0}', after=dep, tag='lds2' if pos < self.o.get('lds2', 18) else '')
                seen.add((t, rho))
                dep = []
            if k == 35:
                done[t] = True
                if t >= 8:
                    X = self.bacc(t, 0)
                    for rho in range(2):
                        a = self.bacc(t, rho)
                        R.op(f'v_cvt_pk_bf16_f32 v{X + 2 * rho}, v{a}, v{a + 1}', prio=40)
                        R.op(f'v_cvt_pk_bf16_f32 v{X + 2 * rho + 1}, v{a + 2}, v{a + 3}', prio=40)
                    put(X, sT0, 1024 * (t - 8), t, R.here + 8)
                elif t & 1:
                    for rho in range(2):
                        X, Y = self.bacc(t - 1, rho), self.bacc(t, rho)
                        for kk, a in enumerate((X, X + 2, Y, Y + 2)):
                            R.op(f'v_cvt_pk_bf16_f32 v{X + kk}, v{a}, v{a + 1}', prio=40)
                        put(X, sH0 + rho, 1024 * (t >> 1), 4 * rho + (t >> 1), R.here + 8 + 3 * rho + (0 if self.o['ntail'] else 3 * t))
        self.phase_c(R, n0 + 18)

    def o_stage_load(self, R, lo):
        buf = self.LB
        sT0, sT1 = KA + 1, KA + 2
        R.op(f'''s_lshl_b32 s{sT0}, s{sI}, 2
        s_add_u32 s{sT0}, s{sT0}, s{sJJ}
        s_lshl_b32 s{sT1}, s{sT0}, 15
        s_add_u32 s{sT1}, s{sT1}, {O_BASE}''', lo=lo - 10)
        self.o_ld = []
        for k in range(2):
            sT3 = KA + 3 + k
            R.op(f'''s_lshl_b32 s{sT3}, s{sWV}, 1
            s_add_u32 s{sT3}, s{sT3}, s{sIL}
            s_add_u32 s{sT3}, s{sT3}, {k}
            s_and_b32 s{sT3}, s{sT3}, 7
            s_lshl_b32 s{sT3}, s{sT3}, 12
            s_add_u32 s{sT3}, s{sT3}, s{sT1}''', lo=lo - 10)
            for p in range(4):
                self.o_ld.append(R.op(f'buffer_load_dwordx4 {vr(buf + 16 * k + 4 * p)}, v{vL16}, {sr(SW)}, s{sT3} offen offset:{1024 * p} sc1', after=[self.chk2o], lo=lo, pipe=P_H))
        a = T + 16
        R.op(f'v_lshrrev_b32 v{a}, 4, v{vLANE}', lo=lo - 10)
        R.op(f'v_lshlrev_b32 v{a}, 8, v{a}', lo=lo - 10)
        R.op(f'v_and_b32 v{a + 1}, 15, v{vLANE}', lo=lo - 10)
        R.op(f'v_lshl_add_u32 v{a}, v{a + 1}, 2, v{a}', lo=lo - 10)
        R.op(f'''s_lshl_b32 s{sT0}, s{sT0}, 1
        s_add_u32 s{sT0}, s{sT0}, s{sC}
        s_lshl_b32 s{sT0}, s{sT0}, 1
        s_add_u32 s{sT0}, s{sT0}, s{sR}
        s_lshl_b32 s{sT0}, s{sT0}, 10
        s_add_u32 s{sT0}, s{sT0}, {OL_BASE}''', lo=lo - 10)
        for p in range(4):
            self.o_ld.append(R.op(f'buffer_load_dword v{XNV + 16 + p}, v{a}, {sr(SW)}, s{sT0} offen offset:{64 * p} sc1', after=[self.chk2o], lo=lo, pipe=30))

    def final_prefetch(self, R, lo):
        XR = self.LB + 36
        sT0 = KA + 5
        self.vXa, self.vXb = SC + 2, SC + 3
        a, b_ = T + 23, T + 22
        R.op(f'''v_and_b32 v{a}, 15, v{vLANE}
        s_lshl_b32 s{sT0}, s{sI}, 2
        s_add_u32 s{sT0}, s{sT0}, s{sJJ}
        s_lshl_b32 s{sT0}, s{sT0}, 5
        v_add_u32 v{self.vXb}, s{sT0}, v{a}
        v_mul_u32_u24 v{self.vXb}, 1152, v{self.vXb}
        v_lshrrev_b32 v{b_}, 5, v{vLANE}
        v_lshl_add_u32 v{self.vXb}, v{b_}, 4, v{self.vXb}
        s_lshl_b32 s{sT0}, s{sQ_}, 3
        s_lshr_b32 s{sT0}, 0x0e0a0400, s{sT0}
        s_and_b32 s{sT0}, s{sT0}, 0xff
        s_add_u32 s{sT0}, s{sT0}, s{sWV}
        s_lshl_b32 s{sT0}, s{sT0}, 6
        v_bfe_u32 v{b_}, v{vLANE}, 4, 1
        v_lshl_add_u32 v{self.vXa}, v{b_}, 5, v{self.vXb}
        v_add_u32 v{self.vXa}, s{sT0}, v{self.vXa}''', lo=lo - 150)
        self.xo = [(self.vXa, '0', 0), (self.vXa, f's{KA + 7}', 0)]
        if self.nt > 8:
            R.op(f'''v_mul_u32_u24 v{b_}, {16 * 1152}, v{b_}
            s_lshl_b32 s{sT0}, s{sQ_}, 1
            s_add_u32 s{sT0}, s{sT0}, s{sC}
            s_lshl_b32 s{sT0}, s{sT0}, 5
            v_add3_u32 v{self.vXb}, v{b_}, v{self.vXb}, s{sT0}
            s_lshl_b32 s{sT0}, s{sR}, 31
            v_or_b32 v{self.vXb}, s{sT0}, v{self.vXb}''', lo=lo - 150)
            self.xo.append((self.vXb, '0', 448))
        R.op(f'''s_lshl_b32 s{sT0}, s{sJJ}, 7
        s_add_u32 s{sT0}, s{sT0}, {RS}
        v_lshl_add_u32 v{a}, v{a}, 2, s{sT0}
        s_mov_b32 s{KA + 7}, {16 * 1152}''', lo=lo - 150)
        self.x_ld = [R.op(f'buffer_load_dwordx4 {vr(XR + 4 * p)}, v{va}, {sr(SX)}, {so} offen offset:{imm}', lo=lo, pipe=160)
                     for p, (va, so, imm) in enumerate(self.xo)]
        self.rs_ld = [R.op(f'ds_read_b32 v{SC + rho}, v{a} offset:{64 * rho}', lo=lo - 100) for rho in range(2)]
        self.XR = XR


    def partial_addr(self, R, t, t2, sk, va, **kw):
        R.op(f'''s_lshl_b32 s{t}, s{sI}, 2
        s_add_u32 s{t}, s{t}, s{sQ_}
        s_lshl_b32 s{t}, s{t}, 2
        s_add_u32 s{t}, s{t}, s{sJJ}
        s_mul_i32 s{t}, s{t}, {4 * PSTR}
        s_add_u32 s{t}, s{t}, {PART_BASE}
        s_lshl_b32 s{t2}, s{sWV}, 10
        v_add_u32 v{va[0]}, s{t2}, v{vL16}
        v_add_u32 v{va[1]}, 4096, v{va[0]}
        s_mul_i32 s{t2}, s{sWV}, {hex(0x40000400)}
        s_and_b32 s{t2}, s{t2}, {hex(0x80000400)}
        s_add_u32 s{t2}, s{t2}, 8192
        v_add_u32 v{va[2]}, s{t2}, v{vL16}''', **kw)
        for k in range(1 if self.o.get('own', 1) else 0, 4):
            R.op(f's_add_u32 s{sk[k]}, s{sJJ}, {k}\ns_and_b32 s{sk[k]}, s{sk[k]}, 3\ns_mul_i32 s{sk[k]}, s{sk[k]}, {PSTR}\ns_add_u32 s{sk[k]}, s{sk[k]}, s{t}', **kw)

    def prefill(self, R):
        sk = [None] + [self.news() for _ in range(3)]
        va = [T + 4, T + 5, T + 6]
        self.partial_addr(R, self.news(), self.news(), sk, va)
        R.op('\n'.join(f'v_mov_b32 v{T + k}, -1' for k in range(4)))
        self.fill = [R.op(f'buffer_store_dwordx4 {vr(T)}, v{va[p]}, {sr(SW)}, s{sk[k]} offen sc1', pipe=P_S if p < 2 else P_S // 2, hi=R.here + 40 + 24 * (3 * p + k))
                     for p in range(2 if self.nt == 8 else 3) for k in range(1, 4)]

    def partial_loads(self, R, chk, lo):
        self.PBS = [self.OB + 16 * k for k in range(3)]
        self.partial_addr(R, KA + 8, sK5, [KA + k for k in range(4)], [vA0, vA1, vLL], lo=lo - 40)
        self.p_ld = []
        for piece, va in enumerate((vA0, vA1, vLL)[:len(self.xo)]):
            for k in range(1 if self.own else 0, 4):
                self.p_ld.append(f'buffer_load_dwordx4 {vr(self.PBS[piece] + 4 * k)}, v{va}, {sr(SW)}, s{KA + k} offen sc1')
                R.op(self.p_ld[-1], after=[chk] if chk else [], prio=100, lo=lo, hi=lo + 2 + len(self.p_ld))
        if self.own:
            a = T + 12
            R.op(f'v_add_u32 v{a}, {self.KVX}, v{vA0}\nv_and_b32 v{a + 1}, 0xffff, v{vLL}\nv_add_u32 v{a + 1}, {self.KVX}, v{a + 1}')
            for piece in range(len(self.xo)):
                R.op(f'ds_read_b128 {vr(self.PBS[piece])}, v{a + (piece >> 1)} offset:{4096 * (piece & 1)}', after=[self.own_bar])

    def c_prepare(self, R, nO, g0):
        pass

    def phase_c(self, R, nO):
        g0 = R.here
        osa, osb = self.slot[nO] * self.CH, self.slot[nO + 1] * self.CH
        a = T + 16
        buf = self.LB
        sT0, sT1 = KA + 6, sK5
        R.op(f'''s_mul_i32 s{sT0}, s{sR}, {osb - osa}
        s_add_u32 s{sT0}, s{sT0}, {osa}
        v_add_u32 v{a + 1}, s{sT0}, v{vL16}
        s_lshl_b32 s{sT1}, s{sC}, 13
        v_add_u32 v{a}, s{sT1}, v{a + 1}
        s_lshl_b32 s{sT1}, s{sC}, 10
        s_add_u32 s{sT1}, s{sT1}, 16384
        v_add_u32 v{a + 1}, s{sT1}, v{a + 1}''', lo=g0 - 120)
        fb = [self.free_bar[self.prev_user[nO]], self.free_bar[self.prev_user[nO + 1]]]
        wl = R.wait([(o, self.o.get('dol', 60) + 5 * (11 - k)) for k, o in enumerate(self.o_ld)], late=False, lo=g0 - 70, tag='old')
        R.op(f'v_add_u32 v{a + 2}, 8, v{a}', lo=g0 - 120)
        ws = [R.op(f'ds_write2st64_b64 v{a + 2 * (p & 1)}, {vr(buf + 4 * p, 2)}, {vr(buf + 4 * p + 2, 2)} offset0:{4 * (p >> 1)} offset1:{4 * (p >> 1) + 2}', after=fb + [wl], lo=g0 - 70) for p in range(8)]
        ws.append(R.op(f'ds_write_b128 v{a + 1}, {vr(XNV + 16)}', after=fb + [wl], lo=g0 - 70))
        vO0 = T + 17
        R.op(f'v_add_u32 v{vO0}, {osa}, v{vL16}' if osa else f'v_mov_b32 v{vO0}, v{vL16}', lo=g0 - 30)
        self.base[vO0] = osa
        vC = [T + 8, T + 9, T + 10]
        R.op(f's_lshl_b32 s{sT0}, s{sC}, 6\nv_xor_b32 v{vC[0]}, s{sT0}, v{vLA0}\ns_lshl_b32 s{sT0}, s{sR}, 10\nv_add_u32 v{vC[0]}, s{sT0}, v{vC[0]}\nv_xor_b32 v{vC[1]}, 32, v{vC[0]}', lo=g0 - 12)
        self.base[vC[0]] = self.base[vC[1]] = self.base[vLA0]
        nf = 2
        if self.nt > 8:
            nf = 3
            R.op(f's_lshl_b32 s{sT0}, s{sC}, 5\nv_xor_b32 v{vC[2]}, s{sT0}, v{vA1}', lo=g0 - 12)
            self.base[vC[2]] = self.base[vA1]
        self.pre_bar += [(o, 4) for o in ws]

        self.span = 8
        nC = nO + 2
        NB = self.o.get('cah', 1) + 1
        AB = [('a', 32 + 12 * k) for k in range(NB)]
        BB = [96 + 8 * k for k in range(NB)]
        self.SA = lambda rho, f: XNV + 16 + 8 * rho + 4 * f if f < 2 else T + 4 * rho

        def reads(k, lo):
            n = nC + (k >> 1)
            if n not in self.bars:
                self.chunk_enter(R, n, lo)
            bar = self.bars[n]
            cb = self.slot[n] * self.CH
            out = []
            for f in range(nf):
                off, step = (cb + 8192 * (k & 1), 4096) if f < 2 else (cb + 16384 + 2048 * (k & 1), 1024)
                d = AB[k % NB][1] + 4 * f
                o_ = self.addr(R, vC[f], off, lo=lo)
                out.append(R.op(f'ds_read_b64_tr_b16 a[{d}:{d + 1}], v{vC[f]} offset:{o_}', after=[bar], prio=10, lo=lo))
                out.append(R.op(f'ds_read_b64_tr_b16 a[{d + 2}:{d + 3}], v{vC[f]} offset:{o_ + step}', after=[bar], prio=10, lo=lo))
            for rho in range(2):
                d = BB[k % NB] + 4 * rho
                off = (osb if (8 <= k < 16 or k == 17) else osa) + (2048 * (k & 7) if k < 16 else 16384) + 1024 * rho
                out.append(R.op(f'ds_read_b128 a[{d}:{d + 3}], v{vO0} offset:{self.addr(R, vO0, off, lo=lo)}', after=[bar], lo=lo, prio=10))
            return out
        rds = {k: reads(k, g0 - 3) for k in range(NB - 1)}
        self.stamp(R, 'C')
        for k in range(18):
            w = R.wait(rds[k], dist=2)
            if k & 1:
                self.lastwait[nC + (k >> 1)] = w
            g = R.here
            if k in (6, 12) and self.o.get('fine'):
                self.stamp(R, f'C.{k}')
            if k == self.o.get('xk', 6):
                self.final_prefetch(R, g)
                self.sel_regs(R, PQ + 8, T + 20, lo=g - 200)
            if k == self.o.get('f3k', 11):
                if not self.o.get('sent', 0):
                    self.flag_later(R, '3', self.part_stores)
                self.pre_bar += [(o_, 4) for o_ in self.own_writes]
                self.post_bar.append(lambda b_: setattr(self, 'own_bar', b_))
            if self.o.get('sent', 0):
                if k == self.o.get('plk', 12):
                    self.partial_loads(R, None, g)
            elif self.o.get('p3e', 0):
                if k == self.o.get('p3i', 0):
                    self.p3 = self.poll(R, 'p', SW, self.flag_addr('3', False, sT2, own_ok=True), 3, 1, g, g, defer=True)
                if '3' in self.flags and self.p3:
                    chk = self.p3(g, [self.flags['3']])
                    self.p3 = None
                    self.partial_loads(R, chk, g)
            elif k == self.o.get('p3k', 13):
                chk = self.poll(R, 'p', SW, self.flag_addr('3', False, sT2), 3, 1, g, g + self.o.get('p3d', 4) * 2 * nf, after=[self.flags['3']])
                self.partial_loads(R, chk, g)
            if k + NB - 1 < 18:
                rds[k + NB - 1] = reads(k + NB - 1, g + 1)
                for q_, o in enumerate(rds[k + NB - 1]):
                    o.after.append((w, 0))
                    o.hi = g + 1 + (q_ + 1) // 2
            for f in range(nf):
                for rho in range(2):
                    d = vr(self.SA(rho, f))
                    R.mfma(f'{MF} {d}, a[{AB[k % NB][1] + 4 * f}:{AB[k % NB][1] + 4 * f + 3}], a[{BB[k % NB] + 4 * rho}:{BB[k % NB] + 4 * rho + 3}], {d if k else 0}', after=[w] if f + rho == 0 else [], cap=3)
        self.marks.append((R, R.here, 'Cend'))

    def final(self):
        L = self.lin.text
        vp = T + 19
        self.stamp(None, 'Cend')
        PBS = self.PBS
        NP = len(self.xo)
        if self.o.get('sent', 0):
            x = self.sfx
            regs = [PBS[p] + e for p in range(NP) for e in range(4, 16)]
            t0, t1 = RING, RING + 1
            ver = f'v_max3_u32 v{t0}, v{regs[0]}, v{regs[1]}, v{regs[2]}\nv_max3_u32 v{t1}, v{regs[3]}, v{regs[4]}, v{regs[5]}\n'
            for n_ in range(6, len(regs), 2):
                tt = t0 if n_ & 2 else t1
                ver += f'v_max3_u32 v{tt}, v{tt}, v{regs[n_]}, v{regs[n_ + 1]}\n'
            ver += f'v_max_u32 v{t0}, v{t0}, v{t1}\nv_cmp_eq_u32 vcc, -1, v{t0}\n'
            L('s_waitcnt vmcnt(0)\n' + ver + f's_cbranch_vccnz L_more{x}\nL_have{x}:')
            rec = ''
            if self.stamps:
                rec = f'v_mov_b32 v{T + 26}, s{sCNT}\ns_lshl_b32 s0, s2, 10\ns_add_u32 s0, s0, {DUMP_BASE + 768 + 4 * len(self.slow)}\nbuffer_store_dword v{T + 26}, v{vFST}, {sr(SW)}, s0 offen\n'
            self.slow.append(f'''L_more{x}:
            s_mov_b32 s{sCNT}, 0
            v_mov_b32 v{vPOLL}, s{KA + 3}
            v_writelane_b32 v{vPOLL}, s{KA + 1}, 1
            v_writelane_b32 v{vPOLL}, s{KA + 2}, 2
            s_lshl_b32 s{sT2}, s{sWV}, 10
            s_add_u32 s{sT2}, s{sT2}, {4096 + 1020}
            L_light{x}:
            buffer_load_dword v{vp}, v{vPOLL}, {sr(SW)}, s{sT2} offen sc1
            s_add_u32 s{sCNT}, s{sCNT}, 1
            s_cmp_ge_u32 s{sCNT}, {self.o['spin']}
            s_cbranch_scc1 L_stopw{x}
            s_waitcnt vmcnt(0)
            v_cmp_eq_u32 vcc, -1, v{vp}
            s_cbranch_vccnz L_light{x}
            ''' + '\n'.join(self.p_ld) + '\ns_waitcnt vmcnt(0)\n' + ver + f'''s_cbranch_vccnz L_light{x}
            L_stopw{x}:
            {rec}s_waitcnt vmcnt(0)
            s_branch L_have{x}''')
        for p in range(NP):
            L(f'v_permlane16_swap_b32 v{self.XR + 4 * p}, v{self.XR + 4 * p + 2}\nv_permlane16_swap_b32 v{self.XR + 4 * p + 1}, v{self.XR + 4 * p + 3}')
        A1, A0 = PQ + 8, PQ + 10
        MS = self.LB
        red = [[f'{MF} {vr(MS + 8 * piece + 4 * half)}, {vr(A1 if half else A0)}, {vr(PBS[piece] + 4 * pj)}, {vr(MS + 8 * piece + 4 * half) if pj else 0}'
                for pj in range(4) for half in range(2)] for piece in range(NP)]
        for x in red[0]:
            L(x)
        R = Region(cap=1000)
        tm = RING
        for piece in range(NP):
            for half in range(2):
                rho, u = (piece, half) if piece < 2 else (half, 2)
                S = self.SA(rho, u)
                X = self.XR + 4 * piece + 2 * half
                M = MS + 8 * piece + 4 * half
                for e in range(4):
                    m = M + e
                    t0 = tm + 2 * e + 8 * (half)
                    R.op(f'v_mul_f32 v{m}, v{SC + rho}, v{m}')
                    R.op(f'v_mul_f32 v{t0}, {hex(NLOG2E)}, v{m}')
                    R.op(f'v_exp_f32 v{t0}, v{t0}')
                    R.op(f'v_mul_f32 v{m}, v{m}, v{S + e}')
                    R.op(f'v_add_f32 v{t0}, 1.0, v{t0}')
                    R.op(f'v_rcp_f32 v{t0}, v{t0}')
                    src = X + (e >> 1)
                    R.op(f'v_and_b32 v{t0 + 1}, 0xffff0000, v{src}' if e & 1 else f'v_lshlrev_b32 v{t0 + 1}, 16, v{src}')
                    R.op(f'v_fma_f32 v{m}, v{m}, v{t0}, v{t0 + 1}')
                nxt = red[piece + 1][4 * half:4 * half + 4] if piece + 1 < NP else []
                for k_, o in enumerate(self.interleave(R.ops)):
                    self.lin.op(o)
                    if nxt and k_ % 6 == 3:
                        L(nxt.pop(0))
                R.ops = []
                Z = MS + 8 * piece
                L(f'v_cvt_pk_bf16_f32 v{Z + 2 * half}, v{M}, v{M + 1}\nv_cvt_pk_bf16_f32 v{Z + 2 * half + 1}, v{M + 2}, v{M + 3}')
            va, so, imm = self.xo[piece]
            L(f'v_permlane16_swap_b32 v{Z}, v{Z + 2}\nv_permlane16_swap_b32 v{Z + 1}, v{Z + 3}')
            L(f'buffer_store_dwordx4 {vr(Z)}, v{va}, {sr(SO)}, {so} offen offset:{imm}{("", " sc1", " nt", " sc0 sc1", " sc1 nt")[self.o.get("osc1", 0)]}')
        self.stamp(None, 'end')

    @staticmethod
    def interleave(ops):
        per = len(ops) // 4
        return [ops[e * per + k] for k in range(per) for e in range(4)]

    def build(self):
        self.hl = {}
        self.flags = {}
        self.build_stream()
        self.setup()
        for fn in (self.layernorm, self.main):
            R = fn()
            if self.o.get('probe') and (fn == self.main or self.o.get('probe') == 3):
                self.lin.probe_vm = self.o['probe'] >= 2
                if self.lin.probe is None:
                    self.lin.probe_skip = self.o.get('pskip', 0)
                self.lin.probe = PRV
                self.o['pf_dummy'] = 1
            for o in R.schedule(self.log):
                self.lin.op(o)
            if self.o.get('prof'):
                ld = R.loads
                for g in range(0, R.nspine, 48):
                    xs = [ld[k] for k in range(g, min(g + 48, R.nspine))]
                    self.log.append(f'{g:5d} sum={sum(xs):4d} ' + ''.join(str(min(9, v)) for v in xs))
        if self.o.get('probe'):
            if self.lin.probe_open:
                self.lin._probe_end()
            self.lin._emit_wait(None, 0)
            self.lin.probe = None
            self.lin.text(f's_lshl_b32 s0, s{sI}, 4\ns_add_u32 s0, s0, s{sJ}\ns_lshl_b32 s0, s0, 2\ns_add_u32 s0, s0, s{sWV}\ns_mul_i32 s0, s0, 768\ns_add_u32 s0, s0, {DUMP_BASE}\nv_lshlrev_b32 v{vPOLL}, 2, v{vLANE}')
            for k in range(3):
                self.lin.text(f'buffer_store_dword v{PRV + k}, v{vPOLL}, {sr(SW)}, s0 offen offset:{256 * k}')
            self.stamp_names = ['probe'] + self.lin.probe_names
        prev = None
        for R_, g, nm in self.marks:
            cur = (R_, R_.time_at[g], R_.slot_t[g], g)
            if prev and prev[0] is R_:
                cat = {}
                for o in R_.ops:
                    if o.pipe and prev[3] < o.gap <= g:
                        k = o.ins[0].kind + (o.tag[0] if o.tag else '')
                        cat[k] = cat.get(k, 0) + o.pipe
                self.log.append(f'  model {nm}: with pipe {cur[1] - prev[1]:.0f}  issue only {cur[2] - prev[2]:.0f} pipe {sum(cat.values())} {cat}')
            prev = cur
        self.final()
        self.lin.text('s_endpgm')
        body = list(self.lin.out)
        for s in self.slow:
            body += [l.strip() for l in s.split('\n')]
        body += [f'L_stop{self.sfx}:', 's_endpgm']
        self.log.append(f'nops={self.lin.nops} autowaits={len(self.lin.autowaits)} instrs={len(body)}')
        return body


DOC = '''
;
;   q in {0,3}: five 64-column gate/up steps, eight 16-column output tiles; q in {1,2}: four steps, ten tiles.
'''


def assemble(gens):
    body = ['s_cmp_ge_u32 s2, 256', 's_cbranch_scc0 L_go', 's_endpgm', 'L_go:', 's_load_dwordx4 s[4:7], s[0:1], 0',
            's_load_dwordx4 s[32:35], s[0:1], 64', 's_load_dwordx2 s[36:37], s[0:1], 16', 's_load_dwordx4 s[8:11], s[0:1], 32',
            's_load_dwordx4 s[20:23], s[0:1], 48']
    body += ['s_bitcmp1_b32 s2, 7'] if gens[0].o.get('hicls', 0) else ['s_add_u32 s3, s2, 8', 's_bitcmp1_b32 s3, 4']
    body += ['s_cbranch_scc1 L_four']
    body += gens[0].build() + ['.p2align 6', 'L_four:'] + gens[1].build()
    hdr = open('cdna_kernels/' + NAME + '.s.ref').read().split('\n')
    head = [l for l in hdr if l.startswith(';')][:11]
    K = NAME + '_kernel'
    txt = head + [f'; @launch grid=(256,1,1) block=(256,1,1) lds={LDS_BYTES}'] + DOC.strip().split('\n') + [
                  '.amdgcn_target "amdgcn-amd-amdhsa--gfx950"', '.text', f'.globl {K}', '.p2align 8',
                  f'.type {K},@function', f'{K}:']
    txt += [l.replace(' offset:0 ', ' ').replace(', ', ',') for l in body]
    txt += ['.section .rodata,"a"', '.p2align 6', f'.amdhsa_kernel {K}', '  .amdhsa_next_free_vgpr 512',
            '  .amdhsa_next_free_sgpr 102', '  .amdhsa_accum_offset 256', '  .amdhsa_group_segment_fixed_size 0',
            '  .amdhsa_kernarg_size 80', '  .amdhsa_float_denorm_mode_32 3', '  .amdhsa_user_sgpr_count 2',
            '  .amdhsa_user_sgpr_kernarg_segment_ptr 1', '  .amdhsa_system_sgpr_workgroup_id_x 1',
            '.end_amdhsa_kernel']
    return '\n'.join(txt) + '\n'


if __name__ == '__main__':
    import argparse
    ap = argparse.ArgumentParser()
    ap.add_argument('out')
    ap.add_argument('--stamps', action='store_true')
    ap.add_argument('-o', action='append', default=[])
    a = ap.parse_args()
    opts = {k: int(v, 0) for k, v in (x.split('=') for x in a.o)}
    P_A, P_H, P_S, P_AH = opts.get('pa', P_A), opts.get('ph', P_H), opts.get('ps', P_S), opts.get('pah', P_AH)
    gens = [Gen(5, stamps=a.stamps, opts=opts), Gen(4, stamps=a.stamps, opts=opts)]
    open(a.out, 'w').write(assemble(gens))
    open(a.out + '.names', 'w').write(' '.join(gens[0].stamp_names) + '\n' + ' '.join(gens[1].stamp_names))
    for g in gens:
        print('\n'.join(g.log))
        for t in g.lin.autowaits:
            if not t.startswith(('v_mfma', 'v_permlane')):
                print('  autowait:', t)
```

```python
import sys
from sched import Region, Linear, Op, Ins

NAME = 'recurrent_scan__linear_attn_block__glu_gated_glu__prompt'
MF = 'v_mfma_f32_16x16x32_bf16'
LOG2E = 0x3fb8aa3b
NLOG2E = 0xbfb8aa3b
EPS6 = 0x358637bd
OOB = 0x80000000

F1, F2A, F2B, F3, F2O, F2C = 0, 4096, 4096 + 8192, 4096 + 16384, 4096 + 24576, 4096 + 32768
F2D = 4096 + 40960
KV2_BASE = 0x100000
KV_BASE, OL_BASE, O_BASE, PART_BASE, H_BASE = 0x20000, 0x200000, 0x300000, 0x500000, 0x1000000
DUMP_BASE = 0x2400000
WS_SIZE = 0x4000000
RS = 159744
QL = 160256
DUMMY = 162304
LDS_BYTES = 163840

SX, SG, SU, SQ, SD, SW, SO, SB, SWO = 4, 8, 12, 16, 20, 24, 28, 32, 36
sI, sJ, sJJ, sQ_, sIL, sWV, sR, sC = 40, 41, 42, 43, 44, 45, 46, 47
KA, KQ, TB = 48, 57, 66
sMA, sM2, sH0, sH1, sT0, sT1, sT2, sT3 = 84, 85, 86, 87, 88, 89, 90, 91
sMASKC, sMASKONE, sMK2, sMK3 = 92, 94, 32, 34
sHB, sCNT, sK3, sK4, sK5 = 96, 97, 98, 99, 100
sS0 = 0
sJQ = 101
sEPS = SQ + 3
sIH = 3
sCNT2 = TB + 9
sCL2 = sM2
sCNT2X = sM2
sST = 76
ACC0, ACC1, XNV, RING = 0, 64, 128, 160
PQ = 192
SC = 208
vL16, vA0, vA1, vLA0, vLA1, vLB, vLL = 212, 213, 214, 215, 216, 217, 218
P_A, P_AH, P_Q, P_B, P_H, P_S = 76, 160, 175, 100, 72, 200
V288 = 219
vFST, vONE, vLANE, vPOLL = 224, 225, 226, 227
T = 228
NT = 28
PSTR = 10240
XR_ = 18432
PRB = 'probe'
PRV = T + 25
V_G0, V_G1 = T + 10, T + 6
VQ = [vLL, T, T + 1, V288 + 4]


def vr(b, n=4):
    return f'v[{b}:{b + n - 1}]' if n > 1 else f'v{b}'


def sr(b, n=4):
    return f's[{b}:{b + n - 1}]'


def xn(n, lo=0, cnt=4):
    if n < 64:
        return f'a[{4 * n + lo}:{4 * n + lo + cnt - 1}]'
    return vr(XNV + 4 * (n - 64) + lo, cnt)


class Gen:
    def __init__(self, ns, stamps=False, opts=None):
        self.ns = ns
        self.nt = 8 if ns == 5 else 10
        self.CH, self.NCH = (18432, 8) if ns == 5 else (20480, 7)
        self.KVX = self.CH * self.NCH
        self.order = ('A0', 'Q', 'A1', 'A2', 'A3', 'A4')[:ns + 1]
        self.LB, self.OB = (ACC1, ACC0) if ns == 5 else (ACC0, ACC1)
        self.sfx = f'_{ns}'
        self.jump = (2, 0, -4, 0) if ns == 5 else (1, 0, -3)
        self.stamps = stamps
        self.o = dict(ntail=4, f3k=3, ppf=600, hlook=7, pkv=90, warm=True, spin=200000, ddma=50, dst=70, backlog=60, dh=50, dm=110)
        self.o.update(opts or {})
        self.lin = Linear()
        self.slow = []
        self.log = []
        self.nstamp = 0
        self.marks = []
        self.spool = 0
        self.stamp_names = []

    def setup(self):
        L = self.lin.text
        st = self.stamps
        hi = self.o.get('hicls', 0)
        L(f'''
        {'s_memrealtime s[76:77]' if st else ''}
        s_getpc_b64 s[{sT2}:{sT3}]
        L_pc{self.sfx}:
        s_lshr_b32 s{sT1}, s2, 3
        v_and_b32 v{vLANE}, 63, v0
        v_lshrrev_b32 v1, 6, v0
        {f's_and_b32 s{sT0}, s{sT1}, 15' if hi else f's_lshr_b32 s{sT0}, s2, 4'}
        {'' if hi else f's_and_b32 s{sT0}, s{sT0}, 14'}
        {'' if hi else f's_bfe_u32 s{sK3}, s2, 0x10003'}
        {'' if hi else f's_or_b32 s{sT0}, s{sT0}, s{sK3}'}
        v_lshl_add_u32 v2, v{vLANE}, 4, s{sT0}
        v_readfirstlane_b32 s{sWV}, v1
        v_lshlrev_b32 v2, 7, v2
        v_min_u32 v2, L_stop{self.sfx}-L_pc{self.sfx}, v2
        v_cmp_gt_u32 vcc, {32 if self.o['warm'] else 0}, v0
        s_and_saveexec_b64 s[{sK3}:{sK4}], vcc
        s_cbranch_execz L_nowarm{self.sfx}
        global_load_dword v{T + 27}, v2, s[{sT2}:{sT3}]
        L_nowarm{self.sfx}:
        s_mov_b64 exec, -1''')
        self.lin.vm.pop()
        L(f'''
        s_and_b32 s{sQ_}, s{sT1}, {1 if hi else 3}
        {(f's_mul_i32 s{sQ_}, s{sQ_}, 3' if self.ns == 5 else f's_add_u32 s{sQ_}, s{sQ_}, 1') if hi else ''}
        {f's_bfe_u32 s{sIL}, s{sT1}, 0x30001' if hi else f's_lshr_b32 s{sIL}, s{sT1}, 2'}
        s_and_b32 s{sT0}, s2, 1
        s_lshl_b32 s{sT0}, s{sT0}, 3
        s_add_u32 s{sI}, s{sT0}, s{sIL}
        s_lshl_b32 s{sT0}, s{sQ_}, 1
        s_add_u32 s{sT0}, s{sT0}, s{sIL}
        s_sub_u32 s{sT2}, s{sT0}, 9
        s_cselect_b32 s{sT0}, s{sT0}, s{sT2}
        s_lshl_b32 s{TB}, s{sT0}, 7
        s_lshl_b32 s{sT1}, s{sI}, 2
        s_add_u32 s{sT1}, s{sT1}, s{sWV}
        s_lshl_b32 s{sT1}, s{sT1}, 5
        v_lshrrev_b32 v4, 3, v{vLANE}
        v_add_u32 v4, s{sT1}, v4
        v_mul_u32_u24 v4, 1152, v4
        v_bfe_u32 v5, v{vLANE}, 4, 2
        v_lshlrev_b32 v5, 1, v5
        v_and_b32 v6, 7, v{vLANE}
        v_xor_b32 v{vA0}, v5, v6
        v_lshl_add_u32 v{T + 2}, v{vA0}, 4, v4
        v_add_u32 v{T + 3}, {8 * 1152 - 1024}, v{T + 2}
        v_add_u32 v{T + 4}, {16 * 1152}, v{T + 2}
        v_add_u32 v{T + 5}, {24 * 1152 - 1024}, v{T + 2}
        s_mul_i32 s{sM2}, s{sWV}, {XR_}
        s_add_u32 s{sM2}, s{sM2}, 16384
        s_add_u32 s{sCNT2}, s{sM2}, {4 * XR_}
        v_mov_b32 v{T + 25}, v0''')
        L(f'''
        {'s_memrealtime s[78:79]' if st else ''}
        s_waitcnt lgkmcnt(0)
        {'s_memrealtime s[80:81]' if st else ''}
        s_mov_b32 s{SQ}, s6
        s_mov_b32 s{SQ + 1}, s7
        s_mov_b32 s6, {2048 * 1152}
        s_mov_b32 s7, 0x20000''')
        self.xl = {}
        nf = self.o.get('xfirst', 3)
        order = [(0, u) for u in range(nf)] + [(1, u) for u in range(nf)]
        order += [(0, u) for u in range(nf, 9)] + [(1, u) for u in range(nf, 9)]
        pend = []
        for rho, u in order:
            pend.append(Op(f's_add_u32 m0, s{sCNT2 if rho else sM2}, {2048 * u}'))
            for hf in range(2):
                op = Op(f'buffer_load_dwordx4 v{T + 2 + 2 * rho + hf}, {sr(SX)}, s{TB + u} offen offset:{1024 * hf} lds')
                self.xl[rho, u, hf] = op
                pend.append(op)
        nxt = lambda u: L(f's_add_u32 s{TB + u}, s{TB + u - 1}, 128\ns_cmp_eq_u32 s{TB + u}, 1152\ns_cselect_b32 s{TB + u}, 0, s{TB + u}')
        for g in range(2 * nf):
            for _ in range(3):
                self.lin.op(pend.pop(0))
            if g + 1 < nf:
                nxt(g + 1)
        for u in range(nf, 9):
            nxt(u)
        if st:
            L('s_memrealtime s[82:83]')
        S = Region()
        L = S.op
        L(f'''
        s_mov_b32 s{SW}, s34
        s_mov_b32 s{SW + 1}, s35
        s_mov_b32 s{SW + 2}, {WS_SIZE}
        s_mov_b32 s{SW + 3}, 0x20000
        s_bfe_u32 s{sJJ}, s2, 0x20001
        s_lshl_b32 s{sJ}, s{sJJ}, 2
        s_and_b32 s{sT0}, s{sQ_}, 2
        s_add_u32 s{sJ}, s{sJ}, s{sT0}
        s_lshr_b32 s{sT0}, s{sJJ}, 1
        s_xor_b32 s{sT0}, s{sT0}, {(self.ns - 4) ^ self.o.get('qflip', 1)}
        s_add_u32 s{sJ}, s{sJ}, s{sT0}
        s_lshr_b32 s{sIH}, s{sI}, 3
        s_and_b32 s{sIH}, s{sIH}, {self.o.get('ihoff', 1)}
        s_xor_b32 s{sJQ}, s{sJ}, {self.o.get('qswap', 1)}
        s_lshr_b32 s{sR}, s{sWV}, 1
        s_and_b32 s{sC}, s{sWV}, 1
        v_mov_b32 v{vONE}, 1
        v_min_u32 v{vFST}, 1, v{T + 25}
        v_lshlrev_b32 v{vFST}, 31, v{vFST}
        v_lshlrev_b32 v{vL16}, 4, v{vLANE}''')
        if self.o.get('defer', 1):
            self.ln_consts(S)
        nearly = len(S.ops)
        for u in range(9):
            L(f's_mul_i32 s{KA + u}, s{TB + u}, {64 * 9216 // 128}\ns_mul_i32 s{KQ + u}, s{TB + u}, {64 * 3456 // 128}')
        L(f'''
        s_mov_b32 s{SU}, s10
        s_mov_b32 s{SU + 1}, s11
        s_mov_b32 s{SO}, s22
        s_mov_b32 s{SO + 1}, s23
        s_mov_b32 s{SO + 2}, {2048 * 1152}
        s_mov_b32 s{SO + 3}, 0x20000
        s_mov_b32 s{SB + 2}, 256
        s_mov_b32 s{SB + 3}, 0x20000
        s_lshl_b32 s{sT1}, s{sQ_}, 3
        s_lshr_b32 s{sCNT}, 0x0d090500, s{sT1}
        s_and_b32 s{sCNT}, s{sCNT}, 0xff
        s_lshl_b32 s{sT0}, s{sCNT}, 7
        s_mul_i32 s{sT1}, s{sJJ}, 2304
        s_add_u32 s{sT0}, s{sT0}, s{sT1}
        s_add_u32 s{SG}, s{SG}, s{sT0}
        s_addc_u32 s{SG + 1}, s{SG + 1}, 0
        s_sub_u32 s{SG + 2}, {576 * 9216}, s{sT0}
        s_mov_b32 s{SG + 3}, 0x20000
        s_add_u32 s{SU}, s{SU}, s{sT0}
        s_addc_u32 s{SU + 1}, s{SU + 1}, 0
        s_sub_u32 s{SU}, s{SU}, 1024
        s_subb_u32 s{SU + 1}, s{SU + 1}, 0
        s_sub_u32 s{SU + 2}, {576 * 9216 + 1024}, s{sT0}
        s_mov_b32 s{SU + 3}, 0x20000
        s_mov_b32 s{SQ + 2}, {576 * 3456}
        s_mov_b32 s{SQ + 3}, 0x20000
        s_lshl_b32 s{sT1}, s{sQ_}, 3
        s_lshr_b32 s{sT0}, 0x07050200, s{sT1}
        s_and_b32 s{sT0}, s{sT0}, 0xff
        s_lshl_b32 s{sT0}, s{sT0}, 7
        s_mul_i32 s{sT1}, s{sR}, {4 * 1152}
        s_add_u32 s{sT1}, s{sT1}, s{sT0}
        s_add_u32 s{SWO}, s{SWO}, s{sT1}
        s_addc_u32 s{SWO + 1}, s{SWO + 1}, 0
        s_sub_u32 s{SWO}, s{SWO}, 1024
        s_subb_u32 s{SWO + 1}, s{SWO + 1}, 0
        s_sub_u32 s{SWO + 2}, {576 * 1152 + 1024}, s{sT1}
        s_mov_b32 s{SWO + 3}, 0x20000
        s_mul_i32 s{sT1}, s{sJJ}, {1152 * 1152}
        s_add_u32 s{sT0}, s{sT0}, s{sT1}
        s_add_u32 s{SD}, s{SD}, s{sT0}
        s_addc_u32 s{SD + 1}, s{SD + 1}, 0
        s_sub_u32 s{SD}, s{SD}, 1024
        s_subb_u32 s{SD + 1}, s{SD + 1}, 0
        s_sub_u32 s{SD + 2}, {4608 * 1152 + 1024}, s{sT0}
        s_mov_b32 s{SD + 3}, 0x20000
        s_lshl_b32 s{sMA}, s{sWV}, 11
        v_lshrrev_b32 v{T + 9}, 3, v{vLANE}
        s_lshl_b32 s{sT0}, s{sWV}, 3
        v_add_u32 v{T + 9}, s{sT0}, v{T + 9}
        v_mul_u32_u24 v{T + 9}, 9216, v{T + 9}
        v_lshl_add_u32 v{vA0}, v{vA0}, 4, v{T + 9}
        v_add_u32 v{vA1}, {32 * 9216}, v{vA0}
        v_lshrrev_b32 v{T + 8}, 2, v{vLANE}
        v_lshrrev_b32 v{T + 9}, 5, v{vLANE}
        v_lshlrev_b32 v{T + 9}, 11, v{T + 9}
        v_and_b32 v{T + 7}, 7, v{T + 8}
        v_lshl_add_u32 v{T + 9}, v{T + 7}, 7, v{T + 9}
        v_bfe_u32 v{T + 7}, v{vLANE}, 3, 2
        s_lshl_b32 s{sT0}, s{sC}, 1
        v_xor_b32 v{T + 7}, s{sT0}, v{T + 7}
        v_lshl_add_u32 v{T + 9}, v{T + 7}, 5, v{T + 9}
        v_and_b32 v{T + 7}, 3, v{vLANE}
        v_lshl_add_u32 v{vLA0}, v{T + 7}, 3, v{T + 9}
        v_xor_b32 v{vLA1}, 32, v{vLA0}
        s_sub_u32 s{sMASKC}, 0, s{sC}
        s_mov_b32 s{sMASKC + 1}, s{sMASKC}
        s_lshl_b32 s{sT0}, s{sC}, 1
        s_lshr_b32 s{sMASKONE}, 0x44444444, s{sT0}
        s_mov_b32 s{sMASKONE + 1}, s{sMASKONE}
        s_lshl_b32 s{sT0}, s{sI}, 2
        s_add_u32 s{sT0}, s{sT0}, s{sJJ}
        s_mul_i32 s{sHB}, s{sT0}, {18 * 16384}
        s_add_u32 s{sHB}, s{sHB}, {H_BASE}
        s_lshl_b32 s{sT0}, s{sCNT}, 14
        s_add_u32 s{sT0}, s{sT0}, s{sHB}
        s_lshl_b32 s{sT1}, s{sC}, 11
        s_add_u32 s{sT0}, s{sT0}, s{sT1}
        s_lshl_b32 s{sT1}, s{sWV}, 12
        s_add_u32 s{sH0}, s{sT0}, s{sT1}
        s_xor_b32 s{sT1}, s{sT1}, 4096
        s_add_u32 s{sH1}, s{sT0}, s{sT1}''')
        qd, qr = self.pat_qkv()
        L(qd)
        L(qr)
        if not self.o.get('defer', 1):
            self.ln_consts(S)
            nearly = len(S.ops)
        for o in S.ops[:nearly]:
            self.lin.op(o)
        rest = S.ops[nearly:]
        if st:
            self.lin.text('s_waitcnt lgkmcnt(0)')
            for k, nm in enumerate(('entry', 'karg0', 'karg1', 'xa')):
                self.stamp_names.append(nm)
                self.lin.text(f'v_mov_b32 v{T + 26}, s{sST + 2 * k}\nv_mov_b32 v{T + 27}, 0\ns_lshl_b32 s{sT2}, s2, 10\ns_add_u32 s{sT2}, s{sT2}, {DUMP_BASE + 8 * k}\nbuffer_store_dwordx2 v[{T + 26}:{T + 27}], v{vFST}, {sr(SW)}, s{sT2} offen')
            self.nstamp = 4
        self.stamp(None, 'setup')
        k = 3 * (9 - nf)
        per = -(-len(rest) // (9 - nf))
        for g in range(9 - nf):
            ops = pend[3 * g:3 * g + 2] + rest[per * g:per * g + per // 2] + [pend[3 * g + 2]] + rest[per * g + per // 2:per * (g + 1)]
            for o in ops:
                self.lin.op(o)
        self.x_pend = pend[k:]
        self.base = {vLA0: 0, vLA1: 0}
        self.base.update({r: 0 for r in VQ})

    @staticmethod
    def raw(rho, t):
        if rho == 0:
            return ACC0 + 4 * t if t < 16 else ACC1 + 56 + 4 * (t - 16)
        return RING + 4 * t if t < 4 else ACC1 + 4 * (t - 4)

    def flag_addr(self, f, own, dst, sT1=sT1, own_ok=False):
        t = dst
        if f == '1':
            blk, grp, line, mem = (sJ if own else sJQ), None, 21, sI
        elif f == '2o':
            blk, grp, line, mem = sI, None, 20, sJ
        elif f == '3':
            blk, grp, line, mem = sI, sQ_, 16, sJJ
        else:
            blk, grp, line, mem = sI, sJJ, 4 * 'abcd'.index(f[1]), sQ_
        s = f's_lshl_b32 s{t}, s{blk}, 5\n'
        if grp is not None:
            s += f's_add_u32 s{t}, s{t}, s{grp}\n'
        if line:
            s += f's_add_u32 s{t}, s{t}, {line}\n'
        if own:
            s += f's_lshl_b32 s{t}, s{t}, 5\ns_add_u32 s{t}, s{t}, s{mem}\ns_lshl_b32 s{t}, s{t}, 2\n'
        else:
            s += f's_lshl_b32 s{t}, s{t}, 7\n'
        return s

    def pat_b(self, a, b):
        s = f'''v_lshrrev_b32 v{a}, 3, v{vLANE}
        s_lshl_b32 s{sK5}, s{sWV}, 3
        v_add_u32 v{a}, s{sK5}, v{a}
        v_mul_u32_u24 v{a}, 1152, v{a}
        v_bfe_u32 v{b}, v{vLANE}, 4, 2
        v_lshlrev_b32 v{b}, 1, v{b}
        v_and_b32 v{V288}, 7, v{vLANE}
        v_xor_b32 v{b}, v{b}, v{V288}
        v_lshl_add_u32 v{a}, v{b}, 4, v{a}
        v_add_u32 v{V288}, 1024, v{a}
        v_add_u32 v{V288 + 1}, 128, v{a}
        v_add_u32 v{V288 + 2}, {1024 + 32 * 1152}, v{a}
        v_add_u32 v{V288 + 3}, {128 + 32 * 1152}, v{a}
        '''
        if self.nt > 8:
            s += f'''v_lshrrev_b32 v{a}, 2, v{vLANE}
            s_lshl_b32 s{sK5}, s{sWV}, 4
            v_add_u32 v{a}, s{sK5}, v{a}
            v_mul_u32_u24 v{a}, 1152, v{a}
            v_bfe_u32 v{b}, v{vLANE}, 4, 1
            v_lshlrev_b32 v{b}, 1, v{b}
            v_and_b32 v{V288 + 4}, 3, v{vLANE}
            v_xor_b32 v{b}, v{b}, v{V288 + 4}
            v_lshl_add_u32 v{a}, v{b}, 4, v{a}
            s_mul_i32 s{sK5}, s{sQ_}, -320
            s_add_u32 s{sK5}, s{sK5}, {1024 + 576}
            v_add_u32 v{V288 + 4}, s{sK5}, v{a}
            '''
        return s

    def pat_c(self):
        s = f'v_add_u32 v{V288 + 2}, {4 * 1152}, v{V288 + 2}\nv_add_u32 v{V288 + 3}, {4 * 1152}, v{V288 + 3}\n'
        if self.nt > 8:
            s += f's_mul_i32 s{sK5}, s{sC}, {4 * 1152}\nv_add_u32 v{V288 + 4}, s{sK5}, v{V288 + 4}\n'
        return s

    def pat_cl(self, a=T + 20):
        s = f'v_lshrrev_b32 v{a}, 5, v{vLANE}\nv_mul_u32_u24 v{a}, {68 * 1152}, v{a}\n'
        for k in range(4):
            s += f'v_add_u32 v{PQ + k}, v{a}, v{V288 + k}\n'
            if k >= 2:
                s += f'v_add_u32 v{PQ + k}, {256 * 1152}, v{PQ + k}\n'
        s += f'''s_mul_i32 s{KQ + 8}, s{sC}, 136
        s_lshl_b32 s{sK5}, s{sR}, 4
        s_add_u32 s{KQ + 8}, s{KQ + 8}, s{sK5}
        s_add_u32 s{KQ + 8}, s{KQ + 8}, 16
        s_mul_i32 s{KQ + 8}, s{KQ + 8}, 1152
        '''
        if self.nt > 8:
            s += f'''v_lshrrev_b32 v{a}, 4, v{vLANE}
            v_mul_u32_u24 v{a}, {68 * 1152}, v{a}
            v_add_u32 v{PQ + 4}, v{a}, v{V288 + 4}
            s_mul_i32 s{sCL2}, s{sR}, 252
            s_mul_i32 s{sK5}, s{sC}, 20
            s_add_u32 s{sCL2}, s{sCL2}, s{sK5}
            s_add_u32 s{sCL2}, s{sCL2}, 16
            s_mul_i32 s{sCL2}, s{sCL2}, 1152
            '''
        return s

    def pat_qkv(self, a=T + 20, b=T + 21, c=T + 22, d=T + 23, e=T + 24):
        s = f'''s_mul_i32 s{sK3}, s{sJQ}, 72
        s_and_b32 s{sK3}, s{sK3}, -16
        v_mov_b32 v{e}, s{sK3}
        s_mul_i32 s{sK3}, s{sJ}, 72
        s_and_b32 s{sK3}, s{sK3}, -16
        '''
        for n in range(4):
            s += f'''v_lshrrev_b32 v{a}, 4, v{vLANE}
            v_add_u32 v{a}, {4 * n}, v{a}
            v_and_b32 v{b}, 7, v{a}
            v_lshlrev_b32 v{b}, 1, v{b}
            v_and_b32 v{c}, 15, v{vLANE}
            v_xor_b32 v{b}, v{b}, v{c}
            v_mul_u32_u24 v{c}, 52, v{b}
            v_lshrrev_b32 v{c}, 8, v{c}
            v_mul_u32_u24 v{d}, 5, v{c}
            v_sub_u32 v{b}, v{b}, v{d}
            v_lshlrev_b32 v{b}, 4, v{b}
            v_add_u32 v{d}, 1, v{c}
            v_mul_u32_u24 v{d}, 1152, v{d}
            v_add_u32 v{d}, s{sK3}, v{d}
            v_cmp_eq_u32 vcc, 2, v{c}
            v_cndmask_b32 v{d}, v{d}, v{e}, vcc
            v_add_u32 v{b}, v{b}, v{d}
            v_add_u32 v{c}, 1, v{c}
            v_lshrrev_b32 v{c}, 2, v{c}
            v_lshl_or_b32 v{b}, v{c}, 31, v{b}
            s_lshl_b32 s{sK5}, s{sWV}, 4
            v_add_u32 v{a}, s{sK5}, v{a}
            v_mul_u32_u24 v{a}, 3456, v{a}
            v_add_u32 v{V288 + n}, v{a}, v{b}
            '''
            if n:
                s += f'v_subrev_u32 v{V288 + n}, {1024 * n}, v{V288 + n}\n'
        r = f'''s_and_b32 s{sK3}, s{sJ}, 1
        s_lshl_b32 s{sK3}, s{sK3}, 3
        s_mul_i32 s{sK4}, s{sC}, 40
        s_and_b32 s{sK5}, s{sJQ}, 1
        s_lshl_b32 s{sK5}, s{sK5}, 3
        s_add_u32 s{sK5}, s{sK5}, s{sK4}
        s_add_u32 s{sK4}, s{sK4}, s{sK3}
        s_add_u32 s{sK3}, s{sK3}, 32
        '''
        for f in range(4):
            r += f'v_and_b32 v{a}, 3, v{vLANE}\n'
            if f < 3:
                r += f'v_lshl_add_u32 v{a}, v{a}, 3, s{sK5 if f == 2 else sK4}\nv_add_u32 v{a}, {80 * f}, v{a}\n'
            else:
                r += f'v_min_u32 v{a}, 2, v{a}\nv_lshrrev_b32 v{c}, 1, v{a}\nv_mul_u32_u24 v{a}, 80, v{a}\nv_add_u32 v{a}, s{sK3}, v{a}\nv_lshlrev_b32 v{c}, 3, v{c}\nv_and_b32 v{c}, {8 * self.o.get("qswap", 1)}, v{c}\nv_xor_b32 v{a}, v{a}, v{c}\n'
            r += f'''v_bfe_u32 v{b}, v{vLANE}, 2, 3
            v_lshlrev_b32 v{b}, 5, v{b}
            v_xor_b32 v{a}, v{a}, v{b}
            v_lshrrev_b32 v{b}, 2, v{vLANE}
            v_lshl_add_u32 v{VQ[f]}, v{b}, 8, v{a}
            '''
        return s, r

    def build_stream(self):
        st = []
        for name in self.order:
            st += [(name, u) for u in range(9)]
        st += [('B', u) for u in range(18)]
        st += [('O', 0), ('O', 1)]
        st += [('C', u) for u in range(9)]
        self.stream = st
        self.dmas = {}
        nC = len(st) - 9
        nO = nC - 2
        npin, tpin = self.o.get('npin', 0), self.o.get('tpin', 40)
        order = [n for n in range(len(st)) if not nC <= n < nC + npin]
        order[tpin:tpin] = list(range(nC, nC + npin))
        self.slot, self.next_user = {}, {}
        first = [0] + list(range(5, self.NCH)) + [1, 2, 3, 4] if self.o.get('npre', 9) > 1 else list(range(self.NCH))
        self.npre = min(self.o.get('npre', 9), self.NCH - 4)
        for k in range(self.NCH):
            self.slot[order[k]] = first[k]
        release = [n for n in range(len(st)) if n not in (nO, nO + 1)]
        for m, k in zip(order[self.NCH:], release):
            self.slot[m] = self.slot[k]
            self.next_user[k] = m
        self.prev_user = {m: k for k, m in self.next_user.items()}

    def dma_ops(self, n):
        name, u = self.stream[n]
        cb = self.slot[n] * self.CH
        ops = []
        if name[0] == 'A':
            if u == 0 and name != 'A0' and self.jump[int(name[1]) - 1]:
                ops.append(Op(f's_mul_i32 s{sK3}, s{sIH}, {128 * self.jump[int(name[1]) - 1]}\ns_add_u32 s{sK3}, s{sK3}, 128\ns_ashr_i32 s{sK4}, s{sK3}, 31'))
                for s_ in (SG, SU):
                    ops.append(Op(f's_add_u32 s{s_}, s{s_}, s{sK3}\ns_addc_u32 s{s_ + 1}, s{s_ + 1}, s{sK4}\ns_sub_u32 s{s_ + 2}, s{s_ + 2}, s{sK3}'))
            elif u == 0 and name != 'A0':
                for s_ in (SG, SU):
                    ops.append(Op(f's_add_u32 s{s_}, s{s_}, 128\ns_addc_u32 s{s_ + 1}, s{s_ + 1}, 0\ns_sub_u32 s{s_ + 2}, s{s_ + 2}, 128'))
            for hh in range(2):
                va = vA1 if hh else vA0
                ops.append(Op(f's_add_u32 m0, s{sMA}, {cb + 8192 * hh}'))
                ops.append(Op(f'buffer_load_dwordx4 v{va}, {sr(SG)}, s{KA + u} offen lds', pipe=P_A))
                ops.append(Op(f'buffer_load_dwordx4 v{va}, {sr(SU)}, s{KA + u} offen offset:1024 lds', pipe=P_A))
        elif name == 'O':
            pass
        elif name == 'Q':
            ops.append(Op(f's_lshl_b32 s{sK5}, s{sMA}, 1'))
            ops.append(Op(f's_add_u32 m0, s{sK5}, {cb}'))
            for k in range(4):
                ops.append(Op(f'buffer_load_dwordx4 v{V288 + k}, {sr(SQ)}, s{KQ + u} offen offset:{1024 * k} lds', pipe=(P_Q if (self.ns - 4) ^ self.o.get('qflip', 1) else 140) * self.o.get('pq', 100) // 100))
        else:
            if name == 'B':
                ops.append(Op(f's_mul_i32 s{sK3}, s{TB + u}, 9'))
                ops.append(Op(f's_lshr_b32 s{sK3}, s{sK3}, 1'))
                so, srd, vb = f's{sK3}', SD, V288
            else:
                so, srd, vb = f's{KQ + u}', SWO, (V288 if u < 8 else PQ)
                if u == 0:
                    ops += [Op(l) for l in self.pat_c().split('\n') if l]
            for hh in range(2):
                ops.append(Op(f's_add_u32 m0, s{sMA}, {cb + 8192 * hh}'))
                for ln in range(2):
                    ops.append(Op(f'buffer_load_dwordx4 v{vb + 2 * hh + ln}, {sr(srd)}, {so} offen offset:{1024 * ln} lds', pipe=P_A))
            if self.nt > 8:
                ops.append(Op(f's_lshr_b32 s{sK4}, s{sMA}, 1'))
                ops.append(Op(f's_add_u32 m0, s{sK4}, {cb + 16384}'))
                ops.append(Op(f'buffer_load_dwordx4 v{vb + 4}, {sr(srd)}, {f"s{sCL2}" if (name, u) == ("C", 8) else so} offen lds', pipe=P_AH))
        self.dmas[n] = [o for o in ops if 'dma' in o.kinds()]
        for o in self.dmas[n]:
            o.tag = f'{name}{u}'
        return ops

    def b_tables(self, R):
        R.op(f's_lshl_b32 s{sK3}, s{sQ_}, 1\ns_add_u32 s{sK3}, s{sK3}, s{sIL}')
        R.op(f's_mul_i32 s{sK4}, s{sIH}, {hex(0x100b0703 - 0x0e0a0601)}\ns_add_u32 s{sK4}, s{sK4}, 0x0e0a0601')
        for p in range(8):
            d = TB + p
            R.op(f'''s_add_u32 s{d}, s{sK3}, {p}
            s_bitcmp1_b32 s{d}, 0
            s_cselect_b32 s{sK5}, s{sK4}, 0x0d090500
            s_and_b32 s{d}, s{d}, 6
            s_lshl_b32 s{d}, s{d}, 2
            s_lshr_b32 s{d}, s{sK5}, s{d}
            s_and_b32 s{d}, s{d}, 0xff
            s_lshl_b32 s{d}, s{d}, 14''')
        R.op(f's_add_u32 s{sK3}, s{sIL}, s{sQ_}')
        for base, n, t0, t1 in ((8, 4, 0x0f0b0702, 0x110c0804), (12, 4, 0x100c0803, 0x0e0a0601), (16, 2, 0x1104, 0x0f02)):
            R.op(f's_mul_i32 s{sK4}, s{sIH}, {hex((t1 - t0) & 0xffffffff)}\ns_add_u32 s{sK4}, s{sK4}, {hex(t0)}')
            for p in range(n):
                d = TB + base + p
                R.op(f'''s_add_u32 s{d}, s{sK3}, {p}
                s_and_b32 s{d}, s{d}, {n - 1}
                s_lshl_b32 s{d}, s{d}, 3
                s_lshr_b32 s{d}, s{sK4}, s{d}
                s_and_b32 s{d}, s{d}, 0xff
                s_lshl_b32 s{d}, s{d}, 14''')

    def c_tables(self, R):
        for k in range(8):
            R.op(f's_add_u32 s{KQ + k}, s{sIL}, {k}\ns_and_b32 s{KQ + k}, s{KQ + k}, 7\ns_mul_i32 s{KQ + k}, s{KQ + k}, {72 * 1152}')

    def news(self):
        pool = [sT0, sT1, sT3] + ([sEPS] if self.sq_busy else [SQ, SQ + 1, SQ + 2]) + ([] if self.in_b or self.kq_busy else [KQ + k for k in range(9)])
        self.spool += 1
        return pool[self.spool % len(pool)]

    def addr(self, R, reg, off, **kw):
        cur = self.base[reg]
        if not (0 <= off - cur and off - cur + 4096 < 65536):
            chunk = off // self.CH
            new = chunk * self.CH
            d = new - cur
            R.op(f'v_add_u32 v{reg}, {d}, v{reg}' if d > 0 else f'v_subrev_u32 v{reg}, {-d}, v{reg}', prio=50, **kw)
            self.base[reg] = cur = new
        return off - cur

    LN_ONES, LN_SEL0, LN_SEL1, LN_VAR = PQ, PQ + 4, PQ + 8, T + 10
    LN_XO, LN_XP, LN_R0, LN_R1 = T + 14, T + 15, T + 16, T + 17

    def ln_consts(self, R):
        ONES, SEL0, SEL1, VAR = self.LN_ONES, self.LN_SEL0, self.LN_SEL1, self.LN_VAR
        vXO, vXP, vR0, vR1 = self.LN_XO, self.LN_XP, self.LN_R0, self.LN_R1
        R.op(f'''v_mov_b32 v{ONES}, 0x3f803f80
        v_mov_b32 v{ONES + 1}, 0x3f803f80
        v_mov_b32 v{ONES + 2}, 0x3f803f80
        v_mov_b32 v{ONES + 3}, 0x3f803f80
        v_and_b32 v{VAR}, 15, v{vLANE}
        v_lshrrev_b32 v{VAR + 1}, 4, v{vLANE}
        v_bfe_u32 v{vR0}, v{vLANE}, 1, 2
        v_lshlrev_b32 v{vR0}, 1, v{vR0}
        v_xor_b32 v{vR0}, v{vR0}, v{VAR + 1}
        v_lshlrev_b32 v{vR0}, 4, v{vR0}
        v_lshl_add_u32 v{vR0}, v{VAR}, 7, v{vR0}
        s_mov_b32 s{sT0}, s{sM2}
        v_add_u32 v{vR0}, s{sT0}, v{vR0}
        v_xor_b32 v{vR1}, 64, v{vR0}
        v_lshlrev_b32 v{VAR + 1}, 3, v{VAR + 1}
        v_sub_u32 v{VAR}, v{VAR}, v{VAR + 1}
        v_mov_b32 v{VAR + 1}, 0x3f80
        v_mov_b32 v{vXO}, 0x3f800000''')
        for sel, add in ((SEL0, 0), (SEL1, 16)):
            for k in range(4):
                R.op(f'''v_cmp_eq_u32 vcc, {2 * k - add}, v{VAR}
                v_cmp_eq_u32 s[{sK3}:{sK4}], {2 * k + 1 - add}, v{VAR}
                v_mov_b32 v{VAR + 2}, 0
                v_cndmask_b32 v{sel + k}, 0, v{VAR + 1}, vcc
                v_cndmask_b32 v{sel + k}, v{sel + k}, v{vXO}, s[{sK3}:{sK4}]''')
        R.op(f'''v_add_u32 v{vXO}, s{sT0}, v{vL16}
        s_xor_b32 s{sT1}, s{sWV}, 1
        s_mul_i32 s{sT1}, s{sT1}, {XR_}
        s_add_u32 s{sT1}, s{sT1}, 16384
        v_add_u32 v{vXP}, s{sT1}, v{vL16}
        v_mov_b32 v{VAR}, 0
        v_mov_b32 v{VAR + 1}, 0
        v_mov_b32 v{VAR + 3}, 0''')

    def ln_center(self, R, rho, t, d0, pk, addr, off, after=(), cap=None, prio=5):
        SEL0, SEL1, VAR = self.LN_SEL0, self.LN_SEL1, self.LN_VAR
        nm = self.LN_NM[rho]
        R.mfma(f'{MF} {vr(d0)}, {vr(SEL0)}, {vr(self.raw(rho, t))}, {vr(nm)}', cap=cap)
        R.mfma(f'{MF} {vr(d0 + 4)}, {vr(SEL1)}, {vr(self.raw(rho, t))}, {vr(nm)}', cap=cap)
        for k in range(4):
            R.op(f'v_cvt_pk_bf16_f32 v{pk + k}, v{d0 + 2 * k}, v{d0 + 2 * k + 1}', prio=prio)
        if self.o.get('ownw', 3) >> rho & 1:
            n = 4 * t + rho
            for k in range(4):
                R.op(f'v_accvgpr_write_b32 a{4 * n + k}, v{pk + k}' if n < 64 else f'v_mov_b32 v{XNV + 4 * (n - 64) + k}, v{pk + k}')
        w = lambda aft: R.op(f'ds_write_b128 v{addr}, {vr(pk)} offset:{off}', after=aft, prio=prio)
        if after is not None:
            w = w(after)
        if self.o.get('vfma', 0) >> rho & 1:
            g = self.LN_G[rho]
            for k in range(8):
                x = d0 + k
                R.op(f'v_fmac_f32 v{g + (k & 3)}, v{x}, v{x}' if t or k >= 4 else f'v_mul_f32 v{g + k}, v{x}, v{x}', prio=prio - 1)
            self.ln_gram(R)
            return w
        self.ln_gram(R)
        self.gram_pend = (rho, t, pk)
        return w

    gram_pend = None
    LN_G = [V_G0, V_G1]

    def ln_gram(self, R):
        if self.gram_pend:
            rho, t, pk = self.gram_pend
            g = vr(self.LN_G[rho])
            R.mfma(f'{MF} {g}, {vr(pk)}, {vr(pk)}, {g if t else 0}')
            self.gram_pend = None

    LN_NM = [PQ + 12, T + 2]

    def layernorm(self):
        R = Region(cap=5, backlog=self.o['backlog'], pipe0=-100000)
        ONES, VAR = self.LN_ONES, self.LN_VAR
        vXO, vXP, vR0, vR1 = self.LN_XO, self.LN_XP, self.LN_R0, self.LN_R1
        NM = self.LN_NM
        D = RING + 16
        PK = [T + 18, SC] if self.o.get('probe') else [T + 18, T + 22, SC]
        rawrd = {}

        def raw_reads(rho, lo):
            for u in range(9):
                if u % 3 == 0 or u < 3:
                    w = R.wait([self.xl[rho, uu, hf] for uu in range(u, (u + 1 if u < 2 else u // 3 * 3 + 3)) for hf in range(2)],
                               late=False, wr=['xw'], lo=None if lo is None else lo + u * self.o.get('r1st', 1))
                for s1 in range(2):
                    rawrd[rho, 2 * u + s1] = R.op(f'ds_read_b128 {vr(self.raw(rho, 2 * u + s1))}, v{vR1 if s1 else vR0} offset:{2048 * u}', after=[w], prio=20)

        def mean(rho, t):
            w = R.wait([rawrd[rho, k] for k in range(t, t + 3)], dist=1) if t % 3 == 0 else None
            R.mfma(f'{MF} {vr(NM[rho])}, {vr(ONES)}, {vr(self.raw(rho, t))}, {vr(NM[rho]) if t else 0}', after=[w] if w else [])
            return w

        for o in self.x_pend:
            o.prio = 10
            o.hi = 17
            R.add(o)
        for o in self.dma_ops(0):
            o.prio = 10
            o.hi = self.o.get('w0hi', 26)
            o.lo = self.o.get('w0lo', 24)
            R.add(o)
        raw_reads(0, None)
        for t in range(18):
            mean(0, t)
        R.op(f's_sub_u32 s{sT0}, s{sCNT2}, s{sM2}\nv_add_u32 v{vR0}, s{sT0}, v{vR0}\nv_add_u32 v{vR1}, s{sT0}, v{vR1}')
        raw_reads(1, self.o.get('r1lo', 44))
        self.stamp(R, 'ctr0')
        for k in range(4):
            R.op(f'v_mul_f32 v{NM[0] + k}, {hex(0xbae38e39)}, v{NM[0] + k}')
        reads = []
        cnt = 0
        for kg in range(3):
            writes = []
            for t in range(6 * kg, 6 * kg + 6):
                writes.append(self.ln_center(R, 0, t, D + 8 * (cnt & 1), PK[cnt % len(PK)], vXO, 1024 * t))
                cnt += 1
                if self.o.get('m1late', 1):
                    if kg == 2:
                        for tt in range(3 * (t % 6), 3 * (t % 6) + 3):
                            mean(1, tt)
                elif kg > 0:
                    tm = 6 * (kg - 1) + t % 6
                    for tt in ((3 * tm) // 2, (3 * tm) // 2 + 1)[:1 + (tm & 1)]:
                        mean(1, tt)
            extra = [rawrd[1, k] for k in range(18)] if kg == self.o.get('wkg', 1) else []
            w = R.wait(writes + extra, late=False, prio=30, dist=self.o.get('dlw', 5))
            bar = R.op('s_barrier', after=[w], wr=['bar'], prio=30)
            if extra:
                raw1_bar = bar
                for n in range(1, self.npre):
                    for o in self.dma_ops(n):
                        o.after.append((bar, 0))
                        o.prio = 30
                        R.add(o)
            for t in range(6 * kg, 6 * kg + 6):
                if not self.o.get('ownw', 3) & 1:
                    reads.append(R.op(f'ds_read_b128 {xn(4 * t)}, v{vXO} offset:{t * 1024}', after=[bar], prio=8))
                reads.append(R.op(f'ds_read_b128 {xn(4 * t + 2)}, v{vXP} offset:{t * 1024}', after=[bar], prio=8))
        self.stamp(R, 'ctr1')
        for k in range(4):
            R.op(f'v_mul_f32 v{NM[1] + k}, {hex(0xbae38e39)}, v{NM[1] + k}')
        R.op(f'''s_lshl_b32 s{sT0}, s{sWV}, 10
        s_add_u32 s{sT0}, s{sT0}, {self.KVX}
        v_add_u32 v{vR0}, s{sT0}, v{vL16}
        v_xor_b32 v{vR1}, 1024, v{vR0}''')
        writes = []
        for t in range(4):
            writes.append(self.ln_center(R, 1, t, D + 8 * (cnt & 1), PK[cnt % len(PK)], vR0, 4096 * t, after=[raw1_bar]))
            cnt += 1
        self.ln_gram(R)
        self.ln_last = reads + writes
        x = self.o.get('lnx', 0)
        drop = set()
        for o in R.ops:
            t = o.ins[0].text if o.ins else ''
            if (x & 1 and t.startswith('ds_write')) or (x & 2 and t.startswith('ds_read_b128 a')) or (x & 8 and t.startswith('v_accvgpr')) \
                    or (x & 16 and t.startswith('v_cvt')) or (x & 32 and t.startswith('s_barrier')):
                o.ins = [Ins('s_nop 0')]
        return R

    def ln_reads1(self, R, n, bar):
        out = []
        for t in (2 * n, 2 * n + 1):
            if not self.o.get('ownw', 3) & 2:
                out.append(R.op(f'ds_read_b128 {xn(4 * t + 1)}, v{self.LN_R0} offset:{4096 * (t & 3)}', after=[bar], prio=12))
            out.append(R.op(f'ds_read_b128 {xn(4 * t + 3)}, v{self.LN_R1} offset:{4096 * (t & 3)}', after=[bar], prio=12))
        return out

    def ln_finish(self, R, bar):
        VAR = self.LN_VAR
        a, ad, ep = T + 18, T + 19, T + 20
        R.op(f'v_and_b32 v{ad}, 15, v{vLANE}')
        R.op(f's_lshl_b32 s{sT0}, s{sWV}, 7\ns_add_u32 s{sT0}, s{sT0}, {RS}')
        R.op(f'v_lshl_add_u32 v{ad}, v{ad}, 2, s{sT0}')
        R.op(f's_mov_b32 s{sT1}, {hex(0x3ae38e39)}')
        R.op(f'v_mov_b32 v{ep}, {hex(0x3727c5ac)}')
        self.ln_gram(R)
        for rho in range(2):
            v = self.LN_G[rho]
            if self.o.get('vfma', 0) >> rho & 1:
                R.op(f'v_add_f32 v{v}, v{v}, v{v + 1}\nv_add_f32 v{v + 2}, v{v + 2}, v{v + 3}\nv_add_f32 v{v}, v{v}, v{v + 2}')
            for k in range(1, 1 if self.o.get('vfma', 0) >> rho & 1 else 4):
                R.op(f's_mov_b32 vcc_lo, {hex(0x11111111 << k)}\ns_mov_b32 vcc_hi, {hex(0x11111111 << k)}\nv_cndmask_b32 v{v}, v{v}, v{v + k}, vcc')
            if not self.o.get('vfma', 0) >> rho & 1:
                R.op(f's_mov_b32 vcc_lo, 0x00f0000f\ns_mov_b32 vcc_hi, 0xf0000f00\nv_cndmask_b32 v{v}, 0, v{v}, vcc')
            R.op(f'v_mov_b32 v{a}, v{v}')
            R.op(f'v_permlane32_swap_b32 v{a}, v{v}')
            R.op(f'v_add_f32 v{v}, v{a}, v{v}')
            R.op(f'v_mov_b32 v{a}, v{v}')
            R.op(f'v_permlane16_swap_b32 v{a}, v{v}')
            R.op(f'v_add_f32 v{v}, v{a}, v{v}')
            R.op(f'v_fma_f32 v{v}, v{v}, s{sT1}, v{ep}')
            R.op(f'v_rsq_f32 v{v}, v{v}')
            self.pre_bar.append((R.op(f'ds_write_b32 v{ad}, v{v} offset:{64 * rho}', after=[bar]), 3))
        self.post_bar.append(lambda b_: self.load_scales(R, [b_]))

    def stamp(self, R, name=''):
        if R:
            self.marks.append((R, R.here, name))
        if not self.stamps or (self.o.get('lite') and name != 'end'):
            return
        k = self.nstamp
        self.nstamp += 1
        t = Op(f's_memrealtime vcc\ns_memtime s[0:1]\ns_waitcnt lgkmcnt(0)\nv_mov_b32 v{T + 26}, vcc_lo\nv_mov_b32 v{T + 27}, s0\ns_lshl_b32 s0, s2, 10\ns_add_u32 s0, s0, {DUMP_BASE + 8 * k}\nbuffer_store_dwordx2 v[{T + 26}:{T + 27}], v{vFST}, {sr(SW)}, s0 offen',
               lo=R.here if R else None, hi=R.here if R else None)
        self.stamp_names.append(name)
        if R:
            R.add(t)
        else:
            self.lin.op(t)

    def poll(self, R, name, srd, addr_text, mask, val, lo, check_lo, after=(), mul=4, defer=False):
        vp = T + 19
        if name != 'p':
            check_lo = lo + self.o.get(f'pd_{name}{self.ns}', self.o.get('pd', check_lo - lo))
        cmp = 'v_cmp_ne_u32' if val == 1 else 'v_cmp_gt_u32'
        if addr_text:
            R.op(addr_text, lo=lo - 30)
        so = f's{sT2}' if addr_text else '0'
        R.op(f'v_and_b32 v{vPOLL}, {mask}, v{vLANE}', lo=lo - 30)
        if defer:
            R.op(f'v_max_u32 v{vPOLL}, 1, v{vPOLL}\nv_add_u32 v{vPOLL}, s{sJJ}, v{vPOLL}\nv_and_b32 v{vPOLL}, 3, v{vPOLL}', lo=lo - 30)
        R.op(f'v_mul_u32_u24 v{vPOLL}, {mul}, v{vPOLL}', lo=lo - 30)
        ld = R.op(f'buffer_load_dword v{vp}, v{vPOLL}, {sr(srd)}, {so} offen sc1', lo=lo, hi=lo + 6, after=after)
        if defer:
            return lambda lo2, aft: self.poll_check(R, name, srd, so, cmp, val, ld, lo2, aft)
        return self.poll_check(R, name, srd, so, cmp, val, ld, check_lo, [])

    def poll_check(self, R, name, srd, so, cmp, val, ld, check_lo, aft):
        vp = T + 19
        w = R.wait([ld], late=False, lo=check_lo, hi=check_lo + 4, tag='poll_' + name, after=aft)
        br = 's_nop 0' if self.o.get('nopoll') else f's_cbranch_vccnz L_slow_{name}{self.sfx}'
        chk = R.op(f'{cmp} vcc, {val}, v{vp}\n{br}\nL_back_{name}{self.sfx}:', after=[w],
                   rd=[f'v{vPOLL}', f's{sT2}'], wr=[f'v{vp}'], hi=check_lo + 4, atomic=True)
        rec = ''
        if self.stamps:
            rec = f'v_mov_b32 v{T + 26}, s{sCNT}\ns_lshl_b32 s{sCNT}, s2, 10\ns_add_u32 s{sCNT}, s{sCNT}, {DUMP_BASE + 768 + 4 * len(self.slow)}\nbuffer_store_dword v{T + 26}, v{vFST}, {sr(SW)}, s{sCNT} offen\ns_waitcnt vmcnt(0)'
        self.slow.append(f'''L_slow_{name}{self.sfx}:
        s_mov_b32 s{sCNT}, 0
        L_spin_{name}{self.sfx}:
        buffer_load_dword v{vp}, v{vPOLL}, {sr(srd)}, {so} offen sc1
        s_waitcnt vmcnt(0)
        {cmp} vcc, {val}, v{vp}
        s_add_u32 s{sCNT}, s{sCNT}, 1
        s_cbranch_vccz L_exit_{name}{self.sfx}
        s_cmp_lt_u32 s{sCNT}, {self.o['spin']}
        s_cbranch_scc1 L_spin_{name}{self.sfx}
        L_exit_{name}{self.sfx}:
        {rec}
        s_branch L_back_{name}{self.sfx}''')
        return chk

    def set_flag(self, R, f, after):
        t0, t1 = self.news(), self.news()
        R.op(self.flag_addr(f, True, t0, t1), lo=after[0].lo - 40)
        self.flags[f] = R.op(f'buffer_store_dword v{vONE}, v{vFST}, {sr(SW)}, s{t0} offen sc1', after=after + [self.chk0], hi=after[0].lo + 2)

    def chunk_enter(self, R, n, lo, pre=()):
        if n in self.paired:
            self.unfreed.append(n)
            self.bars[n] = self.bars[n - 1]
            return self.bars[n]
        name = self.stream[n][0]
        if n + 1 in self.dmas and ((name == 'C' and self.o.get('barc', 1)) or ((0x3f if self.ns == 5 else 0x1f) >> ('Q', 'A1', 'A2', 'A3', 'A4', 'B', 'A0', 'C').index(name) & 1 and self.stream[n + 1][0] not in ('O', 'C'))):
            self.paired.add(n + 1)
            self.dmas[n] = self.dmas[n] + self.dmas[n + 1]
        nd = len(self.dmas[n])
        dd, sg = (self.o.get('ddc', 24), 1) if self.stream[n][0] == 'C' else (self.o['ddma'], self.o.get('stag', 6))
        waits = [(o, dd + sg * (nd - 1 - k)) for k, o in enumerate(self.dmas[n])] + self.pre_bar
        self.pre_bar = []
        nm = '%s%d' % self.stream[n] + ('+' if len(waits) > nd else '')
        w = R.wait(waits, late=False, lo=lo, hi=lo, tag=nm) if waits else None
        dep = list(pre) + ([w] if w else [])
        freed = [k for k in self.unfreed if self.lastwait.get(k) is not None]
        dep += [self.lastwait[k] for k in freed]
        bar = R.op('s_barrier', after=dep, wr=['bar'], lo=lo, prio=100, tag=nm)
        for k in freed:
            self.unfreed.remove(k)
            self.free_bar[k] = bar
            m = self.next_user.get(k)
            if m is not None:
                for o in self.dma_ops(m):
                    if 'dma' in o.kinds():
                        o.after.append((bar, 0))
                    o.lo = lo - 8
                    R.add(o)
                pf = {self.PF[k]: v for k, v in zip(hex(self.o.get('pfat', 0x1283))[2:], (('d', 0), ('o', 0), ('d', 1), ('o', 1)))}.get(self.stream[m])
                if pf:
                    self.prefetch_late(R, pf[0], pf[1], lo, self.dmas[m][-1:])
        fns, self.post_bar = self.post_bar, []
        for fn in fns:
            fn(bar)
        self.unfreed.append(n)
        self.bars[n] = bar
        return bar

    def tr_pair(self, R, dst, reg, off, step, after, prio=10, lo=None):
        o = self.addr(R, reg, off, lo=lo)
        return [R.op(f'ds_read_b64_tr_b16 {vr(dst, 2)}, v{reg} offset:{o}', after=after, prio=prio, lo=lo),
                R.op(f'ds_read_b64_tr_b16 {vr(dst + 2, 2)}, v{reg} offset:{o + step}', after=after, prio=prio, lo=lo)]

    def p_reads(self, R, name, n, t, buf, after):
        cb = self.slot[n] * self.CH
        out = []
        if name == 'Q':
            base = cb + 8192 * (t & 1)
            for f in range(4):
                out += self.tr_pair(R, buf + 4 * f, VQ[f], base, 4096, after)
        else:
            base = cb + 8192 * (t & 1)
            for f in range(4):
                out += self.tr_pair(R, buf + 4 * f, vLA1 if f & 1 else vLA0, base + 1024 * (f >> 1), 4096, after)
        return out

    def epi_glu(self, R, acc, wrap=0):
        stores = []
        hs = (' sc1', '', ' nt')[self.o.get('hst', 0)]
        ps = 90 if self.o.get('hst') else P_S
        if True:
            for rs in range(4):
                G = [acc + (tt * 4 + rs) * 4 for tt in range(2)]
                U = [acc + ((2 + tt) * 4 + rs) * 4 for tt in range(2)]
                for tt in range(2):
                    self.glu4(R, G[tt], U[tt], SC + rs)
                for k in range(4):
                    g = G[k >> 1] + 2 * (k & 1)
                    R.op(f'v_cvt_pk_bf16_f32 v{U[0] + k}, v{g}, v{g + 1}')
                stores.append(R.op(f'buffer_store_dwordx4 {vr(U[0])}, v{vL16}, {sr(SW)}, s{sH0 + (rs >> 1)} offen offset:{1024 * (rs & 1)}{hs}', pipe=ps))
            inc = '16384'
            if wrap:
                t = sCNT2X
                R.op(f's_mul_i32 s{t}, s{sIH}, {16384 * wrap}\ns_add_u32 s{t}, s{t}, 16384')
                inc = f's{t}'
            R.op(f's_add_u32 s{sH0}, s{sH0}, {inc}')
            R.op(f's_add_u32 s{sH1}, s{sH1}, {inc}')
        return stores

    @staticmethod
    def glu4(R, G, U, sc):
        for e in range(4):
            g = G + e
            R.op(f'v_mul_f32 v{g}, v{sc}, v{g}')
            R.op(f'v_exp_f32 v{g}, v{g}')
            R.op(f'v_add_f32 v{g}, 1.0, v{g}')
            R.op(f'v_rcp_f32 v{g}, v{g}')
            R.op(f'v_mul_f32 v{g}, v{g}, v{U + e}')

    @staticmethod
    def phi(R, x, tmp, prio=0):
        R.op(f'v_mul_f32 v{tmp}, {hex(LOG2E)}, v{x}', prio=prio)
        R.op(f'v_exp_f32 v{tmp}, v{tmp} clamp', prio=prio)
        R.op(f'v_max_f32 v{x}, 0, v{x}', prio=prio)
        R.op(f'v_add_f32 v{x}, {hex(EPS6)}, v{x}', prio=prio)
        R.op(f'v_add_f32 v{x}, v{x}, v{tmp}', prio=prio)

    def load_scales(self, R, after):
        a0, a1 = T + 20, T + 21
        R.op(f'v_and_b32 v{a0}, 15, v{vLANE}')
        R.op(f's_lshl_b32 s{sT0}, s{sWV}, 7\ns_add_u32 s{sT0}, s{sT0}, {RS}')
        R.op(f'v_lshl_add_u32 v{a0}, v{a0}, 2, s{sT0}')
        R.op(f'v_xor_b32 v{a1}, 128, v{a0}')
        lds = [R.op(f'ds_read_b32 v{SC + rs}, v{a0 if rs < 2 else a1} offset:{64 * (rs & 1)}', after=after) for rs in range(4)]
        w = R.wait(lds, late=False, dist=6)
        for rs in range(4):
            R.op(f'v_mul_f32 v{SC + rs}, {hex(NLOG2E)}, v{SC + rs}', after=[w])

    def epi_qkv(self, R, acc):
        KM = [acc + 4 * rs for rs in range(4)]
        VM = [acc + 16 + 4 * rs for rs in range(4)]
        QM = [PQ + 4 * rs for rs in range(4)]
        LRP = [acc + 32, acc + 36]
        LL = [acc + 48 + 4 * rs for rs in range(4)]
        a0, a1, aq = T + 20, T + 21, T + 22
        R4 = [T, T + 4]
        LR = T + 8
        TM = [T + 12, T + 13, T + 14, T + 15]
        r1 = T + 16
        R.op(f's_mov_b32 s{sEPS}, {hex(EPS6)}')
        R.op(f'v_lshrrev_b32 v{a0}, 4, v{vLANE}')
        R.op(f's_lshl_b32 s{sT0}, s{sWV}, 7\ns_add_u32 s{sT0}, s{sT0}, {RS}')
        R.op(f'v_lshl_add_u32 v{a0}, v{a0}, 4, s{sT0}')
        R.op(f'v_xor_b32 v{a1}, 128, v{a0}')
        for l in f'''v_and_b32 v{aq}, 3, v{vLANE}
        v_lshlrev_b32 v{aq}, 5, v{aq}
        v_lshrrev_b32 v{r1}, 4, v{vLANE}
        v_lshl_add_u32 v{aq}, v{r1}, 3, v{aq}
        s_lshl_b32 s{sT1}, s{sWV}, 9
        s_add_u32 s{sT1}, s{sT1}, {QL}
        v_add_u32 v{aq}, s{sT1}, v{aq}
        v_lshlrev_b32 v{r1}, 3, v{vLANE}
        v_add_u32 v{r1}, {DUMMY}, v{r1}
        v_bfe_u32 v{TM[0]}, v{vLANE}, 2, 2'''.split('\n'):
            R.op(l)
        R.op(f'v_cmp_eq_u32 vcc, 2, v{TM[0]}\nv_cndmask_b32 v{aq}, v{r1}, v{aq}, vcc')
        self.ql_writes = []
        tm = 0
        one = f's[{sMASKONE}:{sMASKONE + 1}]'
        ld = [R.op(f'ds_read_b128 {vr(R4[rs])}, v{a0} offset:{64 * rs}') for rs in range(2)]
        w = R.wait(ld, late=False, dist=6)
        for rs in range(2):
            for e in range(4):
                R.op(f'v_mul_f32 v{LL[rs] + e}, v{R4[rs] + e}, v{LL[rs] + e}', after=[w], prio=60)
            for k in range(2):
                R.op(f'v_cvt_pk_bf16_f32 v{LRP[0] + 2 * rs + k}, v{LL[rs] + 2 * k}, v{LL[rs] + 2 * k + 1}', prio=60)
            for e in range(4):
                self.phi(R, LL[rs] + e, TM[tm & 3], prio=60); tm += 1
            for k in range(2):
                R.op(f'v_cvt_pk_bf16_f32 v{LL[0] + 2 * rs + k}, v{LL[rs] + 2 * k}, v{LL[rs] + 2 * k + 1}', prio=60)
            self.ql_writes.append(R.op(f'ds_write_b64 v{aq}, {vr(LL[0] + 2 * rs, 2)} offset:{128 * rs}'))
        e0, e1, c1 = LR, LR + 1, LR + 2
        R.op(f'''s_mul_i32 s{sT0}, s{sWV}, 3072
        s_add_u32 s{sT0}, s{sT0}, {self.KVX}
        v_add_u32 v{e0}, s{sT0}, v{vL16}
        s_xor_b32 s{sT1}, s{sWV}, 1
        s_mul_i32 s{sT1}, s{sT1}, 3072
        s_add_u32 s{sT1}, s{sT1}, {self.KVX}
        v_add_u32 v{e1}, s{sT1}, v{vL16}
        v_mov_b32 v{c1}, 0x3f803f80''')
        self.l_writes = [R.op(f'ds_write_b128 v{e0}, {vr(X)} offset:{1024 * k}', prio=60) for k, X in enumerate((LL[0], LRP[0]))]

        def l_read(bar):
            rd = [R.op(f'ds_read_b128 {vr(X)}, v{e1} offset:{1024 * k}', after=[bar], prio=60) for k, X in enumerate((LL[2], LRP[1]))]
            w2 = R.wait(rd, late=False, dist=6)
            self.pre_bar += [(o, 6) for o in rd]
            self.post_bar.append(lambda b_: setattr(self, 'l_free', b_))
            for k in range(8):
                R.op(f'v_cndmask_b32 v{LRP[0] + k}, v{LRP[0] + k}, v{c1}, {one}', after=[w2])
        self.l_read = l_read
        for rs in range(4):
            r4 = R4[rs & 1]
            if rs >= 2:
                w = R.wait([R.op(f'ds_read_b128 {vr(r4)}, v{a1} offset:{64 * (rs & 1)}')], late=False, dist=6)
            for e in range(4):
                R.op(f'v_fma_f32 v{KM[rs] + e}, v{r4 + e}, v{KM[rs] + e}, s{sEPS}', after=[w])
                self.phi_eps(R, KM[rs] + e, TM[tm & 3]); tm += 1
                R.op(f'v_mul_f32 v{VM[rs] + e}, v{r4 + e}, v{VM[rs] + e}', after=[w])
            P, h = rs >> 1, 2 * (rs & 1)
            for X in (KM, VM):
                R.op(f'v_cvt_pk_bf16_f32 v{X[2 * P] + h}, v{X[rs]}, v{X[rs] + 1}')
                R.op(f'v_cvt_pk_bf16_f32 v{X[2 * P] + h + 1}, v{X[rs] + 2}, v{X[rs] + 3}')
        self.kv_in = dict(km=[KM[0], KM[2]], vm=[VM[0], VM[2]], lp=[LL[0], LL[2]], lr=LRP)
        self.kv_d = dict(mm=T, ml=T + 4, lm=T + 8, ll=T + 12)

    def epi_q(self, R):
        r1, tm = T + 16, (T + 21, T + 22)
        for rs in range(4):
            R.op(f'v_mul_f32 v{r1}, {hex(0xbf317218)}, v{SC + rs}')
            for e in range(4):
                x = PQ + 4 * rs + e
                R.op(f'v_fma_f32 v{x}, v{r1}, v{x}, s{sEPS}')
                self.phi_eps(R, x, tm[e & 1])
            R.op(f'v_cvt_pk_bf16_f32 v{PQ + 4 * rs}, v{PQ + 4 * rs}, v{PQ + 4 * rs + 1}')
            R.op(f'v_cvt_pk_bf16_f32 v{PQ + 4 * rs + 1}, v{PQ + 4 * rs + 2}, v{PQ + 4 * rs + 3}')

    @staticmethod
    def phi_eps(R, x, tmp):
        R.op(f'v_mul_f32 v{tmp}, {hex(LOG2E)}, v{x}')
        R.op(f'v_exp_f32 v{tmp}, v{tmp} clamp')
        R.op(f'v_max_f32 v{x}, s{sEPS}, v{x}')
        R.op(f'v_add_f32 v{x}, v{x}, v{tmp}')

    def kv_mfmas(self, R):
        I, D = self.kv_in, self.kv_d
        for P in range(2):
            for d, a, b in (('mm', 'km', 'vm'), ('ml', 'km', 'lr'), ('lm', 'lp', 'vm'), ('ll', 'lp', 'lr')):
                R.mfma(f'{MF} {vr(D[d])}, {vr(I[a][P])}, {vr(I[b][P])}, {vr(D[d]) if P else 0}')

    def kv_exchange(self, R, X, tmp, then):
        a0, a1 = T + 17, T + 18
        t0, t1 = self.news(), self.news()
        R.op(f's_mul_i32 s{t0}, s{sWV}, 3072\ns_add_u32 s{t0}, s{t0}, {self.KVX}')
        R.op(f'v_add_u32 v{a0}, s{t0}, v{vL16}')
        R.op(f's_xor_b32 s{t1}, s{sWV}, 2\ns_mul_i32 s{t1}, s{t1}, 3072\ns_add_u32 s{t1}, s{t1}, {self.KVX}')
        R.op(f'v_add_u32 v{a1}, s{t1}, v{vL16}')
        ws = [R.op(f'ds_write_b128 v{a0}, {vr(X[k])} offset:{1024 * k}', prio=5, after=[self.l_free]) for k in range(3)]
        self.pre_bar += [(o, 4) for o in ws]

        def after_bar(bar):
            for k in range(3):
                rd = R.op(f'ds_read_b128 {vr(tmp[k])}, v{a1} offset:{1024 * k}', after=[bar], prio=5)
                w = R.wait([rd], late=False, dist=6)
                for e in range(4):
                    R.op(f'v_add_f32 v{X[k] + e}, v{X[k] + e}, v{tmp[k] + e}', after=[w], prio=5)
            then()
        self.post_bar.append(after_bar)

    def kv_publish(self, R):
        D = self.kv_d
        mc = f's[{sMASKC}:{sMASKC + 1}]'
        for k, src in enumerate((D['lm'], D['lm'] + 1, D['ll'], D['ll'] + 1)):
            R.op(f'v_cndmask_b32 v{D["lm"] + k}, v{src}, v{src + 2}, {mc}', prio=5)
        X = [D['mm'], D['ml'], D['lm']]

        def store():
            a = T + 17
            sT0, sT1 = self.news(), self.news()
            R.op(f'''s_lshl_b32 s{sT0}, s{sJ}, 1
            s_add_u32 s{sT0}, s{sT0}, s{sC}
            s_lshl_b32 s{sT0}, s{sT0}, 4
            s_add_u32 s{sT0}, s{sT0}, s{sI}
            s_lshl_b32 s{sT0}, s{sT0}, 10
            s_add_u32 s{sT0}, s{sT0}, {KV_BASE}''')
            R.op(f's_lshl_b32 s{sT1}, s{sR}, 31')
            R.op(f'v_or_b32 v{a}, s{sT1}, v{vL16}')
            for k in range(6):
                R.op(f'v_cvt_pk_bf16_f32 v{T + k}, v{T + 2 * k}, v{T + 2 * k + 1}')
            R.op(f'''v_lshrrev_b32 v{a + 1}, 4, v{vLANE}
            v_min_u32 v{a + 1}, 1, v{a + 1}
            v_lshlrev_b32 v{a + 1}, 31, v{a + 1}
            v_lshl_or_b32 v{a + 1}, v{vLANE}, 3, v{a + 1}
            v_or_b32 v{a + 1}, s{sT1}, v{a + 1}
            s_lshr_b32 s{sT1}, s{sT0}, 3
            s_add_u32 s{sT1}, s{sT1}, {KV2_BASE - KV_BASE // 8}''')
            self.kv_stores = [R.op(f'buffer_store_dwordx4 {vr(T)}, v{a}, {sr(SW)}, s{sT0} offen sc1', prio=5, pipe=P_S // 2),
                              R.op(f'buffer_store_dwordx2 {vr(T + 4, 2)}, v{a + 1}, {sr(SW)}, s{sT1} offen sc1', prio=5, pipe=10)]
        self.kv_exchange(R, X, [T + 12] * 3, store)

    def sel_regs(self, R, base, a, **kw):
        R.op(f'''v_and_b32 v{a}, 15, v{vLANE}
        v_lshrrev_b32 v{base}, 4, v{vLANE}
        v_lshlrev_b32 v{base}, 2, v{base}
        v_sub_u32 v{a}, v{a}, v{base}
        v_and_b32 v{base}, 1, v{a}
        v_lshlrev_b32 v{base}, 4, v{base}
        v_mov_b32 v{base + 1}, 0x3f80
        v_lshlrev_b32 v{base + 1}, v{base}, v{base + 1}
        v_lshrrev_b32 v{a}, 1, v{a}
        v_cmp_eq_u32 vcc, 0, v{a}
        v_cndmask_b32 v{base + 2}, 0, v{base + 1}, vcc
        v_cmp_eq_u32 vcc, 1, v{a}
        v_cndmask_b32 v{base + 3}, 0, v{base + 1}, vcc
        v_mov_b32 v{base}, 0
        v_mov_b32 v{base + 1}, 0
        v_mov_b32 v{base + 4}, 0
        v_mov_b32 v{base + 5}, 0''', **kw)

    def kv_gather(self, R, buf, after):
        t, t2 = self.news(), self.news()
        R.op(f'''s_lshl_b32 s{t}, s{sJQ}, 1
        s_add_u32 s{t}, s{t}, s{sC}
        s_lshl_b32 s{t}, s{t}, 1
        s_add_u32 s{t}, s{t}, s{sR}
        s_lshl_b32 s{t}, s{t}, 13
        s_lshr_b32 s{t2}, s{t}, 3
        s_add_u32 s{t2}, s{t2}, {KV2_BASE}
        s_add_u32 s{t}, s{t}, {KV_BASE}''')
        a, X2 = T + 24, T + 20
        R.op(f'''v_and_b32 v{a}, 15, v{vLANE}
        v_lshlrev_b32 v{a}, 3, v{a}
        v_lshrrev_b32 v{X2}, 4, v{vLANE}
        v_lshl_add_u32 v{a}, v{X2}, 8, v{a}''')
        self.kv_ld = [R.op(f'buffer_load_dwordx2 {vr(X2 + 2 * k, 2)}, v{a}, {sr(SW)}, s{t2} offen offset:{128 * k} sc1', after=after, pipe=40) for k in range(2)]
        for p in range(8):
            if p == 4:
                R.op(f's_add_u32 s{t}, s{t}, 4096')
            self.kv_ld.append(R.op(f'buffer_load_dwordx4 {vr(buf + 4 * p)}, v{vL16}, {sr(SW)}, s{t} offen offset:{1024 * (p & 3)} sc1', after=after, pipe=self.o.get('pkv', 140)))
        self.kv_buf = buf
        self.sel_regs(R, T + 12, T + 18)
        R.op(f'''v_and_b32 v{T + 18}, 15, v{vLANE}
        v_and_b32 v{T + 8}, 1, v{T + 18}
        v_lshlrev_b32 v{T + 8}, 4, v{T + 8}
        v_mov_b32 v{T + 9}, 0x3f80
        v_lshlrev_b32 v{T + 9}, v{T + 8}, v{T + 9}
        v_lshrrev_b32 v{T + 18}, 1, v{T + 18}
        v_cmp_eq_u32 vcc, 0, v{T + 18}
        v_cndmask_b32 v{T + 4}, 0, v{T + 9}, vcc
        v_cmp_eq_u32 vcc, 1, v{T + 18}
        v_cndmask_b32 v{T + 5}, 0, v{T + 9}, vcc
        v_mov_b32 v{T + 6}, v{T + 4}
        v_mov_b32 v{T + 7}, v{T + 5}''')

    def kv_sum(self, R):
        buf, A1, A0 = self.kv_buf, T + 12, T + 14
        w = R.wait([(o, self.o.get('dkv', 50) + 5 * (9 - k)) for k, o in enumerate(self.kv_ld)], tag='kvld')
        R.mfma(f'{MF} {vr(T + 8)}, {vr(T + 4)}, {vr(T + 20)}, 0', after=[w])
        for p in range(8):
            for k, a in enumerate((A0, A1)):
                R.mfma(f'{MF} {vr(T + 4 * k)}, {vr(a)}, {vr(buf + 4 * p)}, {vr(T + 4 * k) if p else 0}')

    def kv_finish(self, R, tmp):
        S = T
        KVM, KVL = T + 12, tmp[0]

        def pack():
            m2, m3 = f's[{sMK2}:{sMK2 + 1}]', f's[{sMK3}:{sMK3 + 1}]'
            R.op(f's_and_b32 s{sMK3}, s{sMASKC}, 0xffff\ns_mov_b32 s{sMK3 + 1}, 0\ns_xor_b32 s{sMK2}, s{sMK3}, 0xffff\ns_mov_b32 s{sMK2 + 1}, 0', after=[self.chk0])
            R.op(f'v_cvt_pk_bf16_f32 v{KVM}, v{S}, v{S + 1}')
            R.op(f'v_cvt_pk_bf16_f32 v{KVM + 1}, v{S + 2}, v{S + 3}')
            R.op(f'v_cvt_pk_bf16_f32 v{KVM + 3}, v{S + 8}, v{S + 9}')
            R.op(f'v_cndmask_b32 v{KVM + 2}, 0, v{KVM + 3}, {m2}')
            R.op(f'v_cndmask_b32 v{KVM + 3}, 0, v{KVM + 3}, {m3}')
            R.op(f'v_cvt_pk_bf16_f32 v{S}, v{S + 4}, v{S + 5}')
            R.op(f'v_cvt_pk_bf16_f32 v{S + 1}, v{S + 6}, v{S + 7}')
            R.op(f'v_cvt_pk_bf16_f32 v{S + 3}, v{S + 10}, v{S + 11}')
            R.op(f'v_cndmask_b32 v{S + 2}, 0, v{S + 3}, {m2}')
            R.op(f'v_cndmask_b32 v{S + 3}, 0, v{S + 3}, {m3}')
            sT1 = self.news()
            aq = T + 16
            R.op(f'v_and_b32 v{aq}, 15, v{vLANE}')
            R.op(f's_lshl_b32 s{sT1}, s{sWV}, 9\ns_add_u32 s{sT1}, s{sT1}, {QL}')
            R.op(f'v_lshl_add_u32 v{aq}, v{aq}, 3, s{sT1}')
            R.op(f's_mul_i32 s{sT1}, s{sC}, -1024\ns_add_u32 s{sT1}, s{sT1}, 512\nv_add_u32 v{aq + 1}, s{sT1}, v{aq}')
            rd = [R.op(f'ds_read_b64_tr_b16 {vr(PQ + 4 * rs + 2, 2)}, v{aq + (rs >> 1)} offset:{128 * (rs & 1)}', after=[self.l_free]) for rs in range(4)]
            self.pq_wait = R.wait(rd, late=False, dist=6)
            self.kv_frags = (KVM, S)
        self.kv_exchange(R, [S, S + 4, S + 8], tmp, pack)

    def o_mfmas(self, R, buf):
        KVM, KVL = self.kv_frags
        for rs in range(4):
            R.mfma(f'{MF} {vr(buf + 8 * rs)}, {vr(KVM)}, {vr(PQ + 4 * rs)}, 0', after=[self.pq_wait])
            R.mfma(f'{MF} {vr(buf + 8 * rs + 4)}, {vr(KVL)}, {vr(PQ + 4 * rs)}, 0')
        a = T + 16
        R.op(f'v_and_b32 v{a}, 15, v{vLANE}')
        R.op(f'v_lshlrev_b32 v{a}, 2, v{a}')
        R.op(f'v_mov_b32 v{a + 1}, {OOB}')
        R.op(f'v_lshrrev_b32 v{a + 2}, 4, v{vLANE}')
        R.op(f'v_cmp_eq_u32 vcc, 1, v{a + 2}\nv_cndmask_b32 v{a}, v{a + 1}, v{a}, vcc')
        st = []
        mc = f's[{sMASKC}:{sMASKC + 1}]'
        for P in range(2):
            sT0, sT1, sT3 = self.news(), self.news(), self.news()
            R.op(f'''s_xor_b32 s{sT0}, s{sWV}, {P}
            s_lshl_b32 s{sT1}, s{sI}, 2
            s_add_u32 s{sT0}, s{sT0}, s{sT1}
            s_lshl_b32 s{sT3}, s{sJQ}, 1
            s_add_u32 s{sT3}, s{sT3}, s{sC}''')
            R.op(f'''s_lshl_b32 s{sT1}, s{sT0}, 6
            s_add_u32 s{sT1}, s{sT1}, s{sT3}
            s_lshl_b32 s{sT1}, s{sT1}, 6
            s_add_u32 s{sT1}, s{sT1}, {OL_BASE}''')
            R.op(f'''s_lshl_b32 s{sT0}, s{sT0}, 5
            s_add_u32 s{sT0}, s{sT0}, s{sT3}
            s_lshl_b32 s{sT0}, s{sT0}, 10
            s_add_u32 s{sT0}, s{sT0}, {O_BASE}''')
            for k in range(2):
                rs = 2 * P + k
                m, l = buf + 8 * rs, buf + 8 * rs + 4
                tq = a + 2
                R.op(f'v_cndmask_b32 v{tq}, v{l + 2}, v{l}, {mc}')
                R.op(f'v_cndmask_b32 v{l}, v{l}, v{l + 2}, {mc}')
                R.op(f'v_cndmask_b32 v{l + 1}, v{l + 1}, v{l + 3}, {mc}')
                R.op(f'v_add_f32 v{l + 2}, {hex(EPS6)}, v{tq}')
                R.op(f'v_rcp_f32 v{l + 2}, v{l + 2}')
                for e in (m, m + 1, m + 2, m + 3, l, l + 1):
                    R.op(f'v_mul_f32 v{e}, v{l + 2}, v{e}')
                R.op(f'v_cvt_pk_bf16_f32 v{buf + 16 * P + 2 * k}, v{m}, v{m + 1}')
                R.op(f'v_cvt_pk_bf16_f32 v{buf + 16 * P + 2 * k + 1}, v{m + 2}, v{m + 3}')
                R.op(f'v_cvt_pk_bf16_f32 v{l}, v{l}, v{l + 1}')
                st.append(R.op(f'buffer_store_dword v{l}, v{a}, {sr(SW)}, s{sT1} offen offset:{2048 * k} sc1', pipe=20))
            st.append(R.op(f'buffer_store_dwordx4 {vr(buf + 16 * P)}, v{vL16}, {sr(SW)}, s{sT0} offen sc1', pipe=P_S))
        return st

    def flag_later(self, R, f, stores):
        if not (self.o.get('nostw') and f != '3'):
            n = len(stores)
            self.pre_bar += [(o, self.o['dst'] + (0 if f == '3' else self.o.get('sst', 8) * min(n - 1 - k, 5))) for k, o in enumerate(stores)]
        self.post_bar.append(lambda bar: self.set_flag(R, f, [bar]))

    def main(self):
        R = Region(cap=2, backlog=self.o['backlog'], hwq=self.o.get('hwq', 200), spread=self.o.get('spread', 1), vprio=self.o.get('vprio', 200), vfrom=self.o.get('vfrom', 0))
        self.pre_bar = list(self.ln_last)
        self.post_bar, self.unfreed = [], []
        self.lastwait, self.free_bar, self.bars = {}, {}, {}
        self.paired, self.single = set(), set()
        ks = []
        n0 = 0
        for name in self.order:
            ks += [(name, t, n0 + (t >> 1)) for t in range(18)]
            n0 += 9
        accs = {'A0': ACC0, 'Q': ACC1, 'A1': ACC0, 'A2': ACC1, 'A3': ACC0, 'A4': ACC1}
        last = self.order[-1]
        self.span = 28
        w0 = R.wait(self.pre_bar + self.dmas[0], late=False)
        self.pre_bar = []
        bar = R.op('s_barrier', after=[w0], wr=['bar'])
        self.bars[0] = bar
        self.unfreed = [0]
        for m in range(self.npre, self.NCH):
            for o in self.dma_ops(m):
                if 'dma' in o.kinds():
                    o.after.append((bar, 0))
                R.add(o)
        reads = self.p_reads(R, 'A0', 0, 0, RING, [bar])
        reads = self.ln_reads1(R, 0, bar) + reads
        hst = {}
        self.ln_wr = {}
        for x, (name, t, n) in enumerate(ks):
            buf = RING + 16 * (x & 1)
            nbuf = RING + 16 * ((x + 1) & 1)
            w = R.wait(reads, dist=4)
            last_in_chunk = x + 1 == len(ks) or ks[x + 1][2] != n
            if last_in_chunk:
                self.lastwait[n] = w
            g0 = R.here
            if t == 0 or (self.o.get('fine') and t % self.o['fine'] == 0):
                self.stamp(R, f'{name}.{t}')
            if x + 1 < len(ks):
                nn, nt, nc = ks[x + 1]
                dep = [w]
                if nc != n:
                    self.span = 28 if name != 'A4' else 28
                    dep = [self.chunk_enter(R, nc, g0 + 1, [w]), w]
                reads = self.p_reads(R, nn, nc, nt, nbuf, dep)
                if nn == 'A0' and nc != n:
                    reads += self.ln_reads1(R, nc, dep[0])
                    if nc == 8:
                        self.ln_finish(R, dep[0])
            else:
                self.b_prepare(R, n0, w, g0)
            acc = accs[name]
            nf = 4
            for f in range(nf):
                for rs in range(2 if (name == 'Q' and f == 3) else 4):
                    d = vr(PQ + 4 * rs if (name == 'Q' and f == 2) else acc + (f * 4 + rs) * 4)
                    c = d if t else '0'
                    a_, b_ = vr(buf + 4 * f), xn(4 * t + rs)
                    if name == 'Q' and f != 2:
                        a_, b_ = b_, a_
                    R.mfma(f'{MF} {d}, {a_}, {b_}, {c}', after=[w] if (f == 0 and rs == 0) else [], tag='lds2' if self.o.get('lds2a') else '')
            if name == 'A0' and t <= 13:
                tc = t + 4
                bar_ = self.bars.get(tc // 2 - 1)
                wr = self.ln_center(R, 1, tc, (ACC1 + 56 if self.o.get('probe') else T + 18, ACC1 + 56)[t & 1], (PQ, PQ + 12, SC)[t % 3],
                                    self.LN_R0, 4096 * (tc & 3), after=[bar_] if bar_ else None)
                if bar_:
                    self.ln_wr[tc] = wr
                else:
                    self.post_bar.append(lambda b_, tc=tc, wr=wr: self.ln_wr.__setitem__(tc, wr([b_])))
            if name == 'A0' and t % 2 == 0 and 2 <= t <= 14:
                self.pre_bar += [(self.ln_wr[k], 8) for k in (t + 2, t + 3)]
            g1 = R.here
            o = self.o
            if t == 17:
                if name == 'Q':
                    self.epi_qkv(R, acc)
                else:
                    hst[name] = self.epi_glu(R, acc, (self.jump + (0,))[int(name[1])])
            if name == 'Q' and t == 0:
                self.b_tables(R)
            if name == 'A0' and t == o.get('tclr', 15):
                Z, a_ = T + 20, T + 24
                R.op(f'''s_or_b32 s{sT0}, s{sJ}, s{sWV}
                s_min_u32 s{sT0}, s{sT0}, 1
                s_lshl_b32 s{sT0}, s{sT0}, 31
                v_or_b32 v{a_}, s{sT0}, v{vL16}
                v_or_b32 v{vPOLL}, s{sT0}, v{vFST}
                s_lshl_b32 s{sT0}, s{sI}, 12
                s_lshl_b32 s{sT3}, s{sI}, 2
                v_mov_b32 v{Z}, 0
                v_mov_b32 v{Z + 1}, 0
                v_mov_b32 v{Z + 2}, 0
                v_mov_b32 v{Z + 3}, 0''')
                clr = [R.op(f'buffer_store_dwordx4 {vr(Z)}, v{a_}, {sr(SW)}, s{sT0} offen offset:{1024 * k} sc1', hi=g1 + 20 + 4 * k, pipe=20) for k in range(3)]
                wclr = R.wait(clr, late=False, lo=g1 + 110, hi=g1 + 114)
                R.op(f'buffer_store_dword v{vONE}, v{vPOLL}, {sr(SB)}, s{sT3} offen sc1', after=[wclr], hi=g1 + 118)
            if (name != 'A0' or t > 14) and t % o.get('cpe', 18) == o.get('cpt', 2):
                self.code_ahead(R, g1)
            if name == 'A1' and t == o.get('lx', 6):
                self.pre_bar += [(o_, 6) for o_ in self.l_writes + self.ql_writes]
                self.post_bar.append(self.l_read)
            if name == 'A1' and t == 0:
                R.op(self.pat_b(vPOLL, T + 19), prio=100)
            if name == 'A2' and t == 0:
                self.epi_q(R)
            if name == 'A2' and t == o.get('tfill', 8) and o.get('sent', 0):
                self.prefill(R)
            if name == 'A2' and t == 1:
                self.chk0 = self.poll(R, 'clr', SB, '', 15, 1, g1, g1 + 60)
            if name == 'A1' and t == o.get('kvm', 15):
                self.kv_mfmas(R)
                self.kv_publish(R)
            if name == 'A2' and t == o.get('f1', 7):
                self.flag_later(R, '1', self.kv_stores)
            if name == 'A2' and t == o.get('f2a', 14):
                self.flag_later(R, '2a', hst['A0'] + hst['A1'])
            if name == 'A3' and t == o.get('p1', 6):
                self.chk1 = self.poll(R, 'kv', SW, self.flag_addr('1', False, sT2), 15, 1, g1, g1 + 40, after=[self.chk0, self.flags['1']])
                self.kv_gather(R, ACC1 + 32, [self.chk1])
            if name == last and t == o.get('p2a', 0):
                self.chk2a = self.poll(R, 'ha', SW, self.flag_addr('2a', False, sT2), 3, 1, g1, g1 + 40, after=[self.flags['2a']])
            if name == 'A3' and t == o.get('kvs', 17):
                self.kv_sum(R)
                self.kv_finish(R, [T + 20] * 3)
            if name == 'A3' and t == o.get('f2b', 16):
                self.flag_later(R, '2b', hst['A2'])
            if name == 'A4' and t == o.get('p2b5', 8):
                self.chk2b = self.poll(R, 'hb', SW, self.flag_addr('2b', False, sT2), 3, 1, g1, g1 + 40, after=[self.flags['2b']])
            if name == 'A4' and t == o.get('om5', 12):
                self.o_stores = self.o_mfmas(R, ACC0)
                R.op(self.pat_cl())
            if name == 'A4' and t == o.get('f2c5', 14):
                self.flag_later(R, '2c', hst['A3'])
            if name == last and t >= o.get('h0', 3):
                p_ = t - o.get('h0', 3)
                if p_ < 8 or (p_ < o.get('hpre5', 10) and hasattr(self, 'chk2b')):
                    self.h_loads(R, p_, [self.chk2a if p_ < 8 else self.chk2b], g1)
        x = self.o.get('a0x', 0)
        for o_ in R.ops[:1500]:
            t_ = o_.ins[0].text if o_.ins else ''
            if (x & 1 and t_.startswith(f'ds_write_b128 v{self.LN_R0}')) or (x & 2 and t_.startswith('ds_read_b128 a')) or (x & 8 and t_.startswith('v_accvgpr')) \
                    or (x & 4 and o_.spine and (f', {vr(self.LN_SEL0)},' in t_ or f', {vr(self.LN_SEL1)},' in t_ or t_.startswith(f'{MF} {vr(V_G1)}'))):
                o_.ins = [Ins('s_nop 0')]
        self.hst = hst
        self.phase_b(R, n0)
        return R

    @staticmethod
    def hreg(pos, hh, rho, lo=0, cnt=4):
        return xn(4 * (pos & 15) + 2 * hh + rho)

    PF = {'1': ('A1', 4), '2': ('A2', 0), '3': ('A2', 5), '4': ('A3', 0), '5': ('A1', 0), '6': ('A0', 4), '7': ('A3', 4), '8': ('A2', 4), '9': ('A1', 7), 'a': ('A2', 2), 'b': ('A2', 7), 'c': ('A3', 2)}

    def prefetch_late(self, R, which, part, lo, after):
        if not self.o.get('pf1', 0):
            return
        a, d = T + 24, T + 23
        t, t2 = self.news(), self.news()
        per, step, srd = (36, 18, SD) if which == 'd' else (18, 9, SWO)
        nl = 2 if self.nt == 8 else 3
        sub = f's_mov_b32 s{t}, -1024' if which == 'd' else f's_mul_i32 s{t}, s{sR}, {4 * 1152}\ns_sub_u32 s{t}, s{t}, 1024'
        R.op(sub, lo=lo - 60)
        R.op(f's_lshl_b32 s{t2}, s{sIL}, 2\ns_add_u32 s{t2}, s{t2}, s{sWV}\ns_mul_i32 s{t2}, s{t2}, {per * 1152}\ns_sub_u32 s{t2}, s{t2}, s{t}\ns_xor_b32 s{t}, s{sIH}, {part}\ns_mul_i32 s{t}, s{t}, {step * 1152}\ns_add_u32 s{t2}, s{t2}, s{t}', lo=lo - 60)
        if nl == 3:
            R.op(f's_mul_i32 s{t}, s{sQ_}, -128\ns_add_u32 s{t}, s{t}, 128\ns_add_u32 s{t2}, s{t2}, s{t}', lo=lo - 60)
        R.op(f'v_min_u32 v{a}, {step * nl - 1}, v{vLANE}\nv_mul_u32_u24 v{d}, {128 if nl == 2 else 86}, v{a}\nv_lshrrev_b32 v{d}, 8, v{d}\nv_lshlrev_b32 v{a}, 7, v{a}\nv_mul_u32_u24 v{d}, {1152 - nl * 128}, v{d}\nv_add3_u32 v{a}, v{a}, v{d}, s{t2}', lo=lo - 60)
        R.op(f'buffer_load_dword v{T + 24 if self.o.get(PRB) else T + 25}, v{a}, {sr(srd)}, 0 offen', after=after, prio=500, hi=lo + self.o.get('pfd', 60), pipe=self.o['ppf'] if part == 0 else self.o.get('ppf2', 300))

    def code_ahead(self, R, lo):
        nl = self.o.get('cpn', 2)
        if not nl:
            return
        vb, va = T + 25, T + 26
        if not self.ncp:
            t, t2 = sT0, sT1
            R.op(f'''s_lshl_b32 s{t}, s{sIL}, 1
            s_and_b32 s{t2}, s{sQ_}, 1
            s_add_u32 s{t}, s{t}, s{t2}
            s_lshl_b32 s{t2}, s{sWV}, 4
            s_add_u32 s{t}, s{t}, s{t2}
            v_min_u32 v{vb}, {nl - 1}, v{vLANE}
            v_lshl_add_u32 v{vb}, v{vb}, 6, s{t}
            v_lshlrev_b32 v{vb}, 7, v{vb}
            v_add_u32 v{vb}, {self.o.get('cpd', 2048)}, v{vb}''')
        self.ncp += 1
        lab = f'L_cp{self.ncp}{self.sfx}'
        R.op(f's_getpc_b64 s[0:1]\n{lab}:\nv_min_u32 v{va}, L_stop{self.sfx}-{lab}, v{vb}\nglobal_load_dword v{va + 1}, v{va}, s[0:1]', atomic=True, lo=lo, hi=lo + 10, pipe=40)

    ncp = 0

    def h_loads(self, R, pos, after, lo):
        if pos in self.hl:
            return
        t = TB + pos
        if not hasattr(self, 'vH'):
            self.vH = vLL
            t2 = self.news()
            R.op(f's_lshl_b32 s{t2}, s{sWV}, 12\ns_add_u32 s{t2}, s{t2}, s{sHB}\nv_add_u32 v{self.vH}, s{t2}, v{vL16}', lo=lo - 100, prio=300)
        ops = []
        hsc = '' if self.o.get('hplain') else ' sc1'
        for hh in range(2):
            for rho in range(2):
                ops.append(R.op(f'buffer_load_dwordx4 {self.hreg(pos, hh, rho)}, v{self.vH}, {sr(SW)}, s{t} offen offset:{2048 * hh + 1024 * rho}{hsc}', after=after, lo=lo, pipe=P_H))
        if self.o.get('noh'):
            for o in ops:
                R.ops.remove(o)
            ops = []
        self.hl[pos] = ops

    hl = {}
    in_b = False
    kq_busy = False
    p3 = None
    fill = []
    sq_busy = False

    def b_prepare(self, R, n0, w, g0):
        t = self.news()
        R.op(f's_lshl_b32 s{t}, s{sC}, 6', lo=g0 - 40)
        cur = self.base[vLA0]
        if self.base[vLA1] != cur:
            d = cur - self.base[vLA1]
            R.op(f'v_add_u32 v{vLA1}, {d}, v{vLA1}' if d > 0 else f'v_subrev_u32 v{vLA1}, {-d}, v{vLA1}')
        R.op(f'v_xor_b32 v{vLA0}, s{t}, v{vLA0}\nv_xor_b32 v{vLA1}, s{t}, v{vLA1}\nv_xor_b32 v{vLB}, 64, v{vLA0}\nv_xor_b32 v{vA0}, 64, v{vLA1}', prio=50)
        self.vLT = [vLA0, vLA1, vLB, vA0]
        self.vLH = [vA1, T + 24]
        for r_ in self.vLT:
            self.base[r_] = cur
        if self.nt > 8:
            R.op(f'''v_lshrrev_b32 v{T + 24}, 2, v{vLANE}
            v_lshlrev_b32 v{T + 24}, 6, v{T + 24}
            v_bfe_u32 v{vA1}, v{vLANE}, 4, 1
            v_lshl_add_u32 v{T + 24}, v{vA1}, 5, v{T + 24}
            v_and_b32 v{vA1}, 3, v{vLANE}
            v_lshl_add_u32 v{vA1}, v{vA1}, 3, v{T + 24}
            v_xor_b32 v{T + 24}, 32, v{vA1}''', lo=g0 - 60)
            self.base[vA1] = self.base[T + 24] = 0
        self.bbar = self.chunk_enter(R, n0, g0 + 1, [w])
        self.bq = []
        self.b_ring = [RING + 4 * k for k in range(8)] + [XNV + 16 + 4 * k for k in range(self.o.get('ring', 8) - 8)]
        self.b_next = 0
        self.b_n0 = n0
        for _ in range(4):
            self.b_read(R, g0 + 1)

    def b_order(self):
        nt = self.o['ntail']
        seq = [(k, t) for k in range(36 - nt) for t in range(self.nt)]
        seq += [(k, t) for t in range(self.nt) for k in range(36 - nt, 36)]
        return seq

    def b_read(self, R, lo):
        seq = self.b_order()
        k, t = seq[self.b_next]
        n = self.b_n0 + (k >> 1)
        if n not in self.bars:
            self.span = 30
            self.chunk_enter(R, n, lo)
        reg, off, step = self.tile_addr(n, k, t)
        slot = self.b_ring[self.b_next % len(self.b_ring)]
        self.bq.append(self.tr_pair(R, slot, reg, off, step, [self.bars[n]], lo=lo))
        self.b_next += 1

    b_ring = [RING + 4 * k for k in range(8)]

    def tile_addr(self, n, k, t):
        cb = self.slot[n] * self.CH
        if t < 8:
            return self.vLT[t & 3], cb + 8192 * (k & 1) + 1024 * (t >> 2), 4096
        return self.vLH[t - 8], cb + 16384 + 2048 * (k & 1), 1024

    def bacc(self, t, rho):
        i = 2 * t + rho
        return self.OB + 4 * i if i < 16 else XNV + 4 * (i - 16)

    def phase_b(self, R, n0):
        self.in_b = True
        seq = self.b_order()
        AH, WG = self.o.get('ah', 6), self.o.get('wg', 4)
        lastuse = {}
        for x, (k, t) in enumerate(seq):
            lastuse[k >> 1] = x
        sT0 = KA
        R.op(f'''s_lshl_b32 s{sH0}, s{sI}, 2
        s_add_u32 s{sH0}, s{sH0}, s{sQ_}
        s_lshl_b32 s{sH0}, s{sH0}, 2
        s_add_u32 s{sH0}, s{sH0}, s{sWV}
        s_lshl_b32 s{sH0}, s{sH0}, 2
        s_add_u32 s{sH0}, s{sH0}, s{sJJ}
        s_mul_i32 s{sH0}, s{sH0}, {PSTR}
        s_add_u32 s{sH0}, s{sH0}, {PART_BASE}''', lo=R.here + 300)
        R.op(f's_add_u32 s{sH1}, s{sH0}, 4096', lo=R.here + 300)
        R.op(f's_add_u32 s{sT0}, s{sH0}, 8192', lo=R.here + 300)
        self.part_stores = []
        self.own_writes = []
        vST, vOW, sOWN = T + 11, T + 12, KA + 3 + 1
        self.own = self.o.get('own', 1)
        if not self.own:
            vST = vL16

        def put(X, so, imm, piece, hi):
            self.part_stores.append(R.op(f'buffer_store_dwordx4 {vr(X)}, v{vST}, {sr(SW)}, s{so} offen offset:{imm} sc1', prio=400, pipe=P_S * (3 if self.own else 4) // 4, hi=hi, after=[self.chk2o]))
            if self.own:
                self.own_writes.append(R.op(f's_mov_b64 exec, s[{SQ}:{SQ + 1}]\nds_write_b128 v{vOW}, {vr(X)} offset:{1024 * piece}\ns_mov_b64 exec, -1', atomic=True, noexec=True, hi=hi + 6))
        done = {}
        seen = set()
        hw = {}
        w = None
        for x, (k, t) in enumerate(seq):
            g0 = R.here
            while self.b_next < min(len(seq), x + 1 + AH):
                self.b_read(R, g0)
            if self.b_next == len(seq) and x == len(seq) - 4:
                self.c_prepare(R, n0 + 18, g0)
            dep = []
            if x % WG == 0:
                w = R.wait(sum(self.bq[x:x + WG], []), dist=3)
                dep.append(w)
                for c_, lu in lastuse.items():
                    if x <= lu < x + WG:
                        self.lastwait[n0 + c_] = w
            pos = k >> 1
            if pos not in hw and (pos == 0 or (self.o.get('fine') and pos % 3 == 0)):
                self.stamp(R, f'B.{pos}')
            if pos not in hw:
                o = self.o
                hw[pos] = R.wait([(q_, o['dh'] + o.get('stag', 6) * (len(self.hl[pos]) - 1 - k_)) for k_, q_ in enumerate(self.hl[pos])], tag=f'h{pos}')
                dep.append(hw[pos])
                if pos == 1:
                    self.c_tables(R)
                five = self.ns == 5
                if pos % o.get('cpb', 8) == 0 and pos < 17:
                    self.code_ahead(R, g0)
                if self.own and pos == 12:
                    R.op(f's_cmp_eq_u32 s{sWV}, s{sJJ}\ns_cselect_b32 s{SQ}, -1, 0\ns_mov_b32 s{SQ + 1}, s{SQ}', atomic=True)
                    R.op(f's_lshl_b32 s{SQ + 2}, s{SQ}, 31\nv_or_b32 v{vST}, s{SQ + 2}, v{vL16}\nv_add_u32 v{vOW}, {self.KVX}, v{vL16}')
                    self.sq_busy = True
                if not five and pos == o.get('om', 5):
                    self.o_stores = self.o_mfmas(R, ACC0)
                    R.op(self.pat_cl())
                if not five and pos == o.get('p2b', 2):
                    self.chk2b = self.poll(R, 'hb', SW, self.flag_addr('2b', False, sT2), 3, 1, g0, g0 + 40, after=[self.flags['2b']])
                if pos == o.get('f2l', 6):
                    self.flag_later(R, '2d' if five else '2c', self.hst[self.order[-1]])
                if pos == (o.get('p2c5', 5) if five else o.get('p2c', 8)):
                    self.chk2c = self.poll(R, 'hc', SW, self.flag_addr('2c', False, sT2), 3, 1, g0, g0 + 40, after=[self.flags['2c']])
                if pos == (o.get('f2o5', 1) if five else o.get('f2o', 9)):
                    self.flag_later(R, '2o', self.fill + self.o_stores)
                if pos == (o.get('p2d5', 10) if five else o.get('p2d', 13)):
                    self.chk2d = self.poll(R, 'hd', SW, self.flag_addr('2d', False, sT2), 1, 1, g0, g0 + 34, after=[self.flags['2d']] if five else [], mul=12)
                if pos == (o.get('p2o5', 12) if five else o.get('p2o', 12)):
                    self.chk2o = self.poll(R, 'o', SW, self.flag_addr('2o', False, sT2), 15, 1, g0, g0 + 30, after=[self.flags['2o']])
                    self.o_stage_load(R, g0)
                for nxt in range(pos + 1, min(18, pos + o['hlook'] + 1)):
                    chk = 'chk2a' if nxt < 8 else 'chk2b' if nxt < 12 else 'chk2c' if nxt < 16 else 'chk2d'
                    if hasattr(self, chk):
                        self.h_loads(R, nxt, [getattr(self, chk)], g0)
            slot = self.b_ring[x % len(self.b_ring)]
            for rho in range(2):
                d = vr(self.bacc(t, rho))
                R.mfma(f'{MF} {d}, {vr(slot)}, {self.hreg(pos, k & 1, rho)}, {d if (t, rho) in seen else 0}', after=dep, tag='lds2' if pos < self.o.get('lds2', 18) else '')
                seen.add((t, rho))
                dep = []
            if k == 35:
                done[t] = True
                if t >= 8:
                    X = self.bacc(t, 0)
                    for rho in range(2):
                        a = self.bacc(t, rho)
                        R.op(f'v_cvt_pk_bf16_f32 v{X + 2 * rho}, v{a}, v{a + 1}', prio=40)
                        R.op(f'v_cvt_pk_bf16_f32 v{X + 2 * rho + 1}, v{a + 2}, v{a + 3}', prio=40)
                    put(X, sT0, 1024 * (t - 8), t, R.here + 8)
                elif t & 1:
                    for rho in range(2):
                        X, Y = self.bacc(t - 1, rho), self.bacc(t, rho)
                        for kk, a in enumerate((X, X + 2, Y, Y + 2)):
                            R.op(f'v_cvt_pk_bf16_f32 v{X + kk}, v{a}, v{a + 1}', prio=40)
                        put(X, sH0 + rho, 1024 * (t >> 1), 4 * rho + (t >> 1), R.here + 8 + 3 * rho + (0 if self.o['ntail'] else 3 * t))
        self.phase_c(R, n0 + 18)

    def o_stage_load(self, R, lo):
        buf = self.LB
        sT0, sT1 = KA + 1, KA + 2
        R.op(f'''s_lshl_b32 s{sT0}, s{sI}, 2
        s_add_u32 s{sT0}, s{sT0}, s{sJJ}
        s_lshl_b32 s{sT1}, s{sT0}, 15
        s_add_u32 s{sT1}, s{sT1}, {O_BASE}''', lo=lo - 10)
        self.o_ld = []
        for k in range(2):
            sT3 = KA + 3 + k
            R.op(f'''s_lshl_b32 s{sT3}, s{sWV}, 1
            s_add_u32 s{sT3}, s{sT3}, s{sIL}
            s_add_u32 s{sT3}, s{sT3}, {k}
            s_and_b32 s{sT3}, s{sT3}, 7
            s_lshl_b32 s{sT3}, s{sT3}, 12
            s_add_u32 s{sT3}, s{sT3}, s{sT1}''', lo=lo - 10)
            for p in range(4):
                self.o_ld.append(R.op(f'buffer_load_dwordx4 {vr(buf + 16 * k + 4 * p)}, v{vL16}, {sr(SW)}, s{sT3} offen offset:{1024 * p} sc1', after=[self.chk2o], lo=lo, pipe=P_H))
        a = T + 16
        R.op(f'v_lshrrev_b32 v{a}, 4, v{vLANE}', lo=lo - 10)
        R.op(f'v_lshlrev_b32 v{a}, 8, v{a}', lo=lo - 10)
        R.op(f'v_and_b32 v{a + 1}, 15, v{vLANE}', lo=lo - 10)
        R.op(f'v_lshl_add_u32 v{a}, v{a + 1}, 2, v{a}', lo=lo - 10)
        R.op(f'''s_lshl_b32 s{sT0}, s{sT0}, 1
        s_add_u32 s{sT0}, s{sT0}, s{sC}
        s_lshl_b32 s{sT0}, s{sT0}, 1
        s_add_u32 s{sT0}, s{sT0}, s{sR}
        s_lshl_b32 s{sT0}, s{sT0}, 10
        s_add_u32 s{sT0}, s{sT0}, {OL_BASE}''', lo=lo - 10)
        for p in range(4):
            self.o_ld.append(R.op(f'buffer_load_dword v{XNV + 16 + p}, v{a}, {sr(SW)}, s{sT0} offen offset:{64 * p} sc1', after=[self.chk2o], lo=lo, pipe=30))

    def final_prefetch(self, R, lo):
        XR = self.LB + 36
        sT0 = KA + 5
        self.vXa, self.vXb = SC + 2, SC + 3
        a, b_ = T + 23, T + 22
        R.op(f'''v_and_b32 v{a}, 15, v{vLANE}
        s_lshl_b32 s{sT0}, s{sI}, 2
        s_add_u32 s{sT0}, s{sT0}, s{sJJ}
        s_lshl_b32 s{sT0}, s{sT0}, 5
        v_add_u32 v{self.vXb}, s{sT0}, v{a}
        v_mul_u32_u24 v{self.vXb}, 1152, v{self.vXb}
        v_lshrrev_b32 v{b_}, 5, v{vLANE}
        v_lshl_add_u32 v{self.vXb}, v{b_}, 4, v{self.vXb}
        s_lshl_b32 s{sT0}, s{sQ_}, 3
        s_lshr_b32 s{sT0}, 0x0e0a0400, s{sT0}
        s_and_b32 s{sT0}, s{sT0}, 0xff
        s_add_u32 s{sT0}, s{sT0}, s{sWV}
        s_lshl_b32 s{sT0}, s{sT0}, 6
        v_bfe_u32 v{b_}, v{vLANE}, 4, 1
        v_lshl_add_u32 v{self.vXa}, v{b_}, 5, v{self.vXb}
        v_add_u32 v{self.vXa}, s{sT0}, v{self.vXa}''', lo=lo - 150)
        self.xo = [(self.vXa, '0', 0), (self.vXa, f's{KA + 7}', 0)]
        if self.nt > 8:
            R.op(f'''v_mul_u32_u24 v{b_}, {16 * 1152}, v{b_}
            s_lshl_b32 s{sT0}, s{sQ_}, 1
            s_add_u32 s{sT0}, s{sT0}, s{sC}
            s_lshl_b32 s{sT0}, s{sT0}, 5
            v_add3_u32 v{self.vXb}, v{b_}, v{self.vXb}, s{sT0}
            s_lshl_b32 s{sT0}, s{sR}, 31
            v_or_b32 v{self.vXb}, s{sT0}, v{self.vXb}''', lo=lo - 150)
            self.xo.append((self.vXb, '0', 448))
        R.op(f'''s_lshl_b32 s{sT0}, s{sJJ}, 7
        s_add_u32 s{sT0}, s{sT0}, {RS}
        v_lshl_add_u32 v{a}, v{a}, 2, s{sT0}
        s_mov_b32 s{KA + 7}, {16 * 1152}''', lo=lo - 150)
        self.x_ld = [R.op(f'buffer_load_dwordx4 {vr(XR + 4 * p)}, v{va}, {sr(SX)}, {so} offen offset:{imm}', lo=lo, pipe=160)
                     for p, (va, so, imm) in enumerate(self.xo)]
        self.rs_ld = [R.op(f'ds_read_b32 v{SC + rho}, v{a} offset:{64 * rho}', lo=lo - 100) for rho in range(2)]
        self.XR = XR


    def partial_addr(self, R, t, t2, sk, va, **kw):
        R.op(f'''s_lshl_b32 s{t}, s{sI}, 2
        s_add_u32 s{t}, s{t}, s{sQ_}
        s_lshl_b32 s{t}, s{t}, 2
        s_add_u32 s{t}, s{t}, s{sJJ}
        s_mul_i32 s{t}, s{t}, {4 * PSTR}
        s_add_u32 s{t}, s{t}, {PART_BASE}
        s_lshl_b32 s{t2}, s{sWV}, 10
        v_add_u32 v{va[0]}, s{t2}, v{vL16}
        v_add_u32 v{va[1]}, 4096, v{va[0]}
        s_mul_i32 s{t2}, s{sWV}, {hex(0x40000400)}
        s_and_b32 s{t2}, s{t2}, {hex(0x80000400)}
        s_add_u32 s{t2}, s{t2}, 8192
        v_add_u32 v{va[2]}, s{t2}, v{vL16}''', **kw)
        for k in range(1 if self.o.get('own', 1) else 0, 4):
            R.op(f's_add_u32 s{sk[k]}, s{sJJ}, {k}\ns_and_b32 s{sk[k]}, s{sk[k]}, 3\ns_mul_i32 s{sk[k]}, s{sk[k]}, {PSTR}\ns_add_u32 s{sk[k]}, s{sk[k]}, s{t}', **kw)

    def prefill(self, R):
        sk = [None] + [self.news() for _ in range(3)]
        va = [T + 4, T + 5, T + 6]
        self.partial_addr(R, self.news(), self.news(), sk, va)
        R.op('\n'.join(f'v_mov_b32 v{T + k}, -1' for k in range(4)))
        self.fill = [R.op(f'buffer_store_dwordx4 {vr(T)}, v{va[p]}, {sr(SW)}, s{sk[k]} offen sc1', pipe=P_S if p < 2 else P_S // 2, hi=R.here + 40 + 24 * (3 * p + k))
                     for p in range(2 if self.nt == 8 else 3) for k in range(1, 4)]

    def partial_loads(self, R, chk, lo):
        self.PBS = [self.OB + 16 * k for k in range(3)]
        self.partial_addr(R, KA + 8, sK5, [KA + k for k in range(4)], [vA0, vA1, vLL], lo=lo - 40)
        self.p_ld = []
        for piece, va in enumerate((vA0, vA1, vLL)[:len(self.xo)]):
            for k in range(1 if self.own else 0, 4):
                self.p_ld.append(f'buffer_load_dwordx4 {vr(self.PBS[piece] + 4 * k)}, v{va}, {sr(SW)}, s{KA + k} offen sc1')
                R.op(self.p_ld[-1], after=[chk] if chk else [], prio=100, lo=lo, hi=lo + 2 + len(self.p_ld))
        if self.own:
            a = T + 12
            R.op(f'v_add_u32 v{a}, {self.KVX}, v{vA0}\nv_and_b32 v{a + 1}, 0xffff, v{vLL}\nv_add_u32 v{a + 1}, {self.KVX}, v{a + 1}')
            for piece in range(len(self.xo)):
                R.op(f'ds_read_b128 {vr(self.PBS[piece])}, v{a + (piece >> 1)} offset:{4096 * (piece & 1)}', after=[self.own_bar])

    def c_prepare(self, R, nO, g0):
        pass

    def phase_c(self, R, nO):
        g0 = R.here
        osa, osb = self.slot[nO] * self.CH, self.slot[nO + 1] * self.CH
        a = T + 16
        buf = self.LB
        sT0, sT1 = KA + 6, sK5
        R.op(f'''s_mul_i32 s{sT0}, s{sR}, {osb - osa}
        s_add_u32 s{sT0}, s{sT0}, {osa}
        v_add_u32 v{a + 1}, s{sT0}, v{vL16}
        s_lshl_b32 s{sT1}, s{sC}, 13
        v_add_u32 v{a}, s{sT1}, v{a + 1}
        s_lshl_b32 s{sT1}, s{sC}, 10
        s_add_u32 s{sT1}, s{sT1}, 16384
        v_add_u32 v{a + 1}, s{sT1}, v{a + 1}''', lo=g0 - 120)
        fb = [self.free_bar[self.prev_user[nO]], self.free_bar[self.prev_user[nO + 1]]]
        wl = R.wait([(o, self.o.get('dol', 60) + 5 * (11 - k)) for k, o in enumerate(self.o_ld)], late=False, lo=g0 - 70, tag='old')
        R.op(f'v_add_u32 v{a + 2}, 8, v{a}', lo=g0 - 120)
        ws = [R.op(f'ds_write2st64_b64 v{a + 2 * (p & 1)}, {vr(buf + 4 * p, 2)}, {vr(buf + 4 * p + 2, 2)} offset0:{4 * (p >> 1)} offset1:{4 * (p >> 1) + 2}', after=fb + [wl], lo=g0 - 70) for p in range(8)]
        ws.append(R.op(f'ds_write_b128 v{a + 1}, {vr(XNV + 16)}', after=fb + [wl], lo=g0 - 70))
        vO0 = T + 17
        R.op(f'v_add_u32 v{vO0}, {osa}, v{vL16}' if osa else f'v_mov_b32 v{vO0}, v{vL16}', lo=g0 - 30)
        self.base[vO0] = osa
        vC = [T + 8, T + 9, T + 10]
        R.op(f's_lshl_b32 s{sT0}, s{sC}, 6\nv_xor_b32 v{vC[0]}, s{sT0}, v{vLA0}\ns_lshl_b32 s{sT0}, s{sR}, 10\nv_add_u32 v{vC[0]}, s{sT0}, v{vC[0]}\nv_xor_b32 v{vC[1]}, 32, v{vC[0]}', lo=g0 - 12)
        self.base[vC[0]] = self.base[vC[1]] = self.base[vLA0]
        nf = 2
        if self.nt > 8:
            nf = 3
            R.op(f's_lshl_b32 s{sT0}, s{sC}, 5\nv_xor_b32 v{vC[2]}, s{sT0}, v{vA1}', lo=g0 - 12)
            self.base[vC[2]] = self.base[vA1]
        self.pre_bar += [(o, 4) for o in ws]

        self.span = 8
        nC = nO + 2
        NB = self.o.get('cah', 1) + 1
        AB = [('a', 32 + 12 * k) for k in range(NB)]
        BB = [96 + 8 * k for k in range(NB)]
        self.SA = lambda rho, f: XNV + 16 + 8 * rho + 4 * f if f < 2 else T + 4 * rho

        def reads(k, lo):
            n = nC + (k >> 1)
            if n not in self.bars:
                self.chunk_enter(R, n, lo)
            bar = self.bars[n]
            cb = self.slot[n] * self.CH
            out = []
            for f in range(nf):
                off, step = (cb + 8192 * (k & 1), 4096) if f < 2 else (cb + 16384 + 2048 * (k & 1), 1024)
                d = AB[k % NB][1] + 4 * f
                o_ = self.addr(R, vC[f], off, lo=lo)
                out.append(R.op(f'ds_read_b64_tr_b16 a[{d}:{d + 1}], v{vC[f]} offset:{o_}', after=[bar], prio=10, lo=lo))
                out.append(R.op(f'ds_read_b64_tr_b16 a[{d + 2}:{d + 3}], v{vC[f]} offset:{o_ + step}', after=[bar], prio=10, lo=lo))
            for rho in range(2):
                d = BB[k % NB] + 4 * rho
                off = (osb if (8 <= k < 16 or k == 17) else osa) + (2048 * (k & 7) if k < 16 else 16384) + 1024 * rho
                out.append(R.op(f'ds_read_b128 a[{d}:{d + 3}], v{vO0} offset:{self.addr(R, vO0, off, lo=lo)}', after=[bar], lo=lo, prio=10))
            return out
        rds = {k: reads(k, g0 - 3) for k in range(NB - 1)}
        self.stamp(R, 'C')
        for k in range(18):
            w = R.wait(rds[k], dist=2)
            if k & 1:
                self.lastwait[nC + (k >> 1)] = w
            g = R.here
            if k in (6, 12) and self.o.get('fine'):
                self.stamp(R, f'C.{k}')
            if k == self.o.get('xk', 6):
                self.final_prefetch(R, g)
                self.sel_regs(R, PQ + 8, T + 20, lo=g - 200)
            if k == self.o.get('f3k', 11):
                if not self.o.get('sent', 0):
                    self.flag_later(R, '3', self.part_stores)
                self.pre_bar += [(o_, 4) for o_ in self.own_writes]
                self.post_bar.append(lambda b_: setattr(self, 'own_bar', b_))
            if self.o.get('sent', 0):
                if k == self.o.get('plk', 12):
                    self.partial_loads(R, None, g)
            elif self.o.get('p3e', 0):
                if k == self.o.get('p3i', 0):
                    self.p3 = self.poll(R, 'p', SW, self.flag_addr('3', False, sT2, own_ok=True), 3, 1, g, g, defer=True)
                if '3' in self.flags and self.p3:
                    chk = self.p3(g, [self.flags['3']])
                    self.p3 = None
                    self.partial_loads(R, chk, g)
            elif k == self.o.get('p3k', 13):
                chk = self.poll(R, 'p', SW, self.flag_addr('3', False, sT2), 3, 1, g, g + self.o.get('p3d', 4) * 2 * nf, after=[self.flags['3']])
                self.partial_loads(R, chk, g)
            if k + NB - 1 < 18:
                rds[k + NB - 1] = reads(k + NB - 1, g + 1)
                for q_, o in enumerate(rds[k + NB - 1]):
                    o.after.append((w, 0))
                    o.hi = g + 1 + (q_ + 1) // 2
            for f in range(nf):
                for rho in range(2):
                    d = vr(self.SA(rho, f))
                    R.mfma(f'{MF} {d}, a[{AB[k % NB][1] + 4 * f}:{AB[k % NB][1] + 4 * f + 3}], a[{BB[k % NB] + 4 * rho}:{BB[k % NB] + 4 * rho + 3}], {d if k else 0}', after=[w] if f + rho == 0 else [], cap=3)
        self.marks.append((R, R.here, 'Cend'))

    def final(self):
        L = self.lin.text
        vp = T + 19
        self.stamp(None, 'Cend')
        PBS = self.PBS
        NP = len(self.xo)
        if self.o.get('sent', 0):
            x = self.sfx
            regs = [PBS[p] + e for p in range(NP) for e in range(4, 16)]
            t0, t1 = RING, RING + 1
            ver = f'v_max3_u32 v{t0}, v{regs[0]}, v{regs[1]}, v{regs[2]}\nv_max3_u32 v{t1}, v{regs[3]}, v{regs[4]}, v{regs[5]}\n'
            for n_ in range(6, len(regs), 2):
                tt = t0 if n_ & 2 else t1
                ver += f'v_max3_u32 v{tt}, v{tt}, v{regs[n_]}, v{regs[n_ + 1]}\n'
            ver += f'v_max_u32 v{t0}, v{t0}, v{t1}\nv_cmp_eq_u32 vcc, -1, v{t0}\n'
            L('s_waitcnt vmcnt(0)\n' + ver + f's_cbranch_vccnz L_more{x}\nL_have{x}:')
            rec = ''
            if self.stamps:
                rec = f'v_mov_b32 v{T + 26}, s{sCNT}\ns_lshl_b32 s0, s2, 10\ns_add_u32 s0, s0, {DUMP_BASE + 768 + 4 * len(self.slow)}\nbuffer_store_dword v{T + 26}, v{vFST}, {sr(SW)}, s0 offen\n'
            self.slow.append(f'''L_more{x}:
            s_mov_b32 s{sCNT}, 0
            v_mov_b32 v{vPOLL}, s{KA + 3}
            v_writelane_b32 v{vPOLL}, s{KA + 1}, 1
            v_writelane_b32 v{vPOLL}, s{KA + 2}, 2
            s_lshl_b32 s{sT2}, s{sWV}, 10
            s_add_u32 s{sT2}, s{sT2}, {4096 + 1020}
            L_light{x}:
            buffer_load_dword v{vp}, v{vPOLL}, {sr(SW)}, s{sT2} offen sc1
            s_add_u32 s{sCNT}, s{sCNT}, 1
            s_cmp_ge_u32 s{sCNT}, {self.o['spin']}
            s_cbranch_scc1 L_stopw{x}
            s_waitcnt vmcnt(0)
            v_cmp_eq_u32 vcc, -1, v{vp}
            s_cbranch_vccnz L_light{x}
            ''' + '\n'.join(self.p_ld) + '\ns_waitcnt vmcnt(0)\n' + ver + f'''s_cbranch_vccnz L_light{x}
            L_stopw{x}:
            {rec}s_waitcnt vmcnt(0)
            s_branch L_have{x}''')
        for p in range(NP):
            L(f'v_permlane16_swap_b32 v{self.XR + 4 * p}, v{self.XR + 4 * p + 2}\nv_permlane16_swap_b32 v{self.XR + 4 * p + 1}, v{self.XR + 4 * p + 3}')
        A1, A0 = PQ + 8, PQ + 10
        MS = self.LB
        red = [[f'{MF} {vr(MS + 8 * piece + 4 * half)}, {vr(A1 if half else A0)}, {vr(PBS[piece] + 4 * pj)}, {vr(MS + 8 * piece + 4 * half) if pj else 0}'
                for pj in range(4) for half in range(2)] for piece in range(NP)]
        for x in red[0]:
            L(x)
        R = Region(cap=1000)
        tm = RING
        for piece in range(NP):
            for half in range(2):
                rho, u = (piece, half) if piece < 2 else (half, 2)
                S = self.SA(rho, u)
                X = self.XR + 4 * piece + 2 * half
                M = MS + 8 * piece + 4 * half
                for e in range(4):
                    m = M + e
                    t0 = tm + 2 * e + 8 * (half)
                    R.op(f'v_mul_f32 v{m}, v{SC + rho}, v{m}')
                    R.op(f'v_mul_f32 v{t0}, {hex(NLOG2E)}, v{m}')
                    R.op(f'v_exp_f32 v{t0}, v{t0}')
                    R.op(f'v_mul_f32 v{m}, v{m}, v{S + e}')
                    R.op(f'v_add_f32 v{t0}, 1.0, v{t0}')
                    R.op(f'v_rcp_f32 v{t0}, v{t0}')
                    src = X + (e >> 1)
                    R.op(f'v_and_b32 v{t0 + 1}, 0xffff0000, v{src}' if e & 1 else f'v_lshlrev_b32 v{t0 + 1}, 16, v{src}')
                    R.op(f'v_fma_f32 v{m}, v{m}, v{t0}, v{t0 + 1}')
                nxt = red[piece + 1][4 * half:4 * half + 4] if piece + 1 < NP else []
                for k_, o in enumerate(self.interleave(R.ops)):
                    self.lin.op(o)
                    if nxt and k_ % 6 == 3:
                        L(nxt.pop(0))
                R.ops = []
                Z = MS + 8 * piece
                L(f'v_cvt_pk_bf16_f32 v{Z + 2 * half}, v{M}, v{M + 1}\nv_cvt_pk_bf16_f32 v{Z + 2 * half + 1}, v{M + 2}, v{M + 3}')
            va, so, imm = self.xo[piece]
            L(f'v_permlane16_swap_b32 v{Z}, v{Z + 2}\nv_permlane16_swap_b32 v{Z + 1}, v{Z + 3}')
            L(f'buffer_store_dwordx4 {vr(Z)}, v{va}, {sr(SO)}, {so} offen offset:{imm}{("", " sc1", " nt", " sc0 sc1", " sc1 nt")[self.o.get("osc1", 0)]}')
        self.stamp(None, 'end')

    @staticmethod
    def interleave(ops):
        per = len(ops) // 4
        return [ops[e * per + k] for k in range(per) for e in range(4)]

    def build(self):
        self.hl = {}
        self.flags = {}
        self.build_stream()
        self.setup()
        for fn in (self.layernorm, self.main):
            R = fn()
            if self.o.get('probe') and (fn == self.main or self.o.get('probe') == 3):
                self.lin.probe_vm = self.o['probe'] >= 2
                if self.lin.probe is None:
                    self.lin.probe_skip = self.o.get('pskip', 0)
                self.lin.probe = PRV
                self.o['pf_dummy'] = 1
            for o in R.schedule(self.log):
                self.lin.op(o)
            if self.o.get('prof'):
                ld = R.loads
                for g in range(0, R.nspine, 48):
                    xs = [ld[k] for k in range(g, min(g + 48, R.nspine))]
                    self.log.append(f'{g:5d} sum={sum(xs):4d} ' + ''.join(str(min(9, v)) for v in xs))
        if self.o.get('probe'):
            if self.lin.probe_open:
                self.lin._probe_end()
            self.lin._emit_wait(None, 0)
            self.lin.probe = None
            self.lin.text(f's_lshl_b32 s0, s{sI}, 4\ns_add_u32 s0, s0, s{sJ}\ns_lshl_b32 s0, s0, 2\ns_add_u32 s0, s0, s{sWV}\ns_mul_i32 s0, s0, 768\ns_add_u32 s0, s0, {DUMP_BASE}\nv_lshlrev_b32 v{vPOLL}, 2, v{vLANE}')
            for k in range(3):
                self.lin.text(f'buffer_store_dword v{PRV + k}, v{vPOLL}, {sr(SW)}, s0 offen offset:{256 * k}')
            self.stamp_names = ['probe'] + self.lin.probe_names
        prev = None
        for R_, g, nm in self.marks:
            cur = (R_, R_.time_at[g], R_.slot_t[g], g)
            if prev and prev[0] is R_:
                cat = {}
                for o in R_.ops:
                    if o.pipe and prev[3] < o.gap <= g:
                        k = o.ins[0].kind + (o.tag[0] if o.tag else '')
                        cat[k] = cat.get(k, 0) + o.pipe
                self.log.append(f'  model {nm}: with pipe {cur[1] - prev[1]:.0f}  issue only {cur[2] - prev[2]:.0f} pipe {sum(cat.values())} {cat}')
            prev = cur
        self.final()
        self.lin.text('s_endpgm')
        body = list(self.lin.out)
        for s in self.slow:
            body += [l.strip() for l in s.split('\n')]
        body += [f'L_stop{self.sfx}:', 's_endpgm']
        self.log.append(f'nops={self.lin.nops} autowaits={len(self.lin.autowaits)} instrs={len(body)}')
        return body


DOC = '''
;
;   q in {0,3}: five 64-column gate/up steps, eight 16-column output tiles; q in {1,2}: four steps, ten tiles.
'''


def assemble(gens):
    body = ['s_cmp_ge_u32 s2, 256', 's_cbranch_scc0 L_go', 's_endpgm', 'L_go:', 's_load_dwordx4 s[4:7], s[0:1], 0',
            's_load_dwordx4 s[32:35], s[0:1], 64', 's_load_dwordx2 s[36:37], s[0:1], 16', 's_load_dwordx4 s[8:11], s[0:1], 32',
            's_load_dwordx4 s[20:23], s[0:1], 48']
    body += ['s_bitcmp1_b32 s2, 7'] if gens[0].o.get('hicls', 0) else ['s_add_u32 s3, s2, 8', 's_bitcmp1_b32 s3, 4']
    body += ['s_cbranch_scc1 L_four']
    body += gens[0].build() + ['.p2align 6', 'L_four:'] + gens[1].build()
    hdr = open('cdna_kernels/' + NAME + '.s.ref').read().split('\n')
    head = [l for l in hdr if l.startswith(';')][:11]
    K = NAME + '_kernel'
    txt = head + [f'; @launch grid=(256,1,1) block=(256,1,1) lds={LDS_BYTES}'] + DOC.strip().split('\n') + [
                  '.amdgcn_target "amdgcn-amd-amdhsa--gfx950"', '.text', f'.globl {K}', '.p2align 8',
                  f'.type {K},@function', f'{K}:']
    txt += [l.replace(' offset:0 ', ' ').replace(', ', ',') for l in body]
    txt += ['.section .rodata,"a"', '.p2align 6', f'.amdhsa_kernel {K}', '  .amdhsa_next_free_vgpr 512',
            '  .amdhsa_next_free_sgpr 102', '  .amdhsa_accum_offset 256', '  .amdhsa_group_segment_fixed_size 0',
            '  .amdhsa_kernarg_size 80', '  .amdhsa_float_denorm_mode_32 3', '  .amdhsa_user_sgpr_count 2',
            '  .amdhsa_user_sgpr_kernarg_segment_ptr 1', '  .amdhsa_system_sgpr_workgroup_id_x 1',
            '.end_amdhsa_kernel']
    return '\n'.join(txt) + '\n'


if __name__ == '__main__':
    import argparse
    ap = argparse.ArgumentParser()
    ap.add_argument('out')
    ap.add_argument('--stamps', action='store_true')
    ap.add_argument('-o', action='append', default=[])
    a = ap.parse_args()
    opts = {k: int(v, 0) for k, v in (x.split('=') for x in a.o)}
    P_A, P_H, P_S, P_AH = opts.get('pa', P_A), opts.get('ph', P_H), opts.get('ps', P_S), opts.get('pah', P_AH)
    gens = [Gen(5, stamps=a.stamps, opts=opts), Gen(4, stamps=a.stamps, opts=opts)]
    open(a.out, 'w').write(assemble(gens))
    open(a.out + '.names', 'w').write(' '.join(gens[0].stamp_names) + '\n' + ' '.join(gens[1].stamp_names))
    for g in gens:
        print('\n'.join(g.log))
        for t in g.lin.autowaits:
            if not t.startswith(('v_mfma', 'v_permlane')):
                print('  autowait:', t)
```

```python
import sys
from sched import Region, Linear, Op, Ins

NAME = 'recurrent_scan__linear_attn_block__glu_gated_glu__prompt'
MF = 'v_mfma_f32_16x16x32_bf16'
LOG2E = 0x3fb8aa3b
NLOG2E = 0xbfb8aa3b
EPS6 = 0x358637bd
OOB = 0x80000000

F1, F2A, F2B, F3, F2O, F2C = 0, 4096, 4096 + 8192, 4096 + 16384, 4096 + 24576, 4096 + 32768
F2D = 4096 + 40960
KV2_BASE = 0x100000
KV_BASE, OL_BASE, O_BASE, PART_BASE, H_BASE = 0x20000, 0x200000, 0x300000, 0x500000, 0x1000000
DUMP_BASE = 0x2400000
WS_SIZE = 0x4000000
RS = 159744
QL = 160256
DUMMY = 162304
LDS_BYTES = 163840

SX, SG, SU, SQ, SD, SW, SO, SB, SWO = 4, 8, 12, 16, 20, 24, 28, 32, 36
sI, sJ, sJJ, sQ_, sIL, sWV, sR, sC = 40, 41, 42, 43, 44, 45, 46, 47
KA, KQ, TB = 48, 57, 66
sMA, sM2, sH0, sH1, sT0, sT1, sT2, sT3 = 84, 85, 86, 87, 88, 89, 90, 91
sMASKC, sMASKONE, sMK2, sMK3 = 92, 94, 32, 34
sHB, sCNT, sK3, sK4, sK5 = 96, 97, 98, 99, 100
sS0 = 0
sJQ = 101
sEPS = SQ + 3
sIH = 3
sCNT2 = TB + 9
sCL2 = sM2
sCNT2X = sM2
sST = 76
ACC0, ACC1, XNV, RING = 0, 64, 128, 160
PQ = 192
SC = 208
vL16, vA0, vA1, vLA0, vLA1, vLB, vLL = 212, 213, 214, 215, 216, 217, 218
P_A, P_AH, P_Q, P_B, P_H, P_S = 76, 160, 175, 100, 72, 200
V288 = 219
vFST, vONE, vLANE, vPOLL = 224, 225, 226, 227
T = 228
NT = 28
PSTR = 10240
XR_ = 18432
PRB = 'probe'
PRV = T + 25
V_G0, V_G1 = T + 10, T + 6
VQ = [vLL, T, T + 1, V288 + 4]


def vr(b, n=4):
    return f'v[{b}:{b + n - 1}]' if n > 1 else f'v{b}'


def sr(b, n=4):
    return f's[{b}:{b + n - 1}]'


def xn(n, lo=0, cnt=4):
    if n < 64:
        return f'a[{4 * n + lo}:{4 * n + lo + cnt - 1}]'
    return vr(XNV + 4 * (n - 64) + lo, cnt)


class Gen:
    def __init__(self, ns, stamps=False, opts=None):
        self.ns = ns
        self.nt = 8 if ns == 5 else 10
        self.CH, self.NCH = (18432, 8) if ns == 5 else (20480, 7)
        self.KVX = self.CH * self.NCH
        self.order = ('A0', 'Q', 'A1', 'A2', 'A3', 'A4')[:ns + 1]
        self.LB, self.OB = (ACC1, ACC0) if ns == 5 else (ACC0, ACC1)
        self.sfx = f'_{ns}'
        self.jump = (2, 0, -4, 0) if ns == 5 else (1, 0, -3)
        self.stamps = stamps
        self.o = dict(bar2=0x3f if ns == 5 else 0x1f, p3k=13 if ns == 5 else 12, ntail=4, f3k=3, ppf=600, hlook=7, pkv=90, warm=True, spin=200000, ddma=50, dst=70, backlog=60, dh=50, dm=110)
        self.o.update(opts or {})
        self.o.update({k[:-2]: v for k, v in (opts or {}).items() if k.endswith(f'_{ns}')})
        self.lin = Linear()
        self.slow = []
        self.log = []
        self.nstamp = 0
        self.marks = []
        self.spool = 0
        self.stamp_names = []

    def setup(self):
        L = self.lin.text
        st = self.stamps
        hi = self.o.get('hicls', 0)
        L(f'''
        {'s_memrealtime s[76:77]' if st else ''}
        s_getpc_b64 s[{sT2}:{sT3}]
        L_pc{self.sfx}:
        s_lshr_b32 s{sT1}, s2, 3
        v_and_b32 v{vLANE}, 63, v0
        v_lshrrev_b32 v1, 6, v0
        {f's_and_b32 s{sT0}, s{sT1}, 15' if hi else f's_lshr_b32 s{sT0}, s2, 4'}
        {'' if hi else f's_and_b32 s{sT0}, s{sT0}, 14'}
        {'' if hi else f's_bfe_u32 s{sK3}, s2, 0x10003'}
        {'' if hi else f's_or_b32 s{sT0}, s{sT0}, s{sK3}'}
        v_lshl_add_u32 v2, v{vLANE}, 4, s{sT0}
        v_readfirstlane_b32 s{sWV}, v1
        v_lshlrev_b32 v2, 7, v2
        v_min_u32 v2, L_stop{self.sfx}-L_pc{self.sfx}, v2
        v_cmp_gt_u32 vcc, {32 if self.o['warm'] else 0}, v0
        s_and_saveexec_b64 s[{sK3}:{sK4}], vcc
        s_cbranch_execz L_nowarm{self.sfx}
        global_load_dword v{T + 27}, v2, s[{sT2}:{sT3}]
        L_nowarm{self.sfx}:
        s_mov_b64 exec, -1''')
        self.lin.vm.pop()
        L(f'''
        s_and_b32 s{sQ_}, s{sT1}, {1 if hi else 3}
        {(f's_mul_i32 s{sQ_}, s{sQ_}, 3' if self.ns == 5 else f's_add_u32 s{sQ_}, s{sQ_}, 1') if hi else ''}
        {f's_bfe_u32 s{sIL}, s{sT1}, 0x30001' if hi else f's_lshr_b32 s{sIL}, s{sT1}, 2'}
        s_and_b32 s{sT0}, s2, 1
        s_lshl_b32 s{sT0}, s{sT0}, 3
        s_add_u32 s{sI}, s{sT0}, s{sIL}
        s_lshl_b32 s{sT0}, s{sQ_}, 1
        s_add_u32 s{sT0}, s{sT0}, s{sIL}
        s_sub_u32 s{sT2}, s{sT0}, 9
        s_cselect_b32 s{sT0}, s{sT0}, s{sT2}
        s_lshl_b32 s{TB}, s{sT0}, 7
        s_lshl_b32 s{sT1}, s{sI}, 2
        s_add_u32 s{sT1}, s{sT1}, s{sWV}
        s_lshl_b32 s{sT1}, s{sT1}, 5
        v_lshrrev_b32 v4, 3, v{vLANE}
        v_add_u32 v4, s{sT1}, v4
        v_mul_u32_u24 v4, 1152, v4
        v_bfe_u32 v5, v{vLANE}, 4, 2
        v_lshlrev_b32 v5, 1, v5
        v_and_b32 v6, 7, v{vLANE}
        v_xor_b32 v{vA0}, v5, v6
        v_lshl_add_u32 v{T + 2}, v{vA0}, 4, v4
        v_add_u32 v{T + 3}, {8 * 1152 - 1024}, v{T + 2}
        v_add_u32 v{T + 4}, {16 * 1152}, v{T + 2}
        v_add_u32 v{T + 5}, {24 * 1152 - 1024}, v{T + 2}
        s_mul_i32 s{sM2}, s{sWV}, {XR_}
        s_add_u32 s{sM2}, s{sM2}, 16384
        s_add_u32 s{sCNT2}, s{sM2}, {4 * XR_}
        v_mov_b32 v{T + 25}, v0''')
        L(f'''
        {'s_memrealtime s[78:79]' if st else ''}
        s_waitcnt lgkmcnt(0)
        {'s_memrealtime s[80:81]' if st else ''}
        s_mov_b32 s{SQ}, s6
        s_mov_b32 s{SQ + 1}, s7
        s_mov_b32 s6, {2048 * 1152}
        s_mov_b32 s7, 0x20000''')
        self.xl = {}
        nf = self.o.get('xfirst', 3)
        order = [(0, u) for u in range(nf)] + [(1, u) for u in range(nf)]
        order += [(0, u) for u in range(nf, 9)] + [(1, u) for u in range(nf, 9)]
        pend = []
        for rho, u in order:
            pend.append(Op(f's_add_u32 m0, s{sCNT2 if rho else sM2}, {2048 * u}'))
            for hf in range(2):
                op = Op(f'buffer_load_dwordx4 v{T + 2 + 2 * rho + hf}, {sr(SX)}, s{TB + u} offen offset:{1024 * hf} lds')
                self.xl[rho, u, hf] = op
                pend.append(op)
        nxt = lambda u: L(f's_add_u32 s{TB + u}, s{TB + u - 1}, 128\ns_cmp_eq_u32 s{TB + u}, 1152\ns_cselect_b32 s{TB + u}, 0, s{TB + u}')
        for g in range(2 * nf):
            for _ in range(3):
                self.lin.op(pend.pop(0))
            if g + 1 < nf:
                nxt(g + 1)
        for u in range(nf, 9):
            nxt(u)
        if st:
            L('s_memrealtime s[82:83]')
        S = Region()
        L = S.op
        L(f'''
        s_mov_b32 s{SW}, s34
        s_mov_b32 s{SW + 1}, s35
        s_mov_b32 s{SW + 2}, {WS_SIZE}
        s_mov_b32 s{SW + 3}, 0x20000
        s_bfe_u32 s{sJJ}, s2, 0x20001
        s_lshl_b32 s{sJ}, s{sJJ}, 2
        s_and_b32 s{sT0}, s{sQ_}, 2
        s_add_u32 s{sJ}, s{sJ}, s{sT0}
        s_lshr_b32 s{sT0}, s{sJJ}, 1
        s_xor_b32 s{sT0}, s{sT0}, {(self.ns - 4) ^ self.o.get('qflip', 1)}
        s_add_u32 s{sJ}, s{sJ}, s{sT0}
        s_lshr_b32 s{sIH}, s{sI}, 3
        s_and_b32 s{sIH}, s{sIH}, {self.o.get('ihoff', 1)}
        s_xor_b32 s{sJQ}, s{sJ}, {self.o.get('qswap', 1)}
        s_lshr_b32 s{sR}, s{sWV}, 1
        s_and_b32 s{sC}, s{sWV}, 1
        v_mov_b32 v{vONE}, 1
        v_min_u32 v{vFST}, 1, v{T + 25}
        v_lshlrev_b32 v{vFST}, 31, v{vFST}
        v_lshlrev_b32 v{vL16}, 4, v{vLANE}''')
        if self.o.get('defer', 1):
            self.ln_consts(S)
        nearly = len(S.ops)
        for u in range(9):
            L(f's_mul_i32 s{KA + u}, s{TB + u}, {64 * 9216 // 128}\ns_mul_i32 s{KQ + u}, s{TB + u}, {64 * 3456 // 128}')
        L(f'''
        s_mov_b32 s{SU}, s10
        s_mov_b32 s{SU + 1}, s11
        s_mov_b32 s{SO}, s22
        s_mov_b32 s{SO + 1}, s23
        s_mov_b32 s{SO + 2}, {2048 * 1152}
        s_mov_b32 s{SO + 3}, 0x20000
        s_mov_b32 s{SB + 2}, 256
        s_mov_b32 s{SB + 3}, 0x20000
        s_lshl_b32 s{sT1}, s{sQ_}, 3
        s_lshr_b32 s{sCNT}, 0x0d090500, s{sT1}
        s_and_b32 s{sCNT}, s{sCNT}, 0xff
        s_lshl_b32 s{sT0}, s{sCNT}, 7
        s_mul_i32 s{sT1}, s{sJJ}, 2304
        s_add_u32 s{sT0}, s{sT0}, s{sT1}
        s_add_u32 s{SG}, s{SG}, s{sT0}
        s_addc_u32 s{SG + 1}, s{SG + 1}, 0
        s_sub_u32 s{SG + 2}, {576 * 9216}, s{sT0}
        s_mov_b32 s{SG + 3}, 0x20000
        s_add_u32 s{SU}, s{SU}, s{sT0}
        s_addc_u32 s{SU + 1}, s{SU + 1}, 0
        s_sub_u32 s{SU}, s{SU}, 1024
        s_subb_u32 s{SU + 1}, s{SU + 1}, 0
        s_sub_u32 s{SU + 2}, {576 * 9216 + 1024}, s{sT0}
        s_mov_b32 s{SU + 3}, 0x20000
        s_mov_b32 s{SQ + 2}, {576 * 3456}
        s_mov_b32 s{SQ + 3}, 0x20000
        s_lshl_b32 s{sT1}, s{sQ_}, 3
        s_lshr_b32 s{sT0}, 0x07050200, s{sT1}
        s_and_b32 s{sT0}, s{sT0}, 0xff
        s_lshl_b32 s{sT0}, s{sT0}, 7
        s_mul_i32 s{sT1}, s{sR}, {4 * 1152}
        s_add_u32 s{sT1}, s{sT1}, s{sT0}
        s_add_u32 s{SWO}, s{SWO}, s{sT1}
        s_addc_u32 s{SWO + 1}, s{SWO + 1}, 0
        s_sub_u32 s{SWO}, s{SWO}, 1024
        s_subb_u32 s{SWO + 1}, s{SWO + 1}, 0
        s_sub_u32 s{SWO + 2}, {576 * 1152 + 1024}, s{sT1}
        s_mov_b32 s{SWO + 3}, 0x20000
        s_mul_i32 s{sT1}, s{sJJ}, {1152 * 1152}
        s_add_u32 s{sT0}, s{sT0}, s{sT1}
        s_add_u32 s{SD}, s{SD}, s{sT0}
        s_addc_u32 s{SD + 1}, s{SD + 1}, 0
        s_sub_u32 s{SD}, s{SD}, 1024
        s_subb_u32 s{SD + 1}, s{SD + 1}, 0
        s_sub_u32 s{SD + 2}, {4608 * 1152 + 1024}, s{sT0}
        s_mov_b32 s{SD + 3}, 0x20000
        s_lshl_b32 s{sMA}, s{sWV}, 11
        v_lshrrev_b32 v{T + 9}, 3, v{vLANE}
        s_lshl_b32 s{sT0}, s{sWV}, 3
        v_add_u32 v{T + 9}, s{sT0}, v{T + 9}
        v_mul_u32_u24 v{T + 9}, 9216, v{T + 9}
        v_lshl_add_u32 v{vA0}, v{vA0}, 4, v{T + 9}
        v_add_u32 v{vA1}, {32 * 9216}, v{vA0}
        v_lshrrev_b32 v{T + 8}, 2, v{vLANE}
        v_lshrrev_b32 v{T + 9}, 5, v{vLANE}
        v_lshlrev_b32 v{T + 9}, 11, v{T + 9}
        v_and_b32 v{T + 7}, 7, v{T + 8}
        v_lshl_add_u32 v{T + 9}, v{T + 7}, 7, v{T + 9}
        v_bfe_u32 v{T + 7}, v{vLANE}, 3, 2
        s_lshl_b32 s{sT0}, s{sC}, 1
        v_xor_b32 v{T + 7}, s{sT0}, v{T + 7}
        v_lshl_add_u32 v{T + 9}, v{T + 7}, 5, v{T + 9}
        v_and_b32 v{T + 7}, 3, v{vLANE}
        v_lshl_add_u32 v{vLA0}, v{T + 7}, 3, v{T + 9}
        v_xor_b32 v{vLA1}, 32, v{vLA0}
        s_sub_u32 s{sMASKC}, 0, s{sC}
        s_mov_b32 s{sMASKC + 1}, s{sMASKC}
        s_lshl_b32 s{sT0}, s{sC}, 1
        s_lshr_b32 s{sMASKONE}, 0x44444444, s{sT0}
        s_mov_b32 s{sMASKONE + 1}, s{sMASKONE}
        s_lshl_b32 s{sT0}, s{sI}, 2
        s_add_u32 s{sT0}, s{sT0}, s{sJJ}
        s_mul_i32 s{sHB}, s{sT0}, {18 * 16384}
        s_add_u32 s{sHB}, s{sHB}, {H_BASE}
        s_lshl_b32 s{sT0}, s{sCNT}, 14
        s_add_u32 s{sT0}, s{sT0}, s{sHB}
        s_lshl_b32 s{sT1}, s{sC}, 11
        s_add_u32 s{sT0}, s{sT0}, s{sT1}
        s_lshl_b32 s{sT1}, s{sWV}, 12
        s_add_u32 s{sH0}, s{sT0}, s{sT1}
        s_xor_b32 s{sT1}, s{sT1}, 4096
        s_add_u32 s{sH1}, s{sT0}, s{sT1}''')
        qd, qr = self.pat_qkv()
        L(qd)
        L(qr)
        if not self.o.get('defer', 1):
            self.ln_consts(S)
            nearly = len(S.ops)
        for o in S.ops[:nearly]:
            self.lin.op(o)
        rest = S.ops[nearly:]
        if st:
            self.lin.text('s_waitcnt lgkmcnt(0)')
            for k, nm in enumerate(('entry', 'karg0', 'karg1', 'xa')):
                self.stamp_names.append(nm)
                self.lin.text(f'v_mov_b32 v{T + 26}, s{sST + 2 * k}\nv_mov_b32 v{T + 27}, 0\ns_lshl_b32 s{sT2}, s2, 10\ns_add_u32 s{sT2}, s{sT2}, {DUMP_BASE + 8 * k}\nbuffer_store_dwordx2 v[{T + 26}:{T + 27}], v{vFST}, {sr(SW)}, s{sT2} offen')
            self.nstamp = 4
        self.stamp(None, 'setup')
        k = 3 * (9 - nf)
        per = -(-len(rest) // (9 - nf))
        for g in range(9 - nf):
            ops = pend[3 * g:3 * g + 2] + rest[per * g:per * g + per // 2] + [pend[3 * g + 2]] + rest[per * g + per // 2:per * (g + 1)]
            for o in ops:
                self.lin.op(o)
        self.x_pend = pend[k:]
        self.base = {vLA0: 0, vLA1: 0}
        self.base.update({r: 0 for r in VQ})

    @staticmethod
    def raw(rho, t):
        if rho == 0:
            return ACC0 + 4 * t if t < 16 else ACC1 + 56 + 4 * (t - 16)
        return RING + 4 * t if t < 4 else ACC1 + 4 * (t - 4)

    def flag_addr(self, f, own, dst, sT1=sT1, own_ok=False):
        t = dst
        if f == '1':
            blk, grp, line, mem = (sJ if own else sJQ), None, 21, sI
        elif f == '2o':
            blk, grp, line, mem = sI, None, 20, sJ
        elif f == '3':
            blk, grp, line, mem = sI, sQ_, 16, sJJ
        else:
            blk, grp, line, mem = sI, sJJ, 4 * 'abcd'.index(f[1]), sQ_
        s = f's_lshl_b32 s{t}, s{blk}, 5\n'
        if grp is not None:
            s += f's_add_u32 s{t}, s{t}, s{grp}\n'
        if line:
            s += f's_add_u32 s{t}, s{t}, {line}\n'
        if own:
            s += f's_lshl_b32 s{t}, s{t}, 5\ns_add_u32 s{t}, s{t}, s{mem}\ns_lshl_b32 s{t}, s{t}, 2\n'
        else:
            s += f's_lshl_b32 s{t}, s{t}, 7\n'
        return s

    def pat_b(self, a, b):
        s = f'''v_lshrrev_b32 v{a}, 3, v{vLANE}
        s_lshl_b32 s{sK5}, s{sWV}, 3
        v_add_u32 v{a}, s{sK5}, v{a}
        v_mul_u32_u24 v{a}, 1152, v{a}
        v_bfe_u32 v{b}, v{vLANE}, 4, 2
        v_lshlrev_b32 v{b}, 1, v{b}
        v_and_b32 v{V288}, 7, v{vLANE}
        v_xor_b32 v{b}, v{b}, v{V288}
        v_lshl_add_u32 v{a}, v{b}, 4, v{a}
        v_add_u32 v{V288}, 1024, v{a}
        v_add_u32 v{V288 + 1}, 128, v{a}
        v_add_u32 v{V288 + 2}, {1024 + 32 * 1152}, v{a}
        v_add_u32 v{V288 + 3}, {128 + 32 * 1152}, v{a}
        '''
        if self.nt > 8:
            s += f'''v_lshrrev_b32 v{a}, 2, v{vLANE}
            s_lshl_b32 s{sK5}, s{sWV}, 4
            v_add_u32 v{a}, s{sK5}, v{a}
            v_mul_u32_u24 v{a}, 1152, v{a}
            v_bfe_u32 v{b}, v{vLANE}, 4, 1
            v_lshlrev_b32 v{b}, 1, v{b}
            v_and_b32 v{V288 + 4}, 3, v{vLANE}
            v_xor_b32 v{b}, v{b}, v{V288 + 4}
            v_lshl_add_u32 v{a}, v{b}, 4, v{a}
            s_mul_i32 s{sK5}, s{sQ_}, -320
            s_add_u32 s{sK5}, s{sK5}, {1024 + 576}
            v_add_u32 v{V288 + 4}, s{sK5}, v{a}
            '''
        return s

    def pat_c(self):
        s = f'v_add_u32 v{V288 + 2}, {4 * 1152}, v{V288 + 2}\nv_add_u32 v{V288 + 3}, {4 * 1152}, v{V288 + 3}\n'
        if self.nt > 8:
            s += f's_mul_i32 s{sK5}, s{sC}, {4 * 1152}\nv_add_u32 v{V288 + 4}, s{sK5}, v{V288 + 4}\n'
        return s

    def pat_cl(self, a=T + 20):
        s = f'v_lshrrev_b32 v{a}, 5, v{vLANE}\nv_mul_u32_u24 v{a}, {68 * 1152}, v{a}\n'
        for k in range(4):
            s += f'v_add_u32 v{PQ + k}, v{a}, v{V288 + k}\n'
            if k >= 2:
                s += f'v_add_u32 v{PQ + k}, {256 * 1152}, v{PQ + k}\n'
        s += f'''s_mul_i32 s{KQ + 8}, s{sC}, 136
        s_lshl_b32 s{sK5}, s{sR}, 4
        s_add_u32 s{KQ + 8}, s{KQ + 8}, s{sK5}
        s_add_u32 s{KQ + 8}, s{KQ + 8}, 16
        s_mul_i32 s{KQ + 8}, s{KQ + 8}, 1152
        '''
        if self.nt > 8:
            s += f'''v_lshrrev_b32 v{a}, 4, v{vLANE}
            v_mul_u32_u24 v{a}, {68 * 1152}, v{a}
            v_add_u32 v{PQ + 4}, v{a}, v{V288 + 4}
            s_mul_i32 s{sCL2}, s{sR}, 252
            s_mul_i32 s{sK5}, s{sC}, 20
            s_add_u32 s{sCL2}, s{sCL2}, s{sK5}
            s_add_u32 s{sCL2}, s{sCL2}, 16
            s_mul_i32 s{sCL2}, s{sCL2}, 1152
            '''
        return s

    def pat_qkv(self, a=T + 20, b=T + 21, c=T + 22, d=T + 23, e=T + 24):
        s = f'''s_mul_i32 s{sK3}, s{sJQ}, 72
        s_and_b32 s{sK3}, s{sK3}, -16
        v_mov_b32 v{e}, s{sK3}
        s_mul_i32 s{sK3}, s{sJ}, 72
        s_and_b32 s{sK3}, s{sK3}, -16
        '''
        for n in range(4):
            s += f'''v_lshrrev_b32 v{a}, 4, v{vLANE}
            v_add_u32 v{a}, {4 * n}, v{a}
            v_and_b32 v{b}, 7, v{a}
            v_lshlrev_b32 v{b}, 1, v{b}
            v_and_b32 v{c}, 15, v{vLANE}
            v_xor_b32 v{b}, v{b}, v{c}
            v_mul_u32_u24 v{c}, 52, v{b}
            v_lshrrev_b32 v{c}, 8, v{c}
            v_mul_u32_u24 v{d}, 5, v{c}
            v_sub_u32 v{b}, v{b}, v{d}
            v_lshlrev_b32 v{b}, 4, v{b}
            v_add_u32 v{d}, 1, v{c}
            v_mul_u32_u24 v{d}, 1152, v{d}
            v_add_u32 v{d}, s{sK3}, v{d}
            v_cmp_eq_u32 vcc, 2, v{c}
            v_cndmask_b32 v{d}, v{d}, v{e}, vcc
            v_add_u32 v{b}, v{b}, v{d}
            v_add_u32 v{c}, 1, v{c}
            v_lshrrev_b32 v{c}, 2, v{c}
            v_lshl_or_b32 v{b}, v{c}, 31, v{b}
            s_lshl_b32 s{sK5}, s{sWV}, 4
            v_add_u32 v{a}, s{sK5}, v{a}
            v_mul_u32_u24 v{a}, 3456, v{a}
            v_add_u32 v{V288 + n}, v{a}, v{b}
            '''
            if n:
                s += f'v_subrev_u32 v{V288 + n}, {1024 * n}, v{V288 + n}\n'
        r = f'''s_and_b32 s{sK3}, s{sJ}, 1
        s_lshl_b32 s{sK3}, s{sK3}, 3
        s_mul_i32 s{sK4}, s{sC}, 40
        s_and_b32 s{sK5}, s{sJQ}, 1
        s_lshl_b32 s{sK5}, s{sK5}, 3
        s_add_u32 s{sK5}, s{sK5}, s{sK4}
        s_add_u32 s{sK4}, s{sK4}, s{sK3}
        s_add_u32 s{sK3}, s{sK3}, 32
        '''
        for f in range(4):
            r += f'v_and_b32 v{a}, 3, v{vLANE}\n'
            if f < 3:
                r += f'v_lshl_add_u32 v{a}, v{a}, 3, s{sK5 if f == 2 else sK4}\nv_add_u32 v{a}, {80 * f}, v{a}\n'
            else:
                r += f'v_min_u32 v{a}, 2, v{a}\nv_lshrrev_b32 v{c}, 1, v{a}\nv_mul_u32_u24 v{a}, 80, v{a}\nv_add_u32 v{a}, s{sK3}, v{a}\nv_lshlrev_b32 v{c}, 3, v{c}\nv_and_b32 v{c}, {8 * self.o.get("qswap", 1)}, v{c}\nv_xor_b32 v{a}, v{a}, v{c}\n'
            r += f'''v_bfe_u32 v{b}, v{vLANE}, 2, 3
            v_lshlrev_b32 v{b}, 5, v{b}
            v_xor_b32 v{a}, v{a}, v{b}
            v_lshrrev_b32 v{b}, 2, v{vLANE}
            v_lshl_add_u32 v{VQ[f]}, v{b}, 8, v{a}
            '''
        return s, r

    def build_stream(self):
        st = []
        for name in self.order:
            st += [(name, u) for u in range(9)]
        st += [('B', u) for u in range(18)]
        st += [('O', 0), ('O', 1)]
        st += [('C', u) for u in range(9)]
        self.stream = st
        self.dmas = {}
        nC = len(st) - 9
        nO = nC - 2
        npin, tpin = self.o.get('npin', 0), self.o.get('tpin', 40)
        order = [n for n in range(len(st)) if not nC <= n < nC + npin]
        order[tpin:tpin] = list(range(nC, nC + npin))
        self.slot, self.next_user = {}, {}
        first = [0] + list(range(5, self.NCH)) + [1, 2, 3, 4] if self.o.get('npre', 9) > 1 else list(range(self.NCH))
        self.npre = min(self.o.get('npre', 9), self.NCH - 4)
        for k in range(self.NCH):
            self.slot[order[k]] = first[k]
        release = [n for n in range(len(st)) if n not in (nO, nO + 1)]
        for m, k in zip(order[self.NCH:], release):
            self.slot[m] = self.slot[k]
            self.next_user[k] = m
        self.prev_user = {m: k for k, m in self.next_user.items()}

    def dma_ops(self, n):
        name, u = self.stream[n]
        cb = self.slot[n] * self.CH
        ops = []
        if name[0] == 'A':
            if u == 0 and name != 'A0' and self.jump[int(name[1]) - 1]:
                ops.append(Op(f's_mul_i32 s{sK3}, s{sIH}, {128 * self.jump[int(name[1]) - 1]}\ns_add_u32 s{sK3}, s{sK3}, 128\ns_ashr_i32 s{sK4}, s{sK3}, 31'))
                for s_ in (SG, SU):
                    ops.append(Op(f's_add_u32 s{s_}, s{s_}, s{sK3}\ns_addc_u32 s{s_ + 1}, s{s_ + 1}, s{sK4}\ns_sub_u32 s{s_ + 2}, s{s_ + 2}, s{sK3}'))
            elif u == 0 and name != 'A0':
                for s_ in (SG, SU):
                    ops.append(Op(f's_add_u32 s{s_}, s{s_}, 128\ns_addc_u32 s{s_ + 1}, s{s_ + 1}, 0\ns_sub_u32 s{s_ + 2}, s{s_ + 2}, 128'))
            for hh in range(2):
                va = vA1 if hh else vA0
                ops.append(Op(f's_add_u32 m0, s{sMA}, {cb + 8192 * hh}'))
                ops.append(Op(f'buffer_load_dwordx4 v{va}, {sr(SG)}, s{KA + u} offen lds', pipe=P_A))
                ops.append(Op(f'buffer_load_dwordx4 v{va}, {sr(SU)}, s{KA + u} offen offset:1024 lds', pipe=P_A))
        elif name == 'O':
            pass
        elif name == 'Q':
            ops.append(Op(f's_lshl_b32 s{sK5}, s{sMA}, 1'))
            ops.append(Op(f's_add_u32 m0, s{sK5}, {cb}'))
            for k in range(4):
                ops.append(Op(f'buffer_load_dwordx4 v{V288 + k}, {sr(SQ)}, s{KQ + u} offen offset:{1024 * k} lds', pipe=(P_Q if (self.ns - 4) ^ self.o.get('qflip', 1) else 140) * self.o.get('pq', 100) // 100))
        else:
            if name == 'B':
                ops.append(Op(f's_mul_i32 s{sK3}, s{TB + u}, 9'))
                ops.append(Op(f's_lshr_b32 s{sK3}, s{sK3}, 1'))
                so, srd, vb = f's{sK3}', SD, V288
            else:
                so, srd, vb = f's{KQ + u}', SWO, (V288 if u < 8 else PQ)
                if u == 0:
                    ops += [Op(l) for l in self.pat_c().split('\n') if l]
            for hh in range(2):
                ops.append(Op(f's_add_u32 m0, s{sMA}, {cb + 8192 * hh}'))
                for ln in range(2):
                    ops.append(Op(f'buffer_load_dwordx4 v{vb + 2 * hh + ln}, {sr(srd)}, {so} offen offset:{1024 * ln} lds', pipe=P_A))
            if self.nt > 8:
                ops.append(Op(f's_lshr_b32 s{sK4}, s{sMA}, 1'))
                ops.append(Op(f's_add_u32 m0, s{sK4}, {cb + 16384}'))
                ops.append(Op(f'buffer_load_dwordx4 v{vb + 4}, {sr(srd)}, {f"s{sCL2}" if (name, u) == ("C", 8) else so} offen lds', pipe=P_AH))
        self.dmas[n] = [o for o in ops if 'dma' in o.kinds()]
        for o in self.dmas[n]:
            o.tag = f'{name}{u}'
        return ops

    def b_tables(self, R):
        R.op(f's_lshl_b32 s{sK3}, s{sQ_}, 1\ns_add_u32 s{sK3}, s{sK3}, s{sIL}')
        R.op(f's_mul_i32 s{sK4}, s{sIH}, {hex(0x100b0703 - 0x0e0a0601)}\ns_add_u32 s{sK4}, s{sK4}, 0x0e0a0601')
        for p in range(8):
            d = TB + p
            R.op(f'''s_add_u32 s{d}, s{sK3}, {p}
            s_bitcmp1_b32 s{d}, 0
            s_cselect_b32 s{sK5}, s{sK4}, 0x0d090500
            s_and_b32 s{d}, s{d}, 6
            s_lshl_b32 s{d}, s{d}, 2
            s_lshr_b32 s{d}, s{sK5}, s{d}
            s_and_b32 s{d}, s{d}, 0xff
            s_lshl_b32 s{d}, s{d}, 14''')
        R.op(f's_add_u32 s{sK3}, s{sIL}, s{sQ_}')
        for base, n, t0, t1 in ((8, 4, 0x0f0b0702, 0x110c0804), (12, 4, 0x100c0803, 0x0e0a0601), (16, 2, 0x1104, 0x0f02)):
            R.op(f's_mul_i32 s{sK4}, s{sIH}, {hex((t1 - t0) & 0xffffffff)}\ns_add_u32 s{sK4}, s{sK4}, {hex(t0)}')
            for p in range(n):
                d = TB + base + p
                R.op(f'''s_add_u32 s{d}, s{sK3}, {p}
                s_and_b32 s{d}, s{d}, {n - 1}
                s_lshl_b32 s{d}, s{d}, 3
                s_lshr_b32 s{d}, s{sK4}, s{d}
                s_and_b32 s{d}, s{d}, 0xff
                s_lshl_b32 s{d}, s{d}, 14''')

    def c_tables(self, R):
        for k in range(8):
            R.op(f's_add_u32 s{KQ + k}, s{sIL}, {k}\ns_and_b32 s{KQ + k}, s{KQ + k}, 7\ns_mul_i32 s{KQ + k}, s{KQ + k}, {72 * 1152}')

    def news(self):
        pool = [sT0, sT1, sT3] + ([sEPS] if self.sq_busy else [SQ, SQ + 1, SQ + 2]) + ([] if self.in_b or self.kq_busy else [KQ + k for k in range(9)])
        self.spool += 1
        return pool[self.spool % len(pool)]

    def addr(self, R, reg, off, **kw):
        cur = self.base[reg]
        if not (0 <= off - cur and off - cur + 4096 < 65536):
            chunk = off // self.CH
            new = chunk * self.CH
            d = new - cur
            R.op(f'v_add_u32 v{reg}, {d}, v{reg}' if d > 0 else f'v_subrev_u32 v{reg}, {-d}, v{reg}', prio=50, **kw)
            self.base[reg] = cur = new
        return off - cur

    LN_ONES, LN_SEL0, LN_SEL1, LN_VAR = PQ, PQ + 4, PQ + 8, T + 10
    LN_XO, LN_XP, LN_R0, LN_R1 = T + 14, T + 15, T + 16, T + 17

    def ln_consts(self, R):
        ONES, SEL0, SEL1, VAR = self.LN_ONES, self.LN_SEL0, self.LN_SEL1, self.LN_VAR
        vXO, vXP, vR0, vR1 = self.LN_XO, self.LN_XP, self.LN_R0, self.LN_R1
        R.op(f'''v_mov_b32 v{ONES}, 0x3f803f80
        v_mov_b32 v{ONES + 1}, 0x3f803f80
        v_mov_b32 v{ONES + 2}, 0x3f803f80
        v_mov_b32 v{ONES + 3}, 0x3f803f80
        v_and_b32 v{VAR}, 15, v{vLANE}
        v_lshrrev_b32 v{VAR + 1}, 4, v{vLANE}
        v_bfe_u32 v{vR0}, v{vLANE}, 1, 2
        v_lshlrev_b32 v{vR0}, 1, v{vR0}
        v_xor_b32 v{vR0}, v{vR0}, v{VAR + 1}
        v_lshlrev_b32 v{vR0}, 4, v{vR0}
        v_lshl_add_u32 v{vR0}, v{VAR}, 7, v{vR0}
        s_mov_b32 s{sT0}, s{sM2}
        v_add_u32 v{vR0}, s{sT0}, v{vR0}
        v_xor_b32 v{vR1}, 64, v{vR0}
        v_lshlrev_b32 v{VAR + 1}, 3, v{VAR + 1}
        v_sub_u32 v{VAR}, v{VAR}, v{VAR + 1}
        v_mov_b32 v{VAR + 1}, 0x3f80
        v_mov_b32 v{vXO}, 0x3f800000''')
        for sel, add in ((SEL0, 0), (SEL1, 16)):
            for k in range(4):
                R.op(f'''v_cmp_eq_u32 vcc, {2 * k - add}, v{VAR}
                v_cmp_eq_u32 s[{sK3}:{sK4}], {2 * k + 1 - add}, v{VAR}
                v_mov_b32 v{VAR + 2}, 0
                v_cndmask_b32 v{sel + k}, 0, v{VAR + 1}, vcc
                v_cndmask_b32 v{sel + k}, v{sel + k}, v{vXO}, s[{sK3}:{sK4}]''')
        R.op(f'''v_add_u32 v{vXO}, s{sT0}, v{vL16}
        s_xor_b32 s{sT1}, s{sWV}, 1
        s_mul_i32 s{sT1}, s{sT1}, {XR_}
        s_add_u32 s{sT1}, s{sT1}, 16384
        v_add_u32 v{vXP}, s{sT1}, v{vL16}
        v_mov_b32 v{VAR}, 0
        v_mov_b32 v{VAR + 1}, 0
        v_mov_b32 v{VAR + 3}, 0''')

    def ln_center(self, R, rho, t, d0, pk, addr, off, after=(), cap=None, prio=5):
        SEL0, SEL1, VAR = self.LN_SEL0, self.LN_SEL1, self.LN_VAR
        nm = self.LN_NM[rho]
        R.mfma(f'{MF} {vr(d0)}, {vr(SEL0)}, {vr(self.raw(rho, t))}, {vr(nm)}', cap=cap)
        R.mfma(f'{MF} {vr(d0 + 4)}, {vr(SEL1)}, {vr(self.raw(rho, t))}, {vr(nm)}', cap=cap)
        for k in range(4):
            R.op(f'v_cvt_pk_bf16_f32 v{pk + k}, v{d0 + 2 * k}, v{d0 + 2 * k + 1}', prio=prio)
        if self.o.get('ownw', 3) >> rho & 1:
            n = 4 * t + rho
            for k in range(4):
                R.op(f'v_accvgpr_write_b32 a{4 * n + k}, v{pk + k}' if n < 64 else f'v_mov_b32 v{XNV + 4 * (n - 64) + k}, v{pk + k}')
        w = lambda aft: R.op(f'ds_write_b128 v{addr}, {vr(pk)} offset:{off}', after=aft, prio=prio)
        if after is not None:
            w = w(after)
        if self.o.get('vfma', 0) >> rho & 1:
            g = self.LN_G[rho]
            for k in range(8):
                x = d0 + k
                R.op(f'v_fmac_f32 v{g + (k & 3)}, v{x}, v{x}' if t or k >= 4 else f'v_mul_f32 v{g + k}, v{x}, v{x}', prio=prio - 1)
            self.ln_gram(R)
            return w
        self.ln_gram(R)
        self.gram_pend = (rho, t, pk)
        return w

    gram_pend = None
    LN_G = [V_G0, V_G1]

    def ln_gram(self, R):
        if self.gram_pend:
            rho, t, pk = self.gram_pend
            g = vr(self.LN_G[rho])
            R.mfma(f'{MF} {g}, {vr(pk)}, {vr(pk)}, {g if t else 0}')
            self.gram_pend = None

    LN_NM = [PQ + 12, T + 2]

    def layernorm(self):
        R = Region(cap=5, backlog=self.o['backlog'], pipe0=-100000)
        ONES, VAR = self.LN_ONES, self.LN_VAR
        vXO, vXP, vR0, vR1 = self.LN_XO, self.LN_XP, self.LN_R0, self.LN_R1
        NM = self.LN_NM
        D = RING + 16
        PK = [T + 18, SC] if self.o.get('probe') else [T + 18, T + 22, SC]
        rawrd = {}

        def raw_reads(rho, lo):
            for u in range(9):
                if u % 3 == 0 or u < 3:
                    w = R.wait([self.xl[rho, uu, hf] for uu in range(u, (u + 1 if u < 2 else u // 3 * 3 + 3)) for hf in range(2)],
                               late=False, wr=['xw'], lo=None if lo is None else lo + u * self.o.get('r1st', 1))
                for s1 in range(2):
                    rawrd[rho, 2 * u + s1] = R.op(f'ds_read_b128 {vr(self.raw(rho, 2 * u + s1))}, v{vR1 if s1 else vR0} offset:{2048 * u}', after=[w], prio=20)

        def mean(rho, t):
            w = R.wait([rawrd[rho, k] for k in range(t, t + 3)], dist=1) if t % 3 == 0 else None
            R.mfma(f'{MF} {vr(NM[rho])}, {vr(ONES)}, {vr(self.raw(rho, t))}, {vr(NM[rho]) if t else 0}', after=[w] if w else [])
            return w

        for o in self.x_pend:
            o.prio = 10
            o.hi = 17
            R.add(o)
        for o in self.dma_ops(0):
            o.prio = 10
            o.hi = self.o.get('w0hi', 26)
            o.lo = self.o.get('w0lo', 24)
            R.add(o)
        raw_reads(0, None)
        for t in range(18):
            mean(0, t)
        R.op(f's_sub_u32 s{sT0}, s{sCNT2}, s{sM2}\nv_add_u32 v{vR0}, s{sT0}, v{vR0}\nv_add_u32 v{vR1}, s{sT0}, v{vR1}')
        raw_reads(1, self.o.get('r1lo', 44))
        self.stamp(R, 'ctr0')
        for k in range(4):
            R.op(f'v_mul_f32 v{NM[0] + k}, {hex(0xbae38e39)}, v{NM[0] + k}')
        reads = []
        cnt = 0
        for kg in range(3):
            writes = []
            for t in range(6 * kg, 6 * kg + 6):
                writes.append(self.ln_center(R, 0, t, D + 8 * (cnt & 1), PK[cnt % len(PK)], vXO, 1024 * t))
                cnt += 1
                if self.o.get('m1late', 1):
                    if kg == 2:
                        for tt in range(3 * (t % 6), 3 * (t % 6) + 3):
                            mean(1, tt)
                elif kg > 0:
                    tm = 6 * (kg - 1) + t % 6
                    for tt in ((3 * tm) // 2, (3 * tm) // 2 + 1)[:1 + (tm & 1)]:
                        mean(1, tt)
            extra = [rawrd[1, k] for k in range(18)] if kg == self.o.get('wkg', 1) else []
            w = R.wait(writes + extra, late=False, prio=30, dist=self.o.get('dlw', 5))
            bar = R.op('s_barrier', after=[w], wr=['bar'], prio=30)
            if extra:
                raw1_bar = bar
                for n in range(1, self.npre):
                    for o in self.dma_ops(n):
                        o.after.append((bar, 0))
                        o.prio = 30
                        R.add(o)
            for t in range(6 * kg, 6 * kg + 6):
                if not self.o.get('ownw', 3) & 1:
                    reads.append(R.op(f'ds_read_b128 {xn(4 * t)}, v{vXO} offset:{t * 1024}', after=[bar], prio=8))
                reads.append(R.op(f'ds_read_b128 {xn(4 * t + 2)}, v{vXP} offset:{t * 1024}', after=[bar], prio=8))
        self.stamp(R, 'ctr1')
        for k in range(4):
            R.op(f'v_mul_f32 v{NM[1] + k}, {hex(0xbae38e39)}, v{NM[1] + k}')
        R.op(f'''s_lshl_b32 s{sT0}, s{sWV}, 10
        s_add_u32 s{sT0}, s{sT0}, {self.KVX}
        v_add_u32 v{vR0}, s{sT0}, v{vL16}
        v_xor_b32 v{vR1}, 1024, v{vR0}''')
        writes = []
        for t in range(4):
            writes.append(self.ln_center(R, 1, t, D + 8 * (cnt & 1), PK[cnt % len(PK)], vR0, 4096 * t, after=[raw1_bar]))
            cnt += 1
        self.ln_gram(R)
        self.ln_last = reads + writes
        x = self.o.get('lnx', 0)
        drop = set()
        for o in R.ops:
            t = o.ins[0].text if o.ins else ''
            if (x & 1 and t.startswith('ds_write')) or (x & 2 and t.startswith('ds_read_b128 a')) or (x & 8 and t.startswith('v_accvgpr')) \
                    or (x & 16 and t.startswith('v_cvt')) or (x & 32 and t.startswith('s_barrier')):
                o.ins = [Ins('s_nop 0')]
        return R

    def ln_reads1(self, R, n, bar):
        out = []
        for t in (2 * n, 2 * n + 1):
            if not self.o.get('ownw', 3) & 2:
                out.append(R.op(f'ds_read_b128 {xn(4 * t + 1)}, v{self.LN_R0} offset:{4096 * (t & 3)}', after=[bar], prio=12))
            out.append(R.op(f'ds_read_b128 {xn(4 * t + 3)}, v{self.LN_R1} offset:{4096 * (t & 3)}', after=[bar], prio=12))
        return out

    def ln_finish(self, R, bar):
        VAR = self.LN_VAR
        a, ad, ep = T + 18, T + 19, T + 20
        R.op(f'v_and_b32 v{ad}, 15, v{vLANE}')
        R.op(f's_lshl_b32 s{sT0}, s{sWV}, 7\ns_add_u32 s{sT0}, s{sT0}, {RS}')
        R.op(f'v_lshl_add_u32 v{ad}, v{ad}, 2, s{sT0}')
        R.op(f's_mov_b32 s{sT1}, {hex(0x3ae38e39)}')
        R.op(f'v_mov_b32 v{ep}, {hex(0x3727c5ac)}')
        self.ln_gram(R)
        for rho in range(2):
            v = self.LN_G[rho]
            if self.o.get('vfma', 0) >> rho & 1:
                R.op(f'v_add_f32 v{v}, v{v}, v{v + 1}\nv_add_f32 v{v + 2}, v{v + 2}, v{v + 3}\nv_add_f32 v{v}, v{v}, v{v + 2}')
            for k in range(1, 1 if self.o.get('vfma', 0) >> rho & 1 else 4):
                R.op(f's_mov_b32 vcc_lo, {hex(0x11111111 << k)}\ns_mov_b32 vcc_hi, {hex(0x11111111 << k)}\nv_cndmask_b32 v{v}, v{v}, v{v + k}, vcc')
            if not self.o.get('vfma', 0) >> rho & 1:
                R.op(f's_mov_b32 vcc_lo, 0x00f0000f\ns_mov_b32 vcc_hi, 0xf0000f00\nv_cndmask_b32 v{v}, 0, v{v}, vcc')
            R.op(f'v_mov_b32 v{a}, v{v}')
            R.op(f'v_permlane32_swap_b32 v{a}, v{v}')
            R.op(f'v_add_f32 v{v}, v{a}, v{v}')
            R.op(f'v_mov_b32 v{a}, v{v}')
            R.op(f'v_permlane16_swap_b32 v{a}, v{v}')
            R.op(f'v_add_f32 v{v}, v{a}, v{v}')
            R.op(f'v_fma_f32 v{v}, v{v}, s{sT1}, v{ep}')
            R.op(f'v_rsq_f32 v{v}, v{v}')
            self.pre_bar.append((R.op(f'ds_write_b32 v{ad}, v{v} offset:{64 * rho}', after=[bar]), 3))
        self.post_bar.append(lambda b_: self.load_scales(R, [b_]))

    def stamp(self, R, name=''):
        if R:
            self.marks.append((R, R.here, name))
        if not self.stamps or (self.o.get('lite') and name != 'end'):
            return
        k = self.nstamp
        self.nstamp += 1
        t = Op(f's_memrealtime vcc\ns_memtime s[0:1]\ns_waitcnt lgkmcnt(0)\nv_mov_b32 v{T + 26}, vcc_lo\nv_mov_b32 v{T + 27}, s0\ns_lshl_b32 s0, s2, 10\ns_add_u32 s0, s0, {DUMP_BASE + 8 * k}\nbuffer_store_dwordx2 v[{T + 26}:{T + 27}], v{vFST}, {sr(SW)}, s0 offen',
               lo=R.here if R else None, hi=R.here if R else None)
        self.stamp_names.append(name)
        if R:
            R.add(t)
        else:
            self.lin.op(t)

    def poll(self, R, name, srd, addr_text, mask, val, lo, check_lo, after=(), mul=4, defer=False):
        vp = T + 19
        if name != 'p':
            check_lo = lo + self.o.get(f'pd_{name}{self.ns}', self.o.get('pd', check_lo - lo))
        cmp = 'v_cmp_ne_u32' if val == 1 else 'v_cmp_gt_u32'
        if addr_text:
            R.op(addr_text, lo=lo - 30)
        so = f's{sT2}' if addr_text else '0'
        R.op(f'v_and_b32 v{vPOLL}, {mask}, v{vLANE}', lo=lo - 30)
        if defer:
            R.op(f'v_max_u32 v{vPOLL}, 1, v{vPOLL}\nv_add_u32 v{vPOLL}, s{sJJ}, v{vPOLL}\nv_and_b32 v{vPOLL}, 3, v{vPOLL}', lo=lo - 30)
        R.op(f'v_mul_u32_u24 v{vPOLL}, {mul}, v{vPOLL}', lo=lo - 30)
        ld = R.op(f'buffer_load_dword v{vp}, v{vPOLL}, {sr(srd)}, {so} offen sc1', lo=lo, hi=lo + 6, after=after)
        if defer:
            return lambda lo2, aft: self.poll_check(R, name, srd, so, cmp, val, ld, lo2, aft)
        return self.poll_check(R, name, srd, so, cmp, val, ld, check_lo, [])

    def poll_check(self, R, name, srd, so, cmp, val, ld, check_lo, aft):
        vp = T + 19
        w = R.wait([ld], late=False, lo=check_lo, hi=check_lo + 4, tag='poll_' + name, after=aft)
        br = 's_nop 0' if self.o.get('nopoll') else f's_cbranch_vccnz L_slow_{name}{self.sfx}'
        chk = R.op(f'{cmp} vcc, {val}, v{vp}\n{br}\nL_back_{name}{self.sfx}:', after=[w],
                   rd=[f'v{vPOLL}', f's{sT2}'], wr=[f'v{vp}'], hi=check_lo + 4, atomic=True)
        rec = ''
        if self.stamps:
            rec = f'v_mov_b32 v{T + 26}, s{sCNT}\ns_lshl_b32 s{sCNT}, s2, 10\ns_add_u32 s{sCNT}, s{sCNT}, {DUMP_BASE + 768 + 4 * len(self.slow)}\nbuffer_store_dword v{T + 26}, v{vFST}, {sr(SW)}, s{sCNT} offen\ns_waitcnt vmcnt(0)'
        self.slow.append(f'''L_slow_{name}{self.sfx}:
        s_mov_b32 s{sCNT}, 0
        L_spin_{name}{self.sfx}:
        buffer_load_dword v{vp}, v{vPOLL}, {sr(srd)}, {so} offen sc1
        s_waitcnt vmcnt(0)
        {cmp} vcc, {val}, v{vp}
        s_add_u32 s{sCNT}, s{sCNT}, 1
        s_cbranch_vccz L_exit_{name}{self.sfx}
        s_cmp_lt_u32 s{sCNT}, {self.o['spin']}
        s_cbranch_scc1 L_spin_{name}{self.sfx}
        L_exit_{name}{self.sfx}:
        {rec}
        s_branch L_back_{name}{self.sfx}''')
        return chk

    def set_flag(self, R, f, after):
        t0, t1 = self.news(), self.news()
        R.op(self.flag_addr(f, True, t0, t1), lo=after[0].lo - 40)
        self.flags[f] = R.op(f'buffer_store_dword v{vONE}, v{vFST}, {sr(SW)}, s{t0} offen sc1', after=after + [self.chk0], hi=after[0].lo + 2)

    def chunk_enter(self, R, n, lo, pre=()):
        if n in self.paired:
            self.unfreed.append(n)
            self.bars[n] = self.bars[n - 1]
            return self.bars[n]
        name = self.stream[n][0]
        if n + 1 in self.dmas and ((name == 'C' and self.o.get('barc', 1)) or (self.o['bar2'] >> ('Q', 'A1', 'A2', 'A3', 'A4', 'B', 'A0', 'C').index(name) & 1 and self.stream[n + 1][0] not in ('O', 'C'))):
            self.paired.add(n + 1)
            self.dmas[n] = self.dmas[n] + self.dmas[n + 1]
            if self.o.get('bar3', 0) >> ('Q', 'A1', 'A2', 'A3', 'A4', 'B', 'A0', 'C').index(name) & 1 and n + 2 in self.dmas and self.stream[n + 2][0] not in ('O', 'C'):
                self.paired.add(n + 2)
                self.dmas[n] = self.dmas[n] + self.dmas[n + 2]
        nd = len(self.dmas[n])
        dd, sg = (self.o.get('ddc', 24), 1) if self.stream[n][0] == 'C' else (self.o['ddma'], self.o.get('stag', 6))
        waits = [(o, dd + sg * (nd - 1 - k)) for k, o in enumerate(self.dmas[n])] + self.pre_bar
        self.pre_bar = []
        nm = '%s%d' % self.stream[n] + ('+' if len(waits) > nd else '')
        w = R.wait(waits, late=False, lo=lo, hi=lo, tag=nm) if waits else None
        dep = list(pre) + ([w] if w else [])
        freed = [k for k in self.unfreed if self.lastwait.get(k) is not None]
        dep += [self.lastwait[k] for k in freed]
        bar = R.op('s_barrier', after=dep, wr=['bar'], lo=lo, prio=100, tag=nm)
        for k in freed:
            self.unfreed.remove(k)
            self.free_bar[k] = bar
            m = self.next_user.get(k)
            if m is not None:
                for o in self.dma_ops(m):
                    if 'dma' in o.kinds():
                        o.after.append((bar, 0))
                    o.lo = lo - 8
                    R.add(o)
                pf = {self.PF[k]: v for k, v in zip(hex(self.o.get('pfat', 0x1283))[2:], (('d', 0), ('o', 0), ('d', 1), ('o', 1)))}.get(self.stream[m])
                if pf:
                    self.prefetch_late(R, pf[0], pf[1], lo, self.dmas[m][-1:])
        fns, self.post_bar = self.post_bar, []
        for fn in fns:
            fn(bar)
        self.unfreed.append(n)
        self.bars[n] = bar
        return bar

    def tr_pair(self, R, dst, reg, off, step, after, prio=10, lo=None):
        o = self.addr(R, reg, off, lo=lo)
        return [R.op(f'ds_read_b64_tr_b16 {vr(dst, 2)}, v{reg} offset:{o}', after=after, prio=prio, lo=lo),
                R.op(f'ds_read_b64_tr_b16 {vr(dst + 2, 2)}, v{reg} offset:{o + step}', after=after, prio=prio, lo=lo)]

    def p_reads(self, R, name, n, t, buf, after):
        cb = self.slot[n] * self.CH
        out = []
        if name == 'Q':
            base = cb + 8192 * (t & 1)
            for f in range(4):
                out += self.tr_pair(R, buf + 4 * f, VQ[f], base, 4096, after)
        else:
            base = cb + 8192 * (t & 1)
            for f in range(4):
                out += self.tr_pair(R, buf + 4 * f, vLA1 if f & 1 else vLA0, base + 1024 * (f >> 1), 4096, after)
        return out

    def epi_glu(self, R, acc, wrap=0):
        stores = []
        hs = (' sc1', '', ' nt')[self.o.get('hst', 0)]
        ps = 90 if self.o.get('hst') else P_S
        if True:
            for rs in range(4):
                G = [acc + (tt * 4 + rs) * 4 for tt in range(2)]
                U = [acc + ((2 + tt) * 4 + rs) * 4 for tt in range(2)]
                for tt in range(2):
                    self.glu4(R, G[tt], U[tt], SC + rs)
                for k in range(4):
                    g = G[k >> 1] + 2 * (k & 1)
                    R.op(f'v_cvt_pk_bf16_f32 v{U[0] + k}, v{g}, v{g + 1}')
                stores.append(R.op(f'buffer_store_dwordx4 {vr(U[0])}, v{vL16}, {sr(SW)}, s{sH0 + (rs >> 1)} offen offset:{1024 * (rs & 1)}{hs}', pipe=ps))
            inc = '16384'
            if wrap:
                t = sCNT2X
                R.op(f's_mul_i32 s{t}, s{sIH}, {16384 * wrap}\ns_add_u32 s{t}, s{t}, 16384')
                inc = f's{t}'
            R.op(f's_add_u32 s{sH0}, s{sH0}, {inc}')
            R.op(f's_add_u32 s{sH1}, s{sH1}, {inc}')
        return stores

    @staticmethod
    def glu4(R, G, U, sc):
        for e in range(4):
            g = G + e
            R.op(f'v_mul_f32 v{g}, v{sc}, v{g}')
            R.op(f'v_exp_f32 v{g}, v{g}')
            R.op(f'v_add_f32 v{g}, 1.0, v{g}')
            R.op(f'v_rcp_f32 v{g}, v{g}')
            R.op(f'v_mul_f32 v{g}, v{g}, v{U + e}')

    @staticmethod
    def phi(R, x, tmp, prio=0):
        R.op(f'v_mul_f32 v{tmp}, {hex(LOG2E)}, v{x}', prio=prio)
        R.op(f'v_exp_f32 v{tmp}, v{tmp} clamp', prio=prio)
        R.op(f'v_max_f32 v{x}, 0, v{x}', prio=prio)
        R.op(f'v_add_f32 v{x}, {hex(EPS6)}, v{x}', prio=prio)
        R.op(f'v_add_f32 v{x}, v{x}, v{tmp}', prio=prio)

    def load_scales(self, R, after):
        a0, a1 = T + 20, T + 21
        R.op(f'v_and_b32 v{a0}, 15, v{vLANE}')
        R.op(f's_lshl_b32 s{sT0}, s{sWV}, 7\ns_add_u32 s{sT0}, s{sT0}, {RS}')
        R.op(f'v_lshl_add_u32 v{a0}, v{a0}, 2, s{sT0}')
        R.op(f'v_xor_b32 v{a1}, 128, v{a0}')
        lds = [R.op(f'ds_read_b32 v{SC + rs}, v{a0 if rs < 2 else a1} offset:{64 * (rs & 1)}', after=after) for rs in range(4)]
        w = R.wait(lds, late=False, dist=6)
        for rs in range(4):
            R.op(f'v_mul_f32 v{SC + rs}, {hex(NLOG2E)}, v{SC + rs}', after=[w])

    def epi_qkv(self, R, acc):
        KM = [acc + 4 * rs for rs in range(4)]
        VM = [acc + 16 + 4 * rs for rs in range(4)]
        QM = [PQ + 4 * rs for rs in range(4)]
        LRP = [acc + 32, acc + 36]
        LL = [acc + 48 + 4 * rs for rs in range(4)]
        a0, a1, aq = T + 20, T + 21, T + 22
        R4 = [T, T + 4]
        LR = T + 8
        TM = [T + 12, T + 13, T + 14, T + 15]
        r1 = T + 16
        R.op(f's_mov_b32 s{sEPS}, {hex(EPS6)}')
        R.op(f'v_lshrrev_b32 v{a0}, 4, v{vLANE}')
        R.op(f's_lshl_b32 s{sT0}, s{sWV}, 7\ns_add_u32 s{sT0}, s{sT0}, {RS}')
        R.op(f'v_lshl_add_u32 v{a0}, v{a0}, 4, s{sT0}')
        R.op(f'v_xor_b32 v{a1}, 128, v{a0}')
        for l in f'''v_and_b32 v{aq}, 3, v{vLANE}
        v_lshlrev_b32 v{aq}, 5, v{aq}
        v_lshrrev_b32 v{r1}, 4, v{vLANE}
        v_lshl_add_u32 v{aq}, v{r1}, 3, v{aq}
        s_lshl_b32 s{sT1}, s{sWV}, 9
        s_add_u32 s{sT1}, s{sT1}, {QL}
        v_add_u32 v{aq}, s{sT1}, v{aq}
        v_lshlrev_b32 v{r1}, 3, v{vLANE}
        v_add_u32 v{r1}, {DUMMY}, v{r1}
        v_bfe_u32 v{TM[0]}, v{vLANE}, 2, 2'''.split('\n'):
            R.op(l)
        R.op(f'v_cmp_eq_u32 vcc, 2, v{TM[0]}\nv_cndmask_b32 v{aq}, v{r1}, v{aq}, vcc')
        self.ql_writes = []
        tm = 0
        one = f's[{sMASKONE}:{sMASKONE + 1}]'
        ld = [R.op(f'ds_read_b128 {vr(R4[rs])}, v{a0} offset:{64 * rs}') for rs in range(2)]
        w = R.wait(ld, late=False, dist=6)
        for rs in range(2):
            for e in range(4):
                R.op(f'v_mul_f32 v{LL[rs] + e}, v{R4[rs] + e}, v{LL[rs] + e}', after=[w], prio=60)
            for k in range(2):
                R.op(f'v_cvt_pk_bf16_f32 v{LRP[0] + 2 * rs + k}, v{LL[rs] + 2 * k}, v{LL[rs] + 2 * k + 1}', prio=60)
            for e in range(4):
                self.phi(R, LL[rs] + e, TM[tm & 3], prio=60); tm += 1
            for k in range(2):
                R.op(f'v_cvt_pk_bf16_f32 v{LL[0] + 2 * rs + k}, v{LL[rs] + 2 * k}, v{LL[rs] + 2 * k + 1}', prio=60)
            self.ql_writes.append(R.op(f'ds_write_b64 v{aq}, {vr(LL[0] + 2 * rs, 2)} offset:{128 * rs}'))
        e0, e1, c1 = LR, LR + 1, LR + 2
        R.op(f'''s_mul_i32 s{sT0}, s{sWV}, 3072
        s_add_u32 s{sT0}, s{sT0}, {self.KVX}
        v_add_u32 v{e0}, s{sT0}, v{vL16}
        s_xor_b32 s{sT1}, s{sWV}, 1
        s_mul_i32 s{sT1}, s{sT1}, 3072
        s_add_u32 s{sT1}, s{sT1}, {self.KVX}
        v_add_u32 v{e1}, s{sT1}, v{vL16}
        v_mov_b32 v{c1}, 0x3f803f80''')
        self.l_writes = [R.op(f'ds_write_b128 v{e0}, {vr(X)} offset:{1024 * k}', prio=60) for k, X in enumerate((LL[0], LRP[0]))]

        def l_read(bar):
            rd = [R.op(f'ds_read_b128 {vr(X)}, v{e1} offset:{1024 * k}', after=[bar], prio=60) for k, X in enumerate((LL[2], LRP[1]))]
            w2 = R.wait(rd, late=False, dist=6)
            self.pre_bar += [(o, 6) for o in rd]
            self.post_bar.append(lambda b_: setattr(self, 'l_free', b_))
            for k in range(8):
                R.op(f'v_cndmask_b32 v{LRP[0] + k}, v{LRP[0] + k}, v{c1}, {one}', after=[w2])
        self.l_read = l_read
        for rs in range(4):
            r4 = R4[rs & 1]
            if rs >= 2:
                w = R.wait([R.op(f'ds_read_b128 {vr(r4)}, v{a1} offset:{64 * (rs & 1)}')], late=False, dist=6)
            for e in range(4):
                R.op(f'v_fma_f32 v{KM[rs] + e}, v{r4 + e}, v{KM[rs] + e}, s{sEPS}', after=[w])
                self.phi_eps(R, KM[rs] + e, TM[tm & 3]); tm += 1
                R.op(f'v_mul_f32 v{VM[rs] + e}, v{r4 + e}, v{VM[rs] + e}', after=[w])
            P, h = rs >> 1, 2 * (rs & 1)
            for X in (KM, VM):
                R.op(f'v_cvt_pk_bf16_f32 v{X[2 * P] + h}, v{X[rs]}, v{X[rs] + 1}')
                R.op(f'v_cvt_pk_bf16_f32 v{X[2 * P] + h + 1}, v{X[rs] + 2}, v{X[rs] + 3}')
        self.kv_in = dict(km=[KM[0], KM[2]], vm=[VM[0], VM[2]], lp=[LL[0], LL[2]], lr=LRP)
        self.kv_d = dict(mm=T, ml=T + 4, lm=T + 8, ll=T + 12)

    def epi_q(self, R):
        r1, tm = T + 16, (T + 21, T + 22)
        for rs in range(4):
            R.op(f'v_mul_f32 v{r1}, {hex(0xbf317218)}, v{SC + rs}')
            for e in range(4):
                x = PQ + 4 * rs + e
                R.op(f'v_fma_f32 v{x}, v{r1}, v{x}, s{sEPS}')
                self.phi_eps(R, x, tm[e & 1])
            R.op(f'v_cvt_pk_bf16_f32 v{PQ + 4 * rs}, v{PQ + 4 * rs}, v{PQ + 4 * rs + 1}')
            R.op(f'v_cvt_pk_bf16_f32 v{PQ + 4 * rs + 1}, v{PQ + 4 * rs + 2}, v{PQ + 4 * rs + 3}')

    @staticmethod
    def phi_eps(R, x, tmp):
        R.op(f'v_mul_f32 v{tmp}, {hex(LOG2E)}, v{x}')
        R.op(f'v_exp_f32 v{tmp}, v{tmp} clamp')
        R.op(f'v_max_f32 v{x}, s{sEPS}, v{x}')
        R.op(f'v_add_f32 v{x}, v{x}, v{tmp}')

    def kv_mfmas(self, R):
        I, D = self.kv_in, self.kv_d
        for P in range(2):
            for d, a, b in (('mm', 'km', 'vm'), ('ml', 'km', 'lr'), ('lm', 'lp', 'vm'), ('ll', 'lp', 'lr')):
                R.mfma(f'{MF} {vr(D[d])}, {vr(I[a][P])}, {vr(I[b][P])}, {vr(D[d]) if P else 0}')

    def kv_exchange(self, R, X, tmp, then):
        a0, a1 = T + 17, T + 18
        t0, t1 = self.news(), self.news()
        R.op(f's_mul_i32 s{t0}, s{sWV}, 3072\ns_add_u32 s{t0}, s{t0}, {self.KVX}')
        R.op(f'v_add_u32 v{a0}, s{t0}, v{vL16}')
        R.op(f's_xor_b32 s{t1}, s{sWV}, 2\ns_mul_i32 s{t1}, s{t1}, 3072\ns_add_u32 s{t1}, s{t1}, {self.KVX}')
        R.op(f'v_add_u32 v{a1}, s{t1}, v{vL16}')
        ws = [R.op(f'ds_write_b128 v{a0}, {vr(X[k])} offset:{1024 * k}', prio=5, after=[self.l_free]) for k in range(3)]
        self.pre_bar += [(o, 4) for o in ws]

        def after_bar(bar):
            for k in range(3):
                rd = R.op(f'ds_read_b128 {vr(tmp[k])}, v{a1} offset:{1024 * k}', after=[bar], prio=5)
                w = R.wait([rd], late=False, dist=6)
                for e in range(4):
                    R.op(f'v_add_f32 v{X[k] + e}, v{X[k] + e}, v{tmp[k] + e}', after=[w], prio=5)
            then()
        self.post_bar.append(after_bar)

    def kv_publish(self, R):
        D = self.kv_d
        mc = f's[{sMASKC}:{sMASKC + 1}]'
        for k, src in enumerate((D['lm'], D['lm'] + 1, D['ll'], D['ll'] + 1)):
            R.op(f'v_cndmask_b32 v{D["lm"] + k}, v{src}, v{src + 2}, {mc}', prio=5)
        X = [D['mm'], D['ml'], D['lm']]

        def store():
            a = T + 17
            sT0, sT1 = self.news(), self.news()
            R.op(f'''s_lshl_b32 s{sT0}, s{sJ}, 1
            s_add_u32 s{sT0}, s{sT0}, s{sC}
            s_lshl_b32 s{sT0}, s{sT0}, 4
            s_add_u32 s{sT0}, s{sT0}, s{sI}
            s_lshl_b32 s{sT0}, s{sT0}, 10
            s_add_u32 s{sT0}, s{sT0}, {KV_BASE}''')
            R.op(f's_lshl_b32 s{sT1}, s{sR}, 31')
            R.op(f'v_or_b32 v{a}, s{sT1}, v{vL16}')
            for k in range(6):
                R.op(f'v_cvt_pk_bf16_f32 v{T + k}, v{T + 2 * k}, v{T + 2 * k + 1}')
            R.op(f'''v_lshrrev_b32 v{a + 1}, 4, v{vLANE}
            v_min_u32 v{a + 1}, 1, v{a + 1}
            v_lshlrev_b32 v{a + 1}, 31, v{a + 1}
            v_lshl_or_b32 v{a + 1}, v{vLANE}, 3, v{a + 1}
            v_or_b32 v{a + 1}, s{sT1}, v{a + 1}
            s_lshr_b32 s{sT1}, s{sT0}, 3
            s_add_u32 s{sT1}, s{sT1}, {KV2_BASE - KV_BASE // 8}''')
            self.kv_stores = [R.op(f'buffer_store_dwordx4 {vr(T)}, v{a}, {sr(SW)}, s{sT0} offen sc1', prio=5, pipe=P_S // 2),
                              R.op(f'buffer_store_dwordx2 {vr(T + 4, 2)}, v{a + 1}, {sr(SW)}, s{sT1} offen sc1', prio=5, pipe=10)]
        self.kv_exchange(R, X, [T + 12] * 3, store)

    def sel_regs(self, R, base, a, **kw):
        R.op(f'''v_and_b32 v{a}, 15, v{vLANE}
        v_lshrrev_b32 v{base}, 4, v{vLANE}
        v_lshlrev_b32 v{base}, 2, v{base}
        v_sub_u32 v{a}, v{a}, v{base}
        v_and_b32 v{base}, 1, v{a}
        v_lshlrev_b32 v{base}, 4, v{base}
        v_mov_b32 v{base + 1}, 0x3f80
        v_lshlrev_b32 v{base + 1}, v{base}, v{base + 1}
        v_lshrrev_b32 v{a}, 1, v{a}
        v_cmp_eq_u32 vcc, 0, v{a}
        v_cndmask_b32 v{base + 2}, 0, v{base + 1}, vcc
        v_cmp_eq_u32 vcc, 1, v{a}
        v_cndmask_b32 v{base + 3}, 0, v{base + 1}, vcc
        v_mov_b32 v{base}, 0
        v_mov_b32 v{base + 1}, 0
        v_mov_b32 v{base + 4}, 0
        v_mov_b32 v{base + 5}, 0''', **kw)

    def kv_gather(self, R, buf, after):
        t, t2 = self.news(), self.news()
        R.op(f'''s_lshl_b32 s{t}, s{sJQ}, 1
        s_add_u32 s{t}, s{t}, s{sC}
        s_lshl_b32 s{t}, s{t}, 1
        s_add_u32 s{t}, s{t}, s{sR}
        s_lshl_b32 s{t}, s{t}, 13
        s_lshr_b32 s{t2}, s{t}, 3
        s_add_u32 s{t2}, s{t2}, {KV2_BASE}
        s_add_u32 s{t}, s{t}, {KV_BASE}''')
        a, X2 = T + 24, T + 20
        R.op(f'''v_and_b32 v{a}, 15, v{vLANE}
        v_lshlrev_b32 v{a}, 3, v{a}
        v_lshrrev_b32 v{X2}, 4, v{vLANE}
        v_lshl_add_u32 v{a}, v{X2}, 8, v{a}''')
        self.kv_ld = [R.op(f'buffer_load_dwordx2 {vr(X2 + 2 * k, 2)}, v{a}, {sr(SW)}, s{t2} offen offset:{128 * k} sc1', after=after, pipe=40) for k in range(2)]
        for p in range(8):
            if p == 4:
                R.op(f's_add_u32 s{t}, s{t}, 4096')
            self.kv_ld.append(R.op(f'buffer_load_dwordx4 {vr(buf + 4 * p)}, v{vL16}, {sr(SW)}, s{t} offen offset:{1024 * (p & 3)} sc1', after=after, pipe=self.o.get('pkv', 140)))
        self.kv_buf = buf
        self.sel_regs(R, T + 12, T + 18)
        R.op(f'''v_and_b32 v{T + 18}, 15, v{vLANE}
        v_and_b32 v{T + 8}, 1, v{T + 18}
        v_lshlrev_b32 v{T + 8}, 4, v{T + 8}
        v_mov_b32 v{T + 9}, 0x3f80
        v_lshlrev_b32 v{T + 9}, v{T + 8}, v{T + 9}
        v_lshrrev_b32 v{T + 18}, 1, v{T + 18}
        v_cmp_eq_u32 vcc, 0, v{T + 18}
        v_cndmask_b32 v{T + 4}, 0, v{T + 9}, vcc
        v_cmp_eq_u32 vcc, 1, v{T + 18}
        v_cndmask_b32 v{T + 5}, 0, v{T + 9}, vcc
        v_mov_b32 v{T + 6}, v{T + 4}
        v_mov_b32 v{T + 7}, v{T + 5}''')

    def kv_sum(self, R):
        buf, A1, A0 = self.kv_buf, T + 12, T + 14
        w = R.wait([(o, self.o.get('dkv', 50) + 5 * (9 - k)) for k, o in enumerate(self.kv_ld)], tag='kvld')
        R.mfma(f'{MF} {vr(T + 8)}, {vr(T + 4)}, {vr(T + 20)}, 0', after=[w])
        for p in range(8):
            for k, a in enumerate((A0, A1)):
                R.mfma(f'{MF} {vr(T + 4 * k)}, {vr(a)}, {vr(buf + 4 * p)}, {vr(T + 4 * k) if p else 0}')

    def kv_finish(self, R, tmp):
        S = T
        KVM, KVL = T + 12, tmp[0]

        def pack():
            m2, m3 = f's[{sMK2}:{sMK2 + 1}]', f's[{sMK3}:{sMK3 + 1}]'
            R.op(f's_and_b32 s{sMK3}, s{sMASKC}, 0xffff\ns_mov_b32 s{sMK3 + 1}, 0\ns_xor_b32 s{sMK2}, s{sMK3}, 0xffff\ns_mov_b32 s{sMK2 + 1}, 0', after=[self.chk0])
            R.op(f'v_cvt_pk_bf16_f32 v{KVM}, v{S}, v{S + 1}')
            R.op(f'v_cvt_pk_bf16_f32 v{KVM + 1}, v{S + 2}, v{S + 3}')
            R.op(f'v_cvt_pk_bf16_f32 v{KVM + 3}, v{S + 8}, v{S + 9}')
            R.op(f'v_cndmask_b32 v{KVM + 2}, 0, v{KVM + 3}, {m2}')
            R.op(f'v_cndmask_b32 v{KVM + 3}, 0, v{KVM + 3}, {m3}')
            R.op(f'v_cvt_pk_bf16_f32 v{S}, v{S + 4}, v{S + 5}')
            R.op(f'v_cvt_pk_bf16_f32 v{S + 1}, v{S + 6}, v{S + 7}')
            R.op(f'v_cvt_pk_bf16_f32 v{S + 3}, v{S + 10}, v{S + 11}')
            R.op(f'v_cndmask_b32 v{S + 2}, 0, v{S + 3}, {m2}')
            R.op(f'v_cndmask_b32 v{S + 3}, 0, v{S + 3}, {m3}')
            sT1 = self.news()
            aq = T + 16
            R.op(f'v_and_b32 v{aq}, 15, v{vLANE}')
            R.op(f's_lshl_b32 s{sT1}, s{sWV}, 9\ns_add_u32 s{sT1}, s{sT1}, {QL}')
            R.op(f'v_lshl_add_u32 v{aq}, v{aq}, 3, s{sT1}')
            R.op(f's_mul_i32 s{sT1}, s{sC}, -1024\ns_add_u32 s{sT1}, s{sT1}, 512\nv_add_u32 v{aq + 1}, s{sT1}, v{aq}')
            rd = [R.op(f'ds_read_b64_tr_b16 {vr(PQ + 4 * rs + 2, 2)}, v{aq + (rs >> 1)} offset:{128 * (rs & 1)}', after=[self.l_free]) for rs in range(4)]
            self.pq_wait = R.wait(rd, late=False, dist=6)
            self.kv_frags = (KVM, S)
        self.kv_exchange(R, [S, S + 4, S + 8], tmp, pack)

    def o_mfmas(self, R, buf):
        KVM, KVL = self.kv_frags
        for rs in range(4):
            R.mfma(f'{MF} {vr(buf + 8 * rs)}, {vr(KVM)}, {vr(PQ + 4 * rs)}, 0', after=[self.pq_wait])
            R.mfma(f'{MF} {vr(buf + 8 * rs + 4)}, {vr(KVL)}, {vr(PQ + 4 * rs)}, 0')
        a = T + 16
        R.op(f'v_and_b32 v{a}, 15, v{vLANE}')
        R.op(f'v_lshlrev_b32 v{a}, 2, v{a}')
        R.op(f'v_mov_b32 v{a + 1}, {OOB}')
        R.op(f'v_lshrrev_b32 v{a + 2}, 4, v{vLANE}')
        R.op(f'v_cmp_eq_u32 vcc, 1, v{a + 2}\nv_cndmask_b32 v{a}, v{a + 1}, v{a}, vcc')
        st = []
        mc = f's[{sMASKC}:{sMASKC + 1}]'
        for P in range(2):
            sT0, sT1, sT3 = self.news(), self.news(), self.news()
            R.op(f'''s_xor_b32 s{sT0}, s{sWV}, {P}
            s_lshl_b32 s{sT1}, s{sI}, 2
            s_add_u32 s{sT0}, s{sT0}, s{sT1}
            s_lshl_b32 s{sT3}, s{sJQ}, 1
            s_add_u32 s{sT3}, s{sT3}, s{sC}''')
            R.op(f'''s_lshl_b32 s{sT1}, s{sT0}, 6
            s_add_u32 s{sT1}, s{sT1}, s{sT3}
            s_lshl_b32 s{sT1}, s{sT1}, 6
            s_add_u32 s{sT1}, s{sT1}, {OL_BASE}''')
            R.op(f'''s_lshl_b32 s{sT0}, s{sT0}, 5
            s_add_u32 s{sT0}, s{sT0}, s{sT3}
            s_lshl_b32 s{sT0}, s{sT0}, 10
            s_add_u32 s{sT0}, s{sT0}, {O_BASE}''')
            for k in range(2):
                rs = 2 * P + k
                m, l = buf + 8 * rs, buf + 8 * rs + 4
                tq = a + 2
                R.op(f'v_cndmask_b32 v{tq}, v{l + 2}, v{l}, {mc}')
                R.op(f'v_cndmask_b32 v{l}, v{l}, v{l + 2}, {mc}')
                R.op(f'v_cndmask_b32 v{l + 1}, v{l + 1}, v{l + 3}, {mc}')
                R.op(f'v_add_f32 v{l + 2}, {hex(EPS6)}, v{tq}')
                R.op(f'v_rcp_f32 v{l + 2}, v{l + 2}')
                for e in (m, m + 1, m + 2, m + 3, l, l + 1):
                    R.op(f'v_mul_f32 v{e}, v{l + 2}, v{e}')
                R.op(f'v_cvt_pk_bf16_f32 v{buf + 16 * P + 2 * k}, v{m}, v{m + 1}')
                R.op(f'v_cvt_pk_bf16_f32 v{buf + 16 * P + 2 * k + 1}, v{m + 2}, v{m + 3}')
                R.op(f'v_cvt_pk_bf16_f32 v{l}, v{l}, v{l + 1}')
                st.append(R.op(f'buffer_store_dword v{l}, v{a}, {sr(SW)}, s{sT1} offen offset:{2048 * k} sc1', pipe=20))
            st.append(R.op(f'buffer_store_dwordx4 {vr(buf + 16 * P)}, v{vL16}, {sr(SW)}, s{sT0} offen sc1', pipe=P_S))
        return st

    def flag_later(self, R, f, stores):
        if not (self.o.get('nostw') and f != '3'):
            n = len(stores)
            self.pre_bar += [(o, self.o['dst'] + (0 if f == '3' else self.o.get('sst', 8) * min(n - 1 - k, 5))) for k, o in enumerate(stores)]
        self.post_bar.append(lambda bar: self.set_flag(R, f, [bar]))

    def main(self):
        R = Region(cap=2, backlog=self.o['backlog'], hwq=self.o.get('hwq', 200), spread=self.o.get('spread', 1), vprio=self.o.get('vprio', 200), vfrom=self.o.get('vfrom', 0))
        self.pre_bar = list(self.ln_last)
        self.post_bar, self.unfreed = [], []
        self.lastwait, self.free_bar, self.bars = {}, {}, {}
        self.paired, self.single = set(), set()
        ks = []
        n0 = 0
        for name in self.order:
            ks += [(name, t, n0 + (t >> 1)) for t in range(18)]
            n0 += 9
        accs = {'A0': ACC0, 'Q': ACC1, 'A1': ACC0, 'A2': ACC1, 'A3': ACC0, 'A4': ACC1}
        last = self.order[-1]
        self.span = 28
        w0 = R.wait(self.pre_bar + self.dmas[0], late=False)
        self.pre_bar = []
        bar = R.op('s_barrier', after=[w0], wr=['bar'])
        self.bars[0] = bar
        self.unfreed = [0]
        for m in range(self.npre, self.NCH):
            for o in self.dma_ops(m):
                if 'dma' in o.kinds():
                    o.after.append((bar, 0))
                R.add(o)
        reads = self.p_reads(R, 'A0', 0, 0, RING, [bar])
        reads = self.ln_reads1(R, 0, bar) + reads
        hst = {}
        self.ln_wr = {}
        for x, (name, t, n) in enumerate(ks):
            buf = RING + 16 * (x & 1)
            nbuf = RING + 16 * ((x + 1) & 1)
            w = R.wait(reads, dist=4)
            last_in_chunk = x + 1 == len(ks) or ks[x + 1][2] != n
            if last_in_chunk:
                self.lastwait[n] = w
            g0 = R.here
            if t == 0 or (self.o.get('fine') and t % self.o['fine'] == 0):
                self.stamp(R, f'{name}.{t}')
            if x + 1 < len(ks):
                nn, nt, nc = ks[x + 1]
                dep = [w]
                if nc != n:
                    self.span = 28 if name != 'A4' else 28
                    dep = [self.chunk_enter(R, nc, g0 + 1, [w]), w]
                reads = self.p_reads(R, nn, nc, nt, nbuf, dep)
                if nn == 'A0' and nc != n:
                    reads += self.ln_reads1(R, nc, dep[0])
                    if nc == 8:
                        self.ln_finish(R, dep[0])
            else:
                self.b_prepare(R, n0, w, g0)
            acc = accs[name]
            nf = 4
            for f in range(nf):
                for rs in range(2 if (name == 'Q' and f == 3) else 4):
                    d = vr(PQ + 4 * rs if (name == 'Q' and f == 2) else acc + (f * 4 + rs) * 4)
                    c = d if t else '0'
                    a_, b_ = vr(buf + 4 * f), xn(4 * t + rs)
                    if name == 'Q' and f != 2:
                        a_, b_ = b_, a_
                    R.mfma(f'{MF} {d}, {a_}, {b_}, {c}', after=[w] if (f == 0 and rs == 0) else [], tag='lds2' if self.o.get('lds2a') else '')
            if name == 'A0' and t <= 13:
                tc = t + 4
                bar_ = self.bars.get(tc // 2 - 1)
                wr = self.ln_center(R, 1, tc, (ACC1 + 56 if self.o.get('probe') else T + 18, ACC1 + 56)[t & 1], (PQ, PQ + 12, SC)[t % 3],
                                    self.LN_R0, 4096 * (tc & 3), after=[bar_] if bar_ else None)
                if bar_:
                    self.ln_wr[tc] = wr
                else:
                    self.post_bar.append(lambda b_, tc=tc, wr=wr: self.ln_wr.__setitem__(tc, wr([b_])))
            if name == 'A0' and t % 2 == 0 and 2 <= t <= 14:
                self.pre_bar += [(self.ln_wr[k], 8) for k in (t + 2, t + 3)]
            g1 = R.here
            o = self.o
            if t == 17:
                if name == 'Q':
                    self.epi_qkv(R, acc)
                else:
                    hst[name] = self.epi_glu(R, acc, (self.jump + (0,))[int(name[1])])
            if name == 'Q' and t == 0:
                self.b_tables(R)
            if name == 'A0' and t == o.get('tclr', 15):
                Z, a_ = T + 20, T + 24
                R.op(f'''s_or_b32 s{sT0}, s{sJ}, s{sWV}
                s_min_u32 s{sT0}, s{sT0}, 1
                s_lshl_b32 s{sT0}, s{sT0}, 31
                v_or_b32 v{a_}, s{sT0}, v{vL16}
                v_or_b32 v{vPOLL}, s{sT0}, v{vFST}
                s_lshl_b32 s{sT0}, s{sI}, 12
                s_lshl_b32 s{sT3}, s{sI}, 2
                v_mov_b32 v{Z}, 0
                v_mov_b32 v{Z + 1}, 0
                v_mov_b32 v{Z + 2}, 0
                v_mov_b32 v{Z + 3}, 0''')
                clr = [R.op(f'buffer_store_dwordx4 {vr(Z)}, v{a_}, {sr(SW)}, s{sT0} offen offset:{1024 * k} sc1', hi=g1 + 20 + 4 * k, pipe=20) for k in range(3)]
                wclr = R.wait(clr, late=False, lo=g1 + 110, hi=g1 + 114)
                R.op(f'buffer_store_dword v{vONE}, v{vPOLL}, {sr(SB)}, s{sT3} offen sc1', after=[wclr], hi=g1 + 118)
            if (name != 'A0' or t > 14) and t % o.get('cpe', 18) == o.get('cpt', 2):
                self.code_ahead(R, g1)
            if name == 'A1' and t == o.get('lx', 6):
                self.pre_bar += [(o_, 6) for o_ in self.l_writes + self.ql_writes]
                self.post_bar.append(self.l_read)
            if name == 'A1' and t == 0:
                R.op(self.pat_b(vPOLL, T + 19), prio=100)
            if name == 'A2' and t == 0:
                self.epi_q(R)
            if name == 'A2' and t == o.get('tfill', 8) and o.get('sent', 0):
                self.prefill(R)
            if name == 'A2' and t == 1:
                self.chk0 = self.poll(R, 'clr', SB, '', 15, 1, g1, g1 + 60)
            if name == 'A1' and t == o.get('kvm', 15):
                self.kv_mfmas(R)
                self.kv_publish(R)
            if name == 'A2' and t == o.get('f1', 7):
                self.flag_later(R, '1', self.kv_stores)
            if name == 'A2' and t == o.get('f2a', 14):
                self.flag_later(R, '2a', hst['A0'] + hst['A1'])
            if name == 'A3' and t == o.get('p1', 6):
                self.chk1 = self.poll(R, 'kv', SW, self.flag_addr('1', False, sT2), 15, 1, g1, g1 + 40, after=[self.chk0, self.flags['1']])
                self.kv_gather(R, ACC1 + 32, [self.chk1])
            if name == last and t == o.get('p2a', 0):
                self.chk2a = self.poll(R, 'ha', SW, self.flag_addr('2a', False, sT2), 3, 1, g1, g1 + 40, after=[self.flags['2a']])
            if name == 'A3' and t == o.get('kvs', 17):
                self.kv_sum(R)
                self.kv_finish(R, [T + 20] * 3)
            if name == 'A3' and t == o.get('f2b', 16):
                self.flag_later(R, '2b', hst['A2'])
            if name == 'A4' and t == o.get('p2b5', 8):
                self.chk2b = self.poll(R, 'hb', SW, self.flag_addr('2b', False, sT2), 3, 1, g1, g1 + 40, after=[self.flags['2b']])
            if name == 'A4' and t == o.get('om5', 12):
                self.o_stores = self.o_mfmas(R, ACC0)
                R.op(self.pat_cl())
            if name == 'A4' and t == o.get('f2c5', 14):
                self.flag_later(R, '2c', hst['A3'])
            if name == last and t >= o.get('h0', 3):
                p_ = t - o.get('h0', 3)
                if p_ < 8 or (p_ < o.get('hpre5', 10) and hasattr(self, 'chk2b')):
                    self.h_loads(R, p_, [self.chk2a if p_ < 8 else self.chk2b], g1)
        x = self.o.get('a0x', 0)
        for o_ in R.ops[:1500]:
            t_ = o_.ins[0].text if o_.ins else ''
            if (x & 1 and t_.startswith(f'ds_write_b128 v{self.LN_R0}')) or (x & 2 and t_.startswith('ds_read_b128 a')) or (x & 8 and t_.startswith('v_accvgpr')) \
                    or (x & 4 and o_.spine and (f', {vr(self.LN_SEL0)},' in t_ or f', {vr(self.LN_SEL1)},' in t_ or t_.startswith(f'{MF} {vr(V_G1)}'))):
                o_.ins = [Ins('s_nop 0')]
        self.hst = hst
        self.phase_b(R, n0)
        return R

    @staticmethod
    def hreg(pos, hh, rho, lo=0, cnt=4):
        return xn(4 * (pos & 15) + 2 * hh + rho)

    PF = {'1': ('A1', 4), '2': ('A2', 0), '3': ('A2', 5), '4': ('A3', 0), '5': ('A1', 0), '6': ('A0', 4), '7': ('A3', 4), '8': ('A2', 4), '9': ('A1', 7), 'a': ('A2', 2), 'b': ('A2', 7), 'c': ('A3', 2)}

    def prefetch_late(self, R, which, part, lo, after):
        if not self.o.get('pf1', 0):
            return
        a, d = T + 24, T + 23
        t, t2 = self.news(), self.news()
        per, step, srd = (36, 18, SD) if which == 'd' else (18, 9, SWO)
        nl = 2 if self.nt == 8 else 3
        sub = f's_mov_b32 s{t}, -1024' if which == 'd' else f's_mul_i32 s{t}, s{sR}, {4 * 1152}\ns_sub_u32 s{t}, s{t}, 1024'
        R.op(sub, lo=lo - 60)
        R.op(f's_lshl_b32 s{t2}, s{sIL}, 2\ns_add_u32 s{t2}, s{t2}, s{sWV}\ns_mul_i32 s{t2}, s{t2}, {per * 1152}\ns_sub_u32 s{t2}, s{t2}, s{t}\ns_xor_b32 s{t}, s{sIH}, {part}\ns_mul_i32 s{t}, s{t}, {step * 1152}\ns_add_u32 s{t2}, s{t2}, s{t}', lo=lo - 60)
        if nl == 3:
            R.op(f's_mul_i32 s{t}, s{sQ_}, -128\ns_add_u32 s{t}, s{t}, 128\ns_add_u32 s{t2}, s{t2}, s{t}', lo=lo - 60)
        R.op(f'v_min_u32 v{a}, {step * nl - 1}, v{vLANE}\nv_mul_u32_u24 v{d}, {128 if nl == 2 else 86}, v{a}\nv_lshrrev_b32 v{d}, 8, v{d}\nv_lshlrev_b32 v{a}, 7, v{a}\nv_mul_u32_u24 v{d}, {1152 - nl * 128}, v{d}\nv_add3_u32 v{a}, v{a}, v{d}, s{t2}', lo=lo - 60)
        R.op(f'buffer_load_dword v{T + 24 if self.o.get(PRB) else T + 25}, v{a}, {sr(srd)}, 0 offen', after=after, prio=500, hi=lo + self.o.get('pfd', 60), pipe=self.o['ppf'] if part == 0 else self.o.get('ppf2', 300))

    def code_ahead(self, R, lo):
        nl = self.o.get('cpn', 2)
        if not nl:
            return
        vb, va = T + 25, T + 26
        if not self.ncp:
            t, t2 = sT0, sT1
            R.op(f'''s_lshl_b32 s{t}, s{sIL}, 1
            s_and_b32 s{t2}, s{sQ_}, 1
            s_add_u32 s{t}, s{t}, s{t2}
            s_lshl_b32 s{t2}, s{sWV}, 4
            s_add_u32 s{t}, s{t}, s{t2}
            v_min_u32 v{vb}, {nl - 1}, v{vLANE}
            v_lshl_add_u32 v{vb}, v{vb}, 6, s{t}
            v_lshlrev_b32 v{vb}, 7, v{vb}
            v_add_u32 v{vb}, {self.o.get('cpd', 2048)}, v{vb}''')
        self.ncp += 1
        lab = f'L_cp{self.ncp}{self.sfx}'
        R.op(f's_getpc_b64 s[0:1]\n{lab}:\nv_min_u32 v{va}, L_stop{self.sfx}-{lab}, v{vb}\nglobal_load_dword v{va + 1}, v{va}, s[0:1]', atomic=True, lo=lo, hi=lo + 10, pipe=40)

    ncp = 0

    def h_loads(self, R, pos, after, lo):
        if pos in self.hl:
            return
        t = TB + pos
        if not hasattr(self, 'vH'):
            self.vH = vLL
            t2 = self.news()
            R.op(f's_lshl_b32 s{t2}, s{sWV}, 12\ns_add_u32 s{t2}, s{t2}, s{sHB}\nv_add_u32 v{self.vH}, s{t2}, v{vL16}', lo=lo - 100, prio=300)
        ops = []
        hsc = '' if self.o.get('hplain') else ' sc1'
        for hh in range(2):
            for rho in range(2):
                ops.append(R.op(f'buffer_load_dwordx4 {self.hreg(pos, hh, rho)}, v{self.vH}, {sr(SW)}, s{t} offen offset:{2048 * hh + 1024 * rho}{hsc}', after=after, lo=lo, pipe=P_H))
        if self.o.get('noh'):
            for o in ops:
                R.ops.remove(o)
            ops = []
        self.hl[pos] = ops

    hl = {}
    in_b = False
    kq_busy = False
    p3 = None
    fill = []
    sq_busy = False

    def b_prepare(self, R, n0, w, g0):
        t = self.news()
        R.op(f's_lshl_b32 s{t}, s{sC}, 6', lo=g0 - 40)
        cur = self.base[vLA0]
        if self.base[vLA1] != cur:
            d = cur - self.base[vLA1]
            R.op(f'v_add_u32 v{vLA1}, {d}, v{vLA1}' if d > 0 else f'v_subrev_u32 v{vLA1}, {-d}, v{vLA1}')
        R.op(f'v_xor_b32 v{vLA0}, s{t}, v{vLA0}\nv_xor_b32 v{vLA1}, s{t}, v{vLA1}\nv_xor_b32 v{vLB}, 64, v{vLA0}\nv_xor_b32 v{vA0}, 64, v{vLA1}', prio=50)
        self.vLT = [vLA0, vLA1, vLB, vA0]
        self.vLH = [vA1, T + 24]
        for r_ in self.vLT:
            self.base[r_] = cur
        if self.nt > 8:
            R.op(f'''v_lshrrev_b32 v{T + 24}, 2, v{vLANE}
            v_lshlrev_b32 v{T + 24}, 6, v{T + 24}
            v_bfe_u32 v{vA1}, v{vLANE}, 4, 1
            v_lshl_add_u32 v{T + 24}, v{vA1}, 5, v{T + 24}
            v_and_b32 v{vA1}, 3, v{vLANE}
            v_lshl_add_u32 v{vA1}, v{vA1}, 3, v{T + 24}
            v_xor_b32 v{T + 24}, 32, v{vA1}''', lo=g0 - 60)
            self.base[vA1] = self.base[T + 24] = 0
        self.bbar = self.chunk_enter(R, n0, g0 + 1, [w])
        self.bq = []
        self.b_ring = [RING + 4 * k for k in range(8)] + [XNV + 16 + 4 * k for k in range(self.o.get('ring', 8) - 8)]
        self.b_next = 0
        self.b_n0 = n0
        for _ in range(4):
            self.b_read(R, g0 + 1)

    def b_order(self):
        nt = self.o['ntail']
        seq = [(k, t) for k in range(36 - nt) for t in range(self.nt)]
        seq += [(k, t) for t in range(self.nt) for k in range(36 - nt, 36)]
        return seq

    def b_read(self, R, lo):
        seq = self.b_order()
        k, t = seq[self.b_next]
        n = self.b_n0 + (k >> 1)
        if n not in self.bars:
            self.span = 30
            self.chunk_enter(R, n, lo)
        reg, off, step = self.tile_addr(n, k, t)
        slot = self.b_ring[self.b_next % len(self.b_ring)]
        self.bq.append(self.tr_pair(R, slot, reg, off, step, [self.bars[n]], lo=lo))
        self.b_next += 1

    b_ring = [RING + 4 * k for k in range(8)]

    def tile_addr(self, n, k, t):
        cb = self.slot[n] * self.CH
        if t < 8:
            return self.vLT[t & 3], cb + 8192 * (k & 1) + 1024 * (t >> 2), 4096
        return self.vLH[t - 8], cb + 16384 + 2048 * (k & 1), 1024

    def bacc(self, t, rho):
        i = 2 * t + rho
        return self.OB + 4 * i if i < 16 else XNV + 4 * (i - 16)

    def phase_b(self, R, n0):
        self.in_b = True
        seq = self.b_order()
        AH, WG = self.o.get('ah', 6), self.o.get('wg', 4)
        lastuse = {}
        for x, (k, t) in enumerate(seq):
            lastuse[k >> 1] = x
        sT0 = KA
        R.op(f'''s_lshl_b32 s{sH0}, s{sI}, 2
        s_add_u32 s{sH0}, s{sH0}, s{sQ_}
        s_lshl_b32 s{sH0}, s{sH0}, 2
        s_add_u32 s{sH0}, s{sH0}, s{sWV}
        s_lshl_b32 s{sH0}, s{sH0}, 2
        s_add_u32 s{sH0}, s{sH0}, s{sJJ}
        s_mul_i32 s{sH0}, s{sH0}, {PSTR}
        s_add_u32 s{sH0}, s{sH0}, {PART_BASE}''', lo=R.here + 300)
        R.op(f's_add_u32 s{sH1}, s{sH0}, 4096', lo=R.here + 300)
        R.op(f's_add_u32 s{sT0}, s{sH0}, 8192', lo=R.here + 300)
        self.part_stores = []
        self.own_writes = []
        vST, vOW, sOWN = T + 11, T + 12, KA + 3 + 1
        self.own = self.o.get('own', 1)
        if not self.own:
            vST = vL16

        def put(X, so, imm, piece, hi):
            self.part_stores.append(R.op(f'buffer_store_dwordx4 {vr(X)}, v{vST}, {sr(SW)}, s{so} offen offset:{imm} sc1', prio=400, pipe=P_S * (3 if self.own else 4) // 4, hi=hi, after=[self.chk2o]))
            if self.own:
                self.own_writes.append(R.op(f's_mov_b64 exec, s[{SQ}:{SQ + 1}]\nds_write_b128 v{vOW}, {vr(X)} offset:{1024 * piece}\ns_mov_b64 exec, -1', atomic=True, noexec=True, hi=hi + 6))
        done = {}
        seen = set()
        hw = {}
        w = None
        for x, (k, t) in enumerate(seq):
            g0 = R.here
            while self.b_next < min(len(seq), x + 1 + AH):
                self.b_read(R, g0)
            if self.b_next == len(seq) and x == len(seq) - 4:
                self.c_prepare(R, n0 + 18, g0)
            dep = []
            if x % WG == 0:
                w = R.wait(sum(self.bq[x:x + WG], []), dist=3)
                dep.append(w)
                for c_, lu in lastuse.items():
                    if x <= lu < x + WG:
                        self.lastwait[n0 + c_] = w
            pos = k >> 1
            if pos not in hw and (pos == 0 or (self.o.get('fine') and pos % 3 == 0)):
                self.stamp(R, f'B.{pos}')
            if pos not in hw:
                o = self.o
                hw[pos] = R.wait([(q_, o['dh'] + o.get('stag', 6) * (len(self.hl[pos]) - 1 - k_)) for k_, q_ in enumerate(self.hl[pos])], tag=f'h{pos}')
                dep.append(hw[pos])
                if pos == 1:
                    self.c_tables(R)
                five = self.ns == 5
                if pos % o.get('cpb', 8) == 0 and pos < 17:
                    self.code_ahead(R, g0)
                if self.own and pos == 12:
                    R.op(f's_cmp_eq_u32 s{sWV}, s{sJJ}\ns_cselect_b32 s{SQ}, -1, 0\ns_mov_b32 s{SQ + 1}, s{SQ}', atomic=True)
                    R.op(f's_lshl_b32 s{SQ + 2}, s{SQ}, 31\nv_or_b32 v{vST}, s{SQ + 2}, v{vL16}\nv_add_u32 v{vOW}, {self.KVX}, v{vL16}')
                    self.sq_busy = True
                if not five and pos == o.get('om', 5):
                    self.o_stores = self.o_mfmas(R, ACC0)
                    R.op(self.pat_cl())
                if not five and pos == o.get('p2b', 2):
                    self.chk2b = self.poll(R, 'hb', SW, self.flag_addr('2b', False, sT2), 3, 1, g0, g0 + 40, after=[self.flags['2b']])
                if pos == o.get('f2l', 6):
                    self.flag_later(R, '2d' if five else '2c', self.hst[self.order[-1]])
                if pos == (o.get('p2c5', 5) if five else o.get('p2c', 8)):
                    self.chk2c = self.poll(R, 'hc', SW, self.flag_addr('2c', False, sT2), 3, 1, g0, g0 + 40, after=[self.flags['2c']])
                if pos == (o.get('f2o5', 1) if five else o.get('f2o', 9)):
                    self.flag_later(R, '2o', self.fill + self.o_stores)
                if pos == (o.get('p2d5', 10) if five else o.get('p2d', 13)):
                    self.chk2d = self.poll(R, 'hd', SW, self.flag_addr('2d', False, sT2), 1, 1, g0, g0 + 34, after=[self.flags['2d']] if five else [], mul=12)
                if pos == (o.get('p2o5', 12) if five else o.get('p2o', 12)):
                    self.chk2o = self.poll(R, 'o', SW, self.flag_addr('2o', False, sT2), 15, 1, g0, g0 + 30, after=[self.flags['2o']])
                    self.o_stage_load(R, g0)
                for nxt in range(pos + 1, min(18, pos + o['hlook'] + 1)):
                    chk = 'chk2a' if nxt < 8 else 'chk2b' if nxt < 12 else 'chk2c' if nxt < 16 else 'chk2d'
                    if hasattr(self, chk):
                        self.h_loads(R, nxt, [getattr(self, chk)], g0)
            slot = self.b_ring[x % len(self.b_ring)]
            for rho in range(2):
                d = vr(self.bacc(t, rho))
                R.mfma(f'{MF} {d}, {vr(slot)}, {self.hreg(pos, k & 1, rho)}, {d if (t, rho) in seen else 0}', after=dep, tag='lds2' if pos < self.o.get('lds2', 18) else '')
                seen.add((t, rho))
                dep = []
            if k == 35:
                done[t] = True
                if t >= 8:
                    X = self.bacc(t, 0)
                    for rho in range(2):
                        a = self.bacc(t, rho)
                        R.op(f'v_cvt_pk_bf16_f32 v{X + 2 * rho}, v{a}, v{a + 1}', prio=40)
                        R.op(f'v_cvt_pk_bf16_f32 v{X + 2 * rho + 1}, v{a + 2}, v{a + 3}', prio=40)
                    put(X, sT0, 1024 * (t - 8), t, R.here + 8)
                elif t & 1:
                    for rho in range(2):
                        X, Y = self.bacc(t - 1, rho), self.bacc(t, rho)
                        for kk, a in enumerate((X, X + 2, Y, Y + 2)):
                            R.op(f'v_cvt_pk_bf16_f32 v{X + kk}, v{a}, v{a + 1}', prio=40)
                        put(X, sH0 + rho, 1024 * (t >> 1), 4 * rho + (t >> 1), R.here + 8 + 3 * rho + (0 if self.o['ntail'] else 3 * t))
        self.phase_c(R, n0 + 18)

    def o_stage_load(self, R, lo):
        buf = self.LB
        sT0, sT1 = KA + 1, KA + 2
        R.op(f'''s_lshl_b32 s{sT0}, s{sI}, 2
        s_add_u32 s{sT0}, s{sT0}, s{sJJ}
        s_lshl_b32 s{sT1}, s{sT0}, 15
        s_add_u32 s{sT1}, s{sT1}, {O_BASE}''', lo=lo - 10)
        self.o_ld = []
        for k in range(2):
            sT3 = KA + 3 + k
            R.op(f'''s_lshl_b32 s{sT3}, s{sWV}, 1
            s_add_u32 s{sT3}, s{sT3}, s{sIL}
            s_add_u32 s{sT3}, s{sT3}, {k}
            s_and_b32 s{sT3}, s{sT3}, 7
            s_lshl_b32 s{sT3}, s{sT3}, 12
            s_add_u32 s{sT3}, s{sT3}, s{sT1}''', lo=lo - 10)
            for p in range(4):
                self.o_ld.append(R.op(f'buffer_load_dwordx4 {vr(buf + 16 * k + 4 * p)}, v{vL16}, {sr(SW)}, s{sT3} offen offset:{1024 * p} sc1', after=[self.chk2o], lo=lo, pipe=P_H))
        a = T + 16
        R.op(f'v_lshrrev_b32 v{a}, 4, v{vLANE}', lo=lo - 10)
        R.op(f'v_lshlrev_b32 v{a}, 8, v{a}', lo=lo - 10)
        R.op(f'v_and_b32 v{a + 1}, 15, v{vLANE}', lo=lo - 10)
        R.op(f'v_lshl_add_u32 v{a}, v{a + 1}, 2, v{a}', lo=lo - 10)
        R.op(f'''s_lshl_b32 s{sT0}, s{sT0}, 1
        s_add_u32 s{sT0}, s{sT0}, s{sC}
        s_lshl_b32 s{sT0}, s{sT0}, 1
        s_add_u32 s{sT0}, s{sT0}, s{sR}
        s_lshl_b32 s{sT0}, s{sT0}, 10
        s_add_u32 s{sT0}, s{sT0}, {OL_BASE}''', lo=lo - 10)
        for p in range(4):
            self.o_ld.append(R.op(f'buffer_load_dword v{XNV + 16 + p}, v{a}, {sr(SW)}, s{sT0} offen offset:{64 * p} sc1', after=[self.chk2o], lo=lo, pipe=30))

    def final_prefetch(self, R, lo):
        XR = self.LB + 36
        sT0 = KA + 5
        self.vXa, self.vXb = SC + 2, SC + 3
        a, b_ = T + 23, T + 22
        R.op(f'''v_and_b32 v{a}, 15, v{vLANE}
        s_lshl_b32 s{sT0}, s{sI}, 2
        s_add_u32 s{sT0}, s{sT0}, s{sJJ}
        s_lshl_b32 s{sT0}, s{sT0}, 5
        v_add_u32 v{self.vXb}, s{sT0}, v{a}
        v_mul_u32_u24 v{self.vXb}, 1152, v{self.vXb}
        v_lshrrev_b32 v{b_}, 5, v{vLANE}
        v_lshl_add_u32 v{self.vXb}, v{b_}, 4, v{self.vXb}
        s_lshl_b32 s{sT0}, s{sQ_}, 3
        s_lshr_b32 s{sT0}, 0x0e0a0400, s{sT0}
        s_and_b32 s{sT0}, s{sT0}, 0xff
        s_add_u32 s{sT0}, s{sT0}, s{sWV}
        s_lshl_b32 s{sT0}, s{sT0}, 6
        v_bfe_u32 v{b_}, v{vLANE}, 4, 1
        v_lshl_add_u32 v{self.vXa}, v{b_}, 5, v{self.vXb}
        v_add_u32 v{self.vXa}, s{sT0}, v{self.vXa}''', lo=lo - 150)
        self.xo = [(self.vXa, '0', 0), (self.vXa, f's{KA + 7}', 0)]
        R.op(f'''s_lshl_b32 s{sT0}, s{sJJ}, 7
        s_add_u32 s{sT0}, s{sT0}, {RS}
        v_lshl_add_u32 v{a}, v{a}, 2, s{sT0}
        s_mov_b32 s{KA + 7}, {16 * 1152}''', lo=lo - 150)
        ra = [(a, 0), (a, 64)]
        if self.nt > 8:
            s0, s1 = KA + 6, KA + 7
            R.op(f'''v_lshlrev_b32 v{b_}, 3, v{b_}
            s_lshl_b32 s{sT0}, s{sQ_}, 1
            s_add_u32 s{sT0}, s{sT0}, s{sC}
            s_lshl_b32 s{sT0}, s{sT0}, 5
            v_add3_u32 v{self.vXb}, v{b_}, v{self.vXb}, s{sT0}
            s_mul_i32 s{s0}, s{sR}, {16 * 1152}
            s_sub_u32 s{s1}, {16 * 1152}, s{s0}
            s_lshl_b32 s{sT0}, s{sR}, 6
            v_add_u32 v{a}, s{sT0}, v{a}
            v_xor_b32 v{b_}, 64, v{a}''', lo=lo - 150)
            self.xo = [(self.vXa, f's{s0}', 0), (self.vXa, f's{s1}', 0), (self.vXb, f's{s0}', 448)]
            ra = [(a, 0), (b_, 0)]
        self.x_ld = [R.op(f'buffer_load_dwordx{4 if p < 2 else 2} {vr(XR + 4 * p, 4 if p < 2 else 2)}, v{va}, {sr(SX)}, {so} offen offset:{imm}', lo=lo, pipe=160)
                     for p, (va, so, imm) in enumerate(self.xo)]
        self.rs_ld = [R.op(f'ds_read_b32 v{SC + p}, v{r_} offset:{o_}', lo=lo - 100) for p, (r_, o_) in enumerate(ra)]
        self.XR = XR


    def partial_addr(self, R, t, t2, sk, va, **kw):
        R.op(f'''s_lshl_b32 s{t}, s{sI}, 2
        s_add_u32 s{t}, s{t}, s{sQ_}
        s_lshl_b32 s{t}, s{t}, 2
        s_add_u32 s{t}, s{t}, s{sJJ}
        s_mul_i32 s{t}, s{t}, {4 * PSTR}
        s_add_u32 s{t}, s{t}, {PART_BASE}
        s_lshl_b32 s{t2}, s{sWV}, 10
        v_add_u32 v{va[0]}, s{t2}, v{vL16}''', **kw)
        if self.nt > 8:
            R.op(f'''s_lshl_b32 s{t2}, s{sR}, 12
            v_add_u32 v{va[0]}, s{t2}, v{va[0]}
            s_lshl_b32 s{t2}, s{sC}, 7
            s_add_u32 s{t2}, s{t2}, s{sR}
            s_lshl_b32 s{t2}, s{t2}, 3
            s_add_u32 s{t2}, s{t2}, 8192
            v_add_u32 v{va[2]}, s{t2}, v{vL16}''', **kw)
        R.op(f'v_xor_b32 v{va[1]}, 4096, v{va[0]}', **kw)
        for k in range(1 if self.o.get('own', 1) else 0, 4):
            R.op(f's_add_u32 s{sk[k]}, s{sJJ}, {k}\ns_and_b32 s{sk[k]}, s{sk[k]}, 3\ns_mul_i32 s{sk[k]}, s{sk[k]}, {PSTR}\ns_add_u32 s{sk[k]}, s{sk[k]}, s{t}', **kw)

    def prefill(self, R):
        sk = [None] + [self.news() for _ in range(3)]
        va = [T + 4, T + 5, T + 6]
        self.partial_addr(R, self.news(), self.news(), sk, va)
        R.op('\n'.join(f'v_mov_b32 v{T + k}, -1' for k in range(4)))
        self.fill = [R.op(f'buffer_store_dwordx4 {vr(T)}, v{va[p]}, {sr(SW)}, s{sk[k]} offen sc1', pipe=P_S if p < 2 else P_S // 2, hi=R.here + 40 + 24 * (3 * p + k))
                     for p in range(2 if self.nt == 8 else 3) for k in range(1, 4)]

    def partial_loads(self, R, chk, lo):
        self.PBS = [self.OB + 16 * k for k in range(3)]
        self.partial_addr(R, KA + 8, sK5, [KA + k for k in range(4)], [vA0, vA1, vLL], lo=lo - 40)
        self.p_ld = []
        for piece, va in enumerate((vA0, vA1, vLL)[:len(self.xo)]):
            for k in range(1 if self.own else 0, 4):
                n_ = 4 if piece < 2 else 2
                self.p_ld.append(f'buffer_load_dwordx{n_} {vr(self.PBS[piece] + n_ * k, n_)}, v{va}, {sr(SW)}, s{KA + k} offen sc1')
                R.op(self.p_ld[-1], after=[chk] if chk else [], prio=100, lo=lo, hi=lo + 2 + len(self.p_ld))
        if self.own:
            a = T + 12
            for piece, va in enumerate((vA0, vA1, vLL)[:len(self.xo)]):
                R.op(f'v_add_u32 v{a + piece}, {self.KVX}, v{va}')
                R.op(f'ds_read_b128 {vr(self.PBS[piece])}, v{a + piece}' if piece < 2 else f'ds_read_b64 {vr(self.PBS[piece], 2)}, v{a + piece}', after=[self.own_bar])

    def c_prepare(self, R, nO, g0):
        pass

    def phase_c(self, R, nO):
        g0 = R.here
        osa, osb = self.slot[nO] * self.CH, self.slot[nO + 1] * self.CH
        a = T + 16
        buf = self.LB
        sT0, sT1 = KA + 6, sK5
        R.op(f'''s_mul_i32 s{sT0}, s{sR}, {osb - osa}
        s_add_u32 s{sT0}, s{sT0}, {osa}
        v_add_u32 v{a + 1}, s{sT0}, v{vL16}
        s_lshl_b32 s{sT1}, s{sC}, 13
        v_add_u32 v{a}, s{sT1}, v{a + 1}
        s_lshl_b32 s{sT1}, s{sC}, 10
        s_add_u32 s{sT1}, s{sT1}, 16384
        v_add_u32 v{a + 1}, s{sT1}, v{a + 1}''', lo=g0 - 120)
        fb = [self.free_bar[self.prev_user[nO]], self.free_bar[self.prev_user[nO + 1]]]
        wl = R.wait([(o, self.o.get('dol', 60) + 5 * (11 - k)) for k, o in enumerate(self.o_ld)], late=False, lo=g0 - 70, tag='old')
        R.op(f'v_add_u32 v{a + 2}, 8, v{a}', lo=g0 - 120)
        ws = [R.op(f'ds_write2st64_b64 v{a + 2 * (p & 1)}, {vr(buf + 4 * p, 2)}, {vr(buf + 4 * p + 2, 2)} offset0:{4 * (p >> 1)} offset1:{4 * (p >> 1) + 2}', after=fb + [wl], lo=g0 - 70) for p in range(8)]
        ws.append(R.op(f'ds_write_b128 v{a + 1}, {vr(XNV + 16)}', after=fb + [wl], lo=g0 - 70))
        vO = [T + 17, T + 18]
        if self.nt > 8:
            R.op(f's_lshl_b32 s{sT0}, s{sR}, 10\ns_add_u32 s{sT0}, s{sT0}, {osa}\nv_add_u32 v{vO[0]}, s{sT0}, v{vL16}\nv_xor_b32 v{vO[1]}, 1024, v{vO[0]}', lo=g0 - 30)
        else:
            R.op(f'v_add_u32 v{vO[0]}, {osa}, v{vL16}' if osa else f'v_mov_b32 v{vO[0]}, v{vL16}', lo=g0 - 30)
        self.base[vO[0]] = self.base[vO[1]] = osa
        vC = [T + 8, T + 9, T + 10]
        R.op(f's_lshl_b32 s{sT0}, s{sC}, 6\nv_xor_b32 v{vC[0]}, s{sT0}, v{vLA0}\ns_lshl_b32 s{sT0}, s{sR}, 10\nv_add_u32 v{vC[0]}, s{sT0}, v{vC[0]}\nv_xor_b32 v{vC[1]}, 32, v{vC[0]}', lo=g0 - 12)
        self.base[vC[0]] = self.base[vC[1]] = self.base[vLA0]
        nf = 2
        if self.nt > 8:
            nf = 3
            R.op(f's_lshl_b32 s{sT0}, s{sC}, 5\nv_xor_b32 v{vC[2]}, s{sT0}, v{vA1}', lo=g0 - 12)
            self.base[vC[2]] = self.base[vA1]
        self.pre_bar += [(o, 4) for o in ws]

        self.span = 8
        nC = nO + 2
        NB = self.o.get('cah', 1) + 1
        AB = [('a', 32 + 12 * k) for k in range(NB)]
        BB = [96 + 8 * k for k in range(NB)]
        self.SA = lambda rho, f: XNV + 16 + 8 * rho + 4 * f if f < 2 else T + 4 * rho

        def reads(k, lo):
            n = nC + (k >> 1)
            if n not in self.bars:
                self.chunk_enter(R, n, lo)
            bar = self.bars[n]
            cb = self.slot[n] * self.CH
            out = []
            for f in range(nf):
                off, step = (cb + 8192 * (k & 1), 4096) if f < 2 else (cb + 16384 + 2048 * (k & 1), 1024)
                d = AB[k % NB][1] + 4 * f
                o_ = self.addr(R, vC[f], off, lo=lo)
                out.append(R.op(f'ds_read_b64_tr_b16 a[{d}:{d + 1}], v{vC[f]} offset:{o_}', after=[bar], prio=10, lo=lo))
                out.append(R.op(f'ds_read_b64_tr_b16 a[{d + 2}:{d + 3}], v{vC[f]} offset:{o_ + step}', after=[bar], prio=10, lo=lo))
            for rho in range(2):
                d = BB[k % NB] + 4 * rho
                off = (osb if (8 <= k < 16 or k == 17) else osa) + (2048 * (k & 7) if k < 16 else 16384)
                vo, off = (vO[rho], off) if self.nt > 8 else (vO[0], off + 1024 * rho)
                out.append(R.op(f'ds_read_b128 a[{d}:{d + 3}], v{vo} offset:{self.addr(R, vo, off, lo=lo)}', after=[bar], lo=lo, prio=10))
            return out
        rds = {k: reads(k, g0 - 3) for k in range(NB - 1)}
        self.stamp(R, 'C')
        for k in range(18):
            w = R.wait(rds[k], dist=2)
            if k & 1:
                self.lastwait[nC + (k >> 1)] = w
            g = R.here
            if k in (6, 12) and self.o.get('fine'):
                self.stamp(R, f'C.{k}')
            if k == self.o.get('xk', 6):
                self.final_prefetch(R, g)
                self.sel_regs(R, PQ + 8, T + 20, lo=g - 200)
                if self.nt > 8:
                    R.op('\n'.join(f'v_mov_b32 v{T + 4 + e}, v{PQ + 10 + (e & 1)}' for e in range(4)))
            if k == self.o.get('f3k', 11):
                if not self.o.get('sent', 0):
                    self.flag_later(R, '3', self.part_stores)
                self.pre_bar += [(o_, 4) for o_ in self.own_writes]
                self.post_bar.append(lambda b_: setattr(self, 'own_bar', b_))
            if self.o.get('sent', 0):
                if k == self.o.get('plk', 12):
                    self.partial_loads(R, None, g)
            elif self.o.get('p3e', 0):
                if k == self.o.get('p3i', 0):
                    self.p3 = self.poll(R, 'p', SW, self.flag_addr('3', False, sT2, own_ok=True), 3, 1, g, g, defer=True)
                if '3' in self.flags and self.p3:
                    chk = self.p3(g, [self.flags['3']])
                    self.p3 = None
                    self.partial_loads(R, chk, g)
            elif k == self.o.get('p3k', 13):
                chk = self.poll(R, 'p', SW, self.flag_addr('3', False, sT2), 3, 1, g, g + self.o.get('p3d', 4) * (nf + 2), after=[self.flags['3']])
                self.partial_loads(R, chk, g)
            if k + NB - 1 < 18:
                rds[k + NB - 1] = reads(k + NB - 1, g + 1)
                for q_, o in enumerate(rds[k + NB - 1]):
                    o.after.append((w, 0))
                    o.hi = g + 1 + (q_ + 1) // 2
            for f in range(nf):
                for rho in range(2 if f < 2 else 1):
                    d = vr(self.SA(rho, f))
                    R.mfma(f'{MF} {d}, a[{AB[k % NB][1] + 4 * f}:{AB[k % NB][1] + 4 * f + 3}], a[{BB[k % NB] + 4 * rho}:{BB[k % NB] + 4 * rho + 3}], {d if k else 0}', after=[w] if f + rho == 0 else [], cap=3)
        self.marks.append((R, R.here, 'Cend'))

    def final(self):
        L = self.lin.text
        vp = T + 19
        self.stamp(None, 'Cend')
        PBS = self.PBS
        NP = len(self.xo)
        if self.o.get('sent', 0):
            x = self.sfx
            regs = [PBS[p] + e for p in range(NP) for e in range(4, 16)]
            t0, t1 = RING, RING + 1
            ver = f'v_max3_u32 v{t0}, v{regs[0]}, v{regs[1]}, v{regs[2]}\nv_max3_u32 v{t1}, v{regs[3]}, v{regs[4]}, v{regs[5]}\n'
            for n_ in range(6, len(regs), 2):
                tt = t0 if n_ & 2 else t1
                ver += f'v_max3_u32 v{tt}, v{tt}, v{regs[n_]}, v{regs[n_ + 1]}\n'
            ver += f'v_max_u32 v{t0}, v{t0}, v{t1}\nv_cmp_eq_u32 vcc, -1, v{t0}\n'
            L('s_waitcnt vmcnt(0)\n' + ver + f's_cbranch_vccnz L_more{x}\nL_have{x}:')
            rec = ''
            if self.stamps:
                rec = f'v_mov_b32 v{T + 26}, s{sCNT}\ns_lshl_b32 s0, s2, 10\ns_add_u32 s0, s0, {DUMP_BASE + 768 + 4 * len(self.slow)}\nbuffer_store_dword v{T + 26}, v{vFST}, {sr(SW)}, s0 offen\n'
            self.slow.append(f'''L_more{x}:
            s_mov_b32 s{sCNT}, 0
            v_mov_b32 v{vPOLL}, s{KA + 3}
            v_writelane_b32 v{vPOLL}, s{KA + 1}, 1
            v_writelane_b32 v{vPOLL}, s{KA + 2}, 2
            s_lshl_b32 s{sT2}, s{sWV}, 10
            s_add_u32 s{sT2}, s{sT2}, {4096 + 1020}
            L_light{x}:
            buffer_load_dword v{vp}, v{vPOLL}, {sr(SW)}, s{sT2} offen sc1
            s_add_u32 s{sCNT}, s{sCNT}, 1
            s_cmp_ge_u32 s{sCNT}, {self.o['spin']}
            s_cbranch_scc1 L_stopw{x}
            s_waitcnt vmcnt(0)
            v_cmp_eq_u32 vcc, -1, v{vp}
            s_cbranch_vccnz L_light{x}
            ''' + '\n'.join(self.p_ld) + '\ns_waitcnt vmcnt(0)\n' + ver + f'''s_cbranch_vccnz L_light{x}
            L_stopw{x}:
            {rec}s_waitcnt vmcnt(0)
            s_branch L_have{x}''')
        for p in range(2):
            L(f'v_permlane16_swap_b32 v{self.XR + 4 * p}, v{self.XR + 4 * p + 2}\nv_permlane16_swap_b32 v{self.XR + 4 * p + 1}, v{self.XR + 4 * p + 3}')
        A1, A0 = PQ + 8, PQ + 10
        MS = self.LB
        red = [[f'{MF} {vr(MS + 8 * piece + 4 * half)}, {vr(A1 if half else A0)}, {vr(PBS[piece] + 4 * pj)}, {vr(MS + 8 * piece + 4 * half) if pj else 0}'
                for pj in range(4) for half in range(2)] for piece in range(2)]
        red.append([f'{MF} {vr(MS + 16)}, {vr(T + 4)}, {vr(PBS[2] + 4 * k)}, {vr(MS + 16) if k else 0}' for k in range(2)])
        for x in red[0]:
            L(x)
        R = Region(cap=1000)
        tm = RING
        for piece in range(NP):
            for half in range(2 if piece < 2 else 1):
                rho, u = (piece, half) if piece < 2 else (0, 2)
                S = self.SA(rho, u)
                X = self.XR + 4 * piece + 2 * half
                M = MS + 8 * piece + 4 * half
                for e in range(4):
                    m = M + e
                    t0 = tm + 2 * e + 8 * (half)
                    R.op(f'v_mul_f32 v{m}, v{SC + rho}, v{m}')
                    R.op(f'v_mul_f32 v{t0}, {hex(NLOG2E)}, v{m}')
                    R.op(f'v_exp_f32 v{t0}, v{t0}')
                    R.op(f'v_mul_f32 v{m}, v{m}, v{S + e}')
                    R.op(f'v_add_f32 v{t0}, 1.0, v{t0}')
                    R.op(f'v_rcp_f32 v{t0}, v{t0}')
                    src = X + (e >> 1)
                    R.op(f'v_and_b32 v{t0 + 1}, 0xffff0000, v{src}' if e & 1 else f'v_lshlrev_b32 v{t0 + 1}, 16, v{src}')
                    R.op(f'v_fma_f32 v{m}, v{m}, v{t0}, v{t0 + 1}')
                nxt = red[piece + 1][4 * half:4 * half + 4] if piece + 1 < NP else []
                for k_, o in enumerate(self.interleave(R.ops)):
                    self.lin.op(o)
                    if nxt and k_ % 6 == 3:
                        L(nxt.pop(0))
                R.ops = []
                Z = MS + 8 * piece
                L(f'v_cvt_pk_bf16_f32 v{Z + 2 * half}, v{M}, v{M + 1}\nv_cvt_pk_bf16_f32 v{Z + 2 * half + 1}, v{M + 2}, v{M + 3}')
            va, so, imm = self.xo[piece]
            if piece < 2:
                L(f'v_permlane16_swap_b32 v{Z}, v{Z + 2}\nv_permlane16_swap_b32 v{Z + 1}, v{Z + 3}')
            n_ = 4 if piece < 2 else 2
            L(f'buffer_store_dwordx{n_} {vr(Z, n_)}, v{va}, {sr(SO)}, {so} offen offset:{imm}')
        self.stamp(None, 'end')

    @staticmethod
    def interleave(ops):
        per = len(ops) // 4
        return [ops[e * per + k] for k in range(per) for e in range(4)]

    def build(self):
        self.hl = {}
        self.flags = {}
        self.build_stream()
        self.setup()
        for fn in (self.layernorm, self.main):
            R = fn()
            if self.o.get('probe') and (fn == self.main or self.o.get('probe') == 3):
                self.lin.probe_vm = self.o['probe'] >= 2
                if self.lin.probe is None:
                    self.lin.probe_skip = self.o.get('pskip', 0)
                self.lin.probe = PRV
                self.o['pf_dummy'] = 1
            for o in R.schedule(self.log):
                self.lin.op(o)
            if self.o.get('prof'):
                ld = R.loads
                for g in range(0, R.nspine, 48):
                    xs = [ld[k] for k in range(g, min(g + 48, R.nspine))]
                    self.log.append(f'{g:5d} sum={sum(xs):4d} ' + ''.join(str(min(9, v)) for v in xs))
        if self.o.get('probe'):
            if self.lin.probe_open:
                self.lin._probe_end()
            self.lin._emit_wait(None, 0)
            self.lin.probe = None
            self.lin.text(f's_lshl_b32 s0, s{sI}, 4\ns_add_u32 s0, s0, s{sJ}\ns_lshl_b32 s0, s0, 2\ns_add_u32 s0, s0, s{sWV}\ns_mul_i32 s0, s0, 768\ns_add_u32 s0, s0, {DUMP_BASE}\nv_lshlrev_b32 v{vPOLL}, 2, v{vLANE}')
            for k in range(3):
                self.lin.text(f'buffer_store_dword v{PRV + k}, v{vPOLL}, {sr(SW)}, s0 offen offset:{256 * k}')
            self.stamp_names = ['probe'] + self.lin.probe_names
        prev = None
        for R_, g, nm in self.marks:
            cur = (R_, R_.time_at[g], R_.slot_t[g], g)
            if prev and prev[0] is R_:
                cat = {}
                for o in R_.ops:
                    if o.pipe and prev[3] < o.gap <= g:
                        k = o.ins[0].kind + (o.tag[0] if o.tag else '')
                        cat[k] = cat.get(k, 0) + o.pipe
                self.log.append(f'  model {nm}: with pipe {cur[1] - prev[1]:.0f}  issue only {cur[2] - prev[2]:.0f} pipe {sum(cat.values())} {cat}')
            prev = cur
        self.final()
        self.lin.text('s_endpgm')
        body = list(self.lin.out)
        for s in self.slow:
            body += [l.strip() for l in s.split('\n')]
        body += [f'L_stop{self.sfx}:', 's_endpgm']
        self.log.append(f'nops={self.lin.nops} autowaits={len(self.lin.autowaits)} instrs={len(body)}')
        return body


DOC = '''
;
;   q in {0,3}: five 64-column gate/up steps, eight 16-column output tiles; q in {1,2}: four steps, ten tiles.
'''


def assemble(gens):
    body = ['s_cmp_ge_u32 s2, 256', 's_cbranch_scc0 L_go', 's_endpgm', 'L_go:', 's_load_dwordx4 s[4:7], s[0:1], 0',
            's_load_dwordx4 s[32:35], s[0:1], 64', 's_load_dwordx2 s[36:37], s[0:1], 16', 's_load_dwordx4 s[8:11], s[0:1], 32',
            's_load_dwordx4 s[20:23], s[0:1], 48']
    body += ['s_bitcmp1_b32 s2, 7'] if gens[0].o.get('hicls', 0) else ['s_add_u32 s3, s2, 8', 's_bitcmp1_b32 s3, 4']
    body += ['s_cbranch_scc1 L_four']
    body += gens[0].build() + ['.p2align 6', 'L_four:'] + gens[1].build()
    hdr = open('cdna_kernels/' + NAME + '.s.ref').read().split('\n')
    head = [l for l in hdr if l.startswith(';')][:11]
    K = NAME + '_kernel'
    txt = head + [f'; @launch grid=(256,1,1) block=(256,1,1) lds={LDS_BYTES}'] + DOC.strip().split('\n') + [
                  '.amdgcn_target "amdgcn-amd-amdhsa--gfx950"', '.text', f'.globl {K}', '.p2align 8',
                  f'.type {K},@function', f'{K}:']
    txt += [l.replace(' offset:0 ', ' ').replace(', ', ',') for l in body]
    txt += ['.section .rodata,"a"', '.p2align 6', f'.amdhsa_kernel {K}', '  .amdhsa_next_free_vgpr 512',
            '  .amdhsa_next_free_sgpr 102', '  .amdhsa_accum_offset 256', '  .amdhsa_group_segment_fixed_size 0',
            '  .amdhsa_kernarg_size 80', '  .amdhsa_float_denorm_mode_32 3', '  .amdhsa_user_sgpr_count 2',
            '  .amdhsa_user_sgpr_kernarg_segment_ptr 1', '  .amdhsa_system_sgpr_workgroup_id_x 1',
            '.end_amdhsa_kernel']
    return '\n'.join(txt) + '\n'


if __name__ == '__main__':
    import argparse
    ap = argparse.ArgumentParser()
    ap.add_argument('out')
    ap.add_argument('--stamps', action='store_true')
    ap.add_argument('-o', action='append', default=[])
    a = ap.parse_args()
    opts = {k: int(v, 0) for k, v in (x.split('=') for x in a.o)}
    P_A, P_H, P_S, P_AH = opts.get('pa', P_A), opts.get('ph', P_H), opts.get('ps', P_S), opts.get('pah', P_AH)
    gens = [Gen(5, stamps=a.stamps, opts=opts), Gen(4, stamps=a.stamps, opts=opts)]
    open(a.out, 'w').write(assemble(gens))
    open(a.out + '.names', 'w').write(' '.join(gens[0].stamp_names) + '\n' + ' '.join(gens[1].stamp_names))
    for g in gens:
        print('\n'.join(g.log))
        for t in g.lin.autowaits:
            if not t.startswith(('v_mfma', 'v_permlane')):
                print('  autowait:', t)
```

```python
import sys
from sched import Region, Linear, Op, Ins

NAME = 'recurrent_scan__linear_attn_block__glu_gated_glu__prompt'
MF = 'v_mfma_f32_16x16x32_bf16'
LOG2E = 0x3fb8aa3b
NLOG2E = 0xbfb8aa3b
EPS6 = 0x358637bd
OOB = 0x80000000

F1, F2A, F2B, F3, F2O, F2C = 0, 4096, 4096 + 8192, 4096 + 16384, 4096 + 24576, 4096 + 32768
F2D = 4096 + 40960
KV2_BASE = 0x100000
KV_BASE, OL_BASE, O_BASE, PART_BASE, H_BASE = 0x20000, 0x200000, 0x300000, 0x500000, 0x1000000
DUMP_BASE = 0x2400000
WS_SIZE = 0x4000000
RS = 159744
QL = 160256
DUMMY = 162304
LDS_BYTES = 163840

SX, SG, SU, SQ, SD, SW, SO, SB, SWO = 4, 8, 12, 16, 20, 24, 28, 32, 36
sI, sJ, sJJ, sQ_, sIL, sWV, sR, sC = 40, 41, 42, 43, 44, 45, 46, 47
KA, KQ, TB = 48, 57, 66
sMA, sM2, sH0, sH1, sT0, sT1, sT2, sT3 = 84, 85, 86, 87, 88, 89, 90, 91
sMASKC, sMASKONE, sMK2, sMK3 = 92, 94, 32, 34
sHB, sCNT, sK3, sK4, sK5 = 96, 97, 98, 99, 100
sS0 = 0
sJQ = 101
sEPS = SQ + 3
sIH = 3
sCNT2 = TB + 9
sCL2 = sM2
sCNT2X = sM2
sST = 76
ACC0, ACC1, XNV, RING = 0, 64, 128, 160
PQ = 192
SC = 208
vL16, vA0, vA1, vLA0, vLA1, vLB, vLL = 212, 213, 214, 215, 216, 217, 218
P_A, P_AH, P_Q, P_B, P_H, P_S = 76, 160, 175, 100, 72, 200
V288 = 219
vFST, vONE, vLANE, vPOLL = 224, 225, 226, 227
T = 228
NT = 28
PSTR = 10240
XR_ = 18432
PRB = 'probe'
PRV = T + 25
V_G0, V_G1 = T + 10, T + 6
VQ = [vLL, T, T + 1, V288 + 4]


def vr(b, n=4):
    return f'v[{b}:{b + n - 1}]' if n > 1 else f'v{b}'


def sr(b, n=4):
    return f's[{b}:{b + n - 1}]'


def xn(n, lo=0, cnt=4):
    if n < 64:
        return f'a[{4 * n + lo}:{4 * n + lo + cnt - 1}]'
    return vr(XNV + 4 * (n - 64) + lo, cnt)


class Gen:
    def __init__(self, ns, stamps=False, opts=None):
        self.ns = ns
        self.nt = 8 if ns == 5 else 10
        self.CH, self.NCH = (18432, 8) if ns == 5 else (20480, 7)
        self.KVX = self.CH * self.NCH
        self.order = ('A0', 'Q', 'A1', 'A2', 'A3', 'A4')[:ns + 1]
        self.LB, self.OB = (ACC1, ACC0) if ns == 5 else (ACC0, ACC1)
        self.sfx = f'_{ns}'
        self.jump = (2, 0, -4, 0) if ns == 5 else (1, 0, -3)
        self.stamps = stamps
        self.o = dict(late0=0, bar2=0x3f if ns == 5 else 0x1f, p3k=13 if ns == 5 else 12, ntail=4, f3k=3, ppf=600, hlook=7, pkv=90, warm=True, spin=200000, ddma=50, dst=70, backlog=60, dh=50, dm=110)
        self.o.update(opts or {})
        self.o.update({k[:-2]: v for k, v in (opts or {}).items() if k.endswith(f'_{ns}')})
        self.lin = Linear()
        self.slow = []
        self.log = []
        self.nstamp = 0
        self.marks = []
        self.spool = 0
        self.stamp_names = []

    def setup(self):
        L = self.lin.text
        st = self.stamps
        hi = self.o.get('hicls', 0)
        L(f'''
        {'s_memrealtime s[76:77]' if st else ''}
        s_getpc_b64 s[{sT2}:{sT3}]
        L_pc{self.sfx}:
        s_lshr_b32 s{sT1}, s2, 3
        v_and_b32 v{vLANE}, 63, v0
        v_lshrrev_b32 v1, 6, v0
        {f's_and_b32 s{sT0}, s{sT1}, 15' if hi else f's_lshr_b32 s{sT0}, s2, 4'}
        {'' if hi else f's_and_b32 s{sT0}, s{sT0}, 14'}
        {'' if hi else f's_bfe_u32 s{sK3}, s2, 0x10003'}
        {'' if hi else f's_or_b32 s{sT0}, s{sT0}, s{sK3}'}
        v_lshl_add_u32 v2, v{vLANE}, 4, s{sT0}
        v_readfirstlane_b32 s{sWV}, v1
        v_lshlrev_b32 v2, 7, v2
        v_min_u32 v2, L_stop{self.sfx}-L_pc{self.sfx}, v2
        v_cmp_gt_u32 vcc, {32 if self.o['warm'] else 0}, v0
        s_and_saveexec_b64 s[{sK3}:{sK4}], vcc
        s_cbranch_execz L_nowarm{self.sfx}
        global_load_dword v{T + 27}, v2, s[{sT2}:{sT3}]
        L_nowarm{self.sfx}:
        s_mov_b64 exec, -1''')
        self.lin.vm.pop()
        L(f'''
        s_and_b32 s{sQ_}, s{sT1}, {1 if hi else 3}
        {(f's_mul_i32 s{sQ_}, s{sQ_}, 3' if self.ns == 5 else f's_add_u32 s{sQ_}, s{sQ_}, 1') if hi else ''}
        {f's_bfe_u32 s{sIL}, s{sT1}, 0x30001' if hi else f's_lshr_b32 s{sIL}, s{sT1}, 2'}
        s_and_b32 s{sT0}, s2, 1
        s_lshl_b32 s{sT0}, s{sT0}, 3
        s_add_u32 s{sI}, s{sT0}, s{sIL}
        s_lshl_b32 s{sT0}, s{sQ_}, 1
        s_add_u32 s{sT0}, s{sT0}, s{sIL}
        s_sub_u32 s{sT2}, s{sT0}, 9
        s_cselect_b32 s{sT0}, s{sT0}, s{sT2}
        s_lshl_b32 s{TB}, s{sT0}, 7
        s_lshl_b32 s{sT1}, s{sI}, 2
        s_add_u32 s{sT1}, s{sT1}, s{sWV}
        s_lshl_b32 s{sT1}, s{sT1}, 5
        v_lshrrev_b32 v4, 3, v{vLANE}
        v_add_u32 v4, s{sT1}, v4
        v_mul_u32_u24 v4, 1152, v4
        v_bfe_u32 v5, v{vLANE}, 4, 2
        v_lshlrev_b32 v5, 1, v5
        v_and_b32 v6, 7, v{vLANE}
        v_xor_b32 v{vA0}, v5, v6
        v_lshl_add_u32 v{T + 2}, v{vA0}, 4, v4
        v_add_u32 v{T + 3}, {8 * 1152 - 1024}, v{T + 2}
        v_add_u32 v{T + 4}, {16 * 1152}, v{T + 2}
        v_add_u32 v{T + 5}, {24 * 1152 - 1024}, v{T + 2}
        s_mul_i32 s{sM2}, s{sWV}, {XR_}
        s_add_u32 s{sM2}, s{sM2}, 16384
        s_add_u32 s{sCNT2}, s{sM2}, {4 * XR_}
        v_mov_b32 v{T + 25}, v0''')
        L(f'''
        {'s_memrealtime s[78:79]' if st else ''}
        s_waitcnt lgkmcnt(0)
        {'s_memrealtime s[80:81]' if st else ''}
        s_mov_b32 s{SQ}, s6
        s_mov_b32 s{SQ + 1}, s7
        s_mov_b32 s6, {2048 * 1152}
        s_mov_b32 s7, 0x20000''')
        self.xl = {}
        nf = self.o.get('xfirst', 3)
        order = [(0, u) for u in range(nf)] + [(1, u) for u in range(nf)]
        order += [(0, u) for u in range(nf, 9)] + [(1, u) for u in range(nf, 9)]
        pend = []
        for rho, u in order:
            pend.append(Op(f's_add_u32 m0, s{sCNT2 if rho else sM2}, {2048 * u}'))
            for hf in range(2):
                op = Op(f'buffer_load_dwordx4 v{T + 2 + 2 * rho + hf}, {sr(SX)}, s{TB + u} offen offset:{1024 * hf} lds')
                self.xl[rho, u, hf] = op
                pend.append(op)
        nxt = lambda u: L(f's_add_u32 s{TB + u}, s{TB + u - 1}, 128\ns_cmp_eq_u32 s{TB + u}, 1152\ns_cselect_b32 s{TB + u}, 0, s{TB + u}')
        for g in range(2 * nf):
            for _ in range(3):
                self.lin.op(pend.pop(0))
            if g + 1 < nf:
                nxt(g + 1)
        for u in range(nf, 9):
            nxt(u)
        if st:
            L('s_memrealtime s[82:83]')
        S = Region()
        L = S.op
        L(f'''
        s_mov_b32 s{SW}, s34
        s_mov_b32 s{SW + 1}, s35
        s_mov_b32 s{SW + 2}, {WS_SIZE}
        s_mov_b32 s{SW + 3}, 0x20000
        s_bfe_u32 s{sJJ}, s2, 0x20001
        s_lshl_b32 s{sJ}, s{sJJ}, 2
        s_and_b32 s{sT0}, s{sQ_}, 2
        s_add_u32 s{sJ}, s{sJ}, s{sT0}
        s_lshr_b32 s{sT0}, s{sJJ}, 1
        s_xor_b32 s{sT0}, s{sT0}, {(self.ns - 4) ^ self.o.get('qflip', 1)}
        s_add_u32 s{sJ}, s{sJ}, s{sT0}
        s_lshr_b32 s{sIH}, s{sI}, 3
        s_and_b32 s{sIH}, s{sIH}, {self.o.get('ihoff', 1)}
        s_xor_b32 s{sJQ}, s{sJ}, {self.o.get('qswap', 1)}
        s_lshr_b32 s{sR}, s{sWV}, 1
        s_and_b32 s{sC}, s{sWV}, 1
        v_mov_b32 v{vONE}, 1
        v_min_u32 v{vFST}, 1, v{T + 25}
        v_lshlrev_b32 v{vFST}, 31, v{vFST}
        v_lshlrev_b32 v{vL16}, 4, v{vLANE}''')
        if self.o.get('defer', 1):
            self.ln_consts(S)
        nearly = len(S.ops)
        for u in range(9):
            L(f's_mul_i32 s{KA + u}, s{TB + u}, {64 * 9216 // 128}\ns_mul_i32 s{KQ + u}, s{TB + u}, {64 * 3456 // 128}')
        L(f'''
        s_mov_b32 s{SU}, s10
        s_mov_b32 s{SU + 1}, s11
        s_mov_b32 s{SO}, s22
        s_mov_b32 s{SO + 1}, s23
        s_mov_b32 s{SO + 2}, {2048 * 1152}
        s_mov_b32 s{SO + 3}, 0x20000
        s_mov_b32 s{SB + 2}, 256
        s_mov_b32 s{SB + 3}, 0x20000
        s_lshl_b32 s{sT1}, s{sQ_}, 3
        s_lshr_b32 s{sCNT}, 0x0d090500, s{sT1}
        s_and_b32 s{sCNT}, s{sCNT}, 0xff
        s_lshl_b32 s{sT0}, s{sCNT}, 7
        s_mul_i32 s{sT1}, s{sJJ}, 2304
        s_add_u32 s{sT0}, s{sT0}, s{sT1}
        s_add_u32 s{SG}, s{SG}, s{sT0}
        s_addc_u32 s{SG + 1}, s{SG + 1}, 0
        s_sub_u32 s{SG + 2}, {576 * 9216}, s{sT0}
        s_mov_b32 s{SG + 3}, 0x20000
        s_add_u32 s{SU}, s{SU}, s{sT0}
        s_addc_u32 s{SU + 1}, s{SU + 1}, 0
        s_sub_u32 s{SU}, s{SU}, 1024
        s_subb_u32 s{SU + 1}, s{SU + 1}, 0
        s_sub_u32 s{SU + 2}, {576 * 9216 + 1024}, s{sT0}
        s_mov_b32 s{SU + 3}, 0x20000
        s_mov_b32 s{SQ + 2}, {576 * 3456}
        s_mov_b32 s{SQ + 3}, 0x20000
        s_lshl_b32 s{sT1}, s{sQ_}, 3
        s_lshr_b32 s{sT0}, 0x07050200, s{sT1}
        s_and_b32 s{sT0}, s{sT0}, 0xff
        s_lshl_b32 s{sT0}, s{sT0}, 7
        s_mul_i32 s{sT1}, s{sR}, {4 * 1152}
        s_add_u32 s{sT1}, s{sT1}, s{sT0}
        s_add_u32 s{SWO}, s{SWO}, s{sT1}
        s_addc_u32 s{SWO + 1}, s{SWO + 1}, 0
        s_sub_u32 s{SWO}, s{SWO}, 1024
        s_subb_u32 s{SWO + 1}, s{SWO + 1}, 0
        s_sub_u32 s{SWO + 2}, {576 * 1152 + 1024}, s{sT1}
        s_mov_b32 s{SWO + 3}, 0x20000
        s_mul_i32 s{sT1}, s{sJJ}, {1152 * 1152}
        s_add_u32 s{sT0}, s{sT0}, s{sT1}
        s_add_u32 s{SD}, s{SD}, s{sT0}
        s_addc_u32 s{SD + 1}, s{SD + 1}, 0
        s_sub_u32 s{SD}, s{SD}, 1024
        s_subb_u32 s{SD + 1}, s{SD + 1}, 0
        s_sub_u32 s{SD + 2}, {4608 * 1152 + 1024}, s{sT0}
        s_mov_b32 s{SD + 3}, 0x20000
        s_lshl_b32 s{sMA}, s{sWV}, 11
        v_lshrrev_b32 v{T + 9}, 3, v{vLANE}
        s_lshl_b32 s{sT0}, s{sWV}, 3
        v_add_u32 v{T + 9}, s{sT0}, v{T + 9}
        v_mul_u32_u24 v{T + 9}, 9216, v{T + 9}
        v_lshl_add_u32 v{vA0}, v{vA0}, 4, v{T + 9}
        v_add_u32 v{vA1}, {32 * 9216}, v{vA0}
        v_lshrrev_b32 v{T + 8}, 2, v{vLANE}
        v_lshrrev_b32 v{T + 9}, 5, v{vLANE}
        v_lshlrev_b32 v{T + 9}, 11, v{T + 9}
        v_and_b32 v{T + 7}, 7, v{T + 8}
        v_lshl_add_u32 v{T + 9}, v{T + 7}, 7, v{T + 9}
        v_bfe_u32 v{T + 7}, v{vLANE}, 3, 2
        s_lshl_b32 s{sT0}, s{sC}, 1
        v_xor_b32 v{T + 7}, s{sT0}, v{T + 7}
        v_lshl_add_u32 v{T + 9}, v{T + 7}, 5, v{T + 9}
        v_and_b32 v{T + 7}, 3, v{vLANE}
        v_lshl_add_u32 v{vLA0}, v{T + 7}, 3, v{T + 9}
        v_xor_b32 v{vLA1}, 32, v{vLA0}
        s_sub_u32 s{sMASKC}, 0, s{sC}
        s_mov_b32 s{sMASKC + 1}, s{sMASKC}
        s_lshl_b32 s{sT0}, s{sC}, 1
        s_lshr_b32 s{sMASKONE}, 0x44444444, s{sT0}
        s_mov_b32 s{sMASKONE + 1}, s{sMASKONE}
        s_lshl_b32 s{sT0}, s{sI}, 2
        s_add_u32 s{sT0}, s{sT0}, s{sJJ}
        s_mul_i32 s{sHB}, s{sT0}, {18 * 16384}
        s_add_u32 s{sHB}, s{sHB}, {H_BASE}
        s_lshl_b32 s{sT0}, s{sCNT}, 14
        s_add_u32 s{sT0}, s{sT0}, s{sHB}
        s_lshl_b32 s{sT1}, s{sC}, 11
        s_add_u32 s{sT0}, s{sT0}, s{sT1}
        s_lshl_b32 s{sT1}, s{sWV}, 12
        s_add_u32 s{sH0}, s{sT0}, s{sT1}
        s_xor_b32 s{sT1}, s{sT1}, 4096
        s_add_u32 s{sH1}, s{sT0}, s{sT1}''')
        qd, qr = self.pat_qkv()
        L(qd)
        L(qr)
        if not self.o.get('defer', 1):
            self.ln_consts(S)
            nearly = len(S.ops)
        for o in S.ops[:nearly]:
            self.lin.op(o)
        rest = S.ops[nearly:]
        if st:
            self.lin.text('s_waitcnt lgkmcnt(0)')
            for k, nm in enumerate(('entry', 'karg0', 'karg1', 'xa')):
                self.stamp_names.append(nm)
                self.lin.text(f'v_mov_b32 v{T + 26}, s{sST + 2 * k}\nv_mov_b32 v{T + 27}, 0\ns_lshl_b32 s{sT2}, s2, 10\ns_add_u32 s{sT2}, s{sT2}, {DUMP_BASE + 8 * k}\nbuffer_store_dwordx2 v[{T + 26}:{T + 27}], v{vFST}, {sr(SW)}, s{sT2} offen')
            self.nstamp = 4
        self.stamp(None, 'setup')
        k = 3 * (9 - nf)
        per = -(-len(rest) // (9 - nf))
        for g in range(9 - nf):
            ops = pend[3 * g:3 * g + 2] + rest[per * g:per * g + per // 2] + [pend[3 * g + 2]] + rest[per * g + per // 2:per * (g + 1)]
            for o in ops:
                self.lin.op(o)
        self.x_pend = pend[k:]
        self.base = {vLA0: 0, vLA1: 0}
        self.base.update({r: 0 for r in VQ})

    def raw(self, rho, t):
        if rho == 0 and self.o['late0']:
            return ACC0 + 4 * t if t < 10 else XNV + 4 * (t - 10)
        if rho == 0:
            return ACC0 + 4 * t if t < 16 else ACC1 + 56 + 4 * (t - 16)
        return RING + 4 * t if t < 4 else ACC1 + 4 * (t - 4)

    def flag_addr(self, f, own, dst, sT1=sT1, own_ok=False):
        t = dst
        if f == '1':
            blk, grp, line, mem = (sJ if own else sJQ), None, 21, sI
        elif f == '2o':
            blk, grp, line, mem = sI, None, 20, sJ
        elif f == '3':
            blk, grp, line, mem = sI, sQ_, 16, sJJ
        else:
            blk, grp, line, mem = sI, sJJ, 4 * 'abcd'.index(f[1]), sQ_
        s = f's_lshl_b32 s{t}, s{blk}, 5\n'
        if grp is not None:
            s += f's_add_u32 s{t}, s{t}, s{grp}\n'
        if line:
            s += f's_add_u32 s{t}, s{t}, {line}\n'
        if own:
            s += f's_lshl_b32 s{t}, s{t}, 5\ns_add_u32 s{t}, s{t}, s{mem}\ns_lshl_b32 s{t}, s{t}, 2\n'
        else:
            s += f's_lshl_b32 s{t}, s{t}, 7\n'
        return s

    def pat_b(self, a, b):
        s = f'''v_lshrrev_b32 v{a}, 3, v{vLANE}
        s_lshl_b32 s{sK5}, s{sWV}, 3
        v_add_u32 v{a}, s{sK5}, v{a}
        v_mul_u32_u24 v{a}, 1152, v{a}
        v_bfe_u32 v{b}, v{vLANE}, 4, 2
        v_lshlrev_b32 v{b}, 1, v{b}
        v_and_b32 v{V288}, 7, v{vLANE}
        v_xor_b32 v{b}, v{b}, v{V288}
        v_lshl_add_u32 v{a}, v{b}, 4, v{a}
        v_add_u32 v{V288}, 1024, v{a}
        v_add_u32 v{V288 + 1}, 128, v{a}
        v_add_u32 v{V288 + 2}, {1024 + 32 * 1152}, v{a}
        v_add_u32 v{V288 + 3}, {128 + 32 * 1152}, v{a}
        '''
        if self.nt > 8:
            s += f'''v_lshrrev_b32 v{a}, 2, v{vLANE}
            s_lshl_b32 s{sK5}, s{sWV}, 4
            v_add_u32 v{a}, s{sK5}, v{a}
            v_mul_u32_u24 v{a}, 1152, v{a}
            v_bfe_u32 v{b}, v{vLANE}, 4, 1
            v_lshlrev_b32 v{b}, 1, v{b}
            v_and_b32 v{V288 + 4}, 3, v{vLANE}
            v_xor_b32 v{b}, v{b}, v{V288 + 4}
            v_lshl_add_u32 v{a}, v{b}, 4, v{a}
            s_mul_i32 s{sK5}, s{sQ_}, -320
            s_add_u32 s{sK5}, s{sK5}, {1024 + 576}
            v_add_u32 v{V288 + 4}, s{sK5}, v{a}
            '''
        return s

    def pat_c(self):
        s = f'v_add_u32 v{V288 + 2}, {4 * 1152}, v{V288 + 2}\nv_add_u32 v{V288 + 3}, {4 * 1152}, v{V288 + 3}\n'
        if self.nt > 8:
            s += f's_mul_i32 s{sK5}, s{sC}, {4 * 1152}\nv_add_u32 v{V288 + 4}, s{sK5}, v{V288 + 4}\n'
        return s

    def pat_cl(self, a=T + 20):
        s = f'v_lshrrev_b32 v{a}, 5, v{vLANE}\nv_mul_u32_u24 v{a}, {68 * 1152}, v{a}\n'
        for k in range(4):
            s += f'v_add_u32 v{PQ + k}, v{a}, v{V288 + k}\n'
            if k >= 2:
                s += f'v_add_u32 v{PQ + k}, {256 * 1152}, v{PQ + k}\n'
        s += f'''s_mul_i32 s{KQ + 8}, s{sC}, 136
        s_lshl_b32 s{sK5}, s{sR}, 4
        s_add_u32 s{KQ + 8}, s{KQ + 8}, s{sK5}
        s_add_u32 s{KQ + 8}, s{KQ + 8}, 16
        s_mul_i32 s{KQ + 8}, s{KQ + 8}, 1152
        '''
        if self.nt > 8:
            s += f'''v_lshrrev_b32 v{a}, 4, v{vLANE}
            v_mul_u32_u24 v{a}, {68 * 1152}, v{a}
            v_add_u32 v{PQ + 4}, v{a}, v{V288 + 4}
            s_mul_i32 s{sCL2}, s{sR}, 252
            s_mul_i32 s{sK5}, s{sC}, 20
            s_add_u32 s{sCL2}, s{sCL2}, s{sK5}
            s_add_u32 s{sCL2}, s{sCL2}, 16
            s_mul_i32 s{sCL2}, s{sCL2}, 1152
            '''
        return s

    def pat_qkv(self, a=T + 20, b=T + 21, c=T + 22, d=T + 23, e=T + 24):
        s = f'''s_mul_i32 s{sK3}, s{sJQ}, 72
        s_and_b32 s{sK3}, s{sK3}, -16
        v_mov_b32 v{e}, s{sK3}
        s_mul_i32 s{sK3}, s{sJ}, 72
        s_and_b32 s{sK3}, s{sK3}, -16
        '''
        for n in range(4):
            s += f'''v_lshrrev_b32 v{a}, 4, v{vLANE}
            v_add_u32 v{a}, {4 * n}, v{a}
            v_and_b32 v{b}, 7, v{a}
            v_lshlrev_b32 v{b}, 1, v{b}
            v_and_b32 v{c}, 15, v{vLANE}
            v_xor_b32 v{b}, v{b}, v{c}
            v_mul_u32_u24 v{c}, 52, v{b}
            v_lshrrev_b32 v{c}, 8, v{c}
            v_mul_u32_u24 v{d}, 5, v{c}
            v_sub_u32 v{b}, v{b}, v{d}
            v_lshlrev_b32 v{b}, 4, v{b}
            v_add_u32 v{d}, 1, v{c}
            v_mul_u32_u24 v{d}, 1152, v{d}
            v_add_u32 v{d}, s{sK3}, v{d}
            v_cmp_eq_u32 vcc, 2, v{c}
            v_cndmask_b32 v{d}, v{d}, v{e}, vcc
            v_add_u32 v{b}, v{b}, v{d}
            v_add_u32 v{c}, 1, v{c}
            v_lshrrev_b32 v{c}, 2, v{c}
            v_lshl_or_b32 v{b}, v{c}, 31, v{b}
            s_lshl_b32 s{sK5}, s{sWV}, 4
            v_add_u32 v{a}, s{sK5}, v{a}
            v_mul_u32_u24 v{a}, 3456, v{a}
            v_add_u32 v{V288 + n}, v{a}, v{b}
            '''
            if n:
                s += f'v_subrev_u32 v{V288 + n}, {1024 * n}, v{V288 + n}\n'
        r = f'''s_and_b32 s{sK3}, s{sJ}, 1
        s_lshl_b32 s{sK3}, s{sK3}, 3
        s_mul_i32 s{sK4}, s{sC}, 40
        s_and_b32 s{sK5}, s{sJQ}, 1
        s_lshl_b32 s{sK5}, s{sK5}, 3
        s_add_u32 s{sK5}, s{sK5}, s{sK4}
        s_add_u32 s{sK4}, s{sK4}, s{sK3}
        s_add_u32 s{sK3}, s{sK3}, 32
        '''
        for f in range(4):
            r += f'v_and_b32 v{a}, 3, v{vLANE}\n'
            if f < 3:
                r += f'v_lshl_add_u32 v{a}, v{a}, 3, s{sK5 if f == 2 else sK4}\nv_add_u32 v{a}, {80 * f}, v{a}\n'
            else:
                r += f'v_min_u32 v{a}, 2, v{a}\nv_lshrrev_b32 v{c}, 1, v{a}\nv_mul_u32_u24 v{a}, 80, v{a}\nv_add_u32 v{a}, s{sK3}, v{a}\nv_lshlrev_b32 v{c}, 3, v{c}\nv_and_b32 v{c}, {8 * self.o.get("qswap", 1)}, v{c}\nv_xor_b32 v{a}, v{a}, v{c}\n'
            r += f'''v_bfe_u32 v{b}, v{vLANE}, 2, 3
            v_lshlrev_b32 v{b}, 5, v{b}
            v_xor_b32 v{a}, v{a}, v{b}
            v_lshrrev_b32 v{b}, 2, v{vLANE}
            v_lshl_add_u32 v{VQ[f]}, v{b}, 8, v{a}
            '''
        return s, r

    def build_stream(self):
        st = []
        for name in self.order:
            st += [(name, u) for u in range(9)]
        st += [('B', u) for u in range(18)]
        st += [('O', 0), ('O', 1)]
        st += [('C', u) for u in range(9)]
        self.stream = st
        self.dmas = {}
        nC = len(st) - 9
        nO = nC - 2
        npin, tpin = self.o.get('npin', 0), self.o.get('tpin', 40)
        order = [n for n in range(len(st)) if not nC <= n < nC + npin]
        order[tpin:tpin] = list(range(nC, nC + npin))
        self.slot, self.next_user = {}, {}
        first = [0] + list(range(5, self.NCH)) + [1, 2, 3, 4] if self.o.get('npre', 9) > 1 else list(range(self.NCH))
        self.npre = min(self.o.get('npre', 9), self.NCH - 4)
        for k in range(self.NCH):
            self.slot[order[k]] = first[k]
        release = [n for n in range(len(st)) if n not in (nO, nO + 1)]
        for m, k in zip(order[self.NCH:], release):
            self.slot[m] = self.slot[k]
            self.next_user[k] = m
        self.prev_user = {m: k for k, m in self.next_user.items()}

    def dma_ops(self, n):
        name, u = self.stream[n]
        cb = self.slot[n] * self.CH
        ops = []
        if name[0] == 'A':
            if u == 0 and name != 'A0' and self.jump[int(name[1]) - 1]:
                ops.append(Op(f's_mul_i32 s{sK3}, s{sIH}, {128 * self.jump[int(name[1]) - 1]}\ns_add_u32 s{sK3}, s{sK3}, 128\ns_ashr_i32 s{sK4}, s{sK3}, 31'))
                for s_ in (SG, SU):
                    ops.append(Op(f's_add_u32 s{s_}, s{s_}, s{sK3}\ns_addc_u32 s{s_ + 1}, s{s_ + 1}, s{sK4}\ns_sub_u32 s{s_ + 2}, s{s_ + 2}, s{sK3}'))
            elif u == 0 and name != 'A0':
                for s_ in (SG, SU):
                    ops.append(Op(f's_add_u32 s{s_}, s{s_}, 128\ns_addc_u32 s{s_ + 1}, s{s_ + 1}, 0\ns_sub_u32 s{s_ + 2}, s{s_ + 2}, 128'))
            for hh in range(2):
                va = vA1 if hh else vA0
                ops.append(Op(f's_add_u32 m0, s{sMA}, {cb + 8192 * hh}'))
                ops.append(Op(f'buffer_load_dwordx4 v{va}, {sr(SG)}, s{KA + u} offen lds', pipe=P_A))
                ops.append(Op(f'buffer_load_dwordx4 v{va}, {sr(SU)}, s{KA + u} offen offset:1024 lds', pipe=P_A))
        elif name == 'O':
            pass
        elif name == 'Q':
            ops.append(Op(f's_lshl_b32 s{sK5}, s{sMA}, 1'))
            ops.append(Op(f's_add_u32 m0, s{sK5}, {cb}'))
            for k in range(4):
                ops.append(Op(f'buffer_load_dwordx4 v{V288 + k}, {sr(SQ)}, s{KQ + u} offen offset:{1024 * k} lds', pipe=(P_Q if (self.ns - 4) ^ self.o.get('qflip', 1) else 140) * self.o.get('pq', 100) // 100))
        else:
            if name == 'B':
                ops.append(Op(f's_mul_i32 s{sK3}, s{TB + u}, 9'))
                ops.append(Op(f's_lshr_b32 s{sK3}, s{sK3}, 1'))
                so, srd, vb = f's{sK3}', SD, V288
            else:
                so, srd, vb = f's{KQ + u}', SWO, (V288 if u < 8 else PQ)
                if u == 0:
                    ops += [Op(l) for l in self.pat_c().split('\n') if l]
            for hh in range(2):
                ops.append(Op(f's_add_u32 m0, s{sMA}, {cb + 8192 * hh}'))
                for ln in range(2):
                    ops.append(Op(f'buffer_load_dwordx4 v{vb + 2 * hh + ln}, {sr(srd)}, {so} offen offset:{1024 * ln} lds', pipe=P_A))
            if self.nt > 8:
                ops.append(Op(f's_lshr_b32 s{sK4}, s{sMA}, 1'))
                ops.append(Op(f's_add_u32 m0, s{sK4}, {cb + 16384}'))
                ops.append(Op(f'buffer_load_dwordx4 v{vb + 4}, {sr(srd)}, {f"s{sCL2}" if (name, u) == ("C", 8) else so} offen lds', pipe=P_AH))
        self.dmas[n] = [o for o in ops if 'dma' in o.kinds()]
        for o in self.dmas[n]:
            o.tag = f'{name}{u}'
        k_ = self.o.get('pcu', 0)
        if self.dmas[n] and n > 0 and (u == k_ or (name == 'B' and u in (8 + k_, 12 + k_, 16 + k_))):
            self.dmas[n][-1].pipe += self.o.get('pcold', 0)
        return ops

    def b_tables(self, R):
        R.op(f's_lshl_b32 s{sK3}, s{sQ_}, 1\ns_add_u32 s{sK3}, s{sK3}, s{sIL}')
        R.op(f's_mul_i32 s{sK4}, s{sIH}, {hex(0x100b0703 - 0x0e0a0601)}\ns_add_u32 s{sK4}, s{sK4}, 0x0e0a0601')
        for p in range(8):
            d = TB + p
            R.op(f'''s_add_u32 s{d}, s{sK3}, {p}
            s_bitcmp1_b32 s{d}, 0
            s_cselect_b32 s{sK5}, s{sK4}, 0x0d090500
            s_and_b32 s{d}, s{d}, 6
            s_lshl_b32 s{d}, s{d}, 2
            s_lshr_b32 s{d}, s{sK5}, s{d}
            s_and_b32 s{d}, s{d}, 0xff
            s_lshl_b32 s{d}, s{d}, 14''')
        R.op(f's_add_u32 s{sK3}, s{sIL}, s{sQ_}')
        for base, n, t0, t1 in ((8, 4, 0x0f0b0702, 0x110c0804), (12, 4, 0x100c0803, 0x0e0a0601), (16, 2, 0x1104, 0x0f02)):
            R.op(f's_mul_i32 s{sK4}, s{sIH}, {hex((t1 - t0) & 0xffffffff)}\ns_add_u32 s{sK4}, s{sK4}, {hex(t0)}')
            for p in range(n):
                d = TB + base + p
                R.op(f'''s_add_u32 s{d}, s{sK3}, {p}
                s_and_b32 s{d}, s{d}, {n - 1}
                s_lshl_b32 s{d}, s{d}, 3
                s_lshr_b32 s{d}, s{sK4}, s{d}
                s_and_b32 s{d}, s{d}, 0xff
                s_lshl_b32 s{d}, s{d}, 14''')

    def c_tables(self, R):
        for k in range(8):
            R.op(f's_add_u32 s{KQ + k}, s{sIL}, {k}\ns_and_b32 s{KQ + k}, s{KQ + k}, 7\ns_mul_i32 s{KQ + k}, s{KQ + k}, {72 * 1152}')

    def news(self):
        pool = [sT0, sT1, sT3] + ([sEPS] if self.sq_busy else [SQ, SQ + 1, SQ + 2]) + ([] if self.in_b or self.kq_busy else [KQ + k for k in range(9)])
        self.spool += 1
        return pool[self.spool % len(pool)]

    def addr(self, R, reg, off, **kw):
        cur = self.base[reg]
        if not (0 <= off - cur and off - cur + 4096 < 65536):
            chunk = off // self.CH
            new = chunk * self.CH
            d = new - cur
            R.op(f'v_add_u32 v{reg}, {d}, v{reg}' if d > 0 else f'v_subrev_u32 v{reg}, {-d}, v{reg}', prio=50, **kw)
            self.base[reg] = cur = new
        return off - cur

    LN_ONES, LN_SEL0, LN_SEL1, LN_VAR = PQ, PQ + 4, PQ + 8, T + 10
    LN_XO, LN_XP, LN_R0, LN_R1 = T + 14, T + 15, T + 16, T + 17

    def ln_consts(self, R):
        ONES, SEL0, SEL1, VAR = self.LN_ONES, self.LN_SEL0, self.LN_SEL1, self.LN_VAR
        vXO, vXP, vR0, vR1 = self.LN_XO, self.LN_XP, self.LN_R0, self.LN_R1
        R.op(f'''v_mov_b32 v{ONES}, 0x3f803f80
        v_mov_b32 v{ONES + 1}, 0x3f803f80
        v_mov_b32 v{ONES + 2}, 0x3f803f80
        v_mov_b32 v{ONES + 3}, 0x3f803f80
        v_and_b32 v{VAR}, 15, v{vLANE}
        v_lshrrev_b32 v{VAR + 1}, 4, v{vLANE}
        v_bfe_u32 v{vR0}, v{vLANE}, 1, 2
        v_lshlrev_b32 v{vR0}, 1, v{vR0}
        v_xor_b32 v{vR0}, v{vR0}, v{VAR + 1}
        v_lshlrev_b32 v{vR0}, 4, v{vR0}
        v_lshl_add_u32 v{vR0}, v{VAR}, 7, v{vR0}
        s_mov_b32 s{sT0}, s{sM2}
        v_add_u32 v{vR0}, s{sT0}, v{vR0}
        v_xor_b32 v{vR1}, 64, v{vR0}
        v_lshlrev_b32 v{VAR + 1}, 3, v{VAR + 1}
        v_sub_u32 v{VAR}, v{VAR}, v{VAR + 1}
        v_mov_b32 v{VAR + 1}, 0x3f80
        v_mov_b32 v{vXO}, 0x3f800000''')
        for sel, add in ((SEL0, 0), (SEL1, 16)):
            for k in range(4):
                R.op(f'''v_cmp_eq_u32 vcc, {2 * k - add}, v{VAR}
                v_cmp_eq_u32 s[{sK3}:{sK4}], {2 * k + 1 - add}, v{VAR}
                v_mov_b32 v{VAR + 2}, 0
                v_cndmask_b32 v{sel + k}, 0, v{VAR + 1}, vcc
                v_cndmask_b32 v{sel + k}, v{sel + k}, v{vXO}, s[{sK3}:{sK4}]''')
        R.op(f'''v_add_u32 v{vXO}, s{sT0}, v{vL16}
        s_xor_b32 s{sT1}, s{sWV}, 1
        s_mul_i32 s{sT1}, s{sT1}, {XR_}
        s_add_u32 s{sT1}, s{sT1}, 16384
        v_add_u32 v{vXP}, s{sT1}, v{vL16}
        v_mov_b32 v{VAR}, 0
        v_mov_b32 v{VAR + 1}, 0
        v_mov_b32 v{VAR + 3}, 0''')

    def ln_center(self, R, rho, t, d0, pk, addr, off, after=(), cap=None, prio=5):
        SEL0, SEL1, VAR = self.LN_SEL0, self.LN_SEL1, self.LN_VAR
        nm = self.LN_NM[rho]
        R.mfma(f'{MF} {vr(d0)}, {vr(SEL0)}, {vr(self.raw(rho, t))}, {vr(nm)}', cap=cap)
        R.mfma(f'{MF} {vr(d0 + 4)}, {vr(SEL1)}, {vr(self.raw(rho, t))}, {vr(nm)}', cap=cap)
        for k in range(4):
            R.op(f'v_cvt_pk_bf16_f32 v{pk + k}, v{d0 + 2 * k}, v{d0 + 2 * k + 1}', prio=prio)
        if self.o.get('ownw', 3) >> rho & 1:
            n = 4 * t + rho
            for k in range(4):
                R.op(f'v_accvgpr_write_b32 a{4 * n + k}, v{pk + k}' if n < 64 else f'v_mov_b32 v{XNV + 4 * (n - 64) + k}, v{pk + k}')
        w = lambda aft: R.op(f'ds_write_b128 v{addr}, {vr(pk)} offset:{off}', after=aft, prio=prio)
        if after is not None:
            w = w(after)
        if self.o.get('vfma', 0) >> rho & 1:
            g = self.LN_G[rho]
            for k in range(8):
                x = d0 + k
                R.op(f'v_fmac_f32 v{g + (k & 3)}, v{x}, v{x}' if t or k >= 4 else f'v_mul_f32 v{g + k}, v{x}, v{x}', prio=prio - 1)
            self.ln_gram(R)
            return w
        self.ln_gram(R)
        self.gram_pend = (rho, t, pk)
        return w

    gram_pend = None
    LN_G = [V_G0, V_G1]

    def ln_gram(self, R):
        if self.gram_pend:
            rho, t, pk = self.gram_pend
            g = vr(self.LN_G[rho])
            R.mfma(f'{MF} {g}, {vr(pk)}, {vr(pk)}, {g if t else 0}')
            self.gram_pend = None

    LN_NM = [PQ + 12, T + 2]

    def layernorm(self):
        R = Region(cap=5, backlog=self.o['backlog'], pipe0=-100000)
        ONES, VAR = self.LN_ONES, self.LN_VAR
        vXO, vXP, vR0, vR1 = self.LN_XO, self.LN_XP, self.LN_R0, self.LN_R1
        NM = self.LN_NM
        D = RING + 16
        PK = [T + 18, SC] if self.o.get('probe') else [T + 18, T + 22, SC]
        rawrd = {}

        def raw_reads(rho, lo):
            for u in range(9):
                if u % 3 == 0 or u < 3:
                    w = R.wait([self.xl[rho, uu, hf] for uu in range(u, (u + 1 if u < 2 else u // 3 * 3 + 3)) for hf in range(2)],
                               late=False, wr=['xw'], lo=None if lo is None else lo + u * self.o.get('r1st', 1))
                for s1 in range(2):
                    rawrd[rho, 2 * u + s1] = R.op(f'ds_read_b128 {vr(self.raw(rho, 2 * u + s1))}, v{vR1 if s1 else vR0} offset:{2048 * u}', after=[w], prio=20)

        def mean(rho, t):
            w = R.wait([rawrd[rho, k] for k in range(t, t + 3)], dist=1) if t % 3 == 0 else None
            R.mfma(f'{MF} {vr(NM[rho])}, {vr(ONES)}, {vr(self.raw(rho, t))}, {vr(NM[rho]) if t else 0}', after=[w] if w else [])
            return w

        for o in self.x_pend:
            o.prio = 10
            o.hi = 17
            R.add(o)
        for o in self.dma_ops(0):
            o.prio = 10
            o.hi = self.o.get('w0hi', 26)
            o.lo = self.o.get('w0lo', 24)
            R.add(o)
        raw_reads(0, None)
        for t in range(18):
            mean(0, t)
        R.op(f's_sub_u32 s{sT0}, s{sCNT2}, s{sM2}\nv_add_u32 v{vR0}, s{sT0}, v{vR0}\nv_add_u32 v{vR1}, s{sT0}, v{vR1}')
        raw_reads(1, self.o.get('r1lo', 26 if self.o['late0'] else 44))
        self.stamp(R, 'ctr0')
        for k in range(4):
            R.op(f'v_mul_f32 v{NM[0] + k}, {hex(0xbae38e39)}, v{NM[0] + k}')
        reads = []
        cnt = 0
        groups = [range(0, 5), range(5, 10)] if self.o['late0'] else [range(0, 6), range(6, 12), range(12, 18)]
        for kg, grp in enumerate(groups):
            writes = []
            for t in grp:
                writes.append(self.ln_center(R, 0, t, D + 8 * (cnt & 1), PK[cnt % len(PK)], vXO, 1024 * t))
                cnt += 1
                if self.o['late0']:
                    m0_ = self.o.get('m1t', 5)
                    if t >= m0_:
                        for tt in range(18 * (t - m0_) // (10 - m0_), 18 * (t - m0_ + 1) // (10 - m0_)):
                            mean(1, tt)
                elif self.o.get('m1late', 1):
                    if kg == 2:
                        for tt in range(3 * (t % 6), 3 * (t % 6) + 3):
                            mean(1, tt)
                elif kg > 0:
                    tm = 6 * (kg - 1) + t % 6
                    for tt in ((3 * tm) // 2, (3 * tm) // 2 + 1)[:1 + (tm & 1)]:
                        mean(1, tt)
            extra = [rawrd[1, k] for k in range(18)] if kg == self.o.get('wkg', 1) else []
            w = R.wait(writes + extra, late=False, prio=30, dist=self.o.get('dlw', 5))
            bar = R.op('s_barrier', after=[w], wr=['bar'], prio=30)
            if extra:
                raw1_bar = bar
                for n in range(1, self.npre):
                    for o in self.dma_ops(n):
                        o.after.append((bar, 0))
                        o.prio = 30
                        R.add(o)
            for t in grp:
                if not self.o.get('ownw', 3) & 1:
                    reads.append(R.op(f'ds_read_b128 {xn(4 * t)}, v{vXO} offset:{t * 1024}', after=[bar], prio=8))
                reads.append(R.op(f'ds_read_b128 {xn(4 * t + 2)}, v{vXP} offset:{t * 1024}', after=[bar], prio=8))
        self.stamp(R, 'ctr1')
        for k in range(4):
            R.op(f'v_mul_f32 v{NM[1] + k}, {hex(0xbae38e39)}, v{NM[1] + k}')
        R.op(f'''s_lshl_b32 s{sT0}, s{sWV}, 10
        s_add_u32 s{sT0}, s{sT0}, {self.KVX}
        v_add_u32 v{vR0}, s{sT0}, v{vL16}
        v_xor_b32 v{vR1}, 1024, v{vR0}''')
        writes = []
        for t in range(4):
            writes.append(self.ln_center(R, 1, t, D + 8 * (cnt & 1), PK[cnt % len(PK)], vR0, 4096 * t, after=[raw1_bar]))
            cnt += 1
        self.ln_gram(R)
        self.ln_last = reads + writes
        x = self.o.get('lnx', 0)
        drop = set()
        for o in R.ops:
            t = o.ins[0].text if o.ins else ''
            if (x & 1 and t.startswith('ds_write')) or (x & 2 and t.startswith('ds_read_b128 a')) or (x & 8 and t.startswith('v_accvgpr')) \
                    or (x & 16 and t.startswith('v_cvt')) or (x & 32 and t.startswith('s_barrier')):
                o.ins = [Ins('s_nop 0')]
        return R

    def ln_reads1(self, R, n, bar):
        out = []
        for t in (2 * n, 2 * n + 1):
            if not self.o.get('ownw', 3) & 2:
                out.append(R.op(f'ds_read_b128 {xn(4 * t + 1)}, v{self.LN_R0} offset:{4096 * (t & 3)}', after=[bar], prio=12))
            out.append(R.op(f'ds_read_b128 {xn(4 * t + 3)}, v{self.LN_R1} offset:{4096 * (t & 3)}', after=[bar], prio=12))
        return out

    def ln_finish(self, R, bar):
        VAR = self.LN_VAR
        a, ad, ep = T + 18, T + 19, T + 20
        R.op(f'v_and_b32 v{ad}, 15, v{vLANE}')
        R.op(f's_lshl_b32 s{sT0}, s{sWV}, 7\ns_add_u32 s{sT0}, s{sT0}, {RS}')
        R.op(f'v_lshl_add_u32 v{ad}, v{ad}, 2, s{sT0}')
        R.op(f's_mov_b32 s{sT1}, {hex(0x3ae38e39)}')
        R.op(f'v_mov_b32 v{ep}, {hex(0x3727c5ac)}')
        self.ln_gram(R)
        for rho in range(2):
            v = self.LN_G[rho]
            if self.o.get('vfma', 0) >> rho & 1:
                R.op(f'v_add_f32 v{v}, v{v}, v{v + 1}\nv_add_f32 v{v + 2}, v{v + 2}, v{v + 3}\nv_add_f32 v{v}, v{v}, v{v + 2}')
            for k in range(1, 1 if self.o.get('vfma', 0) >> rho & 1 else 4):
                R.op(f's_mov_b32 vcc_lo, {hex(0x11111111 << k)}\ns_mov_b32 vcc_hi, {hex(0x11111111 << k)}\nv_cndmask_b32 v{v}, v{v}, v{v + k}, vcc')
            if not self.o.get('vfma', 0) >> rho & 1:
                R.op(f's_mov_b32 vcc_lo, 0x00f0000f\ns_mov_b32 vcc_hi, 0xf0000f00\nv_cndmask_b32 v{v}, 0, v{v}, vcc')
            R.op(f'v_mov_b32 v{a}, v{v}')
            R.op(f'v_permlane32_swap_b32 v{a}, v{v}')
            R.op(f'v_add_f32 v{v}, v{a}, v{v}')
            R.op(f'v_mov_b32 v{a}, v{v}')
            R.op(f'v_permlane16_swap_b32 v{a}, v{v}')
            R.op(f'v_add_f32 v{v}, v{a}, v{v}')
            R.op(f'v_fma_f32 v{v}, v{v}, s{sT1}, v{ep}')
            R.op(f'v_rsq_f32 v{v}, v{v}')
            self.pre_bar.append((R.op(f'ds_write_b32 v{ad}, v{v} offset:{64 * rho}', after=[bar]), 3))
        self.post_bar.append(lambda b_: self.load_scales(R, [b_]))

    def stamp(self, R, name=''):
        if R:
            self.marks.append((R, R.here, name))
        if not self.stamps or (self.o.get('lite') and name != 'end'):
            return
        k = self.nstamp
        self.nstamp += 1
        t = Op(f's_memrealtime vcc\ns_memtime s[0:1]\ns_waitcnt lgkmcnt(0)\nv_mov_b32 v{T + 26}, vcc_lo\nv_mov_b32 v{T + 27}, s0\ns_lshl_b32 s0, s2, 10\ns_add_u32 s0, s0, {DUMP_BASE + 8 * k}\nbuffer_store_dwordx2 v[{T + 26}:{T + 27}], v{vFST}, {sr(SW)}, s0 offen',
               lo=R.here if R else None, hi=R.here if R else None)
        self.stamp_names.append(name)
        if R:
            R.add(t)
        else:
            self.lin.op(t)

    def poll(self, R, name, srd, addr_text, mask, val, lo, check_lo, after=(), mul=4, defer=False):
        vp = T + 19
        if name != 'p':
            check_lo = lo + self.o.get(f'pd_{name}{self.ns}', self.o.get('pd', check_lo - lo))
        cmp = 'v_cmp_ne_u32' if val == 1 else 'v_cmp_gt_u32'
        if addr_text:
            R.op(addr_text, lo=lo - 30)
        so = f's{sT2}' if addr_text else '0'
        R.op(f'v_and_b32 v{vPOLL}, {mask}, v{vLANE}', lo=lo - 30)
        if defer:
            R.op(f'v_max_u32 v{vPOLL}, 1, v{vPOLL}\nv_add_u32 v{vPOLL}, s{sJJ}, v{vPOLL}\nv_and_b32 v{vPOLL}, 3, v{vPOLL}', lo=lo - 30)
        R.op(f'v_mul_u32_u24 v{vPOLL}, {mul}, v{vPOLL}', lo=lo - 30)
        ld = R.op(f'buffer_load_dword v{vp}, v{vPOLL}, {sr(srd)}, {so} offen sc1', lo=lo, hi=lo + 6, after=after)
        if defer:
            return lambda lo2, aft: self.poll_check(R, name, srd, so, cmp, val, ld, lo2, aft)
        return self.poll_check(R, name, srd, so, cmp, val, ld, check_lo, [])

    def poll_check(self, R, name, srd, so, cmp, val, ld, check_lo, aft):
        vp = T + 19
        w = R.wait([ld], late=False, lo=check_lo, hi=check_lo + 4, tag='poll_' + name, after=aft)
        br = 's_nop 0' if self.o.get('nopoll') else f's_cbranch_vccnz L_slow_{name}{self.sfx}'
        chk = R.op(f'{cmp} vcc, {val}, v{vp}\n{br}\nL_back_{name}{self.sfx}:', after=[w],
                   rd=[f'v{vPOLL}', f's{sT2}'], wr=[f'v{vp}'], hi=check_lo + 4, atomic=True)
        rec = ''
        if self.stamps:
            rec = f'v_mov_b32 v{T + 26}, s{sCNT}\ns_lshl_b32 s{sCNT}, s2, 10\ns_add_u32 s{sCNT}, s{sCNT}, {DUMP_BASE + 768 + 4 * len(self.slow)}\nbuffer_store_dword v{T + 26}, v{vFST}, {sr(SW)}, s{sCNT} offen\ns_waitcnt vmcnt(0)'
        self.slow.append(f'''L_slow_{name}{self.sfx}:
        s_mov_b32 s{sCNT}, 0
        L_spin_{name}{self.sfx}:
        buffer_load_dword v{vp}, v{vPOLL}, {sr(srd)}, {so} offen sc1
        s_waitcnt vmcnt(0)
        {cmp} vcc, {val}, v{vp}
        s_add_u32 s{sCNT}, s{sCNT}, 1
        s_cbranch_vccz L_exit_{name}{self.sfx}
        s_cmp_lt_u32 s{sCNT}, {self.o['spin']}
        s_cbranch_scc1 L_spin_{name}{self.sfx}
        L_exit_{name}{self.sfx}:
        {rec}
        s_branch L_back_{name}{self.sfx}''')
        return chk

    def set_flag(self, R, f, after):
        t0, t1 = self.news(), self.news()
        R.op(self.flag_addr(f, True, t0, t1), lo=after[0].lo - 40)
        self.flags[f] = R.op(f'buffer_store_dword v{vONE}, v{vFST}, {sr(SW)}, s{t0} offen sc1', after=after + [self.chk0], hi=after[0].lo + 2)

    def chunk_enter(self, R, n, lo, pre=()):
        if n in self.paired:
            self.unfreed.append(n)
            self.bars[n] = self.bars[n - 1]
            return self.bars[n]
        name = self.stream[n][0]
        if n + 1 in self.dmas and ((name == 'C' and self.o.get('barc', 1)) or (self.o['bar2'] >> ('Q', 'A1', 'A2', 'A3', 'A4', 'B', 'A0', 'C').index(name) & 1 and self.stream[n + 1][0] not in ('O', 'C'))):
            self.paired.add(n + 1)
            self.dmas[n] = self.dmas[n] + self.dmas[n + 1]
            if self.o.get('bar3', 0) >> ('Q', 'A1', 'A2', 'A3', 'A4', 'B', 'A0', 'C').index(name) & 1 and n + 2 in self.dmas and self.stream[n + 2][0] not in ('O', 'C'):
                self.paired.add(n + 2)
                self.dmas[n] = self.dmas[n] + self.dmas[n + 2]
        nd = len(self.dmas[n])
        dd, sg = (self.o.get('ddc', 24), 1) if self.stream[n][0] == 'C' else (self.o['ddma'], self.o.get('stag', 6))
        waits = [(o, dd + sg * (nd - 1 - k)) for k, o in enumerate(self.dmas[n])] + self.pre_bar
        self.pre_bar = []
        nm = '%s%d' % self.stream[n] + ('+' if len(waits) > nd else '')
        w = R.wait(waits, late=False, lo=lo, hi=lo, tag=nm) if waits else None
        dep = list(pre) + ([w] if w else [])
        freed = [k for k in self.unfreed if self.lastwait.get(k) is not None]
        dep += [self.lastwait[k] for k in freed]
        bar = R.op('s_barrier', after=dep, wr=['bar'], lo=lo, prio=100, tag=nm)
        for k in freed:
            self.unfreed.remove(k)
            self.free_bar[k] = bar
            m = self.next_user.get(k)
            if m is not None:
                for o in self.dma_ops(m):
                    if 'dma' in o.kinds():
                        o.after.append((bar, 0))
                    o.lo = lo - 8
                    R.add(o)
                pf = {self.PF[k]: v for k, v in zip(hex(self.o.get('pfat', 0x1283))[2:], (('d', 0), ('o', 0), ('d', 1), ('o', 1)))}.get(self.stream[m])
                if pf:
                    self.prefetch_late(R, pf[0], pf[1], lo, self.dmas[m][-1:])
        fns, self.post_bar = self.post_bar, []
        for fn in fns:
            fn(bar)
        self.unfreed.append(n)
        self.bars[n] = bar
        return bar

    def tr_pair(self, R, dst, reg, off, step, after, prio=10, lo=None):
        o = self.addr(R, reg, off, lo=lo)
        return [R.op(f'ds_read_b64_tr_b16 {vr(dst, 2)}, v{reg} offset:{o}', after=after, prio=prio, lo=lo),
                R.op(f'ds_read_b64_tr_b16 {vr(dst + 2, 2)}, v{reg} offset:{o + step}', after=after, prio=prio, lo=lo)]

    def p_reads(self, R, name, n, t, buf, after):
        cb = self.slot[n] * self.CH
        out = []
        if name == 'Q':
            base = cb + 8192 * (t & 1)
            for f in range(4):
                out += self.tr_pair(R, buf + 4 * f, VQ[f], base, 4096, after)
        else:
            base = cb + 8192 * (t & 1)
            for f in range(4):
                out += self.tr_pair(R, buf + 4 * f, vLA1 if f & 1 else vLA0, base + 1024 * (f >> 1), 4096, after)
        return out

    def epi_glu(self, R, acc, wrap=0):
        stores = []
        hs = (' sc1', '', ' nt')[self.o.get('hst', 0)]
        ps = 90 if self.o.get('hst') else P_S
        if True:
            for rs in range(4):
                G = [acc + (tt * 4 + rs) * 4 for tt in range(2)]
                U = [acc + ((2 + tt) * 4 + rs) * 4 for tt in range(2)]
                for tt in range(2):
                    self.glu4(R, G[tt], U[tt], SC + rs)
                for k in range(4):
                    g = G[k >> 1] + 2 * (k & 1)
                    R.op(f'v_cvt_pk_bf16_f32 v{U[0] + k}, v{g}, v{g + 1}')
                stores.append(R.op(f'buffer_store_dwordx4 {vr(U[0])}, v{vL16}, {sr(SW)}, s{sH0 + (rs >> 1)} offen offset:{1024 * (rs & 1)}{hs}', pipe=ps))
            inc = '16384'
            if wrap:
                t = sCNT2X
                R.op(f's_mul_i32 s{t}, s{sIH}, {16384 * wrap}\ns_add_u32 s{t}, s{t}, 16384')
                inc = f's{t}'
            R.op(f's_add_u32 s{sH0}, s{sH0}, {inc}')
            R.op(f's_add_u32 s{sH1}, s{sH1}, {inc}')
        return stores

    @staticmethod
    def glu4(R, G, U, sc):
        for e in range(4):
            g = G + e
            R.op(f'v_mul_f32 v{g}, v{sc}, v{g}')
            R.op(f'v_exp_f32 v{g}, v{g}')
            R.op(f'v_add_f32 v{g}, 1.0, v{g}')
            R.op(f'v_rcp_f32 v{g}, v{g}')
            R.op(f'v_mul_f32 v{g}, v{g}, v{U + e}')

    @staticmethod
    def phi(R, x, tmp, prio=0):
        R.op(f'v_mul_f32 v{tmp}, {hex(LOG2E)}, v{x}', prio=prio)
        R.op(f'v_exp_f32 v{tmp}, v{tmp} clamp', prio=prio)
        R.op(f'v_max_f32 v{x}, 0, v{x}', prio=prio)
        R.op(f'v_add_f32 v{x}, {hex(EPS6)}, v{x}', prio=prio)
        R.op(f'v_add_f32 v{x}, v{x}, v{tmp}', prio=prio)

    def load_scales(self, R, after):
        a0, a1 = T + 20, T + 21
        R.op(f'v_and_b32 v{a0}, 15, v{vLANE}')
        R.op(f's_lshl_b32 s{sT0}, s{sWV}, 7\ns_add_u32 s{sT0}, s{sT0}, {RS}')
        R.op(f'v_lshl_add_u32 v{a0}, v{a0}, 2, s{sT0}')
        R.op(f'v_xor_b32 v{a1}, 128, v{a0}')
        lds = [R.op(f'ds_read_b32 v{SC + rs}, v{a0 if rs < 2 else a1} offset:{64 * (rs & 1)}', after=after) for rs in range(4)]
        w = R.wait(lds, late=False, dist=6)
        for rs in range(4):
            R.op(f'v_mul_f32 v{SC + rs}, {hex(NLOG2E)}, v{SC + rs}', after=[w])

    def epi_qkv(self, R, acc):
        KM = [acc + 4 * rs for rs in range(4)]
        VM = [acc + 16 + 4 * rs for rs in range(4)]
        QM = [PQ + 4 * rs for rs in range(4)]
        LRP = [acc + 32, acc + 36]
        LL = [acc + 48 + 4 * rs for rs in range(4)]
        a0, a1, aq = T + 20, T + 21, T + 22
        R4 = [T, T + 4]
        LR = T + 8
        TM = [T + 12, T + 13, T + 14, T + 15]
        r1 = T + 16
        R.op(f's_mov_b32 s{sEPS}, {hex(EPS6)}')
        R.op(f'v_lshrrev_b32 v{a0}, 4, v{vLANE}')
        R.op(f's_lshl_b32 s{sT0}, s{sWV}, 7\ns_add_u32 s{sT0}, s{sT0}, {RS}')
        R.op(f'v_lshl_add_u32 v{a0}, v{a0}, 4, s{sT0}')
        R.op(f'v_xor_b32 v{a1}, 128, v{a0}')
        for l in f'''v_and_b32 v{aq}, 3, v{vLANE}
        v_lshlrev_b32 v{aq}, 5, v{aq}
        v_lshrrev_b32 v{r1}, 4, v{vLANE}
        v_lshl_add_u32 v{aq}, v{r1}, 3, v{aq}
        s_lshl_b32 s{sT1}, s{sWV}, 9
        s_add_u32 s{sT1}, s{sT1}, {QL}
        v_add_u32 v{aq}, s{sT1}, v{aq}
        v_lshlrev_b32 v{r1}, 3, v{vLANE}
        v_add_u32 v{r1}, {DUMMY}, v{r1}
        v_bfe_u32 v{TM[0]}, v{vLANE}, 2, 2'''.split('\n'):
            R.op(l)
        R.op(f'v_cmp_eq_u32 vcc, 2, v{TM[0]}\nv_cndmask_b32 v{aq}, v{r1}, v{aq}, vcc')
        self.ql_writes = []
        tm = 0
        one = f's[{sMASKONE}:{sMASKONE + 1}]'
        ld = [R.op(f'ds_read_b128 {vr(R4[rs])}, v{a0} offset:{64 * rs}') for rs in range(2)]
        w = R.wait(ld, late=False, dist=6)
        for rs in range(2):
            for e in range(4):
                R.op(f'v_mul_f32 v{LL[rs] + e}, v{R4[rs] + e}, v{LL[rs] + e}', after=[w], prio=60)
            for k in range(2):
                R.op(f'v_cvt_pk_bf16_f32 v{LRP[0] + 2 * rs + k}, v{LL[rs] + 2 * k}, v{LL[rs] + 2 * k + 1}', prio=60)
            for e in range(4):
                self.phi(R, LL[rs] + e, TM[tm & 3], prio=60); tm += 1
            for k in range(2):
                R.op(f'v_cvt_pk_bf16_f32 v{LL[0] + 2 * rs + k}, v{LL[rs] + 2 * k}, v{LL[rs] + 2 * k + 1}', prio=60)
            self.ql_writes.append(R.op(f'ds_write_b64 v{aq}, {vr(LL[0] + 2 * rs, 2)} offset:{128 * rs}'))
        e0, e1, c1 = LR, LR + 1, LR + 2
        R.op(f'''s_mul_i32 s{sT0}, s{sWV}, 3072
        s_add_u32 s{sT0}, s{sT0}, {self.KVX}
        v_add_u32 v{e0}, s{sT0}, v{vL16}
        s_xor_b32 s{sT1}, s{sWV}, 1
        s_mul_i32 s{sT1}, s{sT1}, 3072
        s_add_u32 s{sT1}, s{sT1}, {self.KVX}
        v_add_u32 v{e1}, s{sT1}, v{vL16}
        v_mov_b32 v{c1}, 0x3f803f80''')
        self.l_writes = [R.op(f'ds_write_b128 v{e0}, {vr(X)} offset:{1024 * k}', prio=60) for k, X in enumerate((LL[0], LRP[0]))]

        def l_read(bar):
            rd = [R.op(f'ds_read_b128 {vr(X)}, v{e1} offset:{1024 * k}', after=[bar], prio=60) for k, X in enumerate((LL[2], LRP[1]))]
            w2 = R.wait(rd, late=False, dist=6)
            self.pre_bar += [(o, 6) for o in rd]
            self.post_bar.append(lambda b_: setattr(self, 'l_free', b_))
            for k in range(8):
                R.op(f'v_cndmask_b32 v{LRP[0] + k}, v{LRP[0] + k}, v{c1}, {one}', after=[w2])
        self.l_read = l_read
        for rs in range(4):
            r4 = R4[rs & 1]
            if rs >= 2:
                w = R.wait([R.op(f'ds_read_b128 {vr(r4)}, v{a1} offset:{64 * (rs & 1)}')], late=False, dist=6)
            for e in range(4):
                R.op(f'v_fma_f32 v{KM[rs] + e}, v{r4 + e}, v{KM[rs] + e}, s{sEPS}', after=[w])
                self.phi_eps(R, KM[rs] + e, TM[tm & 3]); tm += 1
                R.op(f'v_mul_f32 v{VM[rs] + e}, v{r4 + e}, v{VM[rs] + e}', after=[w])
            P, h = rs >> 1, 2 * (rs & 1)
            for X in (KM, VM):
                R.op(f'v_cvt_pk_bf16_f32 v{X[2 * P] + h}, v{X[rs]}, v{X[rs] + 1}')
                R.op(f'v_cvt_pk_bf16_f32 v{X[2 * P] + h + 1}, v{X[rs] + 2}, v{X[rs] + 3}')
        self.kv_in = dict(km=[KM[0], KM[2]], vm=[VM[0], VM[2]], lp=[LL[0], LL[2]], lr=LRP)
        self.kv_d = dict(mm=T, ml=T + 4, lm=T + 8, ll=T + 12)

    def epi_q(self, R):
        r1, tm = T + 16, (T + 21, T + 22)
        for rs in range(4):
            R.op(f'v_mul_f32 v{r1}, {hex(0xbf317218)}, v{SC + rs}')
            for e in range(4):
                x = PQ + 4 * rs + e
                R.op(f'v_fma_f32 v{x}, v{r1}, v{x}, s{sEPS}')
                self.phi_eps(R, x, tm[e & 1])
            R.op(f'v_cvt_pk_bf16_f32 v{PQ + 4 * rs}, v{PQ + 4 * rs}, v{PQ + 4 * rs + 1}')
            R.op(f'v_cvt_pk_bf16_f32 v{PQ + 4 * rs + 1}, v{PQ + 4 * rs + 2}, v{PQ + 4 * rs + 3}')

    @staticmethod
    def phi_eps(R, x, tmp):
        R.op(f'v_mul_f32 v{tmp}, {hex(LOG2E)}, v{x}')
        R.op(f'v_exp_f32 v{tmp}, v{tmp} clamp')
        R.op(f'v_max_f32 v{x}, s{sEPS}, v{x}')
        R.op(f'v_add_f32 v{x}, v{x}, v{tmp}')

    def kv_mfmas(self, R):
        I, D = self.kv_in, self.kv_d
        for P in range(2):
            for d, a, b in (('mm', 'km', 'vm'), ('ml', 'km', 'lr'), ('lm', 'lp', 'vm'), ('ll', 'lp', 'lr')):
                R.mfma(f'{MF} {vr(D[d])}, {vr(I[a][P])}, {vr(I[b][P])}, {vr(D[d]) if P else 0}')

    def kv_exchange(self, R, X, tmp, then):
        a0, a1 = T + 17, T + 18
        t0, t1 = self.news(), self.news()
        R.op(f's_mul_i32 s{t0}, s{sWV}, 3072\ns_add_u32 s{t0}, s{t0}, {self.KVX}')
        R.op(f'v_add_u32 v{a0}, s{t0}, v{vL16}')
        R.op(f's_xor_b32 s{t1}, s{sWV}, 2\ns_mul_i32 s{t1}, s{t1}, 3072\ns_add_u32 s{t1}, s{t1}, {self.KVX}')
        R.op(f'v_add_u32 v{a1}, s{t1}, v{vL16}')
        ws = [R.op(f'ds_write_b128 v{a0}, {vr(X[k])} offset:{1024 * k}', prio=5, after=[self.l_free]) for k in range(3)]
        self.pre_bar += [(o, 4) for o in ws]

        def after_bar(bar):
            for k in range(3):
                rd = R.op(f'ds_read_b128 {vr(tmp[k])}, v{a1} offset:{1024 * k}', after=[bar], prio=5)
                w = R.wait([rd], late=False, dist=6)
                for e in range(4):
                    R.op(f'v_add_f32 v{X[k] + e}, v{X[k] + e}, v{tmp[k] + e}', after=[w], prio=5)
            then()
        self.post_bar.append(after_bar)

    def kv_publish(self, R):
        D = self.kv_d
        mc = f's[{sMASKC}:{sMASKC + 1}]'
        for k, src in enumerate((D['lm'], D['lm'] + 1, D['ll'], D['ll'] + 1)):
            R.op(f'v_cndmask_b32 v{D["lm"] + k}, v{src}, v{src + 2}, {mc}', prio=5)
        X = [D['mm'], D['ml'], D['lm']]

        def store():
            a = T + 17
            sT0, sT1 = self.news(), self.news()
            R.op(f'''s_lshl_b32 s{sT0}, s{sJ}, 1
            s_add_u32 s{sT0}, s{sT0}, s{sC}
            s_lshl_b32 s{sT0}, s{sT0}, 4
            s_add_u32 s{sT0}, s{sT0}, s{sI}
            s_lshl_b32 s{sT0}, s{sT0}, 10
            s_add_u32 s{sT0}, s{sT0}, {KV_BASE}''')
            R.op(f's_lshl_b32 s{sT1}, s{sR}, 31')
            R.op(f'v_or_b32 v{a}, s{sT1}, v{vL16}')
            for k in range(6):
                R.op(f'v_cvt_pk_bf16_f32 v{T + k}, v{T + 2 * k}, v{T + 2 * k + 1}')
            R.op(f'''v_lshrrev_b32 v{a + 1}, 4, v{vLANE}
            v_min_u32 v{a + 1}, 1, v{a + 1}
            v_lshlrev_b32 v{a + 1}, 31, v{a + 1}
            v_lshl_or_b32 v{a + 1}, v{vLANE}, 3, v{a + 1}
            v_or_b32 v{a + 1}, s{sT1}, v{a + 1}
            s_lshr_b32 s{sT1}, s{sT0}, 3
            s_add_u32 s{sT1}, s{sT1}, {KV2_BASE - KV_BASE // 8}''')
            self.kv_stores = [R.op(f'buffer_store_dwordx4 {vr(T)}, v{a}, {sr(SW)}, s{sT0} offen sc1', prio=5, pipe=P_S // 2),
                              R.op(f'buffer_store_dwordx2 {vr(T + 4, 2)}, v{a + 1}, {sr(SW)}, s{sT1} offen sc1', prio=5, pipe=10)]
        self.kv_exchange(R, X, [T + 12] * 3, store)

    def sel_regs(self, R, base, a, **kw):
        R.op(f'''v_and_b32 v{a}, 15, v{vLANE}
        v_lshrrev_b32 v{base}, 4, v{vLANE}
        v_lshlrev_b32 v{base}, 2, v{base}
        v_sub_u32 v{a}, v{a}, v{base}
        v_and_b32 v{base}, 1, v{a}
        v_lshlrev_b32 v{base}, 4, v{base}
        v_mov_b32 v{base + 1}, 0x3f80
        v_lshlrev_b32 v{base + 1}, v{base}, v{base + 1}
        v_lshrrev_b32 v{a}, 1, v{a}
        v_cmp_eq_u32 vcc, 0, v{a}
        v_cndmask_b32 v{base + 2}, 0, v{base + 1}, vcc
        v_cmp_eq_u32 vcc, 1, v{a}
        v_cndmask_b32 v{base + 3}, 0, v{base + 1}, vcc
        v_mov_b32 v{base}, 0
        v_mov_b32 v{base + 1}, 0
        v_mov_b32 v{base + 4}, 0
        v_mov_b32 v{base + 5}, 0''', **kw)

    def kv_gather(self, R, buf, after):
        t, t2 = self.news(), self.news()
        R.op(f'''s_lshl_b32 s{t}, s{sJQ}, 1
        s_add_u32 s{t}, s{t}, s{sC}
        s_lshl_b32 s{t}, s{t}, 1
        s_add_u32 s{t}, s{t}, s{sR}
        s_lshl_b32 s{t}, s{t}, 13
        s_lshr_b32 s{t2}, s{t}, 3
        s_add_u32 s{t2}, s{t2}, {KV2_BASE}
        s_add_u32 s{t}, s{t}, {KV_BASE}''')
        a, X2 = T + 24, T + 20
        R.op(f'''v_and_b32 v{a}, 15, v{vLANE}
        v_lshlrev_b32 v{a}, 3, v{a}
        v_lshrrev_b32 v{X2}, 4, v{vLANE}
        v_lshl_add_u32 v{a}, v{X2}, 8, v{a}''')
        self.kv_ld = [R.op(f'buffer_load_dwordx2 {vr(X2 + 2 * k, 2)}, v{a}, {sr(SW)}, s{t2} offen offset:{128 * k} sc1', after=after, pipe=40) for k in range(2)]
        for p in range(8):
            if p == 4:
                R.op(f's_add_u32 s{t}, s{t}, 4096')
            self.kv_ld.append(R.op(f'buffer_load_dwordx4 {vr(buf + 4 * p)}, v{vL16}, {sr(SW)}, s{t} offen offset:{1024 * (p & 3)} sc1', after=after, pipe=self.o.get('pkv', 140)))
        self.kv_buf = buf
        self.sel_regs(R, T + 12, T + 18)
        R.op(f'''v_and_b32 v{T + 18}, 15, v{vLANE}
        v_and_b32 v{T + 8}, 1, v{T + 18}
        v_lshlrev_b32 v{T + 8}, 4, v{T + 8}
        v_mov_b32 v{T + 9}, 0x3f80
        v_lshlrev_b32 v{T + 9}, v{T + 8}, v{T + 9}
        v_lshrrev_b32 v{T + 18}, 1, v{T + 18}
        v_cmp_eq_u32 vcc, 0, v{T + 18}
        v_cndmask_b32 v{T + 4}, 0, v{T + 9}, vcc
        v_cmp_eq_u32 vcc, 1, v{T + 18}
        v_cndmask_b32 v{T + 5}, 0, v{T + 9}, vcc
        v_mov_b32 v{T + 6}, v{T + 4}
        v_mov_b32 v{T + 7}, v{T + 5}''')

    def kv_sum(self, R):
        buf, A1, A0 = self.kv_buf, T + 12, T + 14
        w = R.wait([(o, self.o.get('dkv', 50) + 5 * (9 - k)) for k, o in enumerate(self.kv_ld)], tag='kvld')
        R.mfma(f'{MF} {vr(T + 8)}, {vr(T + 4)}, {vr(T + 20)}, 0', after=[w])
        for p in range(8):
            for k, a in enumerate((A0, A1)):
                R.mfma(f'{MF} {vr(T + 4 * k)}, {vr(a)}, {vr(buf + 4 * p)}, {vr(T + 4 * k) if p else 0}')

    def kv_finish(self, R, tmp):
        S = T
        KVM, KVL = T + 12, tmp[0]

        def pack():
            m2, m3 = f's[{sMK2}:{sMK2 + 1}]', f's[{sMK3}:{sMK3 + 1}]'
            R.op(f's_and_b32 s{sMK3}, s{sMASKC}, 0xffff\ns_mov_b32 s{sMK3 + 1}, 0\ns_xor_b32 s{sMK2}, s{sMK3}, 0xffff\ns_mov_b32 s{sMK2 + 1}, 0', after=[self.chk0])
            R.op(f'v_cvt_pk_bf16_f32 v{KVM}, v{S}, v{S + 1}')
            R.op(f'v_cvt_pk_bf16_f32 v{KVM + 1}, v{S + 2}, v{S + 3}')
            R.op(f'v_cvt_pk_bf16_f32 v{KVM + 3}, v{S + 8}, v{S + 9}')
            R.op(f'v_cndmask_b32 v{KVM + 2}, 0, v{KVM + 3}, {m2}')
            R.op(f'v_cndmask_b32 v{KVM + 3}, 0, v{KVM + 3}, {m3}')
            R.op(f'v_cvt_pk_bf16_f32 v{S}, v{S + 4}, v{S + 5}')
            R.op(f'v_cvt_pk_bf16_f32 v{S + 1}, v{S + 6}, v{S + 7}')
            R.op(f'v_cvt_pk_bf16_f32 v{S + 3}, v{S + 10}, v{S + 11}')
            R.op(f'v_cndmask_b32 v{S + 2}, 0, v{S + 3}, {m2}')
            R.op(f'v_cndmask_b32 v{S + 3}, 0, v{S + 3}, {m3}')
            sT1 = self.news()
            aq = T + 16
            R.op(f'v_and_b32 v{aq}, 15, v{vLANE}')
            R.op(f's_lshl_b32 s{sT1}, s{sWV}, 9\ns_add_u32 s{sT1}, s{sT1}, {QL}')
            R.op(f'v_lshl_add_u32 v{aq}, v{aq}, 3, s{sT1}')
            R.op(f's_mul_i32 s{sT1}, s{sC}, -1024\ns_add_u32 s{sT1}, s{sT1}, 512\nv_add_u32 v{aq + 1}, s{sT1}, v{aq}')
            rd = [R.op(f'ds_read_b64_tr_b16 {vr(PQ + 4 * rs + 2, 2)}, v{aq + (rs >> 1)} offset:{128 * (rs & 1)}', after=[self.l_free]) for rs in range(4)]
            self.pq_wait = R.wait(rd, late=False, dist=6)
            self.kv_frags = (KVM, S)
        self.kv_exchange(R, [S, S + 4, S + 8], tmp, pack)

    def o_mfmas(self, R, buf):
        KVM, KVL = self.kv_frags
        for rs in range(4):
            R.mfma(f'{MF} {vr(buf + 8 * rs)}, {vr(KVM)}, {vr(PQ + 4 * rs)}, 0', after=[self.pq_wait])
            R.mfma(f'{MF} {vr(buf + 8 * rs + 4)}, {vr(KVL)}, {vr(PQ + 4 * rs)}, 0')
        a = T + 16
        R.op(f'v_and_b32 v{a}, 15, v{vLANE}')
        R.op(f'v_lshlrev_b32 v{a}, 2, v{a}')
        R.op(f'v_mov_b32 v{a + 1}, {OOB}')
        R.op(f'v_lshrrev_b32 v{a + 2}, 4, v{vLANE}')
        R.op(f'v_cmp_eq_u32 vcc, 1, v{a + 2}\nv_cndmask_b32 v{a}, v{a + 1}, v{a}, vcc')
        st = []
        mc = f's[{sMASKC}:{sMASKC + 1}]'
        for P in range(2):
            sT0, sT1, sT3 = self.news(), self.news(), self.news()
            R.op(f'''s_xor_b32 s{sT0}, s{sWV}, {P}
            s_lshl_b32 s{sT1}, s{sI}, 2
            s_add_u32 s{sT0}, s{sT0}, s{sT1}
            s_lshl_b32 s{sT3}, s{sJQ}, 1
            s_add_u32 s{sT3}, s{sT3}, s{sC}''')
            R.op(f'''s_lshl_b32 s{sT1}, s{sT0}, 6
            s_add_u32 s{sT1}, s{sT1}, s{sT3}
            s_lshl_b32 s{sT1}, s{sT1}, 6
            s_add_u32 s{sT1}, s{sT1}, {OL_BASE}''')
            R.op(f'''s_lshl_b32 s{sT0}, s{sT0}, 5
            s_add_u32 s{sT0}, s{sT0}, s{sT3}
            s_lshl_b32 s{sT0}, s{sT0}, 10
            s_add_u32 s{sT0}, s{sT0}, {O_BASE}''')
            for k in range(2):
                rs = 2 * P + k
                m, l = buf + 8 * rs, buf + 8 * rs + 4
                tq = a + 2
                R.op(f'v_cndmask_b32 v{tq}, v{l + 2}, v{l}, {mc}')
                R.op(f'v_cndmask_b32 v{l}, v{l}, v{l + 2}, {mc}')
                R.op(f'v_cndmask_b32 v{l + 1}, v{l + 1}, v{l + 3}, {mc}')
                R.op(f'v_add_f32 v{l + 2}, {hex(EPS6)}, v{tq}')
                R.op(f'v_rcp_f32 v{l + 2}, v{l + 2}')
                for e in (m, m + 1, m + 2, m + 3, l, l + 1):
                    R.op(f'v_mul_f32 v{e}, v{l + 2}, v{e}')
                R.op(f'v_cvt_pk_bf16_f32 v{buf + 16 * P + 2 * k}, v{m}, v{m + 1}')
                R.op(f'v_cvt_pk_bf16_f32 v{buf + 16 * P + 2 * k + 1}, v{m + 2}, v{m + 3}')
                R.op(f'v_cvt_pk_bf16_f32 v{l}, v{l}, v{l + 1}')
                st.append(R.op(f'buffer_store_dword v{l}, v{a}, {sr(SW)}, s{sT1} offen offset:{2048 * k} sc1', pipe=20))
            st.append(R.op(f'buffer_store_dwordx4 {vr(buf + 16 * P)}, v{vL16}, {sr(SW)}, s{sT0} offen sc1', pipe=P_S))
        return st

    def flag_later(self, R, f, stores):
        if not (self.o.get('nostw') and f != '3'):
            n = len(stores)
            self.pre_bar += [(o, self.o['dst'] + (0 if f == '3' else self.o.get('sst', 8) * min(n - 1 - k, 5))) for k, o in enumerate(stores)]
        self.post_bar.append(lambda bar: self.set_flag(R, f, [bar]))

    def main(self):
        R = Region(cap=2, backlog=self.o['backlog'], hwq=self.o.get('hwq', 200), spread=self.o.get('spread', 1), vprio=self.o.get('vprio', 200), vfrom=self.o.get('vfrom', 0))
        self.pre_bar = list(self.ln_last)
        self.post_bar, self.unfreed = [], []
        self.lastwait, self.free_bar, self.bars = {}, {}, {}
        self.paired, self.single = set(), set()
        ks = []
        n0 = 0
        for name in self.order:
            ks += [(name, t, n0 + (t >> 1)) for t in range(18)]
            n0 += 9
        accs = {'A0': ACC0, 'Q': ACC1, 'A1': ACC0, 'A2': ACC1, 'A3': ACC0, 'A4': ACC1}
        last = self.order[-1]
        self.span = 28
        w0 = R.wait(self.pre_bar + self.dmas[0], late=False)
        self.pre_bar = []
        bar = R.op('s_barrier', after=[w0], wr=['bar'])
        self.bars[0] = bar
        self.unfreed = [0]
        for m in range(self.npre, self.NCH):
            for o in self.dma_ops(m):
                if 'dma' in o.kinds():
                    o.after.append((bar, 0))
                R.add(o)
        reads = self.p_reads(R, 'A0', 0, 0, RING, [bar])
        reads = self.ln_reads1(R, 0, bar) + reads
        tail = lambda j_: (j_ >> 1) * self.CH + 1024 * (j_ & 1) if self.ns == 5 else 1024 * j_
        wr0 = {}
        if self.o['late0']:
            mul = self.CH * (2 if self.ns == 5 else 1)
            R.op(f'''s_mul_i32 s{sT0}, s{sWV}, {mul}
            s_add_u32 s{sT0}, s{sT0}, 16384
            v_add_u32 v{self.LN_XO}, s{sT0}, v{vL16}
            s_xor_b32 s{sT1}, s{sWV}, 1
            s_mul_i32 s{sT1}, s{sT1}, {mul}
            s_add_u32 s{sT1}, s{sT1}, 16384
            v_add_u32 v{self.LN_XP}, s{sT1}, v{vL16}''')
        hst = {}
        self.ln_wr = {}
        self.at_bar4 = []
        for x, (name, t, n) in enumerate(ks):
            buf = RING + 16 * (x & 1)
            nbuf = RING + 16 * ((x + 1) & 1)
            w = R.wait(reads, dist=4)
            last_in_chunk = x + 1 == len(ks) or ks[x + 1][2] != n
            if last_in_chunk:
                self.lastwait[n] = w
            g0 = R.here
            if t == 0 or (self.o.get('fine') and t % self.o['fine'] == 0):
                self.stamp(R, f'{name}.{t}')
            if x + 1 < len(ks):
                nn, nt, nc = ks[x + 1]
                dep = [w]
                if nc != n:
                    self.span = 28 if name != 'A4' else 28
                    dep = [self.chunk_enter(R, nc, g0 + 1, [w]), w]
                reads = self.p_reads(R, nn, nc, nt, nbuf, dep)
                if nn == 'A0' and nc != n:
                    reads += self.ln_reads1(R, nc, dep[0])
                    if self.o['late0'] and nc in (3, 6):
                        t0_ = 10 if nc == 3 else 14
                        reads += [R.op(f'ds_read_b128 {xn(4 * (t0_ + j_) + 2)}, v{self.LN_XP} offset:{tail(j_)}', after=[dep[0]], prio=12) for j_ in range(4)]
                    if nc == 8:
                        self.ln_finish(R, dep[0])
            else:
                self.b_prepare(R, n0, w, g0)
            acc = accs[name]
            nf = 4
            for f in range(nf):
                for rs in range(2 if (name == 'Q' and f == 3) else 4):
                    d = vr(PQ + 4 * rs if (name == 'Q' and f == 2) else acc + (f * 4 + rs) * 4)
                    c = d if t else '0'
                    a_, b_ = vr(buf + 4 * f), xn(4 * t + rs)
                    if name == 'Q' and f != 2:
                        a_, b_ = b_, a_
                    R.mfma(f'{MF} {d}, {a_}, {b_}, {c}', after=[w] if (f == 0 and rs == 0) else [], tag='lds2' if self.o.get('lds2a') else '')
            if name == 'A0' and t <= 13:
                tc = t + 4
                bar_ = self.bars.get(tc // 2 - 1)
                wr = self.ln_center(R, 1, tc, (ACC1 + 56 if self.o.get('probe') else T + 18, ACC1 + 56)[t & 1], (PQ, SC)[t & 1] if self.o['late0'] else (PQ, PQ + 12, SC)[t % 3],
                                    self.LN_R0, 4096 * (tc & 3), after=[bar_] if bar_ else None)
                if bar_:
                    self.ln_wr[tc] = wr
                else:
                    self.post_bar.append(lambda b_, tc=tc, wr=wr: self.ln_wr.__setitem__(tc, wr([b_])))
            if name == 'A0' and t < 8 and self.o['late0']:
                bar_ = self.bars.get(0 if t < 4 else 4)
                wr = self.ln_center(R, 0, 10 + t, (ACC1 + 56, T + 18)[t & 1], self.raw(1, t + 4), self.LN_XO, tail(t & 3), after=[bar_] if bar_ else None)
                if bar_:
                    wr0[t] = wr
                else:
                    self.at_bar4.append(lambda b_, t=t, wr=wr: wr0.__setitem__(t, wr([b_])))
            if name == 'A0' and t == 6:
                self.post_bar += self.at_bar4
            if name == 'A0' and t in (4, 10) and self.o['late0']:
                self.pre_bar += [(wr0[k], 8) for k in (range(4) if t == 4 else range(4, 8))]
            if name == 'A0' and t % 2 == 0 and 2 <= t <= 14:
                self.pre_bar += [(self.ln_wr[k], 8) for k in (t + 2, t + 3)]
            g1 = R.here
            o = self.o
            if t == 17:
                if name == 'Q':
                    self.epi_qkv(R, acc)
                else:
                    hst[name] = self.epi_glu(R, acc, (self.jump + (0,))[int(name[1])])
            if name == 'Q' and t == 0:
                self.b_tables(R)
            if name == 'A0' and t == o.get('tclr', 15):
                Z, a_ = T + 20, T + 24
                R.op(f'''s_or_b32 s{sT0}, s{sJ}, s{sWV}
                s_min_u32 s{sT0}, s{sT0}, 1
                s_lshl_b32 s{sT0}, s{sT0}, 31
                v_or_b32 v{a_}, s{sT0}, v{vL16}
                v_or_b32 v{vPOLL}, s{sT0}, v{vFST}
                s_lshl_b32 s{sT0}, s{sI}, 12
                s_lshl_b32 s{sT3}, s{sI}, 2
                v_mov_b32 v{Z}, 0
                v_mov_b32 v{Z + 1}, 0
                v_mov_b32 v{Z + 2}, 0
                v_mov_b32 v{Z + 3}, 0''')
                clr = [R.op(f'buffer_store_dwordx4 {vr(Z)}, v{a_}, {sr(SW)}, s{sT0} offen offset:{1024 * k} sc1', hi=g1 + 20 + 4 * k, pipe=20) for k in range(3)]
                wclr = R.wait(clr, late=False, lo=g1 + 110, hi=g1 + 114)
                R.op(f'buffer_store_dword v{vONE}, v{vPOLL}, {sr(SB)}, s{sT3} offen sc1', after=[wclr], hi=g1 + 118)
            if (name != 'A0' or t > 14) and t % o.get('cpe', 18) == o.get('cpt', 2):
                self.code_ahead(R, g1)
            if name == 'A1' and t == o.get('lx', 6):
                self.pre_bar += [(o_, 6) for o_ in self.l_writes + self.ql_writes]
                self.post_bar.append(self.l_read)
            if name == 'A1' and t == 0:
                R.op(self.pat_b(vPOLL, T + 19), prio=100)
            if name == 'A2' and t == 0:
                self.epi_q(R)
            if name == 'A2' and t == o.get('tfill', 8) and o.get('sent', 0):
                self.prefill(R)
            if name == 'A2' and t == 1:
                self.chk0 = self.poll(R, 'clr', SB, '', 15, 1, g1, g1 + 60)
            if name == 'A1' and t == o.get('kvm', 15):
                self.kv_mfmas(R)
                self.kv_publish(R)
            if name == 'A2' and t == o.get('f1', 7):
                self.flag_later(R, '1', self.kv_stores)
            if name == 'A2' and t == o.get('f2a', 14):
                self.flag_later(R, '2a', hst['A0'] + hst['A1'])
            if name == 'A3' and t == o.get('p1', 6):
                self.chk1 = self.poll(R, 'kv', SW, self.flag_addr('1', False, sT2), 15, 1, g1, g1 + 40, after=[self.chk0, self.flags['1']])
                self.kv_gather(R, ACC1 + 32, [self.chk1])
            if name == last and t == o.get('p2a', 0):
                self.chk2a = self.poll(R, 'ha', SW, self.flag_addr('2a', False, sT2), 3, 1, g1, g1 + 40, after=[self.flags['2a']])
            if name == 'A3' and t == o.get('kvs', 17):
                self.kv_sum(R)
                self.kv_finish(R, [T + 20] * 3)
            if name == 'A3' and t == o.get('f2b', 16):
                self.flag_later(R, '2b', hst['A2'])
            if name == 'A4' and t == o.get('p2b5', 8):
                self.chk2b = self.poll(R, 'hb', SW, self.flag_addr('2b', False, sT2), 3, 1, g1, g1 + 40, after=[self.flags['2b']])
            if name == 'A4' and t == o.get('om5', 12):
                self.o_stores = self.o_mfmas(R, ACC0)
                R.op(self.pat_cl())
            if name == 'A4' and t == o.get('f2c5', 14):
                self.flag_later(R, '2c', hst['A3'])
            if name == last and t >= o.get('h0', 3):
                p_ = t - o.get('h0', 3)
                if p_ < 8 or (p_ < o.get('hpre5', 10) and hasattr(self, 'chk2b')):
                    self.h_loads(R, p_, [self.chk2a if p_ < 8 else self.chk2b], g1)
        x = self.o.get('a0x', 0)
        for o_ in R.ops[:1500]:
            t_ = o_.ins[0].text if o_.ins else ''
            if (x & 1 and t_.startswith(f'ds_write_b128 v{self.LN_R0}')) or (x & 2 and t_.startswith('ds_read_b128 a')) or (x & 8 and t_.startswith('v_accvgpr')) \
                    or (x & 4 and o_.spine and (f', {vr(self.LN_SEL0)},' in t_ or f', {vr(self.LN_SEL1)},' in t_ or t_.startswith(f'{MF} {vr(V_G1)}'))):
                o_.ins = [Ins('s_nop 0')]
        self.hst = hst
        self.phase_b(R, n0)
        return R

    @staticmethod
    def hreg(pos, hh, rho, lo=0, cnt=4):
        return xn(4 * (pos & 15) + 2 * hh + rho)

    PF = {'1': ('A1', 4), '2': ('A2', 0), '3': ('A2', 5), '4': ('A3', 0), '5': ('A1', 0), '6': ('A0', 4), '7': ('A3', 4), '8': ('A2', 4), '9': ('A1', 7), 'a': ('A2', 2), 'b': ('A2', 7), 'c': ('A3', 2)}

    def prefetch_late(self, R, which, part, lo, after):
        if not self.o.get('pf1', 0):
            return
        a, d = T + 24, T + 23
        t, t2 = self.news(), self.news()
        per, step, srd = (36, 18, SD) if which == 'd' else (18, 9, SWO)
        nl = 2 if self.nt == 8 else 3
        sub = f's_mov_b32 s{t}, -1024' if which == 'd' else f's_mul_i32 s{t}, s{sR}, {4 * 1152}\ns_sub_u32 s{t}, s{t}, 1024'
        R.op(sub, lo=lo - 60)
        R.op(f's_lshl_b32 s{t2}, s{sIL}, 2\ns_add_u32 s{t2}, s{t2}, s{sWV}\ns_mul_i32 s{t2}, s{t2}, {per * 1152}\ns_sub_u32 s{t2}, s{t2}, s{t}\ns_xor_b32 s{t}, s{sIH}, {part}\ns_mul_i32 s{t}, s{t}, {step * 1152}\ns_add_u32 s{t2}, s{t2}, s{t}', lo=lo - 60)
        if nl == 3:
            R.op(f's_mul_i32 s{t}, s{sQ_}, -128\ns_add_u32 s{t}, s{t}, 128\ns_add_u32 s{t2}, s{t2}, s{t}', lo=lo - 60)
        R.op(f'v_min_u32 v{a}, {step * nl - 1}, v{vLANE}\nv_mul_u32_u24 v{d}, {128 if nl == 2 else 86}, v{a}\nv_lshrrev_b32 v{d}, 8, v{d}\nv_lshlrev_b32 v{a}, 7, v{a}\nv_mul_u32_u24 v{d}, {1152 - nl * 128}, v{d}\nv_add3_u32 v{a}, v{a}, v{d}, s{t2}', lo=lo - 60)
        R.op(f'buffer_load_dword v{T + 24 if self.o.get(PRB) else T + 25}, v{a}, {sr(srd)}, 0 offen', after=after, prio=500, hi=lo + self.o.get('pfd', 60), pipe=self.o['ppf'] if part == 0 else self.o.get('ppf2', 300))

    def code_ahead(self, R, lo):
        nl = self.o.get('cpn', 2)
        if not nl:
            return
        vb, va = T + 25, T + 26
        if not self.ncp:
            t, t2 = sT0, sT1
            R.op(f'''s_lshl_b32 s{t}, s{sIL}, 1
            s_and_b32 s{t2}, s{sQ_}, 1
            s_add_u32 s{t}, s{t}, s{t2}
            s_lshl_b32 s{t2}, s{sWV}, 4
            s_add_u32 s{t}, s{t}, s{t2}
            v_min_u32 v{vb}, {nl - 1}, v{vLANE}
            v_lshl_add_u32 v{vb}, v{vb}, 6, s{t}
            v_lshlrev_b32 v{vb}, 7, v{vb}
            v_add_u32 v{vb}, {self.o.get('cpd', 2048)}, v{vb}''')
        self.ncp += 1
        lab = f'L_cp{self.ncp}{self.sfx}'
        R.op(f's_getpc_b64 s[0:1]\n{lab}:\nv_min_u32 v{va}, L_stop{self.sfx}-{lab}, v{vb}\nglobal_load_dword v{va + 1}, v{va}, s[0:1]', atomic=True, lo=lo, hi=lo + 10, pipe=40)

    ncp = 0

    def h_loads(self, R, pos, after, lo):
        if pos in self.hl:
            return
        t = TB + pos
        if not hasattr(self, 'vH'):
            self.vH = vLL
            t2 = self.news()
            R.op(f's_lshl_b32 s{t2}, s{sWV}, 12\ns_add_u32 s{t2}, s{t2}, s{sHB}\nv_add_u32 v{self.vH}, s{t2}, v{vL16}', lo=lo - 100, prio=300)
        ops = []
        hsc = '' if self.o.get('hplain') else ' sc1'
        for hh in range(2):
            for rho in range(2):
                ops.append(R.op(f'buffer_load_dwordx4 {self.hreg(pos, hh, rho)}, v{self.vH}, {sr(SW)}, s{t} offen offset:{2048 * hh + 1024 * rho}{hsc}', after=after, lo=lo, pipe=P_H))
        if self.o.get('noh'):
            for o in ops:
                R.ops.remove(o)
            ops = []
        self.hl[pos] = ops

    hl = {}
    in_b = False
    kq_busy = False
    p3 = None
    fill = []
    sq_busy = False

    def b_prepare(self, R, n0, w, g0):
        t = self.news()
        R.op(f's_lshl_b32 s{t}, s{sC}, 6', lo=g0 - 40)
        cur = self.base[vLA0]
        if self.base[vLA1] != cur:
            d = cur - self.base[vLA1]
            R.op(f'v_add_u32 v{vLA1}, {d}, v{vLA1}' if d > 0 else f'v_subrev_u32 v{vLA1}, {-d}, v{vLA1}')
        R.op(f'v_xor_b32 v{vLA0}, s{t}, v{vLA0}\nv_xor_b32 v{vLA1}, s{t}, v{vLA1}\nv_xor_b32 v{vLB}, 64, v{vLA0}\nv_xor_b32 v{vA0}, 64, v{vLA1}', prio=50)
        self.vLT = [vLA0, vLA1, vLB, vA0]
        self.vLH = [vA1, T + 24]
        for r_ in self.vLT:
            self.base[r_] = cur
        if self.nt > 8:
            R.op(f'''v_lshrrev_b32 v{T + 24}, 2, v{vLANE}
            v_lshlrev_b32 v{T + 24}, 6, v{T + 24}
            v_bfe_u32 v{vA1}, v{vLANE}, 4, 1
            v_lshl_add_u32 v{T + 24}, v{vA1}, 5, v{T + 24}
            v_and_b32 v{vA1}, 3, v{vLANE}
            v_lshl_add_u32 v{vA1}, v{vA1}, 3, v{T + 24}
            v_xor_b32 v{T + 24}, 32, v{vA1}''', lo=g0 - 60)
            self.base[vA1] = self.base[T + 24] = 0
        self.bbar = self.chunk_enter(R, n0, g0 + 1, [w])
        self.bq = []
        self.b_ring = [RING + 4 * k for k in range(8)] + [XNV + 16 + 4 * k for k in range(self.o.get('ring', 8) - 8)]
        self.b_next = 0
        self.b_n0 = n0
        for _ in range(4):
            self.b_read(R, g0 + 1)

    def b_order(self):
        nt = self.o['ntail']
        seq = [(k, t) for k in range(36 - nt) for t in range(self.nt)]
        seq += [(k, t) for t in range(self.nt) for k in range(36 - nt, 36)]
        return seq

    def b_read(self, R, lo):
        seq = self.b_order()
        k, t = seq[self.b_next]
        n = self.b_n0 + (k >> 1)
        if n not in self.bars:
            self.span = 30
            self.chunk_enter(R, n, lo)
        reg, off, step = self.tile_addr(n, k, t)
        slot = self.b_ring[self.b_next % len(self.b_ring)]
        self.bq.append(self.tr_pair(R, slot, reg, off, step, [self.bars[n]], lo=lo))
        self.b_next += 1

    b_ring = [RING + 4 * k for k in range(8)]

    def tile_addr(self, n, k, t):
        cb = self.slot[n] * self.CH
        if t < 8:
            return self.vLT[t & 3], cb + 8192 * (k & 1) + 1024 * (t >> 2), 4096
        return self.vLH[t - 8], cb + 16384 + 2048 * (k & 1), 1024

    def bacc(self, t, rho):
        i = 2 * t + rho
        return self.OB + 4 * i if i < 16 else XNV + 4 * (i - 16)

    def phase_b(self, R, n0):
        self.in_b = True
        seq = self.b_order()
        AH, WG = self.o.get('ah', 6), self.o.get('wg', 4)
        lastuse = {}
        for x, (k, t) in enumerate(seq):
            lastuse[k >> 1] = x
        sT0 = KA
        R.op(f'''s_lshl_b32 s{sH0}, s{sI}, 2
        s_add_u32 s{sH0}, s{sH0}, s{sQ_}
        s_lshl_b32 s{sH0}, s{sH0}, 2
        s_add_u32 s{sH0}, s{sH0}, s{sWV}
        s_lshl_b32 s{sH0}, s{sH0}, 2
        s_add_u32 s{sH0}, s{sH0}, s{sJJ}
        s_mul_i32 s{sH0}, s{sH0}, {PSTR}
        s_add_u32 s{sH0}, s{sH0}, {PART_BASE}''', lo=R.here + 300)
        R.op(f's_add_u32 s{sH1}, s{sH0}, 4096', lo=R.here + 300)
        R.op(f's_add_u32 s{sT0}, s{sH0}, 8192', lo=R.here + 300)
        self.part_stores = []
        self.own_writes = []
        vST, vOW, sOWN = T + 11, T + 12, KA + 3 + 1
        self.own = self.o.get('own', 1)
        if not self.own:
            vST = vL16

        def put(X, so, imm, piece, hi):
            self.part_stores.append(R.op(f'buffer_store_dwordx4 {vr(X)}, v{vST}, {sr(SW)}, s{so} offen offset:{imm} sc1', prio=400, pipe=P_S * (3 if self.own else 4) // 4, hi=hi, after=[self.chk2o]))
            if self.own:
                self.own_writes.append(R.op(f's_mov_b64 exec, s[{SQ}:{SQ + 1}]\nds_write_b128 v{vOW}, {vr(X)} offset:{1024 * piece}\ns_mov_b64 exec, -1', atomic=True, noexec=True, hi=hi + 6))
        done = {}
        seen = set()
        hw = {}
        w = None
        for x, (k, t) in enumerate(seq):
            g0 = R.here
            while self.b_next < min(len(seq), x + 1 + AH):
                self.b_read(R, g0)
            if self.b_next == len(seq) and x == len(seq) - 4:
                self.c_prepare(R, n0 + 18, g0)
            dep = []
            if x % WG == 0:
                w = R.wait(sum(self.bq[x:x + WG], []), dist=3)
                dep.append(w)
                for c_, lu in lastuse.items():
                    if x <= lu < x + WG:
                        self.lastwait[n0 + c_] = w
            pos = k >> 1
            if pos not in hw and (pos == 0 or (self.o.get('fine') and pos % 3 == 0)):
                self.stamp(R, f'B.{pos}')
            if pos not in hw:
                o = self.o
                hw[pos] = R.wait([(q_, o['dh'] + o.get('stag', 6) * (len(self.hl[pos]) - 1 - k_)) for k_, q_ in enumerate(self.hl[pos])], tag=f'h{pos}')
                dep.append(hw[pos])
                if pos == 1:
                    self.c_tables(R)
                five = self.ns == 5
                if pos % o.get('cpb', 8) == 0 and pos < 17:
                    self.code_ahead(R, g0)
                if self.own and pos == 12:
                    R.op(f's_cmp_eq_u32 s{sWV}, s{sJJ}\ns_cselect_b32 s{SQ}, -1, 0\ns_mov_b32 s{SQ + 1}, s{SQ}', atomic=True)
                    R.op(f's_lshl_b32 s{SQ + 2}, s{SQ}, 31\nv_or_b32 v{vST}, s{SQ + 2}, v{vL16}\nv_add_u32 v{vOW}, {self.KVX}, v{vL16}')
                    self.sq_busy = True
                if not five and pos == o.get('om', 5):
                    self.o_stores = self.o_mfmas(R, ACC0)
                    R.op(self.pat_cl())
                if not five and pos == o.get('p2b', 2):
                    self.chk2b = self.poll(R, 'hb', SW, self.flag_addr('2b', False, sT2), 3, 1, g0, g0 + 40, after=[self.flags['2b']])
                if pos == o.get('f2l', 6):
                    self.flag_later(R, '2d' if five else '2c', self.hst[self.order[-1]])
                if pos == (o.get('p2c5', 5) if five else o.get('p2c', 8)):
                    self.chk2c = self.poll(R, 'hc', SW, self.flag_addr('2c', False, sT2), 3, 1, g0, g0 + 40, after=[self.flags['2c']])
                if pos == (o.get('f2o5', 1) if five else o.get('f2o', 9)):
                    self.flag_later(R, '2o', self.fill + self.o_stores)
                if pos == (o.get('p2d5', 10) if five else o.get('p2d', 13)):
                    self.chk2d = self.poll(R, 'hd', SW, self.flag_addr('2d', False, sT2), 1, 1, g0, g0 + 34, after=[self.flags['2d']] if five else [], mul=12)
                if pos == (o.get('p2o5', 12) if five else o.get('p2o', 12)):
                    self.chk2o = self.poll(R, 'o', SW, self.flag_addr('2o', False, sT2), 15, 1, g0, g0 + 30, after=[self.flags['2o']])
                    self.o_stage_load(R, g0)
                for nxt in range(pos + 1, min(18, pos + o['hlook'] + 1)):
                    chk = 'chk2a' if nxt < 8 else 'chk2b' if nxt < 12 else 'chk2c' if nxt < 16 else 'chk2d'
                    if hasattr(self, chk):
                        self.h_loads(R, nxt, [getattr(self, chk)], g0)
            slot = self.b_ring[x % len(self.b_ring)]
            for rho in range(2):
                d = vr(self.bacc(t, rho))
                R.mfma(f'{MF} {d}, {vr(slot)}, {self.hreg(pos, k & 1, rho)}, {d if (t, rho) in seen else 0}', after=dep, tag='lds2' if pos < self.o.get('lds2', 18) else '')
                seen.add((t, rho))
                dep = []
            if k == 35:
                done[t] = True
                if t >= 8:
                    X = self.bacc(t, 0)
                    for rho in range(2):
                        a = self.bacc(t, rho)
                        R.op(f'v_cvt_pk_bf16_f32 v{X + 2 * rho}, v{a}, v{a + 1}', prio=40)
                        R.op(f'v_cvt_pk_bf16_f32 v{X + 2 * rho + 1}, v{a + 2}, v{a + 3}', prio=40)
                    put(X, sT0, 1024 * (t - 8), t, R.here + 8)
                elif t & 1:
                    for rho in range(2):
                        X, Y = self.bacc(t - 1, rho), self.bacc(t, rho)
                        for kk, a in enumerate((X, X + 2, Y, Y + 2)):
                            R.op(f'v_cvt_pk_bf16_f32 v{X + kk}, v{a}, v{a + 1}', prio=40)
                        put(X, sH0 + rho, 1024 * (t >> 1), 4 * rho + (t >> 1), R.here + 8 + 3 * rho + (0 if self.o['ntail'] else 3 * t))
        self.phase_c(R, n0 + 18)

    def o_stage_load(self, R, lo):
        buf = self.LB
        sT0, sT1 = KA + 1, KA + 2
        R.op(f'''s_lshl_b32 s{sT0}, s{sI}, 2
        s_add_u32 s{sT0}, s{sT0}, s{sJJ}
        s_lshl_b32 s{sT1}, s{sT0}, 15
        s_add_u32 s{sT1}, s{sT1}, {O_BASE}''', lo=lo - 10)
        self.o_ld = []
        for k in range(2):
            sT3 = KA + 3 + k
            R.op(f'''s_lshl_b32 s{sT3}, s{sWV}, 1
            s_add_u32 s{sT3}, s{sT3}, s{sIL}
            s_add_u32 s{sT3}, s{sT3}, {k}
            s_and_b32 s{sT3}, s{sT3}, 7
            s_lshl_b32 s{sT3}, s{sT3}, 12
            s_add_u32 s{sT3}, s{sT3}, s{sT1}''', lo=lo - 10)
            for p in range(4):
                self.o_ld.append(R.op(f'buffer_load_dwordx4 {vr(buf + 16 * k + 4 * p)}, v{vL16}, {sr(SW)}, s{sT3} offen offset:{1024 * p} sc1', after=[self.chk2o], lo=lo, pipe=P_H))
        a = T + 16
        R.op(f'v_lshrrev_b32 v{a}, 4, v{vLANE}', lo=lo - 10)
        R.op(f'v_lshlrev_b32 v{a}, 8, v{a}', lo=lo - 10)
        R.op(f'v_and_b32 v{a + 1}, 15, v{vLANE}', lo=lo - 10)
        R.op(f'v_lshl_add_u32 v{a}, v{a + 1}, 2, v{a}', lo=lo - 10)
        R.op(f'''s_lshl_b32 s{sT0}, s{sT0}, 1
        s_add_u32 s{sT0}, s{sT0}, s{sC}
        s_lshl_b32 s{sT0}, s{sT0}, 1
        s_add_u32 s{sT0}, s{sT0}, s{sR}
        s_lshl_b32 s{sT0}, s{sT0}, 10
        s_add_u32 s{sT0}, s{sT0}, {OL_BASE}''', lo=lo - 10)
        for p in range(4):
            self.o_ld.append(R.op(f'buffer_load_dword v{XNV + 16 + p}, v{a}, {sr(SW)}, s{sT0} offen offset:{64 * p} sc1', after=[self.chk2o], lo=lo, pipe=30))

    def final_prefetch(self, R, lo):
        XR = self.LB + 36
        sT0 = KA + 5
        self.vXa, self.vXb = SC + 2, SC + 3
        a, b_ = T + 23, T + 22
        R.op(f'''v_and_b32 v{a}, 15, v{vLANE}
        s_lshl_b32 s{sT0}, s{sI}, 2
        s_add_u32 s{sT0}, s{sT0}, s{sJJ}
        s_lshl_b32 s{sT0}, s{sT0}, 5
        v_add_u32 v{self.vXb}, s{sT0}, v{a}
        v_mul_u32_u24 v{self.vXb}, 1152, v{self.vXb}
        v_lshrrev_b32 v{b_}, 5, v{vLANE}
        v_lshl_add_u32 v{self.vXb}, v{b_}, 4, v{self.vXb}
        s_lshl_b32 s{sT0}, s{sQ_}, 3
        s_lshr_b32 s{sT0}, 0x0e0a0400, s{sT0}
        s_and_b32 s{sT0}, s{sT0}, 0xff
        s_add_u32 s{sT0}, s{sT0}, s{sWV}
        s_lshl_b32 s{sT0}, s{sT0}, 6
        v_bfe_u32 v{b_}, v{vLANE}, 4, 1
        v_lshl_add_u32 v{self.vXa}, v{b_}, 5, v{self.vXb}
        v_add_u32 v{self.vXa}, s{sT0}, v{self.vXa}''', lo=lo - 150)
        self.xo = [(self.vXa, '0', 0), (self.vXa, f's{KA + 7}', 0)]
        R.op(f'''s_lshl_b32 s{sT0}, s{sJJ}, 7
        s_add_u32 s{sT0}, s{sT0}, {RS}
        v_lshl_add_u32 v{a}, v{a}, 2, s{sT0}
        s_mov_b32 s{KA + 7}, {16 * 1152}''', lo=lo - 150)
        ra = [(a, 0), (a, 64)]
        if self.nt > 8:
            s0, s1 = KA + 6, KA + 7
            R.op(f'''v_lshlrev_b32 v{b_}, 3, v{b_}
            s_lshl_b32 s{sT0}, s{sQ_}, 1
            s_add_u32 s{sT0}, s{sT0}, s{sC}
            s_lshl_b32 s{sT0}, s{sT0}, 5
            v_add3_u32 v{self.vXb}, v{b_}, v{self.vXb}, s{sT0}
            s_mul_i32 s{s0}, s{sR}, {16 * 1152}
            s_sub_u32 s{s1}, {16 * 1152}, s{s0}
            s_lshl_b32 s{sT0}, s{sR}, 6
            v_add_u32 v{a}, s{sT0}, v{a}
            v_xor_b32 v{b_}, 64, v{a}''', lo=lo - 150)
            self.xo = [(self.vXa, f's{s0}', 0), (self.vXa, f's{s1}', 0), (self.vXb, f's{s0}', 448)]
            ra = [(a, 0), (b_, 0)]
        self.x_ld = [R.op(f'buffer_load_dwordx{4 if p < 2 else 2} {vr(XR + 4 * p, 4 if p < 2 else 2)}, v{va}, {sr(SX)}, {so} offen offset:{imm}', lo=lo, pipe=160)
                     for p, (va, so, imm) in enumerate(self.xo)]
        self.rs_ld = [R.op(f'ds_read_b32 v{SC + p}, v{r_} offset:{o_}', lo=lo - 100) for p, (r_, o_) in enumerate(ra)]
        self.XR = XR


    def partial_addr(self, R, t, t2, sk, va, **kw):
        R.op(f'''s_lshl_b32 s{t}, s{sI}, 2
        s_add_u32 s{t}, s{t}, s{sQ_}
        s_lshl_b32 s{t}, s{t}, 2
        s_add_u32 s{t}, s{t}, s{sJJ}
        s_mul_i32 s{t}, s{t}, {4 * PSTR}
        s_add_u32 s{t}, s{t}, {PART_BASE}
        s_lshl_b32 s{t2}, s{sWV}, 10
        v_add_u32 v{va[0]}, s{t2}, v{vL16}''', **kw)
        if self.nt > 8:
            R.op(f'''s_lshl_b32 s{t2}, s{sR}, 12
            v_add_u32 v{va[0]}, s{t2}, v{va[0]}
            s_lshl_b32 s{t2}, s{sC}, 7
            s_add_u32 s{t2}, s{t2}, s{sR}
            s_lshl_b32 s{t2}, s{t2}, 3
            s_add_u32 s{t2}, s{t2}, 8192
            v_add_u32 v{va[2]}, s{t2}, v{vL16}''', **kw)
        R.op(f'v_xor_b32 v{va[1]}, 4096, v{va[0]}', **kw)
        for k in range(1 if self.o.get('own', 1) else 0, 4):
            R.op(f's_add_u32 s{sk[k]}, s{sJJ}, {k}\ns_and_b32 s{sk[k]}, s{sk[k]}, 3\ns_mul_i32 s{sk[k]}, s{sk[k]}, {PSTR}\ns_add_u32 s{sk[k]}, s{sk[k]}, s{t}', **kw)

    def prefill(self, R):
        sk = [None] + [self.news() for _ in range(3)]
        va = [T + 4, T + 5, T + 6]
        self.partial_addr(R, self.news(), self.news(), sk, va)
        R.op('\n'.join(f'v_mov_b32 v{T + k}, -1' for k in range(4)))
        self.fill = [R.op(f'buffer_store_dwordx4 {vr(T)}, v{va[p]}, {sr(SW)}, s{sk[k]} offen sc1', pipe=P_S if p < 2 else P_S // 2, hi=R.here + 40 + 24 * (3 * p + k))
                     for p in range(2 if self.nt == 8 else 3) for k in range(1, 4)]

    def partial_loads(self, R, chk, lo):
        self.PBS = [self.OB + 16 * k for k in range(3)]
        self.partial_addr(R, KA + 8, sK5, [KA + k for k in range(4)], [vA0, vA1, vLL], lo=lo - 40)
        self.p_ld = []
        for piece, va in enumerate((vA0, vA1, vLL)[:len(self.xo)]):
            for k in range(1 if self.own else 0, 4):
                n_ = 4 if piece < 2 else 2
                self.p_ld.append(f'buffer_load_dwordx{n_} {vr(self.PBS[piece] + n_ * k, n_)}, v{va}, {sr(SW)}, s{KA + k} offen sc1')
                R.op(self.p_ld[-1], after=[chk] if chk else [], prio=100, lo=lo, hi=lo + 2 + len(self.p_ld))
        if self.own:
            a = T + 12
            for piece, va in enumerate((vA0, vA1, vLL)[:len(self.xo)]):
                R.op(f'v_add_u32 v{a + piece}, {self.KVX}, v{va}')
                R.op(f'ds_read_b128 {vr(self.PBS[piece])}, v{a + piece}' if piece < 2 else f'ds_read_b64 {vr(self.PBS[piece], 2)}, v{a + piece}', after=[self.own_bar])

    def c_prepare(self, R, nO, g0):
        pass

    def phase_c(self, R, nO):
        g0 = R.here
        osa, osb = self.slot[nO] * self.CH, self.slot[nO + 1] * self.CH
        a = T + 16
        buf = self.LB
        sT0, sT1 = KA + 6, sK5
        R.op(f'''s_mul_i32 s{sT0}, s{sR}, {osb - osa}
        s_add_u32 s{sT0}, s{sT0}, {osa}
        v_add_u32 v{a + 1}, s{sT0}, v{vL16}
        s_lshl_b32 s{sT1}, s{sC}, 13
        v_add_u32 v{a}, s{sT1}, v{a + 1}
        s_lshl_b32 s{sT1}, s{sC}, 10
        s_add_u32 s{sT1}, s{sT1}, 16384
        v_add_u32 v{a + 1}, s{sT1}, v{a + 1}''', lo=g0 - 120)
        fb = [self.free_bar[self.prev_user[nO]], self.free_bar[self.prev_user[nO + 1]]]
        wl = R.wait([(o, self.o.get('dol', 60) + 5 * (11 - k)) for k, o in enumerate(self.o_ld)], late=False, lo=g0 - 70, tag='old')
        R.op(f'v_add_u32 v{a + 2}, 8, v{a}', lo=g0 - 120)
        ws = [R.op(f'ds_write2st64_b64 v{a + 2 * (p & 1)}, {vr(buf + 4 * p, 2)}, {vr(buf + 4 * p + 2, 2)} offset0:{4 * (p >> 1)} offset1:{4 * (p >> 1) + 2}', after=fb + [wl], lo=g0 - 70) for p in range(8)]
        ws.append(R.op(f'ds_write_b128 v{a + 1}, {vr(XNV + 16)}', after=fb + [wl], lo=g0 - 70))
        vO = [T + 17, T + 18]
        if self.nt > 8:
            R.op(f's_lshl_b32 s{sT0}, s{sR}, 10\ns_add_u32 s{sT0}, s{sT0}, {osa}\nv_add_u32 v{vO[0]}, s{sT0}, v{vL16}\nv_xor_b32 v{vO[1]}, 1024, v{vO[0]}', lo=g0 - 30)
        else:
            R.op(f'v_add_u32 v{vO[0]}, {osa}, v{vL16}' if osa else f'v_mov_b32 v{vO[0]}, v{vL16}', lo=g0 - 30)
        self.base[vO[0]] = self.base[vO[1]] = osa
        vC = [T + 8, T + 9, T + 10]
        R.op(f's_lshl_b32 s{sT0}, s{sC}, 6\nv_xor_b32 v{vC[0]}, s{sT0}, v{vLA0}\ns_lshl_b32 s{sT0}, s{sR}, 10\nv_add_u32 v{vC[0]}, s{sT0}, v{vC[0]}\nv_xor_b32 v{vC[1]}, 32, v{vC[0]}', lo=g0 - 12)
        self.base[vC[0]] = self.base[vC[1]] = self.base[vLA0]
        nf = 2
        if self.nt > 8:
            nf = 3
            R.op(f's_lshl_b32 s{sT0}, s{sC}, 5\nv_xor_b32 v{vC[2]}, s{sT0}, v{vA1}', lo=g0 - 12)
            self.base[vC[2]] = self.base[vA1]
        self.pre_bar += [(o, 4) for o in ws]

        self.span = 8
        nC = nO + 2
        NB = self.o.get('cah', 1) + 1
        AB = [('a', 32 + 12 * k) for k in range(NB)]
        BB = [96 + 8 * k for k in range(NB)]
        self.SA = lambda rho, f: XNV + 16 + 8 * rho + 4 * f if f < 2 else T + 4 * rho

        def reads(k, lo):
            n = nC + (k >> 1)
            if n not in self.bars:
                self.chunk_enter(R, n, lo)
            bar = self.bars[n]
            cb = self.slot[n] * self.CH
            out = []
            for f in range(nf):
                off, step = (cb + 8192 * (k & 1), 4096) if f < 2 else (cb + 16384 + 2048 * (k & 1), 1024)
                d = AB[k % NB][1] + 4 * f
                o_ = self.addr(R, vC[f], off, lo=lo)
                out.append(R.op(f'ds_read_b64_tr_b16 a[{d}:{d + 1}], v{vC[f]} offset:{o_}', after=[bar], prio=10, lo=lo))
                out.append(R.op(f'ds_read_b64_tr_b16 a[{d + 2}:{d + 3}], v{vC[f]} offset:{o_ + step}', after=[bar], prio=10, lo=lo))
            for rho in range(2):
                d = BB[k % NB] + 4 * rho
                off = (osb if (8 <= k < 16 or k == 17) else osa) + (2048 * (k & 7) if k < 16 else 16384)
                vo, off = (vO[rho], off) if self.nt > 8 else (vO[0], off + 1024 * rho)
                out.append(R.op(f'ds_read_b128 a[{d}:{d + 3}], v{vo} offset:{self.addr(R, vo, off, lo=lo)}', after=[bar], lo=lo, prio=10))
            return out
        rds = {k: reads(k, g0 - 3) for k in range(NB - 1)}
        self.stamp(R, 'C')
        for k in range(18):
            w = R.wait(rds[k], dist=2)
            if k & 1:
                self.lastwait[nC + (k >> 1)] = w
            g = R.here
            if k in (6, 12) and self.o.get('fine'):
                self.stamp(R, f'C.{k}')
            if k == self.o.get('xk', 6):
                self.final_prefetch(R, g)
                self.sel_regs(R, PQ + 8, T + 20, lo=g - 200)
                if self.nt > 8:
                    R.op('\n'.join(f'v_mov_b32 v{T + 4 + e}, v{PQ + 10 + (e & 1)}' for e in range(4)))
            if k == self.o.get('f3k', 11):
                if not self.o.get('sent', 0):
                    self.flag_later(R, '3', self.part_stores)
                self.pre_bar += [(o_, 4) for o_ in self.own_writes]
                self.post_bar.append(lambda b_: setattr(self, 'own_bar', b_))
            if self.o.get('sent', 0):
                if k == self.o.get('plk', 12):
                    self.partial_loads(R, None, g)
            elif self.o.get('p3e', 0):
                if k == self.o.get('p3i', 0):
                    self.p3 = self.poll(R, 'p', SW, self.flag_addr('3', False, sT2, own_ok=True), 3, 1, g, g, defer=True)
                if '3' in self.flags and self.p3:
                    chk = self.p3(g, [self.flags['3']])
                    self.p3 = None
                    self.partial_loads(R, chk, g)
            elif k == self.o.get('p3k', 13):
                chk = self.poll(R, 'p', SW, self.flag_addr('3', False, sT2), 3, 1, g, g + self.o.get('p3d', 4) * (nf + 2), after=[self.flags['3']])
                self.partial_loads(R, chk, g)
            if k + NB - 1 < 18:
                rds[k + NB - 1] = reads(k + NB - 1, g + 1)
                for q_, o in enumerate(rds[k + NB - 1]):
                    o.after.append((w, 0))
                    o.hi = g + 1 + (q_ + 1) // 2
            for f in range(nf):
                for rho in range(2 if f < 2 else 1):
                    d = vr(self.SA(rho, f))
                    R.mfma(f'{MF} {d}, a[{AB[k % NB][1] + 4 * f}:{AB[k % NB][1] + 4 * f + 3}], a[{BB[k % NB] + 4 * rho}:{BB[k % NB] + 4 * rho + 3}], {d if k else 0}', after=[w] if f + rho == 0 else [], cap=3)
        self.marks.append((R, R.here, 'Cend'))

    def final(self):
        L = self.lin.text
        vp = T + 19
        self.stamp(None, 'Cend')
        PBS = self.PBS
        NP = len(self.xo)
        if self.o.get('sent', 0):
            x = self.sfx
            regs = [PBS[p] + e for p in range(NP) for e in range(4, 16)]
            t0, t1 = RING, RING + 1
            ver = f'v_max3_u32 v{t0}, v{regs[0]}, v{regs[1]}, v{regs[2]}\nv_max3_u32 v{t1}, v{regs[3]}, v{regs[4]}, v{regs[5]}\n'
            for n_ in range(6, len(regs), 2):
                tt = t0 if n_ & 2 else t1
                ver += f'v_max3_u32 v{tt}, v{tt}, v{regs[n_]}, v{regs[n_ + 1]}\n'
            ver += f'v_max_u32 v{t0}, v{t0}, v{t1}\nv_cmp_eq_u32 vcc, -1, v{t0}\n'
            L('s_waitcnt vmcnt(0)\n' + ver + f's_cbranch_vccnz L_more{x}\nL_have{x}:')
            rec = ''
            if self.stamps:
                rec = f'v_mov_b32 v{T + 26}, s{sCNT}\ns_lshl_b32 s0, s2, 10\ns_add_u32 s0, s0, {DUMP_BASE + 768 + 4 * len(self.slow)}\nbuffer_store_dword v{T + 26}, v{vFST}, {sr(SW)}, s0 offen\n'
            self.slow.append(f'''L_more{x}:
            s_mov_b32 s{sCNT}, 0
            v_mov_b32 v{vPOLL}, s{KA + 3}
            v_writelane_b32 v{vPOLL}, s{KA + 1}, 1
            v_writelane_b32 v{vPOLL}, s{KA + 2}, 2
            s_lshl_b32 s{sT2}, s{sWV}, 10
            s_add_u32 s{sT2}, s{sT2}, {4096 + 1020}
            L_light{x}:
            buffer_load_dword v{vp}, v{vPOLL}, {sr(SW)}, s{sT2} offen sc1
            s_add_u32 s{sCNT}, s{sCNT}, 1
            s_cmp_ge_u32 s{sCNT}, {self.o['spin']}
            s_cbranch_scc1 L_stopw{x}
            s_waitcnt vmcnt(0)
            v_cmp_eq_u32 vcc, -1, v{vp}
            s_cbranch_vccnz L_light{x}
            ''' + '\n'.join(self.p_ld) + '\ns_waitcnt vmcnt(0)\n' + ver + f'''s_cbranch_vccnz L_light{x}
            L_stopw{x}:
            {rec}s_waitcnt vmcnt(0)
            s_branch L_have{x}''')
        for p in range(2):
            L(f'v_permlane16_swap_b32 v{self.XR + 4 * p}, v{self.XR + 4 * p + 2}\nv_permlane16_swap_b32 v{self.XR + 4 * p + 1}, v{self.XR + 4 * p + 3}')
        A1, A0 = PQ + 8, PQ + 10
        MS = self.LB
        red = [[f'{MF} {vr(MS + 8 * piece + 4 * half)}, {vr(A1 if half else A0)}, {vr(PBS[piece] + 4 * pj)}, {vr(MS + 8 * piece + 4 * half) if pj else 0}'
                for pj in range(4) for half in range(2)] for piece in range(2)]
        red.append([f'{MF} {vr(MS + 16)}, {vr(T + 4)}, {vr(PBS[2] + 4 * k)}, {vr(MS + 16) if k else 0}' for k in range(2)])
        for x in red[0]:
            L(x)
        R = Region(cap=1000)
        tm = RING
        for piece in range(NP):
            for half in range(2 if piece < 2 else 1):
                rho, u = (piece, half) if piece < 2 else (0, 2)
                S = self.SA(rho, u)
                X = self.XR + 4 * piece + 2 * half
                M = MS + 8 * piece + 4 * half
                for e in range(4):
                    m = M + e
                    t0 = tm + 2 * e + 8 * (half)
                    R.op(f'v_mul_f32 v{m}, v{SC + rho}, v{m}')
                    R.op(f'v_mul_f32 v{t0}, {hex(NLOG2E)}, v{m}')
                    R.op(f'v_exp_f32 v{t0}, v{t0}')
                    R.op(f'v_mul_f32 v{m}, v{m}, v{S + e}')
                    R.op(f'v_add_f32 v{t0}, 1.0, v{t0}')
                    R.op(f'v_rcp_f32 v{t0}, v{t0}')
                    src = X + (e >> 1)
                    R.op(f'v_and_b32 v{t0 + 1}, 0xffff0000, v{src}' if e & 1 else f'v_lshlrev_b32 v{t0 + 1}, 16, v{src}')
                    R.op(f'v_fma_f32 v{m}, v{m}, v{t0}, v{t0 + 1}')
                nxt = red[piece + 1][4 * half:4 * half + 4] if piece + 1 < NP else []
                for k_, o in enumerate(self.interleave(R.ops)):
                    self.lin.op(o)
                    if nxt and k_ % 6 == 3:
                        L(nxt.pop(0))
                R.ops = []
                Z = MS + 8 * piece
                L(f'v_cvt_pk_bf16_f32 v{Z + 2 * half}, v{M}, v{M + 1}\nv_cvt_pk_bf16_f32 v{Z + 2 * half + 1}, v{M + 2}, v{M + 3}')
            va, so, imm = self.xo[piece]
            if piece < 2:
                L(f'v_permlane16_swap_b32 v{Z}, v{Z + 2}\nv_permlane16_swap_b32 v{Z + 1}, v{Z + 3}')
            n_ = 4 if piece < 2 else 2
            L(f'buffer_store_dwordx{n_} {vr(Z, n_)}, v{va}, {sr(SO)}, {so} offen offset:{imm}')
        self.stamp(None, 'end')

    @staticmethod
    def interleave(ops):
        per = len(ops) // 4
        return [ops[e * per + k] for k in range(per) for e in range(4)]

    def build(self):
        self.hl = {}
        self.flags = {}
        self.build_stream()
        self.setup()
        for fn in (self.layernorm, self.main):
            R = fn()
            if self.o.get('probe') and (fn == self.main or self.o.get('probe') == 3):
                self.lin.probe_vm = self.o['probe'] >= 2
                if self.lin.probe is None:
                    self.lin.probe_skip = self.o.get('pskip', 0)
                self.lin.probe = PRV
                self.o['pf_dummy'] = 1
            kill = self.o.get('kill', 0) if fn == self.main else 0
            for o in R.schedule(self.log):
                t_ = o.ins[0].text if o.ins else ''
                if (kill & 1 and t_.startswith(('v_exp', 'v_rcp', 'v_mul_f32', 'v_add_f32', 'v_cvt_pk'))) or (kill & 2 and t_.startswith('ds_read_b64_tr')) \
                        or (kill & 4 and 'dma' in o.kinds()) or (kill & 8 and t_.startswith('buffer_load_dwordx4 a')) \
                        or (kill & 16 and t_.startswith('buffer_store_dwordx4')) or (kill & 32 and t_.startswith('s_barrier')) or (kill & 64 and o.spine):
                    continue
                self.lin.op(o)
            if self.o.get('prof'):
                ld = R.loads
                for g in range(0, R.nspine, 48):
                    xs = [ld[k] for k in range(g, min(g + 48, R.nspine))]
                    self.log.append(f'{g:5d} sum={sum(xs):4d} ' + ''.join(str(min(9, v)) for v in xs))
        if self.o.get('probe'):
            if self.lin.probe_open:
                self.lin._probe_end()
            self.lin._emit_wait(None, 0)
            self.lin.probe = None
            self.lin.text(f's_lshl_b32 s0, s{sI}, 4\ns_add_u32 s0, s0, s{sJ}\ns_lshl_b32 s0, s0, 2\ns_add_u32 s0, s0, s{sWV}\ns_mul_i32 s0, s0, 768\ns_add_u32 s0, s0, {DUMP_BASE}\nv_lshlrev_b32 v{vPOLL}, 2, v{vLANE}')
            for k in range(3):
                self.lin.text(f'buffer_store_dword v{PRV + k}, v{vPOLL}, {sr(SW)}, s0 offen offset:{256 * k}')
            self.stamp_names = ['probe'] + self.lin.probe_names
        prev = None
        for R_, g, nm in self.marks:
            cur = (R_, R_.time_at[g], R_.slot_t[g], g)
            if prev and prev[0] is R_:
                cat = {}
                for o in R_.ops:
                    if o.pipe and prev[3] < o.gap <= g:
                        k = o.ins[0].kind + (o.tag[0] if o.tag else '')
                        cat[k] = cat.get(k, 0) + o.pipe
                self.log.append(f'  model {nm}: with pipe {cur[1] - prev[1]:.0f}  issue only {cur[2] - prev[2]:.0f} pipe {sum(cat.values())} {cat}')
            prev = cur
        self.final()
        self.lin.text('s_endpgm')
        body = list(self.lin.out)
        for s in self.slow:
            body += [l.strip() for l in s.split('\n')]
        body += [f'L_stop{self.sfx}:', 's_endpgm']
        self.log.append(f'nops={self.lin.nops} autowaits={len(self.lin.autowaits)} instrs={len(body)}')
        return body


DOC = '''
;
;   q in {0,3}: five 64-column gate/up steps, eight 16-column output tiles; q in {1,2}: four steps, ten tiles.
'''


def assemble(gens):
    body = ['s_cmp_ge_u32 s2, 256', 's_cbranch_scc0 L_go', 's_endpgm', 'L_go:', 's_load_dwordx4 s[4:7], s[0:1], 0',
            's_load_dwordx4 s[32:35], s[0:1], 64', 's_load_dwordx2 s[36:37], s[0:1], 16', 's_load_dwordx4 s[8:11], s[0:1], 32',
            's_load_dwordx4 s[20:23], s[0:1], 48']
    body += ['s_bitcmp1_b32 s2, 7'] if gens[0].o.get('hicls', 0) else ['s_add_u32 s3, s2, 8', 's_bitcmp1_b32 s3, 4']
    body += ['s_cbranch_scc1 L_four']
    body += gens[0].build() + ['.p2align 6', 'L_four:'] + gens[1].build()
    hdr = open('cdna_kernels/' + NAME + '.s.ref').read().split('\n')
    head = [l for l in hdr if l.startswith(';')][:11]
    K = NAME + '_kernel'
    txt = head + [f'; @launch grid=(256,1,1) block=(256,1,1) lds={LDS_BYTES}'] + DOC.strip().split('\n') + [
                  '.amdgcn_target "amdgcn-amd-amdhsa--gfx950"', '.text', f'.globl {K}', '.p2align 8',
                  f'.type {K},@function', f'{K}:']
    txt += [l.replace(' offset:0 ', ' ').replace(', ', ',') for l in body]
    txt += ['.section .rodata,"a"', '.p2align 6', f'.amdhsa_kernel {K}', '  .amdhsa_next_free_vgpr 512',
            '  .amdhsa_next_free_sgpr 102', '  .amdhsa_accum_offset 256', '  .amdhsa_group_segment_fixed_size 0',
            '  .amdhsa_kernarg_size 80', '  .amdhsa_float_denorm_mode_32 3', '  .amdhsa_user_sgpr_count 2',
            '  .amdhsa_user_sgpr_kernarg_segment_ptr 1', '  .amdhsa_system_sgpr_workgroup_id_x 1',
            '.end_amdhsa_kernel']
    return '\n'.join(txt) + '\n'


if __name__ == '__main__':
    import argparse
    ap = argparse.ArgumentParser()
    ap.add_argument('out')
    ap.add_argument('--stamps', action='store_true')
    ap.add_argument('-o', action='append', default=[])
    a = ap.parse_args()
    opts = {k: int(v, 0) for k, v in (x.split('=') for x in a.o)}
    P_A, P_H, P_S, P_AH = opts.get('pa', P_A), opts.get('ph', P_H), opts.get('ps', P_S), opts.get('pah', P_AH)
    gens = [Gen(5, stamps=a.stamps, opts=opts), Gen(4, stamps=a.stamps, opts=opts)]
    open(a.out, 'w').write(assemble(gens))
    open(a.out + '.names', 'w').write(' '.join(gens[0].stamp_names) + '\n' + ' '.join(gens[1].stamp_names))
    for g in gens:
        print('\n'.join(g.log))
        for t in g.lin.autowaits:
            if not t.startswith(('v_mfma', 'v_permlane')):
                print('  autowait:', t)
```
